```python
import torch

def _softmax(x, axis=-1):
    return torch.softmax(x, dim=axis)
def _gelu(x):
    return torch.nn.functional.gelu(x, approximate="tanh")
def _silu(x):
    return torch.nn.functional.silu(x)
def _sigmoid(x):
    return torch.sigmoid(x)
def _layernorm(x, axis=-1, eps=1e-5):
    m = x.mean(dim=axis, keepdim=True)
    v = x.var(dim=axis, keepdim=True, unbiased=False)
    return (x - m) / torch.sqrt(v + eps)
def _scatter_add(tgt, idx, src, axis=0):
    return tgt.clone().index_add_(axis, idx, src)
def _segment_sum(src, seg, n):
    out = torch.zeros((n,) + src.shape[1:], dtype=src.dtype)
    return out.index_add_(0, seg, src)
def _pad(x, pw):
    flat = tuple(v for pair in reversed(pw) for v in pair)
    return torch.nn.functional.pad(x, flat)

kernel_name = 'recurrent_scan__ssm_conv_h3__swiglu_ffn__prompt'

def setup_inputs():

    _w = (lambda a: (lambda t: t.to(torch.bfloat16) if t.is_floating_point() else t)(torch.as_tensor(a)))
    def _A_setup():
        B, S, D = 1, 2048, 512
        ks = 4
        return {
            "q": _w((lambda *s: torch.randn(*s, dtype=torch.bfloat16) * 0.05)(B, S, D)),
            "k": _w((lambda *s: torch.randn(*s, dtype=torch.bfloat16) * 0.2)(B, S, D)),
            "v": _w((lambda *s: torch.randn(*s, dtype=torch.bfloat16) * 0.2)(B, S, D)),
            "shift_k": _w((lambda *s: torch.randn(*s, dtype=torch.bfloat16) * 0.2)(D, ks) * 0.5),
            "ssm_k": _w((lambda *s: torch.randn(*s, dtype=torch.bfloat16) * 0.2)(D, S) * (1.0 / S ** 0.5)),
            "ssm_D": _w((lambda *s: torch.randn(*s, dtype=torch.bfloat16) * 0.2)(D)),
        }
    _A_in = _A_setup()

    def _B_setup():
        B, S, D, F = 1, 2048, 512, 1792
        return {
            "x": _w((lambda *s: torch.randn(*s, dtype=torch.bfloat16) * 0.05)(B, S, D)),
            "w_gate": _w((lambda *s: torch.randn(*s, dtype=torch.bfloat16) * 0.1)(D, F)),
            "w_up": _w((lambda *s: torch.randn(*s, dtype=torch.bfloat16) * 0.1)(D, F)),
            "w_down": _w((lambda *s: torch.randn(*s, dtype=torch.bfloat16) * 0.1)(F, D)),
        }
    _B_in = _B_setup()

    return {
        "A_q": _A_in["q"],
        "A_k": _A_in["k"],
        "A_v": _A_in["v"],
        "A_shift_k": _A_in["shift_k"],
        "A_ssm_k": _A_in["ssm_k"],
        "A_ssm_D": _A_in["ssm_D"],
        "B_x": _B_in["x"],
        "B_w_gate": _B_in["w_gate"],
        "B_w_up": _B_in["w_up"],
        "B_w_down": _B_in["w_down"],
    }

def reference(A_q, A_k, A_v, A_shift_k, A_ssm_k, A_ssm_D, B_x, B_w_gate, B_w_up, B_w_down):
    def _A_ref(q, k, v, shift_k, ssm_k, ssm_D):
        B, S, D = q.shape
        ks = shift_k.shape[-1]
        k_pad = _pad(k, ((0, 0), (ks - 1, 0), (0, 0)))
        k_shift = torch.zeros_like(k)
        for t in range(ks):
            k_shift = k_shift + k_pad[:, t:t + S, :] * shift_k[:, ks - 1 - t][None, None, :]
        kv = k_shift * v
        L = 2 * S
        kv_pad = _pad(kv, ((0, 0), (0, S), (0, 0)))
        kf_pad = _pad(ssm_k, ((0, 0), (0, S)))
        kv_f = (lambda x, axes=(-2,-1): torch.fft.rfft2(x.float(), dim=axes))(kv_pad[:, None, :, :], axes=(1, 2))
        kf_f = (lambda x, axes=(-2,-1): torch.fft.rfft2(x.float(), dim=axes))(kf_pad[:, None, :], axes=(1, 2))
        kf_f = (lambda x, *d: x.permute(*d))(kf_f, 1, 2, 0)
        y_f = kv_f * kf_f[None, :, :, :]
        y = (lambda x, s, axes=(-2,-1): torch.fft.irfft2(x, s=s, dim=axes).to(torch.bfloat16))(y_f, (1, L), axes=(1, 2))[:, 0, :S, :]
        y = y + kv * ssm_D[None, None, :]
        return q * y

    def _B_ref(x, w_gate, w_up, w_down):
        g = _silu(x @ w_gate)
        u = x @ w_up
        return (g * u) @ w_down

    x = A_q
    xn = _layernorm(x, axis=-1)
    s = _A_ref(xn, A_k, A_v, A_shift_k, A_ssm_k, A_ssm_D)
    g = _silu(_B_ref(xn, B_w_gate, B_w_up, B_w_down))
    return x + s * g
```

```python
KN = "recurrent_scan__ssm_conv_h3__swiglu_ffn__prompt"

class A:
    def __init__(self):
        self.l = []
    def __call__(self, s=""):
        for line in s.split("\n"):
            self.l.append(line)
    def label(self, name):
        self.l.append(name + ":")
    def text(self):
        return "\n".join(self.l) + "\n"

def header(launch_lines):
    s = open("cdna_kernels/%s.s.ref" % KN).read().split("\n")
    out = []
    for line in s:
        if line.startswith("; @launch"):
            break
        out.append(line)
    out += launch_lines
    out.append('.amdgcn_target "amdgcn-amd-amdhsa--gfx950"')
    out.append(".text")
    return "\n".join(out) + "\n"

def kernel_begin(name):
    return ".globl %s\n.p2align 8\n.type %s,@function\n%s:\n" % (name, name, name)

def kernel_desc(name, vgpr, sgpr, accum, extra=""):
    return """.amdhsa_kernel %s
  .amdhsa_next_free_vgpr %d
  .amdhsa_next_free_sgpr %d
  .amdhsa_accum_offset %d
  .amdhsa_group_segment_fixed_size 0
  .amdhsa_kernarg_size 104
  .amdhsa_user_sgpr_count 2
  .amdhsa_user_sgpr_kernarg_segment_ptr 1
  .amdhsa_system_sgpr_workgroup_id_x 1
%s.end_amdhsa_kernel
""" % (name, vgpr, sgpr, accum, extra)

RODATA = '.section .rodata,"a"\n.p2align 6\n'
```

```python
from asmlib import *
from sched import *
from gen import *

WS_FL = 0xB10000
CH_STRIDE = 21504
XR_OFF = 16640
RING = 43008
RED = RING
RS = 272
YT_L = 0
uWD = 10; uH = 14; uTR = 18; uCA = 22; uCB = 23; uL16 = 24; uYst = 25; uFl = 26; uX = 27; uTmp = 28
uAD = 36; uPoll = 40; uXin = 44; uSt = 52; uWF = 56
uCacc = 88
uAcc = 120
uE = 184
aH = 0
aCF = 128
tWd = 8; tHk = 12; tWS = 16; tWave = 20; tTB = 21; tDB = 22; tWdOff = 23; tHOff = 24; tRing = 25; tT0 = 26; tT1 = 27; tT2 = 28
tQ = 36; tOut = 40; tCB = 29; tD = 30; tYoff = 31; tT3 = 32

def g2_loads(s):
    L = []
    tag = "g%d" % s
    L.append(mk("s_add_u32 m0, s%d, %d" % (tRing, (s % 7) * 4096)))
    L.append(mk("s_add_u32 s%d, s%d, %d" % (tT0, tWdOff, s * 32768)))
    for j in range(4):
        L.append(mk("buffer_load_dwordx4 v%d, s[%d:%d], s%d offen offset:%d lds" % (uWD + j, tWd, tWd + 3, tT0, j * 1024), vm="w%d" % s))
    return L
def g2_hloads(s):
    L = [mk("s_add_u32 s%d, s%d, %d" % (tT1, tHOff, s * 1024))]
    for nt in range(4):
        r = aH + 16 * (s % 7) + 4 * nt
        L.append(mk("buffer_load_dwordx4 a[%d:%d], v%d, s[%d:%d], s%d offen" % (r, r + 3, uH + nt, tWS, tWS + 3, tT1), vm="h%d" % s))
    return L
def g2_reads(s):
    L = []
    for mt in range(4):
        r = uWF + 16 * (s & 1) + 4 * mt
        L.append(mk("ds_read_b64_tr_b16 v[%d:%d], v%d offset:%d" % (r, r + 1, uTR + mt, (s % 7) * 4096), lg="t%d" % s))
        L.append(mk("ds_read_b64_tr_b16 v[%d:%d], v%d offset:%d" % (r + 2, r + 3, uTR + mt, (s % 7) * 4096 + 512), lg="t%d" % s))
    return L
def conv_reads(rr):
    L = []
    b = aCF + 64 * (rr & 1)
    for i in range(8):
        a = b + 4 * i
        L.append(mk("ds_read_b64 a[%d:%d], v%d offset:%d" % (a, a + 1, uCA, 64 * rr + 512 * i), lg="c%d_%d" % (rr, i)))
        L.append(mk("ds_read_b64 a[%d:%d], v%d offset:%d" % (a + 2, a + 3, uCA, 64 * rr + 512 * i + 8), lg="c%d_%d" % (rr, i)))
        L.append(mk("ds_read_b128 a[%d:%d], v%d offset:%d" % (a + 32, a + 35, uCB, 3584 - 512 * i + 64 * rr), lg="c%d_%d" % (rr, i)))
    return L

def k2_body(p, opts):
    p("s_and_b32 s3, s2, 7\ns_lshr_b32 s4, s2, 3\ns_lshl_b32 s3, s3, 2\ns_and_b32 s5, s4, 3\ns_add_u32 s%d, s3, s5\ns_lshr_b32 s%d, s4, 2" % (tTB, tDB))
    p("v_and_b32 v1, 63, v0\nv_lshrrev_b32 v2, 6, v0\nv_lshlrev_b32 v%d, 4, v1\nv_readfirstlane_b32 s%d, v2" % (uL16, tWave))
    p("s_load_dwordx4 s[44:47], s[0:1], 32\ns_load_dwordx4 s[48:51], s[0:1], 72\ns_load_dwordx2 s[52:53], s[0:1], 96\ns_load_dwordx2 s[54:55], s[0:1], 0")
    p("s_lshr_b32 s3, s%d, 1\ns_lshl_b32 s4, s2, 1\ns_add_u32 s4, s4, s3" % tWave)
    p("s_mul_i32 s%d, s3, %d" % (tCB, CH_STRIDE))
    p("s_waitcnt lgkmcnt(0)")
    p("s_lshl_b32 s5, s4, 12\ns_add_u32 s%d, s44, s5\ns_addc_u32 s%d, s45, 0\ns_and_b32 s%d, s%d, 0xffff\ns_sub_u32 s%d, 0x200000, s5\ns_mov_b32 s%d, 0x20000" % (tHk, tHk + 1, tHk + 1, tHk + 1, tHk + 2, tHk + 3))
    srd(p, tWS, 52, WS_SZ)
    p("s_lshl_b32 s6, s4, 1\ns_and_b32 s6, s6, 0xfffffffc\ns_load_dword s%d, s[46:47], s6" % tD)
    p("s_and_b32 s6, s%d, 1" % tWave)
    for cc in range(2):
        p("s_lshl_b32 s7, s6, 1\ns_add_u32 s7, s7, %d" % cc)
        p("s_mul_i32 s%d, s7, 4160\ns_add_u32 s%d, s%d, s%d\ns_add_u32 m0, s%d, 32\ns_lshl_b32 s%d, s7, 1" % (tT0, tT0, tT0, tCB, tT0, tT1))
        for j in range(4):
            p("buffer_load_dwordx4 v%d, s[%d:%d], s%d offen offset:%d lds" % (uL16, tHk, tHk + 3, tT1, j * 1024), vm="cv")
    p("s_lshl_b32 s7, s6, 11\ns_add_u32 s%d, s7, s%d\ns_add_u32 m0, s%d, %d\ns_add_u32 s%d, s7, s5\ns_add_u32 s%d, s%d, %d" % (tT0, tCB, tT0, XR_OFF, tT1, tT1, tT1, WS_XR))
    for j in range(2):
        p("buffer_load_dwordx4 v%d, s[%d:%d], s%d offen offset:%d lds" % (uL16, tWS, tWS + 3, tT1, j * 1024), vm="cv")
    p("v_lshrrev_b32 v2, 4, v1\nv_and_b32 v3, 15, v1\nv_add_u32 v4, v2, v3\nv_add_u32 v4, -16, v4\nv_lshlrev_b32 v4, 1, v4")
    p("buffer_load_ushort v5, v4, s[%d:%d], 0 offen" % (tHk, tHk + 3), vm="cv")
    srd(p, tWd, 48, 1792 * 1024)
    srd(p, tOut, 50, 2048 * 1024)
    srd(p, tQ, 54, 2048 * 1024)
    p("v_lshrrev_b32 v6, 3, v1\nv_and_b32 v7, 7, v1\nv_and_b32 v8, 1, v2\nv_lshlrev_b32 v8, 1, v8\nv_xor_b32 v8, v8, v7")
    p("s_lshl_b32 s7, s%d, 7" % tDB)
    for j in range(4):
        p("v_xor_b32 v9, %d, v8\nv_lshlrev_b32 v9, 4, v9\nv_lshl_add_u32 v9, v6, 10, v9\nv_add_u32 v9, s7, v9\nv_add_u32 v%d, %d, v9" % (4 * (j & 1), uWD + j, j * 7168))
    p("s_mul_i32 s%d, s%d, %d" % (tWdOff, tWave, 448 * 1024))
    p("s_mul_i32 s%d, s%d, 28672\ns_add_u32 s%d, s%d, %d" % (tRing, tWave, tRing, tRing, RING))
    for nt in range(4):
        p("v_add_u32 v%d, %d, v%d" % (uH + nt, nt * 57344, uL16))
    p("s_mul_i32 s%d, s%d, %d\ns_mul_i32 s7, s%d, 14336\ns_add_u32 s%d, s%d, s7" % (tHOff, tTB, 4 * 57344, tWave, tHOff, tHOff))
    if WS_H: p("s_add_u32 s%d, s%d, %d" % (tHOff, tHOff, WS_H))
    vq = []
    for s in range(7):
        vq += g2_loads(s) + g2_hloads(s)
    npre = opts.get("k2pre", 11)
    for _ in range(npre): p.add(vq.pop(0))
    stamp(p, 1, opts)
    p("v_bfe_u32 v6, v1, 2, 2\nv_and_b32 v7, 3, v1\nv_lshrrev_b32 v8, 1, v6\nv_and_b32 v9, 1, v2\nv_lshl_add_u32 v8, v9, 1, v8")
    p("v_lshl_add_u32 v6, v2, 3, v6\nv_lshlrev_b32 v6, 7, v6\nv_lshl_add_u32 v6, v7, 3, v6\nv_add_u32 v6, s%d, v6" % tRing)
    for mt in range(4):
        p("v_xor_b32 v9, %d, v8\nv_lshl_add_u32 v%d, v9, 5, v6" % (mt, uTR + mt))
    p("v_add_u32 v6, 1, v3\nv_and_b32 v7, 3, v6\nv_sub_u32 v6, v6, v7\nv_lshl_add_u32 v6, v2, 3, v6\nv_lshlrev_b32 v6, 1, v6")
    p("v_mul_u32_u24 v7, 4160, v7\ns_lshl_b32 s7, s6, 8\ns_add_u32 s7, s7, s%d\nv_add3_u32 v%d, v6, v7, s7" % (tCB, uCA))
    p("v_lshlrev_b32 v6, 5, v3\nv_lshlrev_b32 v7, 4, v2\nv_sub_u32 v6, v7, v6\ns_add_u32 s7, s7, %d\nv_add_u32 v%d, s7, v6" % (XR_OFF + 480, uCB))
    p("v_mul_u32_u24 v6, 4160, v2\nv_lshl_add_u32 v6, v3, 1, v6\nv_add_u32 v6, s%d, v6" % tCB)
    p("v_mov_b32 v8, 0\nv_mov_b32 v9, 0\nv_lshlrev_b32 v7, 3, v1\ns_add_u32 s7, s%d, %d\nv_add_u32 v7, s7, v7" % (tCB, XR_OFF + 4096))
    p("ds_write_b64 v7, v[8:9]", lg="z")
    p("s_waitcnt lgkmcnt(0)")
    p("s_lshr_b32 s7, s%d, 16\ns_and_b32 s%d, s%d, 0xffff\ns_bitcmp1_b32 s4, 0\ns_cselect_b32 s%d, s7, s%d" % (tD, tD, tD, tD, tD))
    p("s_cmp_eq_u32 s6, 0\ns_cselect_b32 s%d, s%d, 0\ns_lshl_b32 s7, s%d, 16" % (tD, tD, tD))
    p("v_lshl_add_u32 v8, v2, 3, v3\nv_sub_u32 v8, 15, v8\nv_mov_b32 v%d, s%d\nv_mov_b32 v%d, s7" % (uTmp, tD, uTmp + 1))
    for u in range(4):
        p("v_cmp_eq_u32 vcc, %d, v8\ns_nop 1\nv_cndmask_b32 v%d, 0, v%d, vcc" % (2 * u, uAD + u, uTmp))
        p("v_cmp_eq_u32 vcc, %d, v8\ns_nop 1\nv_cndmask_b32 v%d, v%d, v%d, vcc" % (2 * u + 1, uAD + u, uAD + u, uTmp + 1))
    p("v_and_b32 v8, 2, v2\nv_lshlrev_b32 v8, 3, v8\nv_lshl_add_u32 v8, v3, 5, v8\nv_and_b32 v9, 1, v2\nv_lshl_add_u32 v%d, v9, 9, v8" % uYst)
    p("s_lshl_b32 s7, s6, 11\ns_add_u32 s%d, s5, s7\ns_add_u32 s%d, s%d, %d" % (tYoff, tYoff, tYoff, WS_YT))
    p("s_lshl_b32 s7, s%d, 6\ns_lshl_b32 s3, s%d, 4\ns_add_u32 s7, s7, s3\nv_add_u32 v8, s7, v3" % (tTB, tWave))
    p("v_lshlrev_b32 v9, 10, v8\nv_lshl_add_u32 v9, v2, 5, v9\ns_lshl_b32 s7, s%d, 7\nv_add_u32 v%d, s7, v9" % (tDB, uX))
    p("v_lshlrev_b32 v8, 4, v8\nv_add_u32 v%d, %d, v8" % (uTmp + 2, WS_ST))
    p.wait(vm="cv")
    p("ds_write_b16 v6, v5", lg="z")
    p.wait(lg="*")
    p("s_barrier")
    stamp(p, 2, opts)
    extra = [mk("buffer_load_dwordx4 %s, v%d, s[%d:%d], 0 offen" % (vr(uXin), uX, tQ, tQ + 3), vm="xin"),
             mk("buffer_load_dwordx4 %s, v%d, s[%d:%d], 0 offen offset:16" % (vr(uXin + 4), uX, tQ, tQ + 3), vm="xin"),
             mk("buffer_load_dwordx4 %s, v%d, s[%d:%d], 0 offen" % (vr(uSt), uTmp + 2, tWS, tWS + 3), vm="xin")]
    vq += extra
    for x in conv_reads(0): p.add(x)
    first = set()
    nm = 0
    for rr in range(4):
        rq = conv_reads(rr + 1) if rr < 3 else []
        b = aCF + 64 * (rr & 1)
        pairs = sorted([(s1, p1) for s1 in range(8) for p1 in range(8) if s1 + p1 <= 7], key=lambda x: (max(x), x[0] + x[1], x[0]))
        seen = -1
        k = 0
        for (s1, p1) in pairs:
            mx = max(s1, p1)
            if mx > seen:
                p.wait(lg="c%d_%d" % (rr, mx)); seen = mx
            j = s1 + p1
            acc = vr(uCacc + 4 * j)
            p("v_mfma_f32_16x16x32_bf16 %s, a[%d:%d], a[%d:%d], %s" % (acc, b + 4 * s1, b + 4 * s1 + 3, b + 32 + 4 * p1, b + 35 + 4 * p1, acc if j in first else "0"))
            first.add(j)
            k += 1; nm += 1
            n = 0
            if rq and k > 2 and (k % 4 != 0):
                p.add(rq.pop(0)); n += 1
            if vq and (nm % 2 == 0 or n == 0):
                p.add(vq.pop(0))
            if rr == 0 and s1 == 0:
                p("v_mfma_f32_16x16x32_bf16 %s, %s, a[%d:%d], %s" % (acc, vr(uAD), b + 32 + 4 * p1, b + 35 + 4 * p1, acc))
        for x in rq: p.add(x)
    for x in vq: p.add(x)
    stamp(p, 3, opts)
    p("s_barrier\ns_nop 1")
    p("s_lshl_b32 s7, s%d, 12\nv_add_u32 v8, s7, v%d\ns_xor_b32 s7, s7, 4096\nv_add_u32 v9, s7, v%d" % (tWave, uL16, uL16))
    p("s_cmp_eq_u32 s6, 0\ns_cbranch_scc1 L_k2_x0")
    for i in range(4):
        p("ds_write_b128 v8, %s offset:%d" % (vr(uCacc + 4 * i), i * 1024), lg="xw")
    for i in range(16):
        p("v_mov_b32 v%d, v%d" % (uCacc + i, uCacc + 16 + i))
    p("s_branch L_k2_x1")
    p.label("L_k2_x0")
    for i in range(4):
        p("ds_write_b128 v8, %s offset:%d" % (vr(uCacc + 16 + 4 * i), i * 1024), lg="xw")
    p.label("L_k2_x1")
    p("s_waitcnt lgkmcnt(0)\ns_barrier")
    for i in range(4):
        p("ds_read_b128 %s, v9 offset:%d" % (vr(uCacc + 16 + 4 * i), i * 1024), lg="xr%d" % i)
    p.wait(vm=["w0"])
    for x in g2_reads(0): p.add(x)
    for i in range(4):
        p.wait(lg="xr%d" % i)
        for e in range(4):
            p("v_add_f32 v%d, v%d, v%d" % (uCacc + 4 * i + e, uCacc + 4 * i + e, uCacc + 16 + 4 * i + e))
    for i in range(4):
        o = uTmp + 4 * (i >> 1) + 2 * (i & 1)
        p("v_cvt_pk_bf16_f32 v%d, v%d, v%d\nv_cvt_pk_bf16_f32 v%d, v%d, v%d" % (o, uCacc + 4 * i, uCacc + 4 * i + 1, o + 1, uCacc + 4 * i + 2, uCacc + 4 * i + 3))
    p("s_nop 1")
    for h in range(2):
        o = uTmp + 4 * h
        p("v_permlane16_swap_b32 v%d, v%d\nv_permlane16_swap_b32 v%d, v%d" % (o, o + 2, o + 1, o + 3))
    for h in range(2):
        p("buffer_store_dwordx4 %s, v%d, s[%d:%d], s%d offen offset:%d sc1" % (vr(uTmp + 4 * h), uYst, tWS, tWS + 3, tYoff, h * 1024), vm="yst")
    p("s_lshl_b32 s7, s2, 7\ns_lshl_b32 s3, s%d, 2\ns_add_u32 s7, s7, s3\ns_add_u32 s%d, s7, %d" % (tWave, tT3, WS_FL))
    p("v_lshlrev_b32 v8, 7, v1\ns_lshl_b32 s7, s%d, 12\ns_add_u32 s7, s7, %d\nv_and_b32 v8, 0xfff, v8\nv_add_u32 v%d, s7, v8" % (tDB, WS_FL, uFl))
    p("v_mov_b32 v2, 1\nv_mov_b32 v3, 0")
    for s in range(14):
        rq = g2_reads(s + 1) if s < 13 else []
        wq = g2_loads(s + 7) if s + 7 < 14 else []
        hq = g2_hloads(s + 7) if s + 7 < 14 else []
        p.wait(vm="h%d" % s, lg="t%d" % s)
        m = 0
        for nt in range(4):
            for mt in range(4):
                acc = vr(uAcc + 16 * nt + 4 * mt)
                hr = aH + 16 * (s % 7) + 4 * nt
                p("v_mfma_f32_16x16x32_bf16 %s, %s, a[%d:%d], %s" % (acc, vr(uWF + 16 * (s & 1) + 4 * mt), hr, hr + 3, acc if s else "0"))
                m += 1
                if m == 1 and rq: p.wait(vm="w%d" % (s + 1))
                if rq and m <= 8:
                    p.add(rq.pop(0))
                if wq and m > 2 and m % 2 == 0: p.add(wq.pop(0))
                if hq and (m == 3 or m in (5, 9, 13, 16)): p.add(hq.pop(0))
        assert not rq and not wq and not hq, (s, len(rq), len(wq), len(hq))
        if s == 7:
            p.wait(vm="yst")
            p("s_mov_b64 exec, 1\nbuffer_store_dword v2, v3, s[%d:%d], s%d offen sc1\ns_mov_b64 exec, -1" % (tWS, tWS + 3, tT3), vm="flag")
        if s == 10:
            p("buffer_load_dwordx4 %s, v%d, s[%d:%d], 0 offen sc1" % (vr(uPoll), uFl, tWS, tWS + 3), vm="poll")
    stamp(p, 4, opts)
    p("s_cmp_lg_u32 s%d, 0\ns_cbranch_scc1 L_k2_ready" % tWave)
    p.wait(vm="poll")
    p.label("L_k2_chk")
    p("v_and_b32 v%d, v%d, v%d\nv_and_b32 v%d, v%d, v%d\nv_and_b32 v%d, v%d, v%d" % (uPoll, uPoll, uPoll + 1, uPoll + 2, uPoll + 2, uPoll + 3, uPoll, uPoll, uPoll + 2))
    p("v_cmp_ne_u32 vcc, 1, v%d\ns_cbranch_vccnz L_k2_slow" % uPoll)
    p.label("L_k2_ready")
    p("s_barrier")
    p("v_lshrrev_b32 v8, 3, v1\nv_lshlrev_b32 v8, 12, v8\nv_and_b32 v9, 7, v1\nv_lshl_add_u32 v8, v9, 4, v8\nv_add_u32 v9, %d, v8" % (32768 - 1024))
    p("s_lshl_b32 s3, s%d, 18\ns_lshl_b32 s7, s%d, 16\ns_add_u32 s3, s3, s7\ns_lshl_b32 s7, s%d, 7\ns_add_u32 s3, s3, s7\ns_add_u32 s3, s3, %d" % (tDB, tWave, tTB, WS_YT))
    p("s_lshl_b32 s7, s%d, 11\ns_add_u32 m0, s7, %d\ns_nop 0" % (tWave, YT_L))
    p("buffer_load_dwordx4 v8, s[%d:%d], s3 offen sc1 lds" % (tWS, tWS + 3), vm="yt")
    p("buffer_load_dwordx4 v9, s[%d:%d], s3 offen offset:1024 sc1 lds" % (tWS, tWS + 3), vm="yt")
    p("v_and_b32 v3, 15, v1\nv_lshrrev_b32 v2, 4, v1\nv_mul_u32_u24 v8, %d, v3\nv_lshl_add_u32 v9, v2, 4, v8" % RS)
    p("s_mul_i32 s3, s%d, %d\ns_add_u32 s3, s3, %d\nv_add_u32 v9, s3, v9" % (tWave, 64 * RS, RED))
    for nt in range(4):
        for mt in range(4):
            p("ds_write_b128 v9, %s offset:%d" % (vr(uAcc + 16 * nt + 4 * mt), nt * 16 * RS + mt * 64), lg="rw")
    p("v_lshl_add_u32 v8, v2, 6, v8\ns_mul_i32 s3, s%d, %d\ns_add_u32 s3, s3, %d\nv_add_u32 v8, s3, v8" % (tWave, 16 * RS, RED))
    p("v_bfe_u32 v6, v1, 2, 2\nv_lshl_add_u32 v6, v2, 4, v6\nv_lshlrev_b32 v6, 7, v6\nv_and_b32 v7, 3, v1\nv_lshl_add_u32 v6, v7, 3, v6\ns_lshl_b32 s3, s%d, 5\nv_add_u32 v6, s3, v6" % tWave)
    if YT_L: p("v_add_u32 v6, %d, v6" % YT_L)
    X = uE; XN = uE + 16; Y = uE + 32; YR = uE + 48
    p.wait(vm="xin")
    for i in range(8):
        p("v_lshlrev_b32 v%d, 16, v%d\nv_and_b32 v%d, 0xffff0000, v%d" % (X + 2 * i, uXin + i, X + 2 * i + 1, uXin + i))
    p("v_and_b32 v%d, 0xffff0000, v%d\nv_mul_f32 v%d, v%d, v%d" % (uSt, uSt, uSt, uSt, uSt + 3))
    for i in range(16):
        p("v_fma_f32 v%d, v%d, v%d, v%d" % (XN + i, X + i, uSt + 3, uSt))
    p("s_waitcnt vmcnt(0) lgkmcnt(0)\ns_barrier")
    for j in range(4):
        p("ds_read_b64_tr_b16 v[%d:%d], v6 offset:%d" % (YR + 2 * j, YR + 2 * j + 1, j * 512), lg="y")
    for j in range(4):
        for w in range(4):
            p("ds_read_b128 %s, v8 offset:%d" % (vr(uAcc + 16 * w + 4 * j), w * 64 * RS + 16 * j), lg="r%d" % j)
    p.wait(lg="y")
    for i in range(8):
        p("v_lshlrev_b32 v%d, 16, v%d\nv_and_b32 v%d, 0xffff0000, v%d" % (Y + 2 * i, YR + i, Y + 2 * i + 1, YR + i))
    for i in range(8):
        p("v_pk_mul_f32 %s, %s, %s" % (vr(XN + 2 * i, 2), vr(XN + 2 * i, 2), vr(Y + 2 * i, 2)))
    p("s_mov_b32 s3, %s" % hex(f2u(-LOG2E)))
    for j in range(4):
        p.wait(lg="r%d" % j)
        F = uAcc + 4 * j
        for h in range(2):
            p("v_pk_add_f32 %s, %s, %s" % (vr(F + 2 * h, 2), vr(F + 2 * h, 2), vr(F + 16 + 2 * h, 2)))
            p("v_pk_add_f32 %s, %s, %s" % (vr(F + 32 + 2 * h, 2), vr(F + 32 + 2 * h, 2), vr(F + 48 + 2 * h, 2)))
        for h in range(2):
            p("v_pk_add_f32 %s, %s, %s" % (vr(F + 2 * h, 2), vr(F + 2 * h, 2), vr(F + 32 + 2 * h, 2)))
    for i in range(16):
        p("v_mul_f32 v%d, s3, v%d" % (Y + i, uAcc + i))
    for i in range(16):
        p("v_exp_f32 v%d, v%d" % (Y + i, Y + i))
    for i in range(8):
        p("v_pk_mul_f32 %s, %s, %s" % (vr(XN + 2 * i, 2), vr(XN + 2 * i, 2), vr(uAcc + 2 * i, 2)))
    for i in range(16):
        p("v_add_f32 v%d, 1.0, v%d" % (Y + i, Y + i))
    for i in range(16):
        p("v_rcp_f32 v%d, v%d" % (Y + i, Y + i))
    for i in range(8):
        p("v_pk_fma_f32 %s, %s, %s, %s" % (vr(X + 2 * i, 2), vr(XN + 2 * i, 2), vr(Y + 2 * i, 2), vr(X + 2 * i, 2)))
    for i in range(8):
        p("v_cvt_pk_bf16_f32 v%d, v%d, v%d" % (uXin + i, X + 2 * i, X + 2 * i + 1))
    p("buffer_store_dwordx4 %s, v%d, s[%d:%d], 0 offen" % (vr(uXin), uX, tOut, tOut + 3))
    p("buffer_store_dwordx4 %s, v%d, s[%d:%d], 0 offen offset:16" % (vr(uXin + 4), uX, tOut, tOut + 3))
    stamp(p, 5, opts)

def k2(a, opts):
    a(kernel_begin("k2_kernel"))
    a("s_cmp_ge_u32 s2, 256\ns_cbranch_scc1 L_k2_end")
    if opts.get("prof"):
        a("s_memrealtime s[78:79]\ns_memtime s[60:61]")
        for i in range(2, 16): a("s_mov_b32 s%d, 0" % (60 + i))
    p = Prog(); k2_body(p, opts); emit(a, p, "k2")
    o = dict(opts); o["sfx"] = "_k2"; o["prof_off"] = 0x10000; prof_store(a, o)
    a.label("L_k2_end")
    a("s_endpgm")
    a.label("L_k2_slow")
    a("s_sleep 4")
    a("buffer_load_dwordx4 %s, v%d, s[%d:%d], 0 offen sc1" % (vr(uPoll), uFl, tWS, tWS + 3))
    a("s_waitcnt vmcnt(0)")
    a("s_branch L_k2_chk")
```

```python
import re

class I:
    __slots__ = ("t", "vm", "lg", "cost", "kind")
    def __init__(self, t, vm=None, lg=None, cost=4, kind=None):
        self.t = t; self.vm = vm; self.lg = lg; self.cost = cost; self.kind = kind

TRANS = ("v_exp_f32", "v_log_f32", "v_rcp_f32", "v_rsq_f32", "v_sqrt_f32", "v_sin_f32", "v_cos_f32")

def regs_of(op):
    op = op.strip()
    op = op.lstrip("-")
    m = re.match(r"^abs\((.*)\)$", op)
    if m: op = m.group(1)
    m = re.match(r"^([vas])\[(\d+):(\d+)\]$", op)
    if m:
        return {(m.group(1), i) for i in range(int(m.group(2)), int(m.group(3)) + 1)}
    m = re.match(r"^([vas])(\d+)$", op)
    if m:
        return {(m.group(1), int(m.group(2)))}
    if op == "vcc": return {("s", "vcc")}
    if op == "m0": return {("s", "m0")}
    if op == "exec": return {("s", "exec")}
    return set()

def parse(t):
    t = t.split(";")[0].strip()
    if not t or t.endswith(":") or t.startswith("."):
        return None
    parts = t.split(None, 1)
    mn = parts[0]
    ops = []
    if len(parts) > 1:
        rest = parts[1]
        cur = ""; depth = 0
        for ch in rest:
            if ch == "[": depth += 1
            if ch == "]": depth -= 1
            if ch == "," and depth == 0:
                ops.append(cur.strip()); cur = ""
            else:
                cur += ch
        ops.append(cur.strip())
        ops = [o.split()[0] if o and not o.startswith("hwreg") else o for o in ops]
    R = [regs_of(o) for o in ops]
    defs = set(); uses = set()
    lds = " lds" in (" " + t + " ") and mn.startswith("buffer_load")
    if mn.startswith("buffer_store") or mn.startswith("global_store") or mn.startswith("ds_write") or lds \
       or (mn.startswith("buffer_atomic") and "sc0" not in t) or (mn.startswith("global_atomic") and "sc0" not in t):
        for r in R: uses |= r
        if lds: uses.add(("s", "m0"))
    elif mn.startswith("s_cmp") or mn.startswith("s_cbranch") or mn in ("s_waitcnt", "s_nop", "s_barrier", "s_branch", "s_endpgm", "s_sleep", "s_setprio"):
        for r in R: uses |= r
    elif mn.startswith("v_permlane") and "swap" in mn:
        defs = R[0] | R[1]; uses = R[0] | R[1]
    else:
        if R:
            defs = set(R[0])
            for r in R[1:]: uses |= r
        if mn.startswith("v_fmac") or mn.startswith("v_dot2c") or mn.startswith("s_addk") or mn.startswith("v_writelane"):
            uses |= R[0]
        if mn.startswith("v_add_co") or mn.startswith("v_addc_co") or mn.startswith("v_sub_co"):
            defs |= R[1]
        if mn.startswith("v_cndmask") and len(R) == 3:
            uses.add(("s", "vcc"))
        if "saveexec" in mn:
            defs.add(("s", "exec"))
        if "dpp" in mn or "row_" in t or "quad_perm" in t:
            uses |= R[0]
    return mn, defs, uses

def is_valu(mn):
    return mn.startswith("v_") and not mn.startswith("v_mfma")
def is_mfma(mn):
    return mn.startswith("v_mfma")
def is_vmem(mn):
    return mn.startswith("buffer_") or mn.startswith("global_")
def mfma_passes(mn):
    return 8 if "32x32" in mn else 4

def states(mn, t):
    if mn == "s_nop":
        return int(t.split()[1]) + 1
    return 1

def check_hazards(lines, name=""):
    P = []
    ins = []
    for n, t in enumerate(lines):
        p = parse(t)
        if p: ins.append((n, t, p))
    for i, (n, t, (mn, d, u)) in enumerate(ins):
        dist = 0
        j = i - 1
        while j >= 0 and dist < 21:
            n2, t2, (mn2, d2, u2) = ins[j]
            need = 0
            vd2 = {r for r in d2 if r[0] in "va"}
            sd2 = {r for r in d2 if r[0] == "s"}
            if is_valu(mn2) and is_mfma(mn) and (vd2 & u): need = max(need, 2)
            if is_mfma(mn2):
                ps = mfma_passes(mn2)
                if is_mfma(mn):
                    ops = [o.strip() for o in re.split(r",\s*(?![^\[]*\])", t.split(None, 1)[1])]
                    ab = regs_of(ops[1]) | regs_of(ops[2]); c = regs_of(ops[3].split()[0])
                    if vd2 & ab: need = max(need, {4: 8, 8: 12}[ps])
                    if vd2 & c and (c != vd2 or mn != mn2): need = max(need, {4: 6, 8: 10}[ps])
                    if (vd2 & d) and not (vd2 & c): need = max(need, {4: 6, 8: 10}[ps])
                elif is_valu(mn) or is_vmem(mn) or mn.startswith("ds_"):
                    if vd2 & (u | d): need = max(need, {4: 8, 8: 12}[ps])
                    if is_valu(mn):
                        ops2 = [o.strip() for o in re.split(r",\s*(?![^\[]*\])", t2.split(None, 1)[1])]
                        c2 = regs_of(ops2[3].split()[0])
                        if c2 & d: need = max(need, {4: 3, 8: 7}[ps])
            if mn2.split("_e")[0] in TRANS or mn2 in TRANS:
                if is_valu(mn) and mn not in TRANS and (vd2 & u): need = max(need, 1)
                if is_valu(mn) and mn in TRANS and (vd2 & u): need = max(need, 1)
            if is_valu(mn2) and sd2:
                if is_vmem(mn) and (sd2 & u): need = max(need, 5)
                if is_valu(mn) and (sd2 & u): need = max(need, 2)
                if mn.startswith("v_readlane") and (sd2 & u): need = max(need, 4)
            if is_valu(mn2) and ("s", "exec") in d2 and is_mfma(mn): need = max(need, 4)
            if is_valu(mn2) and (mn.startswith("v_readfirstlane") or mn.startswith("v_readlane")) and (vd2 & u): need = max(need, 1)
            if is_valu(mn2) and mn.startswith("v_permlane") and (vd2 & u): need = max(need, 2)
            if is_valu(mn2) and is_valu(mn) and ("dpp" in mn or "quad_perm" in t or "row_" in t) and (vd2 & u): need = max(need, 2)
            if not is_valu(mn2) and ("s", "m0") in d2 and ("s", "m0") in u and is_vmem(mn): need = max(need, 1)
            if (mn2.startswith("buffer_store") or mn2.startswith("global_store")) and ("x4" in mn2 or "x3" in mn2):
                dat = regs_of(t2.split(None, 1)[1].split(",")[0 if mn2.startswith("buffer") else 1].strip()) if True else set()
                ops2 = [o.strip() for o in re.split(r",\s*(?![^\[]*\])", t2.split(None, 1)[1])]
                dat = regs_of(ops2[0] if mn2.startswith("buffer") else ops2[1])
                if dat & d: need = max(need, 2 if is_valu(mn) else 1)
            if need > dist:
                P.append("%s line %d: '%s' needs %d states after '%s' (has %d)" % (name, n, t.strip(), need, t2.strip(), dist))
            dist += states(mn2, t2)
            j -= 1
    return P

class Prog:
    def __init__(self):
        self.ins = []
    def __call__(self, t, vm=None, lg=None, cost=None):
        for line in t.split("\n"):
            line = line.strip()
            if not line: continue
            self.ins.append(mk(line, vm, lg, cost))
    def add(self, i):
        self.ins.append(i)
    def wait(self, vm=None, lg=None):
        self.ins.append(I("WAIT", vm=vm, lg=lg, kind="wait"))
    def label(self, n):
        self.ins.append(I(n + ":", kind="label", cost=0))
    def resolve(self):
        out = []
        vmq = []; lgq = []
        for i in self.ins:
            if i.kind == "wait":
                parts = []
                for tag, q, nm, mx in ((i.vm, vmq, "vmcnt", 63), (i.lg, lgq, "lgkmcnt", 15)):
                    if tag is None: continue
                    tags = tag if isinstance(tag, (list, tuple)) else [tag]
                    if "*" in tags:
                        n = 0
                    else:
                        last = -1
                        for k, x in enumerate(q):
                            if x in tags: last = k
                        if last < 0: continue
                        n = len(q) - 1 - last
                    if n > mx: n = mx
                    del q[:len(q) - n]
                    parts.append("%s(%d)" % (nm, n))
                if parts: out.append("s_waitcnt " + " ".join(parts))
                continue
            if i.kind == "bundle":
                out += i.t.split("\n"); continue
            if "\n" in i.t:
                vmq.append(i.vm); out += i.t.split("\n"); continue
            mn = i.t.split()[0]
            if is_vmem(mn): vmq.append(i.vm)
            if mn.startswith("ds_"): lgq.append(i.lg)
            if mn == "s_waitcnt":
                m = re.search(r"vmcnt\((\d+)\)", i.t)
                if m: del vmq[:max(0, len(vmq) - int(m.group(1)))]
                m = re.search(r"lgkmcnt\((\d+)\)", i.t)
                if m: del lgq[:max(0, len(lgq) - int(m.group(1)))]
            out.append(i.t)
        return out

def mk(line, vm=None, lg=None, cost=None):
    mn = line.split()[0]
    if cost is None:
        cost = 8 if mn in TRANS else 4
    return I(line, vm=vm, lg=lg, cost=cost)

def W(vm=None, lg=None):
    return I("WAIT", vm=vm, lg=lg, kind="wait")
```

```python
import sys
from asmlib import *
from sched import *

WS_H  = 0x000000
WS_XR = 0x700000
WS_YT = 0x900000
WS_ST = 0xB00000
WS_CS = 0xB08000
WS_SZ = 0xC00000
LOG2E = 1.4426950408889634

import struct
def f2u(x):
    return struct.unpack("<I", struct.pack("<f", x))[0]

def vr(b, n=4, p="v"):
    return "%s[%d:%d]" % (p, b, b + n - 1) if n > 1 else "%s%d" % (p, b)

def srd(p, d, lo, size):
    p("s_mov_b32 s%d, s%d" % (d, lo))
    p("s_and_b32 s%d, s%d, 0xffff" % (d + 1, lo + 1))
    p("s_mov_b32 s%d, 0x%x" % (d + 2, size))
    p("s_mov_b32 s%d, 0x20000" % (d + 3))

def stamp(p, idx, opts):
    if opts.get("prof"):
        p("s_memtime s[%d:%d]" % (60 + 2 * idx, 61 + 2 * idx), cost=0)

NSLOT = 5
SLOT = 32768
vWD = 10; vXD = 14; vXA = 18; vWA = 30; vHoff = 33; vSToff = 34; vCSoff = 35; vPoll = 36; vZero = 37
vR1A = 40; vR1B = 44; vST = 52; vXF = 84; vACC = 116; vTMP = 212; vOUT = 220
sQ = 8; sW = 12; sWS = 16; sWave = 20; sTB = 21; sCB = 22; sXoffA = 23; sXoffB = 24; sLdsX = 25; sLdsW = 26
sT0 = 27; sT1 = 28; sHoff = 29; sSToff = 30; sLdsXB = 31; sDbg = 32; sT2 = 34; sT3 = 35

def acc_of(tile):
    return vACC + 16 * {0: 0, 1: 1, 2: 2, 3: 3, 4: 4, 5: 5, 6: 0, 7: 1}[tile]

def lds_win(addr):
    return addr >> 16, addr & 0xffff

def g1_dma_stage(s):
    L = []
    base = (s % NSLOT) * SLOT
    tag = "st%d" % s
    if s < 8:
        L.append(mk("s_add_u32 m0, s%d, %d" % (sLdsW, base)))
        L.append(mk("s_mov_b32 s%d, %d" % (sT0, s * 64 * 3584)))
        for j in range(4):
            L.append(mk("buffer_load_dwordx4 v%d, s[%d:%d], s%d offen offset:%d lds" % (vWD + j, sW, sW + 3, sT0, j * 1024), vm=tag))
        L.append(mk("s_add_u32 m0, s%d, %d" % (sLdsX, base)))
        L.append(mk("s_add_u32 s%d, s%d, %d" % (sT1, sXoffA, s * 128)))
        for j in range(4):
            L.append(mk("buffer_load_dwordx4 v%d, s[%d:%d], s%d offen offset:%d lds" % (vXD + j, sQ, sQ + 3, sT1, j * 1024), vm=tag))
    else:
        bb = s - 8
        for h in range(2):
            L.append(mk("s_add_u32 m0, s%d, %d" % (sLdsXB, base + h * 4096)))
            L.append(mk("s_add_u32 s%d, s%d, %d" % (sT1 if h else sT0, sXoffB, bb * 32768 + h * 128)))
            for j in range(4):
                L.append(mk("buffer_load_dwordx4 v%d, s[%d:%d], s%d offen offset:%d lds" % (vXD + j, sQ, sQ + 3, sT1 if h else sT0, j * 1024), vm=tag))
    return L

def g1_epilogue(tile, opts):
    A0 = acc_of(tile)
    c1 = vST + 4 * tile + 1; c4 = vST + 4 * tile + 2
    g = [A0 + (p >> 2) * 8 + (p & 3) for p in range(8)]
    u = [x + 4 for x in g]
    o = vOUT + 4 * (tile & 1)
    st = [[] for _ in range(8)]
    for p in range(8):
        t = vTMP + p
        st[p] = [mk("v_mul_f32 v%d, v%d, v%d" % (g[p], g[p], c1)),
                 mk("v_exp_f32 v%d, v%d" % (t, g[p])),
                 mk("v_mul_f32 v%d, v%d, v%d" % (u[p], g[p], u[p])),
                 mk("v_fma_f32 v%d, v%d, v%d, v%d" % (t, t, c4, c4)),
                 mk("v_rcp_f32 v%d, v%d" % (t, t)),
                 mk("v_mul_f32 v%d, v%d, v%d" % (u[p], u[p], t))]
    L = []
    for step in range(8 + 10):
        for k in (5, 4, 3, 2, 1, 0):
            p = step - 2 * k
            if 0 <= p < 8:
                L.append(st[p][k])
                if k == 5 and (p & 1):
                    L.append(None if False else ("cvt", p))
    R = []
    pend = []
    for x in L:
        if isinstance(x, tuple):
            pend.append(x[1]); continue
        R.append(x)
        while pend:
            p = pend.pop(0)
            R.append(mk("v_cvt_pk_bf16_f32 v%d, v%d, v%d" % (o + (p >> 1), u[p - 1], u[p])))
    for p in pend:
        R.append(mk("v_cvt_pk_bf16_f32 v%d, v%d, v%d" % (o + (p >> 1), u[p - 1], u[p])))
    R.append(mk("s_add_u32 s%d, s%d, %d" % (sT2, sHoff, tile * 2 * 56 * 1024)))
    R.append(mk("buffer_store_dwordx4 %s, v%d, s[%d:%d], s%d offen%s" % (vr(o), vHoff, sWS, sWS + 3, sT2, opts.get("hst", "")), vm="hst"))
    return R

def gemm1(p, opts):
    p("s_sub_u32 s3, s2, 32")
    p("s_and_b32 s4, s3, 7\ns_lshr_b32 s5, s3, 3")
    p("s_and_b32 s6, s4, 1\ns_lshl_b32 s6, s6, 2\ns_and_b32 s7, s5, 3\ns_add_u32 s%d, s6, s7" % sTB)
    p("s_lshr_b32 s6, s4, 1\ns_mul_i32 s6, s6, 7\ns_lshr_b32 s7, s5, 2\ns_add_u32 s%d, s6, s7" % sCB)
    p("v_and_b32 v1, 63, v0\nv_lshrrev_b32 v2, 6, v0\ns_nop 0\nv_readfirstlane_b32 s%d, v2" % sWave)
    p("v_lshrrev_b32 v2, 3, v1\nv_and_b32 v3, 7, v1\nv_lshrrev_b32 v4, 4, v1")
    for j in range(4):
        p("v_add_u32 v5, %d, v4\nv_and_b32 v5, 7, v5\nv_xor_b32 v5, v5, v3\nv_lshlrev_b32 v5, 4, v5" % (4 * j))
        p("v_lshl_add_u32 v5, v2, 10, v5\nv_add_u32 v%d, %d, v5" % (vXD + j, j * 7168))
    p("s_waitcnt lgkmcnt(0)")
    srd(p, sQ, 36, 2048 * 1024)
    srd(p, sWS, 44, WS_SZ)
    p("s_cmp_ge_u32 s%d, 2\ns_cselect_b32 s40, s42, s40\ns_cselect_b32 s41, s43, s41" % sWave)
    srd(p, sW, 40, 512 * 3584)
    p("s_mov_b32 s%d, s46\ns_mov_b32 s%d, s47" % (sDbg, sDbg + 1))
    p("s_lshl_b32 s3, s%d, 18\ns_lshl_b32 s4, s%d, 15\ns_add_u32 s%d, s3, s4" % (sTB, sWave, sXoffA))
    p("s_add_u32 s3, s3, 131072\ns_lshl_b32 s4, s%d, 8\ns_add_u32 s%d, s3, s4" % (sWave, sXoffB))
    p("s_lshl_b32 s%d, s%d, 12\ns_add_u32 s%d, s%d, 16384\ns_lshl_b32 s%d, s%d, 13" % (sLdsW, sWave, sLdsX, sLdsW, sLdsXB, sWave))
    p("s_lshr_b32 s3, s%d, 1\ns_lshl_b32 s3, s3, 2" % sWave)
    p("v_and_b32 v5, 1, v4\nv_lshlrev_b32 v5, 1, v5\nv_xor_b32 v5, s3, v5\nv_xor_b32 v5, v5, v3\nv_lshlrev_b32 v5, 4, v5")
    p("s_and_b32 s4, s%d, 1\ns_mul_i32 s4, s4, %d\ns_lshl_b32 s5, s%d, 7\ns_add_u32 s4, s4, s5" % (sWave, 32 * 3584, sCB))
    p("v_mul_u32_u24 v6, 3584, v2\nv_add3_u32 v5, v5, v6, s4")
    for j in range(4):
        p("v_add_u32 v%d, %d, v5" % (vWD + j, j * (8 * 3584 - 1024)))
    for s in range(NSLOT):
        for x in g1_dma_stage(s): p.add(x)
    stamp(p, 1, opts)
    p("v_and_b32 v2, 31, v1\nv_lshrrev_b32 v3, 5, v1\nv_lshrrev_b32 v4, 1, v2\nv_and_b32 v4, 7, v4")
    for ks in range(4):
        p("v_add_u32 v5, %d, v3\nv_xor_b32 v5, v5, v4\nv_lshlrev_b32 v5, 4, v5\nv_lshl_add_u32 v%d, v2, 7, v5" % (2 * ks, vXA + ks))
        p("v_add_u32 v%d, 0x10000, v%d\nv_add_u32 v%d, 0x20000, v%d" % (vXA + 4 + ks, vXA + ks, vXA + 8 + ks, vXA + ks))
    p("v_bfe_u32 v2, v1, 2, 2\nv_bfe_u32 v4, v1, 1, 1\nv_and_b32 v5, 1, v1\nv_bfe_u32 v6, v1, 4, 1")
    p("v_lshrrev_b32 v7, 1, v2\nv_lshl_add_u32 v7, v4, 1, v7\nv_xor_b32 v7, s%d, v7\nv_lshlrev_b32 v7, 5, v7" % sWave)
    p("v_lshl_add_u32 v7, v5, 4, v7\nv_lshl_add_u32 v7, v6, 3, v7\nv_lshl_add_u32 v7, v4, 13, v7")
    p("v_lshl_add_u32 v2, v3, 3, v2\nv_lshl_add_u32 v%d, v2, 7, v7" % vWA)
    p("v_add_u32 v%d, 0x10000, v%d\nv_add_u32 v%d, 0x20000, v%d" % (vWA + 1, vWA, vWA + 2, vWA))
    p("v_bfe_u32 v2, v1, 4, 1\nv_mul_u32_u24 v2, 57344, v2\nv_and_b32 v4, 15, v1\nv_lshl_add_u32 v4, v3, 4, v4")
    p("s_and_b32 s3, s%d, 1\ns_lshl_b32 s3, s3, 9\nv_lshl_add_u32 v4, v4, 4, v2\nv_add_u32 v%d, s3, v4" % (sWave, vHoff))
    p("s_mul_i32 s3, s%d, %d\ns_lshl_b32 s4, s%d, 1\ns_lshr_b32 s5, s%d, 1\ns_add_u32 s4, s4, s5\ns_lshl_b32 s4, s4, 10\ns_add_u32 s%d, s3, s4" % (sTB, 16 * 56 * 1024, sCB, sWave, sHoff))
    if WS_H: p("s_add_u32 s%d, s%d, %d" % (sHoff, sHoff, WS_H))
    p("v_and_b32 v2, 31, v1\nv_lshlrev_b32 v%d, 4, v2" % vSToff)
    p("s_lshl_b32 s3, s%d, 12\ns_add_u32 s%d, s3, %d" % (sTB, sSToff, WS_ST))
    p("v_bfe_u32 v2, v1, 3, 1\nv_mul_u32_u24 v2, 1792, v2\nv_bfe_u32 v4, v1, 2, 1\nv_lshl_add_u32 v2, v4, 3, v2")
    p("v_bfe_u32 v4, v1, 4, 1\nv_lshl_add_u32 v2, v4, 2, v2\nv_and_b32 v4, 3, v1\nv_add_u32 v2, v2, v4")
    p("s_lshl_b32 s3, s%d, 6\ns_lshl_b32 s4, s%d, 4\ns_add_u32 s3, s3, s4\nv_add_u32 v2, s3, v2\nv_lshlrev_b32 v2, 2, v2" % (sCB, sWave))
    p("v_add_u32 v2, %d, v2\nv_lshlrev_b32 v4, 31, v3\nv_or_b32 v%d, v2, v4" % (WS_CS, vCSoff))
    p("v_mov_b32 v%d, 0" % vZero)
    for r in (1, 2, 3):
        p("v_mov_b32 v%d, 0\nv_mov_b32 v%d, 0\nv_mov_b32 v%d, 0" % (vR1A + r, vR1B + r, vR1B + 4 + r))

    def rdW(n):
        s, ks = n >> 2, n & 3
        w, off = lds_win((s % NSLOT) * SLOT + ks * 2048)
        return [mk("ds_read_b64_tr_b16 a[%d:%d], v%d offset:%d" % (4 * n, 4 * n + 1, vWA + w, off), lg="W%d" % n),
                mk("ds_read_b64_tr_b16 a[%d:%d], v%d offset:%d" % (4 * n + 2, 4 * n + 3, vWA + w, off + 512), lg="W%d" % n)]
    def rdXA(n, i):
        s, ks = n >> 2, n & 3
        w, off = lds_win((s % NSLOT) * SLOT + 16384 + i * 4096)
        return mk("ds_read_b128 %s, v%d offset:%d" % (vr(vXF + 16 * (n & 1) + 4 * i), vXA + 4 * w + ks, off), lg="X%d_%d" % (n, i))
    def rdXB(bb, n):
        s = 8 + bb
        w, off = lds_win((s % NSLOT) * SLOT + (n >> 2) * 4096)
        return mk("ds_read_b128 %s, v%d offset:%d" % (vr(vXF + 4 * (n & 7)), vXA + 4 * w + (n & 3), off), lg="B%d_%d" % (bb, n))

    p.wait(vm="st0")
    p("s_barrier")
    stamp(p, 2, opts)
    for x in rdW(0): p.add(x)
    for i in range(4): p.add(rdXA(0, i))
    dq = []
    PD = 5
    for n in range(32):
        s, ks = n >> 2, n & 3
        gaps = [[], [], [], []]
        if ks == 3:
            gaps[0] += [W(vm="st%d" % (s + 1), lg="*"), mk("s_barrier")]
            if s + NSLOT < 12: dq = g1_dma_stage(s + NSLOT)
        if n < 31:
            gaps[0] += rdW(n + 1)
            gaps[1] += [rdXA(n + 1, 0), rdXA(n + 1, 1)]
            gaps[2] += [rdXA(n + 1, 2), rdXA(n + 1, 3)]
        else:
            pass
        if n == 18:
            gaps[3].append(mk("global_load_dword v%d, v%d, s[%d:%d] sc1" % (vPoll, vZero, sDbg, sDbg + 1), vm="poll"))
        if n == 23:
            gaps[2] += [mk("v_readfirstlane_b32 s%d, v%d" % (sT2, vPoll))]
            gaps[3] += [mk("s_cmp_lt_u32 s%d, 32" % sT2), mk("s_cbranch_scc1 L_g1_slow"), I("L_g1_ready:", kind="label", cost=0)]
            gaps[1].append(W(vm="poll"))
        if 24 <= n < 28:
            for t in (2 * (n - 24), 2 * (n - 24) + 1):
                gaps[3].append(mk("buffer_load_dwordx4 %s, v%d, s[%d:%d], s%d offen offset:%d sc1" % (vr(vST + 4 * t), vSToff, sWS, sWS + 3, sSToff, t * 512), vm="stats"))
        if n == 28:
            gaps[3].append(mk("buffer_load_dword v%d, v%d, s[%d:%d], 0 offen sc1" % (vR1A, vCSoff, sWS, sWS + 3), vm="stats"))
        for g in (0, 1, 2, 3):
            if ks == 3 and g == 0: continue
            while dq and sum(x.cost for x in gaps[g]) < (12 if g < 3 else 16):
                gaps[g].append(dq.pop(0))
        for i in range(4):
            p.wait(lg=["W%d" % n, "X%d_%d" % (n, i)] if i == 0 else "X%d_%d" % (n, i))
            a = acc_of(i)
            p("v_mfma_f32_32x32x16_bf16 %s, a[%d:%d], %s, %s" % (vr(a, 16), 4 * n, 4 * n + 3, vr(vXF + 16 * (n & 1) + 4 * i), vr(a, 16) if n else "0"))
            if n == 31 and i >= 1:
                pass
            for x in gaps[i]: p.add(x)
            if n == 31 and i in (0, 1):
                p.add(rdXB(0, 2 * i)); p.add(rdXB(0, 2 * i + 1))
    assert not dq
    stamp(p, 3, opts)
    p.wait(vm="stats")
    p("v_mov_b32 v%d, v%d" % (vR1B, vST))
    p("v_mov_b32 v%d, v%d" % (vR1B + 4, vST + 4))
    p.add(rdXB(0, 4))
    for t in range(4):
        a = acc_of(t)
        p("v_mfma_f32_32x32x16_bf16 %s, %s, %s, %s" % (vr(a, 16), vr(vR1A), vr(vR1B + 4 * (t & 1)), vr(a, 16)))
        p("v_mov_b32 v%d, v%d" % (vR1B + 4 * (t & 1), vST + 4 * (t + 2)))
        p("s_nop 0")
    ep = []
    for t in range(7):
        ep.append(g1_epilogue(t, opts))
    total = sum(x.cost for e in ep for x in e)
    ngaps = 4 * 33
    done = 0
    cur = 0
    gi = 0
    for bb in range(4):
        tile = 4 + bb
        a = acc_of(tile)
        for n in range(-1, 32):
            gap = []
            if n == -1:
                p("v_mfma_f32_32x32x16_bf16 %s, %s, %s, 0" % (vr(a, 16), vr(vR1A), vr(vR1B + 4 * (bb & 1))))
                if bb < 2: gap.append(mk("v_mov_b32 v%d, v%d" % (vR1B + 4 * (bb & 1), vST + 4 * (tile + 2))))
            else:
                if n % 2 == 0:
                    p.wait(lg="B%d_%d" % (bb, n + 1))
                p("v_mfma_f32_32x32x16_bf16 %s, a[%d:%d], %s, %s" % (vr(a, 16), 4 * n, 4 * n + 3, vr(vXF + 4 * (n & 7)), vr(a, 16)))
                m = n + PD
                if m == 32 and bb < 3:
                    gap += [W(vm="st%d" % (9 + bb)), mk("s_barrier")]
                if m < 32: gap.append(rdXB(bb, m))
                elif bb < 3: gap.append(rdXB(bb + 1, m - 32))
            gi += 1
            target = total * gi / float(ngaps)
            budget = 24 - (4 if (n % 2 == 1) else 0)
            while cur < 7 and done < target:
                if cur >= 4 and (cur - 4 >= bb or (cur - 4 == bb - 1 and n < 4)): break
                if cur < 4 and bb == 0 and n < 2: break
                x = ep[cur][0]
                if sum(y.cost for y in gap) + x.cost > budget + 4: break
                gap.append(ep[cur].pop(0)); done += x.cost
                if not ep[cur]: cur += 1
            for x in gap: p.add(x)
    stamp(p, 4, opts)
    while cur < 7:
        for x in ep[cur]: p.add(x)
        cur += 1
    p("s_nop 7\ns_nop 3")
    for x in g1_epilogue(7, opts): p.add(x)
    stamp(p, 5, opts)

def gemm1_slow(a):
    a.label("L_g1_slow")
    a("s_sleep 2")
    a("global_load_dword v%d, v%d, s[%d:%d] sc1" % (vPoll, vZero, sDbg, sDbg + 1))
    a("s_waitcnt vmcnt(0)")
    a("v_readfirstlane_b32 s%d, v%d" % (sT2, vPoll))
    a("s_cmp_lt_u32 s%d, 32" % sT2)
    a("s_cbranch_scc1 L_g1_slow")
    a("s_branch L_g1_ready")

def aux(p, opts):
    sK = 48; sV = 52; sG = 12; sU = 24; sSh = 56
    p("v_and_b32 v1, 63, v0\nv_lshrrev_b32 v2, 6, v0\ns_nop 0\nv_readfirstlane_b32 s%d, v2" % sWave)
    p("v_lshrrev_b32 v2, 3, v1\nv_and_b32 v3, 7, v1")
    p("s_load_dwordx4 s[4:7], s[0:1], 8\ns_load_dwordx2 s[22:23], s[0:1], 24")
    p("s_waitcnt lgkmcnt(0)")
    srd(p, sQ, 36, 2048 * 1024)
    srd(p, sWS, 44, WS_SZ)
    srd(p, sG, 40, 512 * 3584)
    srd(p, sU, 42, 512 * 3584)
    srd(p, sK, 4, 2048 * 1024)
    srd(p, sV, 6, 2048 * 1024)
    srd(p, sSh, 22, 4096)
    p("s_mov_b32 s%d, s46\ns_mov_b32 s%d, s47" % (sDbg, sDbg + 1))
    p("s_lshl_b32 s3, s2, 6\ns_lshl_b32 s4, s%d, 4\ns_add_u32 s3, s3, s4" % sWave)
    p("v_add_u32 v4, s3, v2\nv_lshlrev_b32 v5, 10, v4\nv_lshl_add_u32 v5, v3, 4, v5\nv_add_u32 v6, 8192, v5")
    for g in range(2):
        for i in range(8):
            p("buffer_load_dwordx4 %s, v%d, s[%d:%d], 0 offen offset:%d" % (vr(64 + 32 * g + 4 * i), 5 + g, sQ, sQ + 3, i * 128), vm="sx%d" % g)
    p("s_mul_i32 s4, s%d, %d\ns_lshl_b32 s5, s2, 7\ns_add_u32 s4, s4, s5" % (sWave, 128 * 3584))
    p("s_cmp_lt_u32 s2, 28\ns_cselect_b32 s4, s4, 0x40000000")
    p("v_mul_u32_u24 v7, 3584, v2\nv_lshl_add_u32 v7, v3, 4, v7\nv_add_u32 v7, s4, v7")
    for m in range(2):
        for i in range(16):
            p("s_mov_b32 s5, %d" % (i * 8 * 3584))
            p("buffer_load_dwordx4 %s, v7, s[%d:%d], s5 offen" % (vr(128 + 64 * m + 4 * i), (sG, sU)[m], (sG, sU)[m] + 3), vm="cw%d_%d" % (m, i))
    p("s_mov_b32 s5, 0x3f803f80\ns_mov_b32 s6, 0x00003f80\ns_mov_b32 s7, 0x3f800000")
    for g in range(2):
        p.wait(vm="sx%d" % g)
        s1 = 8 + 4 * g; s2 = s1 + 1
        for r in range(32):
            x = 64 + 32 * g + r
            c = r & 1
            p("v_dot2_f32_bf16 v%d, v%d, s5, %s" % (s1 + 2 * c, x, "v%d" % (s1 + 2 * c) if r > 1 else "0"))
            p("v_dot2_f32_bf16 v%d, v%d, v%d, %s" % (s2 + 2 * c, x, x, "v%d" % (s2 + 2 * c) if r > 1 else "0"))
    p("s_nop 2")
    p("v_add_f32 v8, v8, v10\nv_add_f32 v9, v9, v11\nv_add_f32 v10, v12, v14\nv_add_f32 v11, v13, v15")
    for mod in ("quad_perm:[1,0,3,2]", "quad_perm:[2,3,0,1]", "row_half_mirror"):
        p("s_nop 1")
        for r in range(8, 12):
            p("v_add_f32_dpp v%d, v%d, v%d %s row_mask:0xf bank_mask:0xf" % (r, r, r, mod))
    p("s_lshr_b32 s3, s2, 3\ns_lshl_b32 s3, s3, 9\ns_lshl_b32 s4, s%d, 7\ns_add_u32 s3, s3, s4" % sWave)
    p("s_and_b32 s4, s2, 7\ns_lshl_b32 s4, s4, 7")
    p("v_lshl_add_u32 v16, v2, 3, s3\nv_lshlrev_b32 v17, 10, v16\nv_lshl_add_u32 v17, v3, 4, v17\nv_add_u32 v17, s4, v17")
    p("v_add_u32 v18, 4096, v17\nv_add_u32 v19, 0xfffff400, v17")
    def kvloads(ps, kb):
        so = "s30" if ps else "0"
        for j in range(11):
            reg, off = (19, j) if j < 3 else ((17, j - 3) if j < 7 else (18, j - 7))
            if ps and j < 3: reg, off = (20, j)
            p("buffer_load_dwordx4 %s, v%d, s[%d:%d], %s offen offset:%d" % (vr(kb + 4 * j), reg, sK, sK + 3, so if not (ps and j < 3) else "0", off * 1024), vm="kv%d" % ps)
        for j in range(8):
            reg, off = (17, j) if j < 4 else (18, j - 4)
            p("buffer_load_dwordx4 %s, v%d, s[%d:%d], %s offen offset:%d" % (vr(kb + 44 + 4 * j), reg, sV, sV + 3, so, off * 1024), vm="kv%d" % ps)
    p("s_mov_b32 s30, 65536\nv_add_u32 v20, %d, v17" % (65536 - 3072))
    kvloads(0, 52)
    for g in range(2):
        S1 = 8 + 2 * g; S2 = S1 + 1; o = 24 + 4 * g
        p("v_mul_f32 v%d, %s, v%d" % (S1, hex(f2u(1.0 / 512)), S1))
        p("v_mul_f32 v%d, %s, v%d" % (S2, hex(f2u(1.0 / 512)), S2))
        p("v_fma_f32 v%d, -v%d, v%d, v%d" % (S2, S1, S1, S2))
        p("v_max_f32 v%d, 0, v%d" % (S2, S2))
        p("v_cvt_pk_bf16_f32 v%d, -v%d, -v%d" % (o, S1, S1))
        p("v_cvt_pk_bf16_f32 v%d, v%d, v%d" % (S2, S2, S2))
        p("v_and_b32 v%d, 0xffff0000, v%d" % (S2, S2))
        p("v_add_f32 v%d, %s, v%d" % (S2, hex(f2u(1e-5)), S2))
        p("v_cvt_pk_bf16_f32 v%d, v%d, v%d" % (S2, S2, S2))
        p("v_and_b32 v%d, 0xffff0000, v%d" % (S2, S2))
        p("v_sqrt_f32 v%d, v%d\ns_nop 0" % (S2, S2))
        p("v_cvt_pk_bf16_f32 v%d, v%d, v%d" % (S2, S2, S2))
        p("v_and_b32 v%d, 0xffff0000, v%d" % (S2, S2))
        p("v_rcp_f32 v%d, v%d\ns_nop 0" % (o + 3, S2))
        p("v_mul_f32 v%d, %s, v%d" % (o + 1, hex(f2u(-LOG2E)), o + 3))
        p("v_mul_f32 v%d, %s, v%d" % (o + 2, hex(f2u(-LOG2E)), S2))
    p("v_lshlrev_b32 v21, 4, v4\nv_add_u32 v21, %d, v21\nv_cmp_eq_u32 vcc, 0, v3\nv_mov_b32 v22, 0x80000000\ns_nop 0\nv_cndmask_b32 v21, v22, v21, vcc" % WS_ST)
    p("buffer_store_dwordx4 v[24:27], v21, s[%d:%d], 0 offen sc1" % (sWS, sWS + 3), vm="pub")
    p("buffer_store_dwordx4 v[28:31], v21, s[%d:%d], 0 offen offset:128 sc1" % (sWS, sWS + 3), vm="pub")
    for m in range(2):
        for i in range(16):
            p.wait(vm="cw%d_%d" % (m, i))
            for d in range(4):
                x = 128 + 64 * m + 4 * i + d
                a0 = 32 + 8 * m + 2 * d
                p("v_dot2_f32_bf16 v%d, v%d, s6, %s" % (a0, x, "v%d" % a0 if i else "0"))
                p("v_dot2_f32_bf16 v%d, v%d, s7, %s" % (a0 + 1, x, "v%d" % (a0 + 1) if i else "0"))
    kvloads(1, 128)
    p("s_and_b32 s4, s2, 7\ns_lshl_b32 s4, s4, 9\nv_lshl_add_u32 v21, v3, 6, s4")
    for i in range(4):
        p("buffer_load_dwordx4 %s, v21, s[%d:%d], 0 offen offset:%d" % (vr(204 + 4 * i), sSh, sSh + 3, 16 * i), vm="shw")
    p("s_lshl_b32 s4, s%d, 12\nv_lshlrev_b32 v21, 9, v2\nv_lshl_add_u32 v21, v3, 5, v21\nv_add_u32 v21, s4, v21" % sWave)
    p("s_nop 1")
    p("ds_write_b128 v21, v[32:35]\nds_write_b128 v21, v[36:39] offset:16\nds_write_b128 v21, v[40:43] offset:256\nds_write_b128 v21, v[44:47] offset:272")
    p("s_waitcnt lgkmcnt(0)\ns_barrier")
    p("v_and_b32 v21, 127, v0\nv_lshlrev_b32 v21, 2, v21\nv_lshrrev_b32 v22, 7, v0\nv_lshl_add_u32 v21, v22, 13, v21")
    for i in range(16):
        p("ds_read_b32 v%d, v21 offset:%d" % (32 + i, i * 512), lg="cs")
    p.wait(lg="*")
    for st in (8, 4, 2, 1):
        for i in range(st):
            p("v_add_f32 v%d, v%d, v%d" % (32 + i, 32 + i, 32 + i + st))
    p("v_lshlrev_b32 v21, 2, v0\ns_barrier\nds_write_b32 v21, v32\ns_waitcnt lgkmcnt(0)\ns_barrier")
    p("v_and_b32 v21, 127, v0\nv_lshlrev_b32 v22, 2, v21\nds_read_b32 v32, v22\nds_read_b32 v33, v22 offset:512\ns_waitcnt lgkmcnt(0)")
    p("v_add_f32 v32, v32, v33\nv_cvt_pk_bf16_f32 v33, v32, v32\nv_and_b32 v33, 0xffff0000, v33\nv_sub_f32 v32, v32, v33\nv_cvt_pk_bf16_f32 v32, v33, v32")
    p("v_lshrrev_b32 v22, 6, v21\nv_mul_u32_u24 v22, 1792, v22\nv_and_b32 v21, 63, v21\ns_lshl_b32 s4, s2, 6\nv_add3_u32 v21, v21, v22, s4")
    p("v_lshlrev_b32 v21, 2, v21\nv_add_u32 v21, %d, v21" % WS_CS)
    p("s_cmp_lt_u32 s2, 28\ns_cselect_b32 s4, 128, 0\nv_cmp_gt_u32 vcc, s4, v0\nv_mov_b32 v22, 0x80000000\ns_nop 0\nv_cndmask_b32 v21, v22, v21, vcc")
    p("buffer_store_dword v32, v21, s[%d:%d], 0 offen sc1" % (sWS, sWS + 3), vm="pub")
    p("s_waitcnt vmcnt(0)\ns_barrier")
    p("v_mov_b32 v21, 0\nv_mov_b32 v22, 1\nv_cmp_eq_u32 vcc, 0, v0\ns_and_saveexec_b64 s[4:5], vcc\ns_cbranch_execz L_aux_sig")
    p("global_atomic_add v21, v22, s[%d:%d] sc1" % (sDbg, sDbg + 1), vm="sig")
    p.label("L_aux_sig")
    p("s_mov_b64 exec, s[4:5]")
    stamp(p, 3, opts)
    wb = 220
    for c in range(8):
        for i in range(4):
            src = 204 + 2 * c + (i >> 1)
            dst = wb + ((c >> 1) * 4 + i) * 2 + (c & 1)
            p(("v_and_b32 v%d, 0xffff0000, v%d" if i & 1 else "v_lshlrev_b32 v%d, 16, v%d") % (dst, src))
    p("s_and_b32 s4, s2, 7\ns_lshl_b32 s4, s4, 18\ns_add_u32 s4, s4, %d" % (WS_XR + 4080))
    p("v_lshlrev_b32 v21, 15, v3\nv_lshlrev_b32 v22, 1, v16\nv_sub_u32 v21, v21, v22\nv_add_u32 v21, s4, v21")
    K = 24; V = 46; A = 48; KV = 4
    for ps in range(2):
        kb = (52, 128)[ps]
        for u in range(4):
            for j in range(11):
                p("v_lshlrev_b32 v%d, 16, v%d\nv_and_b32 v%d, 0xffff0000, v%d" % (K + 2 * j, kb + 4 * j + u, K + 2 * j + 1, kb + 4 * j + u))
            for t in range(8):
                kv = KV + 2 * t
                w = lambda i: vr(wb + (u * 4 + i) * 2, 2)
                p("v_lshlrev_b32 v%d, 16, v%d\nv_and_b32 v%d, 0xffff0000, v%d" % (V, kb + 44 + 4 * t + u, V + 1, kb + 44 + 4 * t + u))
                p("v_pk_mul_f32 %s, %s, %s" % (vr(kv, 2), vr(K + 2 * t, 2), w(3)))
                for i in (2, 1, 0):
                    p("v_pk_fma_f32 %s, %s, %s, %s" % (vr(kv, 2), vr(K + 2 * (t + 3 - i), 2), w(i), vr(kv, 2)))
                p("v_pk_mul_f32 %s, %s, %s" % (vr(kv, 2), vr(kv, 2), vr(V, 2)))
            for e in range(2):
                o = 48 if e == 0 else 252
                for q in range(4):
                    p("v_cvt_pk_bf16_f32 v%d, v%d, v%d" % (o + q, KV + 2 * (7 - 2 * q) + e, KV + 2 * (6 - 2 * q) + e))
                p("s_mov_b32 s4, %d" % ((2 * u + e) * 4096))
                p("buffer_store_dwordx4 %s, v21, s[%d:%d], s4 offen%s" % (vr(o), sWS, sWS + 3, opts.get("xst", "")), vm="kvst")
        if ps == 0:
            p("v_subrev_u32 v21, 128, v21")
    stamp(p, 5, opts)

def prof_store(a, opts, nst=6):
    if not opts.get("prof"): return
    a("s_waitcnt vmcnt(0) lgkmcnt(0)")
    a("s_memtime s[%d:%d]\ns_memrealtime s[76:77]\ns_waitcnt lgkmcnt(0)" % (60 + 2 * nst, 61 + 2 * nst))
    a("s_load_dwordx2 s[4:5], s[0:1], 96\ns_waitcnt lgkmcnt(0)")
    a("s_lshl_b32 s6, s2, 7\ns_add_u32 s6, s6, %d\ns_add_u32 s4, s4, s6\ns_addc_u32 s5, s5, 0" % (0x1000000 + opts.get("prof_off", 0)))
    for i in range(20):
        a("v_mov_b32 v%d, s%d" % (8 + i, 60 + i))
    a("v_mov_b32 v2, 0\nv_cmp_eq_u32 vcc, 0, v0\ns_and_saveexec_b64 s[6:7], vcc\ns_cbranch_execz L_prof_skip%s" % opts.get("sfx", ""))
    for i in range(5):
        a("global_store_dwordx4 v2, v[%d:%d], s[4:5] offset:%d" % (8 + 4 * i, 11 + 4 * i, 16 * i))
    a("s_waitcnt vmcnt(0)")
    a.label("L_prof_skip%s" % opts.get("sfx", ""))

def emit(a, p, name):
    lines = p.resolve()
    pr = check_hazards(lines, name)
    for x in pr[:40]: print("HAZARD", x, file=sys.stderr)
    if pr: raise SystemExit("hazards in " + name)
    for l in lines: a(l if l.endswith(":") else "  " + l)

def k1(a, opts):
    a(kernel_begin("k1_kernel"))
    a("s_cmp_ge_u32 s2, 256\ns_cbranch_scc1 L_k1_end")
    if opts.get("prof"):
        a("s_memrealtime s[78:79]\ns_memtime s[60:61]")
        for i in range(2, 16): a("s_mov_b32 s%d, 0" % (60 + i))
    a("s_load_dwordx2 s[36:37], s[0:1], 0\ns_load_dwordx4 s[40:43], s[0:1], 56\ns_load_dwordx2 s[44:45], s[0:1], 96\ns_load_dwordx2 s[46:47], s[0:1], 88")
    a("s_waitcnt lgkmcnt(0)")
    a("s_lshl_b32 s4, s2, 7\ns_add_u32 s4, s4, 0xB10000\ns_add_u32 s4, s44, s4\ns_addc_u32 s5, s45, 0")
    a("v_mov_b32 v2, 0\nv_lshlrev_b32 v1, 2, v0\nv_cmp_gt_u32 vcc, 4, v0\ns_and_saveexec_b64 s[6:7], vcc\ns_cbranch_execz L_k1_z")
    a("global_store_dword v1, v2, s[4:5]")
    a.label("L_k1_z")
    a("s_mov_b64 exec, s[6:7]")
    a("s_cmp_lt_u32 s2, 32\ns_cbranch_scc1 L_aux")
    p = Prog(); gemm1(p, opts); emit(a, p, "gemm1")
    o = dict(opts); o["sfx"] = "_g1"; prof_store(a, o)
    a("s_endpgm")
    gemm1_slow(a)
    a.label("L_aux")
    p = Prog(); aux(p, opts); emit(a, p, "aux")
    o = dict(opts); o["sfx"] = "_aux"; prof_store(a, o)
    a.label("L_k1_end")
    a("s_endpgm")

def build(opts):
    a = A()
    launches = ["; @launch kernel=k1_kernel grid=(256,1,1) block=(256,1,1) lds=163840"]
    if not opts.get("k1only"):
        launches.append("; @launch kernel=k2_kernel grid=(256,1,1) block=(256,1,1) lds=163840")
    a(header(launches))
    k1(a, opts)
    if not opts.get("k1only"):
        import gen2
        gen2.k2(a, opts)
    a(RODATA)
    a(kernel_desc("k1_kernel", 384, 96, 256))
    if not opts.get("k1only"):
        a(".p2align 6")
        a(kernel_desc("k2_kernel", 512, 96, 256))
    return a.text()

if __name__ == "__main__":
    opts = {}
    out = sys.argv[1]
    for kv in sys.argv[2:]:
        k, _, v = kv.partition("=")
        opts[k] = int(v) if v.lstrip("-").isdigit() else (v if v else 1)
    for k in ("hst", "xst", "yst"):
        if k in opts: opts[k] = " " + opts[k].replace("+", " ")
    open(out, "w").write(build(opts))
```

```python
import sys, struct
from asmlib import *
from sched import *

WS_H  = 0x000000
WS_XR = 0x700000
WS_YT = 0x900000
WS_ST = 0xB00000
WS_FK = 0xB08000
WS_FH = 0xB0A000
WS_FY = 0xB12000
WS_FD = 0xB1A000
WS_CS = 0xB20000
WS_SZ = 0xC00000
LOG2E = 1.4426950408889634
SPIN_MAX = 1 << 17

def f2u(x): return struct.unpack("<I", struct.pack("<f", x))[0]
def vr(b, n=4, p="v"): return "%s[%d:%d]" % (p, b, b + n - 1) if n > 1 else "%s%d" % (p, b)
def S4(b): return "s[%d:%d]" % (b, b + 3)
def srd(p, d, lo, size):
    p("s_mov_b32 s%d, s%d\ns_and_b32 s%d, s%d, 0xffff\ns_mov_b32 s%d, 0x%x\ns_mov_b32 s%d, 0x20000" % (d, lo, d + 1, lo + 1, d + 2, size, d + 3))

SLOT = 32768
CONV = 98304; CH_STRIDE = 21504; XR_OFF = 16640
WDL = [141312, 0, 16384, 32768, 49152, 65536, 81920]
RED = 0; RS = 272
YT_L = CONV; XCH = CONV
sQ = 8; sW = 12; sWS = 16; sWave = 20; sTB = 21; sCB = 22; sLdsX = 23; sLdsW = 24; sLdsXB = 25; sT0 = 26; sT1 = 27
sHa = 28; sHb = 29; sSTa = 30; sSTb = 31; sDbg = 32; sT2 = 34; sT3 = 35; sWd = 36; sHk = 40; sOut = 44; sTag = 48
sXB = 50
sCSw = 52; sTB2 = 53; sDB = 54; sCV = 55; sD = 56; sYoff = 57; sFlH = 58; sFlY = 59
sTab = 60
sTabW = 76
sHalf = 90; sCh4k = 91; sSpin = 92; sWdL = 93
vWD = 10; vXD = 14; vXA = 18; vWA = 26; vHoff = 28; vSToff = 29; vCSoff = 30; vNon = 32; vL16 = 31
vOnes = 36; vR1A = 40; vR1B = 44; vST = 52; vXF = 84; vACC = 116; vTMP = 212; vOUT = 220
vCSR = 180
vCSA = 196
uWD = 228; uH = 232; uTR = 236; uCA = 240; uCB = 241; uYst = 242; uFY = 243; uX = 244; uSto = 245; uFH = 246; uFK = 247
uHead = 248; uHeadA = 249; uPoll = 250
uAD = 4
uTmp = 32; uXin = 44; uSt = 52; uWF = 56; uCacc = 88; uAcc = 120; uE = 184 - 64
aWD = 0; aCF = 128; aH = 128

PROF_BASE = 94
def stamp(p, idx, opts):
    if opts.get("prof"):
        p("s_memtime s[94:95]\ns_waitcnt lgkmcnt(0)\nv_writelane_b32 v255, s94, %d" % idx, cost=0)

def acc_of(t): return vACC + 16 * {0: 0, 1: 1, 2: 2, 3: 3, 4: 4, 5: 5, 6: 0, 7: 1}[t]
def win(addr): return addr >> 16, addr & 0xffff

def dma(v, srd_, so, off, tag, fl=""):
    return mk("buffer_load_dwordx4 v%d, %s, %s offen offset:%d%s lds" % (v, S4(srd_), so, off, fl), vm=tag)

def g1_stage(s, opts):
    L = []; base = (s % 3) * SLOT; tag = "st%d" % s
    fw = opts.get("fw", ""); fx = opts.get("fx", "")
    if s < 8:
        L.append(mk("s_add_u32 m0, s%d, %d" % (sLdsW, base)))
        L += [dma(vWD + j, sW, "s%d" % (sTab + s), j * 1024, tag, fw) for j in range(4)]
        L.append(mk("s_add_u32 m0, s%d, %d" % (sLdsX, base)))
        L += [dma(vXD + j, sQ, "s%d" % (sTab + 8 + s), j * 1024, tag, fx) for j in range(4)]
        L.insert(1, mk("s_nop 0")); L.insert(7, mk("s_nop 0"))
    else:
        for h in range(2):
            L.append(mk("s_add_u32 m0, s%d, %d" % (sLdsXB, base + h * 4096)))
            L.append(mk("s_add_u32 s%d, s%d, %d" % (sT0 + h, sXB + h, (s - 8) * 32768)))
            L += [dma(vXD + j, sQ, "s%d" % (sT0 + h), j * 1024, tag, fx) for j in range(4)]
    return L

def wd_loads(s, opts):
    L = [mk("s_add_u32 m0, s%d, %d" % (sWdL, WDL[s % 7])), mk("s_nop 0")]
    L += [dma(uWD + j, sWd, "s%d" % (sTabW + s), j * 1024, "w%d" % s, opts.get("fd", "")) for j in range(4)]
    return L
def h_loads(s):
    L = []
    for nt in range(4):
        r = aH + 16 * (s % 8) + 4 * nt
        L.append(mk("buffer_load_dwordx4 a[%d:%d], v%d, %s, s%d offen sc1" % (r, r + 3, uH + nt, S4(sWS), sTab + s), vm="h%d" % s))
    return L
def wd_reads(s):
    L = []
    w, off = win(WDL[s % 7])
    for mt in range(4):
        if s < 7: r = "a[%d:%d]"; b = aWD + 16 * s + 4 * mt
        else: r = "v[%d:%d]"; b = uWF + 16 * (s & 1) + 4 * mt
        reg = uTR + mt
        L.append((r % (b, b + 1), reg, WDL[s % 7], "t%d" % s))
        L.append((r % (b + 2, b + 3), reg, WDL[s % 7] + 512, "t%d" % s))
    return L
def conv_copies(opts):
    L = []
    for cc in range(2):
        L.append(mk("s_lshl_b32 s7, s%d, 1" % sHalf)); L.append(mk("s_add_u32 s7, s7, %d" % cc))
        L.append(mk("s_mul_i32 s6, s7, 4160")); L.append(mk("s_add_u32 s6, s6, s%d" % sCV))
        L.append(mk("s_add_u32 m0, s6, 32")); L.append(mk("s_lshl_b32 s%d, s7, 1" % sT2))
        L += [dma(vL16, sHk, "s%d" % sT2, j * 1024, "cv", opts.get("fk", "")) for j in range(4)]
    L.append(mk("buffer_load_ushort v%d, v%d, %s, 0 offen" % (uHead, uHead, S4(sHk)), vm="cv"))
    return L
def conv_xr():
    L = [mk("s_lshl_b32 s7, s%d, 11" % sHalf), mk("s_add_u32 s6, s7, s%d" % sCV), mk("s_add_u32 m0, s6, %d" % XR_OFF),
         mk("s_add_u32 s7, s7, s%d" % sCh4k), mk("s_add_u32 s%d, s7, %d" % (sT2, WS_XR))]
    L += [dma(vL16, sWS, "s%d" % sT2, j * 1024, "cv", " sc1") for j in range(2)]
    return L
def conv_reads(rr):
    L = []; b = aCF + 64 * (rr & 1)
    for i in range(8):
        a = b + 4 * i; t = "c%d_%d" % (rr, i)
        L.append(mk("ds_read_b64 a[%d:%d], v%d offset:%d" % (a, a + 1, uCA, 64 * rr + 512 * i), lg=t))
        L.append(mk("ds_read_b64 a[%d:%d], v%d offset:%d" % (a + 2, a + 3, uCA, 64 * rr + 512 * i + 8), lg=t))
        L.append(mk("ds_read_b128 a[%d:%d], v%d offset:%d" % (a + 32, a + 35, uCB, 3584 - 512 * i + 64 * rr), lg=t))
    return L

SLOW = []
def poll_check(p, name, regs, reload_, nlanes=64, gaps=None):
    L = []
    for i, r in enumerate(regs):
        if i == 0: L.append(mk("v_cmp_ne_u64 vcc, s[%d:%d], v[%d:%d]" % (sTag, sTag + 1, r, r + 1)))
        else:
            L.append(mk("v_cmp_ne_u64 s[4:5], s[%d:%d], v[%d:%d]" % (sTag, sTag + 1, r, r + 1)))
            L.append(mk("s_or_b64 vcc, vcc, s[4:5]"))
    if nlanes < 64:
        L.append(mk("s_and_b64 vcc, vcc, 0x%x" % ((1 << nlanes) - 1) if nlanes < 32 else "s_mov_b32 vcc_hi, 0"))
    L.append(mk("s_cbranch_vccnz L_slow_%s" % name))
    L.append(I("L_ok_%s:" % name, kind="label", cost=0))
    t = ["L_slow_%s:" % name, "s_mov_b32 s%d, 0" % sSpin, "L_spin_%s:" % name, "s_sleep 4"]
    t += [x.t for x in reload_]
    t += ["s_waitcnt vmcnt(0)"]
    t += [x.t for x in L[:-2]]
    t += ["s_cbranch_vccz L_ok_%s" % name, "s_add_u32 s%d, s%d, 1" % (sSpin, sSpin), "s_cmp_lt_u32 s%d, %d" % (sSpin, SPIN_MAX),
          "s_cbranch_scc1 L_spin_%s" % name, "s_branch L_ok_%s" % name]
    SLOW.append("\n".join(t))
    return L

def nonce_get(name):
    ld = mk("global_load_dwordx2 v[%d:%d], v%d, s[%d:%d] sc1" % (vNon, vNon + 1, vNon + 2, sDbg, sDbg + 1), vm="non")
    chk = [mk("v_readfirstlane_b32 s%d, v%d" % (sTag, vNon)), mk("v_readfirstlane_b32 s%d, v%d" % (sTag + 1, vNon + 1)),
           mk("s_cmp_eq_u32 s%d, 0" % sTag), mk("s_cbranch_scc1 L_slow_%s" % name), I("L_ok_%s:" % name, kind="label", cost=0)]
    t = ["L_slow_%s:" % name, "s_mov_b32 s%d, 0" % sSpin, "L_spin_%s:" % name, "s_sleep 2", ld.t, "s_waitcnt vmcnt(0)", chk[0].t, chk[1].t,
         "s_cmp_lg_u32 s%d, 0" % sTag, "s_cbranch_scc1 L_ok_%s" % name, "s_add_u32 s%d, s%d, 1" % (sSpin, sSpin),
         "s_cmp_lt_u32 s%d, %d" % (sSpin, SPIN_MAX), "s_cbranch_scc1 L_spin_%s" % name, "s_branch L_ok_%s" % name]
    SLOW.append("\n".join(t))
    return ld, chk

def g1_epilogue(tile, opts):
    A0 = acc_of(tile)
    c4 = vST + 4 * tile + 1; c1 = vST + 4 * tile + 2
    g = [A0 + (p >> 2) * 8 + (p & 3) for p in range(8)]
    u = [x + 4 for x in g]
    o = vOUT + 4 * (tile & 1)
    st = []
    for p in range(8):
        t = vTMP + p
        st.append([mk("v_mul_f32 v%d, v%d, v%d" % (g[p], g[p], c1)), mk("v_exp_f32 v%d, v%d" % (t, g[p])),
                   mk("v_mul_f32 v%d, v%d, v%d" % (u[p], g[p], u[p])), mk("v_fma_f32 v%d, v%d, v%d, v%d" % (t, t, c4, c4)),
                   mk("v_rcp_f32 v%d, v%d" % (t, t)), mk("v_mul_f32 v%d, v%d, v%d" % (u[p], u[p], t))])
    R = []; pend = []
    for step in range(18):
        for k in (5, 4, 3, 2, 1, 0):
            p = step - 2 * k
            if 0 <= p < 8:
                R.append(st[p][k])
                for q in pend: R.append(mk("v_cvt_pk_bf16_f32 v%d, v%d, v%d" % (o + (q >> 1), u[q - 1], u[q])))
                pend = [p] if (k == 5 and p & 1) else []
    for q in pend: R.append(mk("v_cvt_pk_bf16_f32 v%d, v%d, v%d" % (o + (q >> 1), u[q - 1], u[q])))
    R.append(mk("s_add_u32 s%d, s%d, %d" % (sT3, sHa if tile < 4 else sHb, (tile & 3) * 2 * 56 * 1024)))
    R.append(mk("buffer_store_dwordx4 %s, v%d, %s, s%d offen sc1" % (vr(o), vHoff, S4(sWS), sT3), vm="hst"))
    return R

def common_setup(p, opts):
    p("v_and_b32 v1, 63, v0\nv_lshrrev_b32 v2, 6, v0\nv_lshlrev_b32 v%d, 4, v1\nv_readfirstlane_b32 s%d, v2" % (vL16, sWave))
    p("v_lshrrev_b32 v2, 3, v1\nv_and_b32 v3, 7, v1\nv_lshrrev_b32 v8, 4, v1\nv_mov_b32 v%d, 0" % (vNon + 2))

def phase2_setup(p, opts):
    p("s_and_b32 s3, s2, 7\ns_lshr_b32 s4, s2, 3\ns_lshl_b32 s3, s3, 2\ns_and_b32 s5, s4, 3\ns_add_u32 s%d, s3, s5\ns_lshr_b32 s%d, s4, 2" % (sTB2, sDB))
    p("s_lshr_b32 s3, s%d, 1\ns_lshl_b32 s4, s2, 1\ns_add_u32 s4, s4, s3\ns_mul_i32 s%d, s3, %d\ns_add_u32 s%d, s%d, %d" % (sWave, sCV, CH_STRIDE, sCV, sCV, CONV))
    p("s_and_b32 s%d, s%d, 1\ns_lshl_b32 s%d, s4, 12" % (sHalf, sWave, sCh4k))
    p("s_load_dwordx4 s[76:79], s[0:1], 32\ns_load_dwordx4 s[80:83], s[0:1], 72")
    p("s_lshl_b32 s%d, s%d, 12" % (sWdL, sWave))
    p("v_lshrrev_b32 v2, 4, v1\nv_and_b32 v3, 15, v1")
    p("v_lshrrev_b32 v6, 3, v1\nv_and_b32 v7, 7, v1\nv_and_b32 v8, 1, v2\nv_lshlrev_b32 v8, 1, v8\nv_xor_b32 v8, v8, v7")
    p("s_lshl_b32 s7, s%d, 7\ns_mul_i32 s5, s%d, %d\ns_add_u32 s7, s7, s5" % (sDB, sWave, 448 * 1024))
    for j in range(4):
        p("v_xor_b32 v9, %d, v8\nv_lshlrev_b32 v9, 4, v9\nv_lshl_add_u32 v9, v6, 10, v9\nv_add_u32 v9, s7, v9\nv_add_u32 v%d, %d, v9" % (4 * (j & 1), uWD + j, j * 7168))
    p("s_mul_i32 s5, s%d, %d\ns_mul_i32 s7, s%d, 14336\ns_add_u32 s5, s5, s7" % (sTB2, 4 * 57344, sWave))
    for nt in range(4):
        p("s_add_u32 s7, s5, %d\nv_add_u32 v%d, s7, v%d" % (WS_H + nt * 57344, uH + nt, vL16))
    p("s_waitcnt lgkmcnt(0)")
    p("s_add_u32 s%d, s76, s%d\ns_addc_u32 s%d, s77, 0\ns_and_b32 s%d, s%d, 0xffff\ns_sub_u32 s%d, 0x200000, s%d\ns_mov_b32 s%d, 0x20000" % (sHk, sCh4k, sHk + 1, sHk + 1, sHk + 1, sHk + 2, sCh4k, sHk + 3))
    p("s_lshl_b32 s6, s4, 1\ns_and_b32 s6, s6, 0xfffffffc\ns_load_dword s%d, s[78:79], s6" % sD)
    srd(p, sWd, 80, 1792 * 1024)
    srd(p, sOut, 82, 2048 * 1024)
    p("v_bfe_u32 v6, v1, 2, 2\nv_and_b32 v7, 3, v1\nv_lshrrev_b32 v8, 1, v6\nv_and_b32 v9, 1, v2\nv_lshl_add_u32 v8, v9, 1, v8")
    p("v_lshl_add_u32 v6, v2, 3, v6\nv_lshlrev_b32 v6, 7, v6\nv_lshl_add_u32 v6, v7, 3, v6\nv_add_u32 v6, s%d, v6" % sWdL)
    for mt in range(4):
        p("v_xor_b32 v9, %d, v8\nv_lshl_add_u32 v%d, v9, 5, v6" % (mt, uTR + mt))
    p("v_add_u32 v6, 1, v3\nv_and_b32 v7, 3, v6\nv_sub_u32 v6, v6, v7\nv_lshl_add_u32 v6, v2, 3, v6\nv_lshlrev_b32 v6, 1, v6")
    p("v_mul_u32_u24 v7, 4160, v7\ns_lshl_b32 s7, s%d, 8\ns_add_u32 s7, s7, s%d\nv_add3_u32 v%d, v6, v7, s7" % (sHalf, sCV, uCA))
    p("v_lshlrev_b32 v6, 5, v3\nv_lshlrev_b32 v7, 4, v2\nv_sub_u32 v6, v7, v6\ns_add_u32 s7, s7, %d\nv_add_u32 v%d, s7, v6" % (XR_OFF + 480, uCB))
    p("v_mul_u32_u24 v6, 4160, v2\nv_lshl_add_u32 v6, v3, 1, v6\nv_add_u32 v%d, s%d, v6" % (uHeadA, sCV))
    p("v_add_u32 v6, v2, v3\nv_add_u32 v6, -16, v6\nv_lshlrev_b32 v%d, 1, v6" % uHead)
    p("v_mov_b32 v8, 0\nv_mov_b32 v9, 0\nv_lshlrev_b32 v7, 3, v1\ns_add_u32 s7, s%d, %d\nv_add_u32 v7, s7, v7" % (sCV, XR_OFF + 4096))
    p("ds_write_b64 v7, v[8:9]")
    p("v_and_b32 v8, 2, v2\nv_lshlrev_b32 v8, 3, v8\nv_lshl_add_u32 v8, v3, 5, v8\nv_and_b32 v9, 1, v2\nv_lshl_add_u32 v%d, v9, 9, v8" % uYst)
    p("s_lshl_b32 s7, s%d, 11\ns_add_u32 s7, s7, s%d\ns_add_u32 s%d, s7, %d" % (sHalf, sCh4k, sYoff, WS_YT))
    p("s_lshl_b32 s7, s%d, 6\ns_lshl_b32 s3, s%d, 4\ns_add_u32 s7, s7, s3\nv_add_u32 v8, s7, v3" % (sTB2, sWave))
    p("v_lshlrev_b32 v9, 10, v8\nv_lshl_add_u32 v9, v2, 5, v9\ns_lshl_b32 s7, s%d, 7\nv_add_u32 v%d, s7, v9" % (sDB, uX))
    p("v_lshlrev_b32 v8, 4, v8\nv_add_u32 v%d, %d, v8" % (uSto, WS_ST))
    p("s_lshl_b32 s7, s2, 7\ns_lshl_b32 s3, s%d, 3\ns_add_u32 s7, s7, s3\ns_add_u32 s%d, s7, %d" % (sWave, sFlY, WS_FY))
    p("v_lshrrev_b32 v8, 1, v1\nv_lshlrev_b32 v8, 7, v8\nv_and_b32 v9, 1, v1\nv_lshl_add_u32 v8, v9, 4, v8\ns_lshl_b32 s7, s%d, 12\ns_add_u32 s7, s7, %d\nv_add_u32 v%d, s7, v8" % (sDB, WS_FY, uFY))
    p("v_min_u32 v8, 27, v1\nv_lshrrev_b32 v9, 2, v8\nv_lshlrev_b32 v9, 7, v9\nv_and_b32 v8, 3, v8\nv_lshl_add_u32 v8, v8, 3, v9")
    p("s_lshr_b32 s7, s%d, 2\ns_lshl_b32 s7, s7, 5\ns_mul_i32 s3, s%d, 7\ns_add_u32 s7, s7, s3\ns_lshl_b32 s7, s7, 7\ns_add_u32 s7, s7, %d\nv_add_u32 v%d, s7, v8" % (sTB2, sWave, WS_FH, uFH))
    p("v_and_b32 v8, 3, v1\nv_lshlrev_b32 v8, 10, v8\ns_lshr_b32 s7, s2, 5\ns_lshl_b32 s7, s7, 7\ns_add_u32 s7, s7, %d\nv_add_u32 v%d, s7, v8" % (WS_FK, uFK))
    p("s_waitcnt lgkmcnt(0)")
    p("s_lshr_b32 s7, s%d, 16\ns_and_b32 s%d, s%d, 0xffff\ns_bitcmp1_b32 s4, 0\ns_cselect_b32 s%d, s7, s%d" % (sD, sD, sD, sD, sD))
    p("s_cmp_eq_u32 s%d, 0\ns_cselect_b32 s%d, s%d, 0\ns_lshl_b32 s7, s%d, 16" % (sHalf, sD, sD, sD))
    p("v_lshl_add_u32 v8, v2, 3, v3\nv_sub_u32 v8, 15, v8\nv_mov_b32 v2, s%d\nv_mov_b32 v3, s7" % sD)
    for u in range(4):
        p("v_cmp_eq_u32 vcc, %d, v8\ns_nop 1\nv_cndmask_b32 v%d, 0, v2, vcc" % (2 * u, uAD + u))
        p("v_cmp_eq_u32 vcc, %d, v8\ns_nop 1\nv_cndmask_b32 v%d, v%d, v3, vcc" % (2 * u + 1, uAD + u, uAD + u))
    p("s_lshl_b32 s3, s%d, 1\ns_add_u32 s3, s3, s%d" % (sDB, sTB2))
    for _ in range(3): p("s_cmp_ge_u32 s3, 14\ns_cselect_b32 s4, 14, 0\ns_sub_u32 s3, s3, s4")
    if not opts.get("rot2", 1): p("s_mov_b32 s3, 0")
    for s in range(14):
        p("s_lshl_b32 s%d, s3, 15\ns_add_u32 s3, s3, 1\ns_cmp_eq_u32 s3, 14\ns_cselect_b32 s3, 0, s3" % (sTabW + s))

def gemm1(p, opts):
    p("s_sub_u32 s3, s2, 32\ns_and_b32 s4, s3, 7\ns_lshr_b32 s5, s3, 3")
    p("s_and_b32 s6, s4, 1\ns_lshl_b32 s6, s6, 2\ns_and_b32 s7, s5, 3\ns_add_u32 s%d, s6, s7" % sTB)
    p("s_lshr_b32 s6, s4, 1\ns_mul_i32 s6, s6, 7\ns_lshr_b32 s7, s5, 2\ns_add_u32 s%d, s6, s7" % sCB)
    for j in range(4):
        p("v_add_u32 v5, %d, v8\nv_and_b32 v5, 7, v5\nv_xor_b32 v5, v5, v3\nv_lshlrev_b32 v5, 4, v5" % (4 * j))
        p("v_lshl_add_u32 v5, v2, 10, v5\nv_add_u32 v%d, %d, v5" % (vXD + j, j * 7168))
    p("s_lshr_b32 s3, s%d, 1\ns_lshl_b32 s3, s3, 2" % sWave)
    p("v_and_b32 v5, 1, v8\nv_lshlrev_b32 v5, 1, v5\nv_xor_b32 v5, s3, v5\nv_xor_b32 v5, v5, v3\nv_lshlrev_b32 v5, 4, v5")
    p("s_and_b32 s4, s%d, 1\ns_mul_i32 s4, s4, %d\ns_lshl_b32 s5, s%d, 7\ns_add_u32 s4, s4, s5" % (sWave, 32 * 3584, sCB))
    p("v_mul_u32_u24 v6, 3584, v2\nv_add3_u32 v5, v5, v6, s4")
    for j in range(4):
        p("v_add_u32 v%d, %d, v5" % (vWD + j, j * (8 * 3584 - 1024)))
    p("s_add_u32 s34, s%d, s%d\ns_and_b32 s34, s34, 7" % (sTB, sCB))
    if not opts.get("rot1", 1): p("s_mov_b32 s34, s%d" % sTB)
    p("s_lshr_b32 s35, s%d, 3\ns_and_b32 s35, s35, 1" % sCB)
    if not opts.get("hswap", 1): p("s_mov_b32 s35, 0")
    p("s_lshl_b32 s3, s%d, 18\ns_lshl_b32 s4, s35, 17\ns_add_u32 s5, s3, s4\ns_xor_b32 s4, s4, 0x20000\ns_add_u32 s6, s3, s4" % sTB)
    p("s_lshl_b32 s4, s%d, 15\ns_add_u32 s7, s5, s4" % sWave)
    p("s_lshl_b32 s%d, s%d, 12\ns_add_u32 s%d, s%d, 16384\ns_lshl_b32 s%d, s%d, 13" % (sLdsW, sWave, sLdsX, sLdsW, sLdsXB, sWave))
    p("s_waitcnt lgkmcnt(0)")
    srd(p, sQ, 60, 2048 * 1024)
    p("s_cmp_ge_u32 s%d, 2\ns_cselect_b32 s64, s66, s64\ns_cselect_b32 s65, s67, s65" % sWave)
    srd(p, sW, 64, 512 * 3584)
    srd(p, sWS, 68, WS_SZ)
    p("s_mov_b32 s%d, s70\ns_mov_b32 s%d, s71" % (sDbg, sDbg + 1))
    def tab(s):
        p("s_add_u32 s3, s34, %d\ns_and_b32 s3, s3, 7\ns_mul_i32 s%d, s3, %d\ns_lshl_b32 s3, s3, 7\ns_add_u32 s%d, s3, s7" % (s, sTab + s, 64 * 3584, sTab + 8 + s))
    tab(0)
    for x in g1_stage(0, opts): p.add(x)
    for s in range(1, 8): tab(s)
    for h in range(2):
        p("s_lshl_b32 s3, s%d, 1\ns_add_u32 s3, s3, s34\ns_add_u32 s3, s3, %d\ns_and_b32 s3, s3, 7\ns_lshl_b32 s3, s3, 7\ns_add_u32 s%d, s3, s6" % (sWave, h, sXB + h))
    p("s_lshr_b32 s5, s5, 10\ns_lshr_b32 s6, s6, 10")
    p("s_lshl_b32 s3, s%d, 1\ns_lshr_b32 s4, s%d, 1\ns_add_u32 s3, s3, s4\ns_lshl_b32 s3, s3, 10" % (sCB, sWave))
    p("s_mul_i32 s4, s5, 3584\ns_add_u32 s%d, s3, s4\ns_mul_i32 s4, s6, 3584\ns_add_u32 s%d, s3, s4" % (sHa, sHb))
    p("s_lshl_b32 s4, s5, 4\ns_add_u32 s%d, s4, %d\ns_lshl_b32 s4, s6, 4\ns_add_u32 s%d, s4, %d" % (sSTa, WS_ST, sSTb, WS_ST))
    p("s_lshl_b32 s3, s%d, 14\ns_lshl_b32 s4, s%d, 9\ns_add_u32 s3, s3, s4\ns_add_u32 s3, s3, %d" % (sCB, sWave, WS_CS))
    p("v_and_b32 v2, 31, v1\nv_lshrrev_b32 v3, 5, v1\nv_lshlrev_b32 v%d, 4, v2\nv_add_u32 v%d, s3, v%d" % (vSToff, vCSoff, vSToff))
    p("s_lshl_b32 s%d, s34, 11" % sCSw)
    p("s_lshl_b32 s3, s%d, 5\ns_add_u32 s3, s3, s%d\ns_lshl_b32 s3, s3, 7\ns_lshl_b32 s4, s%d, 3\ns_add_u32 s3, s3, s4\ns_add_u32 s%d, s3, %d" % (sTB, sCB, sWave, sFlH, WS_FH))
    p("v_lshrrev_b32 v4, 1, v2\nv_and_b32 v4, 7, v4")
    for ks in range(4):
        p("v_add_u32 v5, %d, v3\nv_xor_b32 v5, v5, v4\nv_lshlrev_b32 v5, 4, v5\nv_lshl_add_u32 v%d, v2, 7, v5\nv_add_u32 v%d, 0x10000, v%d" % (2 * ks, vXA + ks, vXA + 4 + ks, vXA + ks))
    p("v_bfe_u32 v2, v1, 2, 2\nv_bfe_u32 v4, v1, 1, 1\nv_and_b32 v5, 1, v1\nv_bfe_u32 v6, v1, 4, 1")
    p("v_lshrrev_b32 v7, 1, v2\nv_lshl_add_u32 v7, v4, 1, v7\nv_xor_b32 v7, s%d, v7\nv_lshlrev_b32 v7, 5, v7" % sWave)
    p("v_lshl_add_u32 v7, v5, 4, v7\nv_lshl_add_u32 v7, v6, 3, v7\nv_lshl_add_u32 v7, v4, 13, v7")
    p("v_lshl_add_u32 v2, v3, 3, v2\nv_lshl_add_u32 v%d, v2, 7, v7\nv_add_u32 v%d, 0x10000, v%d" % (vWA, vWA + 1, vWA))
    p("v_bfe_u32 v2, v1, 4, 1\nv_mul_u32_u24 v2, 57344, v2\nv_and_b32 v4, 15, v1\nv_lshl_add_u32 v4, v3, 4, v4")
    p("s_and_b32 s3, s%d, 1\ns_lshl_b32 s3, s3, 9\nv_lshl_add_u32 v4, v4, 4, v2\nv_add_u32 v%d, s3, v4" % (sWave, vHoff))
    for r in (1, 2, 3): p("v_mov_b32 v%d, 0\nv_mov_b32 v%d, 0\nv_mov_b32 v%d, 0" % (vR1A + r, vR1B + r, vR1B + 4 + r))
    for r in range(4): p("v_mov_b32 v%d, 0x3f803f80" % (vOnes + r))
    phase2_setup(p, opts)
    for x in g1_stage(1, opts): p.add(x)
    nld, nchk = nonce_get("ng")
    p.add(nld)
    stamp(p, 1, opts)

    def rdW(n):
        s, ks = n >> 2, n & 3
        w, off = win((s % 3) * SLOT + ks * 2048)
        return [mk("ds_read_b64_tr_b16 a[%d:%d], v%d offset:%d" % (4 * n, 4 * n + 1, vWA + w, off), lg="W%d" % n),
                mk("ds_read_b64_tr_b16 a[%d:%d], v%d offset:%d" % (4 * n + 2, 4 * n + 3, vWA + w, off + 512), lg="W%d" % n)]
    def rdXA(n, i):
        s, ks = n >> 2, n & 3
        w, off = win((s % 3) * SLOT + 16384 + i * 4096)
        return mk("ds_read_b128 %s, v%d offset:%d" % (vr(vXF + 16 * (n & 1) + 4 * i), vXA + 4 * w + ks, off), lg="X%d_%d" % (n, i))
    def rdXB(bb, n):
        w, off = win(((8 + bb) % 3) * SLOT + (n >> 2) * 4096)
        return mk("ds_read_b128 %s, v%d offset:%d" % (vr(vXF + 4 * (n & 7)), vXA + 4 * w + (n & 3), off), lg="B%d_%d" % (bb, n))

    rec_loads = [mk("buffer_load_dwordx4 %s, v%d, %s, s%d offen offset:%d sc1" % (vr(vST + 4 * t), vSToff, S4(sWS), sSTa if t < 4 else sSTb, (t & 3) * 512), vm="rec") for t in range(8)]
    rec_loads += [mk("buffer_load_dwordx4 %s, v%d, %s, %s offen offset:%d sc1" % (vr(vCSR + 4 * t), vCSoff, S4(sWS), "s%d" % sT3 if t >= 2 else "0", (t & 1) * 2048), vm="rec") for t in range(2)]
    for t2 in range(1, 4):
        rec_loads.append(mk("s_mov_b32 s%d, %d" % (sT3, t2 * 4096)))
        rec_loads += [mk("buffer_load_dwordx4 %s, v%d, %s, s%d offen offset:%d sc1" % (vr(vCSR + 4 * (2 * t2 + e)), vCSoff, S4(sWS), sT3, e * 2048), vm="rec") for e in range(2)]
    RL = opts.get("recst", 5)
    post = poll_check(p, "rec", [vST + 4 * t + 2 for t in range(8)] + [vCSR + 4 * t + 2 for t in range(8)], rec_loads)
    for a_, b_ in ((0, 1), (2, 3), (4, 5), (6, 7), (0, 2), (4, 6), (0, 4)):
        post.append(mk("v_add_f32 v%d, v%d, v%d" % (vCSR + 4 * a_, vCSR + 4 * a_, vCSR + 4 * b_)))
    for t in range(8): post.append(mk("v_rcp_f32 v%d, v%d" % (vST + 4 * t + 2, vST + 4 * t + 1)))
    post += [mk("v_cvt_pk_bf16_f32 v%d, v%d, v%d" % (vCSR + 1, vCSR, vCSR)), mk("v_and_b32 v%d, 0xffff0000, v%d" % (vCSR + 1, vCSR + 1)),
             mk("v_sub_f32 v%d, v%d, v%d" % (vCSR, vCSR, vCSR + 1)), mk("v_cmp_gt_u32 vcc, 32, v1"),
             mk("v_cvt_pk_bf16_f32 v%d, v%d, v%d" % (vCSR, vCSR + 1, vCSR)),
             mk("v_mov_b32 v%d, v%d" % (vR1B, vST)), mk("v_cndmask_b32 v%d, 0, v%d, vcc" % (vR1A, vCSR)), mk("v_mov_b32 v%d, v%d" % (vR1B + 4, vST + 4))]
    for t in range(8): post.append(mk("v_mul_f32 v%d, %s, v%d" % (vST + 4 * t + 2, hex(f2u(LOG2E * LOG2E)), vST + 4 * t + 2)))

    p.wait(vm="st0")
    p("s_barrier")
    stamp(p, 2, opts)
    for x in rdW(0): p.add(x)
    for i in range(4): p.add(rdXA(0, i))
    PD = 5
    xq = []
    for n in range(32):
        s, ks = n >> 2, n & 3
        gaps = [[], [], [], []]
        if ks == 3: gaps[0] += [W(vm="st%d" % (s + 1), lg="*"), mk("s_barrier")]
        if n < 31:
            gaps[0] += rdW(n + 1); gaps[1] += [rdXA(n + 1, 0), rdXA(n + 1, 1)]; gaps[2] += [rdXA(n + 1, 2), rdXA(n + 1, 3)]
        else:
            gaps[0] += [rdXB(0, 0), rdXB(0, 1)]; gaps[1] += [rdXB(0, 2), rdXB(0, 3)]
        if n == 4: xq += [W(vm="non")] + nchk
        if n == 5:
            xq += [mk("v_mov_b32 v%d, s%d" % (vCSA + 2, sTag)), mk("v_mov_b32 v%d, s%d" % (vCSA + 3, sTag + 1)),
                   mk("v_lshlrev_b32 v2, 26, v1"), mk("v_and_b32 v2, 0x80000000, v2"), mk("v_or_b32 v2, v2, v%d" % vCSoff),
                   mk("buffer_store_dwordx4 %s, v2, %s, s%d offen sc1" % (vr(vCSA), S4(sWS), sCSw), vm="csst")]
        if n == 4 * RL: xq += rec_loads
        if ks == opts.get("dks", 2): xq += g1_stage(s + 2, opts)
        if n == 4 * (RL + 2): xq += [W(vm="rec")] + post
        for g in range(4):
            if ks == 3 and g == 0: continue
            while xq and sum(x.cost for x in gaps[g]) + xq[0].cost <= 20: gaps[g].append(xq.pop(0))
        if ks == 2:
            while xq and any(x.vm == "st%d" % (s + 2) for x in xq): gaps[3].append(xq.pop(0))
        for i in range(4):
            p.wait(lg=["W%d" % n, "X%d_%d" % (n, i)] if i == 0 else "X%d_%d" % (n, i))
            a = acc_of(i)
            p("v_mfma_f32_32x32x16_bf16 %s, a[%d:%d], %s, %s" % (vr(a, 16), 4 * n, 4 * n + 3, vr(vXF + 16 * (n & 1) + 4 * i), vr(a, 16) if n else "0"))
            for x in gaps[i]: p.add(x)
        if n < 4:
            p("v_mfma_f32_32x32x16_bf16 %s, %s, a[%d:%d], %s" % (vr(vCSA, 16), vr(vOnes), 4 * n, 4 * n + 3, vr(vCSA, 16) if n else "0"))
    for x in xq: p.add(x)
    stamp(p, 3, opts)
    p.add(rdXB(0, 4))
    p("s_nop 0")
    for t in range(4):
        a = acc_of(t)
        p("v_mfma_f32_32x32x16_bf16 %s, %s, %s, %s" % (vr(a, 16), vr(vR1A), vr(vR1B + 4 * (t & 1)), vr(a, 16)))
        p("v_mov_b32 v%d, v%d\ns_nop 0" % (vR1B + 4 * (t & 1), vST + 4 * (t + 2)))
    ep = [g1_epilogue(t, opts) for t in range(7)]
    total = sum(x.cost for e in ep for x in e)
    kvpoll = [mk("buffer_load_dwordx2 v[%d:%d], v%d, %s, 0 offen sc1" % (uPoll, uPoll + 1, uFK, S4(sWS)), vm="kvp")]
    mq = {0: g1_stage(10, opts) + conv_copies(opts) + wd_loads(0, opts),
          1: [], 2: g1_stage(11, opts) + kvpoll + wd_loads(1, opts) + wd_loads(2, opts),
          3: wd_loads(3, opts) + [W(vm="kvp")] + poll_check(p, "kv", [uPoll], kvpoll) + conv_xr() + wd_loads(4, opts)}
    ngaps = 4 * 33; done = 0; cur = 0; gi = 0
    vq = []
    BUD = opts.get("bud", 24)
    for bb in range(4):
        tile = 4 + bb; a = acc_of(tile)
        for n in range(-1, 32):
            gap = []
            if n == -1:
                p("v_mfma_f32_32x32x16_bf16 %s, %s, %s, 0" % (vr(a, 16), vr(vR1A), vr(vR1B + 4 * (bb & 1))))
                if bb < 2: gap.append(mk("v_mov_b32 v%d, v%d" % (vR1B + 4 * (bb & 1), vST + 4 * (tile + 2))))
                if bb == 0: vq += mq[0]
            else:
                if n % 2 == 0: p.wait(lg="B%d_%d" % (bb, n + 1))
                p("v_mfma_f32_32x32x16_bf16 %s, a[%d:%d], %s, %s" % (vr(a, 16), 4 * n, 4 * n + 3, vr(vXF + 4 * (n & 7)), vr(a, 16)))
                m = n + PD
                if m == 32 and bb < 3:
                    for x in vq:
                        if x.vm == "st%d" % (9 + bb): raise SystemExit("stage not issued before its wait")
                    gap += [W(vm="st%d" % (9 + bb), lg="*"), mk("s_barrier")]
                    vq += mq[bb + 1]
                if m < 32: gap.append(rdXB(bb, m))
                elif bb < 3: gap.append(rdXB(bb + 1, m - 32))
            gi += 1
            budget = BUD - (4 if (n % 2 == 1) else 0)
            if vq and sum(y.cost for y in gap) + 4 <= budget and (gi % 2 == 0 or len(vq) > 20):
                gap.append(vq.pop(0))
                while vq and vq[0].cost == 0: gap.append(vq.pop(0))
            target = total * gi / float(ngaps - 4)
            while cur < 7 and done < target:
                if cur >= 4 and (cur - 4 >= bb or (cur - 4 == bb - 1 and n < 4)): break
                if cur < 4 and bb == 0 and n < 2: break
                x = ep[cur][0]
                if sum(y.cost for y in gap) + x.cost > budget: break
                gap.append(ep[cur].pop(0)); done += x.cost
                if not ep[cur]: cur += 1
            for x in gap: p.add(x)
    stamp(p, 4, opts)
    for x in vq: p.add(x)
    while cur < 7:
        for x in ep[cur]: p.add(x)
        cur += 1
    p("s_nop 7\ns_nop 3")
    for x in g1_epilogue(7, opts): p.add(x)

def phase2(p, opts):
    def trd(x, hi):
        dst, reg, addr, tag = x
        w, off = win(addr)
        return mk("ds_read_b64_tr_b16 %s, v%d offset:%d" % (dst, reg + 4 * 0 if w == 0 else hi[w] + (reg - uTR), off), lg=tag)
    hi = {1: 8 + 0, 2: 12}
    stamp(p, 5, opts)
    for s in range(14): p("s_lshr_b32 s%d, s%d, 5" % (sTab + s, sTabW + s))
    for mt in range(4): p("v_add_u32 v%d, 0x10000, v%d\nv_add_u32 v%d, 0x20000, v%d" % (8 + mt, uTR + mt, 12 + mt, uTR + mt))
    p.wait(vm="cv")
    p("ds_write_b16 v%d, v%d" % (uHeadA, uHead))
    p("s_waitcnt lgkmcnt(0)\ns_barrier")
    for x in conv_reads(0): p.add(x)
    p("v_mov_b32 v2, s%d\nv_mov_b32 v3, s%d\nv_mov_b32 v16, 0" % (sTag, sTag + 1))
    vq = wd_loads(5, opts) + wd_loads(6, opts)
    for s in range(7):
        vq += [W(vm="w%d" % s)] + [trd(x, hi) for x in wd_reads(s)] + [W(lg="t%d" % s)] + wd_loads(7 + s, opts)
    hpoll = [mk("buffer_load_dwordx2 v[%d:%d], v%d, %s, 0 offen sc1" % (uPoll, uPoll + 1, uFH, S4(sWS)), vm="hp")]
    extra = [mk("buffer_load_dwordx4 %s, v%d, %s, 0 offen" % (vr(uXin), uX, S4(sQ)), vm="xin"),
             mk("buffer_load_dwordx4 %s, v%d, %s, 0 offen offset:16" % (vr(uXin + 4), uX, S4(sQ)), vm="xin")]
    flagat = opts.get("hflag", 60); pollat = opts.get("hpoll", 120)
    first = set(); nm = 0
    for rr in range(4):
        rq = conv_reads(rr + 1) if rr < 3 else []
        b = aCF + 64 * (rr & 1)
        pairs = sorted([(s1, p1) for s1 in range(8) for p1 in range(8) if s1 + p1 <= 7], key=lambda x: (max(x), x[0] + x[1], x[0]))
        seen = -1; k = 0
        for (s1, p1) in pairs:
            mx = max(s1, p1)
            if mx > seen:
                p.wait(lg="c%d_%d" % (rr, mx)); seen = mx
            acc = vr(uCacc + 4 * (s1 + p1))
            p("v_mfma_f32_16x16x32_bf16 %s, a[%d:%d], a[%d:%d], %s" % (acc, b + 4 * s1, b + 4 * s1 + 3, b + 32 + 4 * p1, b + 35 + 4 * p1, acc if (s1 + p1) in first else "0"))
            first.add(s1 + p1); k += 1; nm += 1
            n = 0
            if rq and k > 2 and (k % 4 != 0): p.add(rq.pop(0)); n += 1
            while vq and n < 2: p.add(vq.pop(0)); n += 1
            if nm == flagat:
                p.wait(vm="hst")
                p("s_mov_b64 exec, 1\nbuffer_store_dwordx2 v[2:3], v16, %s, s%d offen sc1\ns_mov_b64 exec, -1" % (S4(sWS), sFlH), vm="hfl")
                stamp(p, 6, opts)
            if nm == pollat:
                for x in extra + hpoll: p.add(x)
            if rr == 0 and s1 == 0:
                p("v_mfma_f32_16x16x32_bf16 %s, %s, a[%d:%d], %s" % (acc, vr(uAD), b + 32 + 4 * p1, b + 35 + 4 * p1, acc))
        for x in rq: p.add(x)
    for x in vq: p.add(x)
    stamp(p, 7, opts)
    p.wait(vm="hp")
    for x in poll_check(p, "h", [uPoll], hpoll): p.add(x)
    stamp(p, 8, opts)
    HPRE = opts.get("hpre", 3)
    for s in range(HPRE):
        for x in h_loads(s): p.add(x)
    strec = [mk("buffer_load_dwordx4 %s, v%d, %s, 0 offen sc1" % (vr(uSt), uSto, S4(sWS)), vm="xin")]
    p.add(strec[0])
    p("s_barrier")
    p("s_lshl_b32 s7, s%d, 12\ns_add_u32 s7, s7, %d\nv_add_u32 v17, s7, v%d\ns_lshl_b32 s7, s%d, 12\ns_xor_b32 s7, s7, 4096\ns_add_u32 s7, s7, %d\nv_add_u32 v18, s7, v%d" % (sWave, XCH, vL16, sWave, XCH, vL16))
    p("s_cmp_eq_u32 s%d, 0\ns_cbranch_scc1 L_x0" % sHalf)
    for i in range(4): p("ds_write_b128 v17, %s offset:%d" % (vr(uCacc + 4 * i), i * 1024))
    for i in range(16): p("v_mov_b32 v%d, v%d" % (uCacc + i, uCacc + 16 + i))
    p("s_branch L_x1")
    p.label("L_x0")
    for i in range(4): p("ds_write_b128 v17, %s offset:%d" % (vr(uCacc + 16 + 4 * i), i * 1024))
    p.label("L_x1")
    p("s_waitcnt lgkmcnt(0)\ns_barrier")
    for i in range(4): p("ds_read_b128 %s, v18 offset:%d" % (vr(uCacc + 16 + 4 * i), i * 1024), lg="xr%d" % i)
    for i in range(4):
        p.wait(lg="xr%d" % i)
        for e in range(4): p("v_add_f32 v%d, v%d, v%d" % (uCacc + 4 * i + e, uCacc + 4 * i + e, uCacc + 16 + 4 * i + e))
    for i in range(4):
        o = uTmp + 4 * (i >> 1) + 2 * (i & 1)
        p("v_cvt_pk_bf16_f32 v%d, v%d, v%d\nv_cvt_pk_bf16_f32 v%d, v%d, v%d" % (o, uCacc + 4 * i, uCacc + 4 * i + 1, o + 1, uCacc + 4 * i + 2, uCacc + 4 * i + 3))
    p("s_nop 1")
    for h in range(2):
        o = uTmp + 4 * h
        p("v_permlane16_swap_b32 v%d, v%d\nv_permlane16_swap_b32 v%d, v%d" % (o, o + 2, o + 1, o + 3))
    for h in range(2):
        p("buffer_store_dwordx4 %s, v%d, %s, s%d offen offset:%d sc1" % (vr(uTmp + 4 * h), uYst, S4(sWS), sYoff, h * 1024), vm="yst")
    ypoll = [mk("buffer_load_dwordx4 %s, v%d, %s, 0 offen sc1" % (vr(uPoll), uFY, S4(sWS)), vm="yp")]
    for s in range(14):
        rq = [trd(x, hi) for x in wd_reads(s + 1)] if 7 <= s + 1 < 14 else []
        hq = h_loads(s + HPRE) if s + HPRE < 14 else []
        p.wait(vm="h%d" % s, lg="t%d" % s)
        m = 0
        for nt in range(4):
            for mt in range(4):
                acc = vr(uAcc + 16 * nt + 4 * mt)
                hr = aH + 16 * (s % 8) + 4 * nt
                A_ = "a[%d:%d]" % (aWD + 16 * s + 4 * mt, aWD + 16 * s + 4 * mt + 3) if s < 7 else vr(uWF + 16 * (s & 1) + 4 * mt)
                p("v_mfma_f32_16x16x32_bf16 %s, %s, a[%d:%d], %s" % (acc, A_, hr, hr + 3, acc if s else "0"))
                m += 1
                if hq and m in (1, 3, 5, 7): p.add(hq.pop(0))
                if m == 2 and rq: p.wait(vm="w%d" % (s + 1))
                if rq and m >= 2: p.add(rq.pop(0))
        assert not rq and not hq
        if s == opts.get("yflag", 5):
            p.wait(vm="yst")
            p("s_mov_b64 exec, 1\nbuffer_store_dwordx2 v[2:3], v16, %s, s%d offen sc1\ns_mov_b64 exec, -1" % (S4(sWS), sFlY), vm="yfl")
        if s == 11: p.add(ypoll[0])
    stamp(p, 9, opts)
    p("s_cmp_lg_u32 s%d, 0\ns_cbranch_scc1 L_ok_y" % sWave)
    p.wait(vm="yp")
    for x in poll_check(p, "y", [uPoll, uPoll + 2], ypoll): p.add(x)
    p("s_barrier")
    p("v_lshrrev_b32 v8, 3, v1\nv_lshlrev_b32 v8, 12, v8\nv_and_b32 v9, 7, v1\nv_lshl_add_u32 v8, v9, 4, v8\nv_add_u32 v9, %d, v8" % (32768 - 1024))
    p("s_lshl_b32 s3, s%d, 18\ns_lshl_b32 s7, s%d, 16\ns_add_u32 s3, s3, s7\ns_lshl_b32 s7, s%d, 7\ns_add_u32 s3, s3, s7\ns_add_u32 s3, s3, %d" % (sDB, sWave, sTB2, WS_YT))
    p("s_lshl_b32 s7, s%d, 11\ns_add_u32 m0, s7, %d\ns_nop 0" % (sWave, YT_L))
    p.add(dma(8, sWS, "s3", 0, "yt", " sc1")); p.add(dma(9, sWS, "s3", 1024, "yt", " sc1"))
    p("v_and_b32 v3, 15, v1\nv_lshrrev_b32 v2, 4, v1\nv_mul_u32_u24 v8, %d, v3\nv_lshl_add_u32 v9, v2, 4, v8" % RS)
    p("s_mul_i32 s3, s%d, %d\ns_add_u32 s3, s3, %d\nv_add_u32 v9, s3, v9" % (sWave, 64 * RS, RED))
    for nt in range(4):
        for mt in range(4):
            p("ds_write_b128 v9, %s offset:%d" % (vr(uAcc + 16 * nt + 4 * mt), nt * 16 * RS + mt * 64))
    p("v_lshl_add_u32 v8, v2, 6, v8\ns_mul_i32 s3, s%d, %d\ns_add_u32 s3, s3, %d\nv_add_u32 v8, s3, v8" % (sWave, 16 * RS, RED))
    p("v_bfe_u32 v6, v1, 2, 2\nv_lshl_add_u32 v6, v2, 4, v6\nv_lshlrev_b32 v6, 7, v6\nv_and_b32 v7, 3, v1\nv_lshl_add_u32 v6, v7, 3, v6\ns_lshl_b32 s3, s%d, 5\ns_add_u32 s3, s3, %d\nv_add_u32 v6, s3, v6" % (sWave, YT_L))
    X = 56; XN = 72; Y = 88; YR = 104
    p.wait(vm="xin")
    for x in poll_check(p, "st", [uSt + 2], strec): p.add(x)
    p("v_rcp_f32 v%d, v%d" % (uSt + 1, uSt + 1))
    for i in range(8):
        p("v_lshlrev_b32 v%d, 16, v%d\nv_and_b32 v%d, 0xffff0000, v%d" % (X + 2 * i, uXin + i, X + 2 * i + 1, uXin + i))
    p("v_mul_f32 v%d, %s, v%d\nv_and_b32 v%d, 0xffff0000, v%d\nv_mul_f32 v%d, v%d, v%d" % (uSt + 1, hex(f2u(-LOG2E)), uSt + 1, uSt, uSt, uSt, uSt, uSt + 1))
    for i in range(16): p("v_fma_f32 v%d, v%d, v%d, v%d" % (XN + i, X + i, uSt + 1, uSt))
    p("s_waitcnt vmcnt(0) lgkmcnt(0)\ns_barrier")
    stamp(p, 10, opts)
    for j in range(4): p("ds_read_b64_tr_b16 v[%d:%d], v6 offset:%d" % (YR + 2 * j, YR + 2 * j + 1, j * 512), lg="y")
    for j in range(4):
        for w in range(4): p("ds_read_b128 %s, v8 offset:%d" % (vr(uAcc + 16 * w + 4 * j), w * 64 * RS + 16 * j), lg="r%d" % j)
    p.wait(lg="y")
    for i in range(8):
        p("v_lshlrev_b32 v%d, 16, v%d\nv_and_b32 v%d, 0xffff0000, v%d" % (Y + 2 * i, YR + i, Y + 2 * i + 1, YR + i))
    for i in range(8): p("v_pk_mul_f32 %s, %s, %s" % (vr(XN + 2 * i, 2), vr(XN + 2 * i, 2), vr(Y + 2 * i, 2)))
    p("s_mov_b32 s3, %s" % hex(f2u(-LOG2E)))
    for j in range(4):
        p.wait(lg="r%d" % j)
        F = uAcc + 4 * j
        for h in range(2):
            p("v_pk_add_f32 %s, %s, %s" % (vr(F + 2 * h, 2), vr(F + 2 * h, 2), vr(F + 16 + 2 * h, 2)))
            p("v_pk_add_f32 %s, %s, %s" % (vr(F + 32 + 2 * h, 2), vr(F + 32 + 2 * h, 2), vr(F + 48 + 2 * h, 2)))
        for h in range(2): p("v_pk_add_f32 %s, %s, %s" % (vr(F + 2 * h, 2), vr(F + 2 * h, 2), vr(F + 32 + 2 * h, 2)))
    for i in range(16): p("v_mul_f32 v%d, s3, v%d" % (Y + i, uAcc + i))
    for i in range(16): p("v_exp_f32 v%d, v%d" % (Y + i, Y + i))
    for i in range(8): p("v_pk_mul_f32 %s, %s, %s" % (vr(XN + 2 * i, 2), vr(XN + 2 * i, 2), vr(uAcc + 2 * i, 2)))
    for i in range(16): p("v_add_f32 v%d, 1.0, v%d" % (Y + i, Y + i))
    for i in range(16): p("v_rcp_f32 v%d, v%d" % (Y + i, Y + i))
    for i in range(8): p("v_pk_fma_f32 %s, %s, %s, %s" % (vr(X + 2 * i, 2), vr(XN + 2 * i, 2), vr(Y + 2 * i, 2), vr(X + 2 * i, 2)))
    for i in range(8): p("v_cvt_pk_bf16_f32 v%d, v%d, v%d" % (uXin + i, X + 2 * i, X + 2 * i + 1))
    p("buffer_store_dwordx4 %s, v%d, %s, 0 offen%s" % (vr(uXin), uX, S4(sOut), opts.get("fo", "")))
    p("buffer_store_dwordx4 %s, v%d, %s, 0 offen offset:16%s" % (vr(uXin + 4), uX, S4(sOut), opts.get("fo", "")))
    stamp(p, 11, opts)

def aux(p, opts):
    sK = 12; sV = 24; sSh = 28
    fkv = opts.get("fkv", " nt")
    p("s_load_dwordx4 s[4:7], s[0:1], 8\ns_load_dwordx2 s[22:23], s[0:1], 24\ns_memrealtime s[%d:%d]" % (sTag, sTag + 1))
    p("s_waitcnt lgkmcnt(0)")
    p("s_mov_b32 s%d, s70\ns_mov_b32 s%d, s71" % (sDbg, sDbg + 1))
    p("s_or_b32 s3, s2, s%d\ns_cmp_lg_u32 s3, 0\ns_cbranch_scc1 L_aux_nt" % sWave)
    p("s_or_b32 s%d, s%d, 1\nv_mov_b32 v4, s%d\nv_mov_b32 v5, s%d\ns_mov_b64 exec, 1" % (sTag, sTag, sTag, sTag + 1))
    p("global_store_dwordx2 v%d, v[4:5], s[%d:%d] sc1\ns_mov_b64 exec, -1" % (vNon + 2, sDbg, sDbg + 1))
    p.label("L_aux_nt")
    srd(p, sQ, 60, 2048 * 1024)
    srd(p, sWS, 68, WS_SZ)
    srd(p, sK, 4, 2048 * 1024)
    srd(p, sV, 6, 2048 * 1024)
    srd(p, sSh, 22, 4096)
    p("s_lshl_b32 s3, s2, 6\ns_lshl_b32 s4, s%d, 4\ns_add_u32 s3, s3, s4" % sWave)
    p("v_add_u32 v4, s3, v2\nv_lshlrev_b32 v5, 10, v4\nv_lshl_add_u32 v5, v3, 4, v5\nv_add_u32 v6, 8192, v5")
    for g in range(2):
        for i in range(8):
            p("buffer_load_dwordx4 %s, v%d, %s, 0 offen offset:%d" % (vr(160 + 32 * g + 4 * i), 5 + g, S4(sQ), i * 128), vm="sx%d" % g)
    nld, nchk = nonce_get("na")
    p.add(nld)
    p("s_lshr_b32 s3, s2, 3\ns_lshl_b32 s3, s3, 9\ns_lshl_b32 s4, s%d, 7\ns_add_u32 s3, s3, s4" % sWave)
    p("s_and_b32 s4, s2, 7\ns_lshl_b32 s4, s4, 7")
    p("v_lshl_add_u32 v16, v2, 3, s3\nv_lshlrev_b32 v17, 10, v16\nv_lshl_add_u32 v17, v3, 4, v17\nv_add_u32 v17, s4, v17")
    p("v_add_u32 v18, 4096, v17\nv_add_u32 v19, 0xfffff400, v17\nv_add_u32 v20, %d, v17\ns_mov_b32 s34, 65536" % (65536 - 3072))
    p("s_and_b32 s4, s2, 7\ns_lshl_b32 s4, s4, 9\nv_lshl_add_u32 v21, v3, 6, s4")
    for i in range(4):
        p("buffer_load_dwordx4 %s, v21, %s, 0 offen offset:%d" % (vr(36 + 4 * i), S4(sSh), 16 * i), vm="shw")
    def kvloads(ps, kb):
        so = "s34" if ps else "0"
        for j in range(11):
            reg, off = (19, j) if j < 3 else ((17, j - 3) if j < 7 else (18, j - 7))
            if ps and j < 3: reg, off = (20, j)
            p("buffer_load_dwordx4 %s, v%d, %s, %s offen offset:%d%s" % (vr(kb + 4 * j), reg, S4(sK), so if not (ps and j < 3) else "0", off * 1024, fkv), vm="kv%d" % ps)
        for j in range(8):
            reg, off = (17, j) if j < 4 else (18, j - 4)
            p("buffer_load_dwordx4 %s, v%d, %s, %s offen offset:%d%s" % (vr(kb + 44 + 4 * j), reg, S4(sV), so, off * 1024, fkv), vm="kv%d" % ps)
    p("s_mov_b32 s5, 0x3f803f80")
    for g in range(2):
        p.wait(vm="sx%d" % g)
        s1 = 8 + 4 * g; s2 = s1 + 1
        for r in range(32):
            x = 160 + 32 * g + r; c = r & 1
            p("v_dot2_f32_bf16 v%d, v%d, s5, %s" % (s1 + 2 * c, x, "v%d" % (s1 + 2 * c) if r > 1 else "0"))
            p("v_dot2_f32_bf16 v%d, v%d, v%d, %s" % (s2 + 2 * c, x, x, "v%d" % (s2 + 2 * c) if r > 1 else "0"))
        if g == 0: kvloads(0, 84)
    p("s_nop 2")
    p("v_add_f32 v8, v8, v10\nv_add_f32 v9, v9, v11\nv_add_f32 v10, v12, v14\nv_add_f32 v11, v13, v15")
    for mod in ("quad_perm:[1,0,3,2]", "quad_perm:[2,3,0,1]", "row_half_mirror"):
        p("s_nop 1")
        for r in range(8, 12): p("v_add_f32_dpp v%d, v%d, v%d %s row_mask:0xf bank_mask:0xf" % (r, r, r, mod))
    p.wait(vm="non")
    for x in nchk: p.add(x)
    for g in range(2):
        S1 = 8 + 2 * g; S2 = S1 + 1; o = 24 + 4 * g
        p("v_mul_f32 v%d, %s, v%d\nv_mul_f32 v%d, %s, v%d" % (S1, hex(f2u(1.0 / 512)), S1, S2, hex(f2u(1.0 / 512)), S2))
        p("v_fma_f32 v%d, -v%d, v%d, v%d\nv_max_f32 v%d, 0, v%d" % (S2, S1, S1, S2, S2, S2))
        p("v_cvt_pk_bf16_f32 v%d, -v%d, -v%d" % (o, S1, S1))
        p("v_cvt_pk_bf16_f32 v%d, v%d, v%d\nv_and_b32 v%d, 0xffff0000, v%d" % (S2, S2, S2, S2, S2))
        p("v_add_f32 v%d, %s, v%d" % (S2, hex(f2u(1e-5)), S2))
        p("v_cvt_pk_bf16_f32 v%d, v%d, v%d\nv_and_b32 v%d, 0xffff0000, v%d" % (S2, S2, S2, S2, S2))
        p("v_sqrt_f32 v%d, v%d\ns_nop 0" % (S2, S2))
        p("v_cvt_pk_bf16_f32 v%d, v%d, v%d\nv_and_b32 v%d, 0xffff0000, v%d" % (S2, S2, S2, S2, S2))
        p("v_mul_f32 v%d, %s, v%d" % (o + 1, hex(f2u(-LOG2E)), S2))
        p("v_mov_b32 v%d, s%d\nv_mov_b32 v%d, s%d" % (o + 2, sTag, o + 3, sTag + 1))
    p("v_lshlrev_b32 v21, 4, v4\nv_add_u32 v21, %d, v21\nv_cmp_eq_u32 vcc, 0, v3\nv_mov_b32 v22, 0x80000000\ns_nop 0\nv_cndmask_b32 v21, v22, v21, vcc" % WS_ST)
    p("buffer_store_dwordx4 v[24:27], v21, %s, 0 offen sc1" % S4(sWS), vm="pub")
    p("buffer_store_dwordx4 v[28:31], v21, %s, 0 offen offset:128 sc1" % S4(sWS), vm="pub")
    stamp(p, 1, opts)
    kvloads(1, 160)
    wb = 52
    p.wait(vm="shw")
    for c in range(8):
        for i in range(4):
            src = 36 + 2 * c + (i >> 1); dst = wb + ((c >> 1) * 4 + i) * 2 + (c & 1)
            p(("v_and_b32 v%d, 0xffff0000, v%d" if i & 1 else "v_lshlrev_b32 v%d, 16, v%d") % (dst, src))
    p("s_and_b32 s4, s2, 7\ns_lshl_b32 s4, s4, 18\ns_add_u32 s4, s4, %d" % (WS_XR + 4080))
    p("v_lshlrev_b32 v21, 15, v3\nv_lshlrev_b32 v22, 1, v16\nv_sub_u32 v21, v21, v22\nv_add_u32 v21, s4, v21")
    K = 24; V = 46; KV = 4
    for ps in range(2):
        kb = (84, 160)[ps]
        p.wait(vm="kv%d" % ps)
        for u in range(4):
            for j in range(11):
                p("v_lshlrev_b32 v%d, 16, v%d\nv_and_b32 v%d, 0xffff0000, v%d" % (K + 2 * j, kb + 4 * j + u, K + 2 * j + 1, kb + 4 * j + u))
            for t in range(8):
                kv = KV + 2 * t
                w = lambda i: vr(wb + (u * 4 + i) * 2, 2)
                p("v_lshlrev_b32 v%d, 16, v%d\nv_and_b32 v%d, 0xffff0000, v%d" % (V, kb + 44 + 4 * t + u, V + 1, kb + 44 + 4 * t + u))
                p("v_pk_mul_f32 %s, %s, %s" % (vr(kv, 2), vr(K + 2 * t, 2), w(3)))
                for i in (2, 1, 0): p("v_pk_fma_f32 %s, %s, %s, %s" % (vr(kv, 2), vr(K + 2 * (t + 3 - i), 2), w(i), vr(kv, 2)))
                p("v_pk_mul_f32 %s, %s, %s" % (vr(kv, 2), vr(kv, 2), vr(V, 2)))
            for e in range(2):
                o = 48 if e == 0 else 236
                for q in range(4): p("v_cvt_pk_bf16_f32 v%d, v%d, v%d" % (o + q, KV + 2 * (7 - 2 * q) + e, KV + 2 * (6 - 2 * q) + e))
                p("s_mov_b32 s4, %d" % ((2 * u + e) * 4096))
                p("buffer_store_dwordx4 %s, v21, %s, s4 offen sc1" % (vr(o), S4(sWS)), vm="kvst")
        if ps == 0: p("v_subrev_u32 v21, 128, v21")
    stamp(p, 2, opts)
    p("v_lshlrev_b32 v%d, 4, v1" % vL16)
    phase2_setup(p, opts)
    p("s_waitcnt vmcnt(0)\ns_barrier")
    p("v_mov_b32 v2, s%d\nv_mov_b32 v3, s%d\nv_mov_b32 v16, 0\ns_lshl_b32 s3, s2, 7\ns_add_u32 s3, s3, %d" % (sTag, sTag + 1, WS_FK))
    p("s_cmp_lg_u32 s%d, 0\ns_cbranch_scc1 L_aux_nf" % sWave)
    p("s_mov_b64 exec, 1\nbuffer_store_dwordx2 v[2:3], v16, %s, s3 offen sc1\ns_mov_b64 exec, -1" % S4(sWS))
    p.label("L_aux_nf")
    stamp(p, 3, opts)
    p("s_mov_b32 s%d, %d" % (sFlH, WS_FD))
    for x in conv_copies(opts): p.add(x)
    for s in range(5):
        for x in wd_loads(s, opts): p.add(x)
    kvpoll = [mk("buffer_load_dwordx2 v[%d:%d], v%d, %s, 0 offen sc1" % (uPoll, uPoll + 1, uFK, S4(sWS)), vm="kvp")]
    p.add(kvpoll[0])
    p.wait(vm="kvp")
    for x in poll_check(p, "kva", [uPoll], kvpoll): p.add(x)
    for x in conv_xr(): p.add(x)
    p("s_waitcnt vmcnt(0)")
    stamp(p, 4, opts)

def emit(a, lines):
    for l in lines: a(l if l.endswith(":") else "  " + l)

def build(opts):
    del SLOW[:]
    name = KN + "_kernel"
    a = A()
    a(header(["; @launch grid=(256,1,1) block=(256,1,1) lds=163840"]))
    a(kernel_begin(name))
    a("s_cmp_ge_u32 s2, 256\ns_cbranch_scc1 L_end")
    if opts.get("prof"):
        a("s_memrealtime s[96:97]\ns_memtime s[94:95]\nv_mov_b32 v255, 0\ns_waitcnt lgkmcnt(0)\nv_writelane_b32 v255, s94, 0\nv_writelane_b32 v255, s96, 14")
    a("s_load_dwordx2 s[60:61], s[0:1], 0\ns_load_dwordx4 s[64:67], s[0:1], 56\ns_load_dwordx2 s[68:69], s[0:1], 96\ns_load_dwordx2 s[70:71], s[0:1], 88")
    p0 = Prog(); common_setup(p0, opts); emit(a, p0.resolve())
    a("s_cmp_lt_u32 s2, 32\ns_cbranch_scc1 L_aux")
    p = Prog(); gemm1(p, opts); p.label("L_phase2"); phase2(p, opts)
    lines = p.resolve()
    pa = Prog(); aux(pa, opts)
    la = pa.resolve()
    pr = check_hazards(lines, "main") + check_hazards(la, "aux")
    for x in pr[:40]: print("HAZARD", x, file=sys.stderr)
    if pr: raise SystemExit("hazards")
    emit(a, lines)
    if opts.get("prof"):
        a("s_waitcnt vmcnt(0) lgkmcnt(0)\ns_memtime s[94:95]\ns_memrealtime s[96:97]\ns_load_dwordx2 s[4:5], s[0:1], 96\ns_waitcnt lgkmcnt(0)")
        a("v_writelane_b32 v255, s94, 12\nv_writelane_b32 v255, s96, 15\ns_getreg_b32 s94, hwreg(HW_REG_XCC_ID)\nv_writelane_b32 v255, s94, 13")
        a("s_lshl_b32 s6, s2, 8\ns_lshl_b32 s7, s%d, 6\ns_add_u32 s6, s6, s7\ns_add_u32 s6, s6, 0x1000000\ns_add_u32 s4, s4, s6\ns_addc_u32 s5, s5, 0" % sWave)
        a("v_lshlrev_b32 v2, 2, v1\ns_mov_b64 exec, 0xffff\nglobal_store_dword v2, v255, s[4:5]\ns_waitcnt vmcnt(0)")
    a.label("L_end")
    a("s_endpgm")
    a.label("L_aux")
    emit(a, la)
    a("s_branch L_phase2")
    for t in SLOW: a(t)
    a(RODATA)
    a(kernel_desc(name, 512, 102, 256))
    return a.text()

if __name__ == "__main__":
    opts = {}
    for kv in sys.argv[2:]:
        k, _, v = kv.partition("=")
        opts[k] = int(v) if v.lstrip("-").isdigit() else (v if v else 1)
    for k in ("fw", "fx", "fd", "fk", "fkv", "fo"):
        if k in opts: opts[k] = "" if opts[k] == "none" else " " + opts[k].replace("+", " ")
    open(sys.argv[1], "w").write(build(opts))
```

```python
import sys, struct
from asmlib import *
from sched import *

WS_H  = 0x000000
WS_XR = 0x700000
WS_YT = 0x900000
WS_ST = 0xB00000
WS_FK = 0xB08000
WS_FH = 0xB10000
WS_FY = 0xB18000
WS_FD = 0xB20000
WS_CS = 0xB28000
WS_SZ = 0xC00000
LOG2E = 1.4426950408889634
SPIN_MAX = 1 << 17

def f2u(x): return struct.unpack("<I", struct.pack("<f", x))[0]
def vr(b, n=4, p="v"): return "%s[%d:%d]" % (p, b, b + n - 1) if n > 1 else "%s%d" % (p, b)
def S4(b): return "s[%d:%d]" % (b, b + 3)
def srd(p, d, lo, size):
    p("s_mov_b32 s%d, s%d\ns_and_b32 s%d, s%d, 0xffff\ns_mov_b32 s%d, 0x%x\ns_mov_b32 s%d, 0x20000" % (d, lo, d + 1, lo + 1, d + 2, size, d + 3))
def ml(t, **kw): return [mk(x, **kw) for x in t.split("\n")]
def bundle(t):
    b = I(t, cost=4 * len(t.split("\n"))); b.kind = "bundle"; return b

SLOT = 32768
CONV = 98304; CH_STRIDE = 21504; XR_OFF = 16640
WDL = [141312, 0, 16384, 32768, 49152, 65536, 81920]
KVL = 141312
RED = 0; RS = 272
YT_L = CONV + 16384; XCH = CONV
sQ = 8; sW = 12; sWS = 16; sWave = 20; sTB = 21; sCB = 22; sLdsX = 23; sLdsW = 24; sLdsXB = 25; sT0 = 26; sT1 = 27
sHa = 28; sST = 29; sFlK = 30; sDoff = 31; sDbg = 32; sT2 = 34; sT3 = 35; sWd = 36; sHk = 40; sOut = 44; sTag = 48
sXB = 50
sCSw = 52; sTB2 = 53; sDB = 54; sCV = 55; sXRso = 56; sYoff = 57; sFlH = 58; sFlY = 59
sTabW = 60
sHalf = 74; sCh4k = 75; sSpin = 76; sWdL = 77
sDp = 80
sTab = 84
sK = 36; sV = 44; sSh = 96
kSK = 60; kD = 62; kWG = 66; kWU = 68; kWD = 70; kOUT = 72; kDBG = 74; kWS = 76; kQ = 80; kK = 82; kV = 84; kSH = 86
vKD = 2
vTag = 6; vFl = 8
vWD = 10; vXD = 14; vXA = 18; vWA = 26; vHoff = 28; vSToff = 29; vCSoff = 30; vL16 = 31; vNon = 32
vKA = 36; vKO = 37; vSH = 38
vR1A = 40; vR1B = 44; vOnes = 44; vST = 52; vXF = 84; vACC = 116; vTMP = 212; vOUT = 220
vCSR = 180; vCSA = 196
uWD = 228; uH = 232; uTR = 236; uCA = 240; uCB = 241; uYst = 242; uFY = 243; uX = 244; uSto = 245; uFH = 246; uFK = 247
uHead = 248; uHeadA = 249; uPoll = 250; uD = 254
uAD = 40; uTmp = 32; uXin = 44; uSt = 52; uCacc = 88; uAcc = 120
aCF = 128; aH = 128
def wfrag(s, mt):
    if s < 8: return "a", 16 * s + 4 * mt
    if s < 10: return "v", 184 + 16 * (s - 8) + 4 * mt
    return "v", 56 + 16 * (s - 10) + 4 * mt

STAMPS = ["start"]
def stamp_l(name, opts, lvl=1):
    if not opts.get("prof") or (lvl > 1 and lvl != opts.get("plvl", 1)): return []
    if name not in STAMPS: STAMPS.append(name)
    idx = STAMPS.index(name)
    assert idx < 60
    return ml("s_memtime s[100:101]\ns_waitcnt lgkmcnt(0)\nv_writelane_b32 v255, s100, %d" % idx, cost=0)
def stamp(p, name, opts, lvl=1):
    for x in stamp_l(name, opts, lvl): p.add(x)

def acc_of(t): return vACC + 16 * {0: 0, 1: 1, 2: 2, 3: 3, 4: 4, 5: 5, 6: 0, 7: 1}[t]
def win(addr): return addr >> 16, addr & 0xffff
def dma(v, srd_, so, off, tag, fl=""):
    return mk("buffer_load_dwordx4 v%d, %s, %s offen offset:%d%s lds" % (v, S4(srd_), so, off, fl), vm=tag)
def is_m0(x): return " m0," in x.t
def is_vm(x): return x.t.startswith("buffer_") or x.t.startswith("global_")
def seq(p, L):
    for i, x in enumerate(L):
        p.add(x)
        if is_m0(x) and i + 1 < len(L) and is_vm(L[i + 1]): p("s_nop 0")
def flag_store(so, off=0, tag="fl"):
    return mk("buffer_store_dwordx2 v[%d:%d], v%d, %s, s%d offen offset:%d sc1" % (vTag, vTag + 1, vFl, S4(sWS), so, off), vm=tag)

def g1_stage(s, opts):
    L = []; base = (s % 3) * SLOT; tag = "st%d" % s
    fw = opts.get("fw", ""); fx = opts.get("fx", "")
    if s < 8:
        L.append(mk("s_add_u32 m0, s%d, %d" % (sLdsW, base)))
        L += [dma(vWD + j, sW, "s%d" % (sTab + s), j * 1024, tag, fw) for j in range(4)]
        L.append(mk("s_add_u32 m0, s%d, %d" % (sLdsX, base)))
        L += [dma(vXD + j, sQ, "s%d" % (sTab + 8 + s), j * 1024, tag, fx) for j in range(4)]
    else:
        for h in range(2):
            L.append(mk("s_add_u32 m0, s%d, %d" % (sLdsXB, base + h * 4096)))
            L.append(mk("s_add_u32 s%d, s%d, %d" % (sT0 + h, sXB + h, (s - 8) * 32768)))
            L += [dma(vXD + j, sQ, "s%d" % (sT0 + h), j * 1024, tag, fx) for j in range(4)]
    return L
def wd_loads(s, opts):
    return [mk("s_add_u32 m0, s%d, %d" % (sWdL, WDL[s % 7]))] + \
           [dma(uWD + j, sWd, "s%d" % (sTabW + s), j * 1024, "w%d" % s, opts.get("fd", "")) for j in range(4)]
def h_loads(hs):
    ps, s = divmod(hs, 14)
    L = []
    for e in range(2):
        r = aH + 8 * (hs % 16) + 4 * e
        L.append(mk("buffer_load_dwordx4 a[%d:%d], v%d, %s, s%d offen sc1" % (r, r + 3, uH + 2 * ps + e, S4(sWS), sTab + s), vm="h%d" % hs))
    return L
HI = {1: 16, 2: 20}
def wd_reads(s):
    L = []
    w, off = win(WDL[s % 7])
    for mt in range(4):
        k, b = wfrag(s, mt)
        reg = uTR + mt if w == 0 else HI[w] + mt
        L.append(mk("ds_read_b64_tr_b16 %s[%d:%d], v%d offset:%d" % (k, b, b + 1, reg, off), lg="t%d" % s))
        L.append(mk("ds_read_b64_tr_b16 %s[%d:%d], v%d offset:%d" % (k, b + 2, b + 3, reg, off + 512), lg="t%d" % s))
    return L
def hk_loads(opts):
    L = ml("s_lshl_b32 s7, s%d, 11\ns_add_u32 s6, s7, s%d\ns_add_u32 m0, s6, 32" % (sHalf, sCV))
    L += [dma(vL16, sHk, "s7", j * 1024, "hk", opts.get("fk", " nt")) for j in range(2)]
    L.append(mk("buffer_load_ushort v%d, v%d, %s, 0 offen" % (uHead, uHead, S4(sHk)), vm="hk"))
    L.append(mk("buffer_load_ushort v%d, off, %s, s%d" % (uD, S4(sDp), sDoff), vm="hk"))
    return L
def hk_build():
    D = 212; E1 = 220; E3 = 224; C2 = 52
    L = ml("s_lshl_b32 s7, s%d, 11\ns_add_u32 s7, s7, s%d\nv_add_u32 v39, s7, v%d\nds_write_b16 v%d, v%d" % (sHalf, sCV, vL16, uHeadA, uHead))
    for j in range(2):
        o = 32 + j * 1024
        L.append(mk("ds_read_b128 %s, v39 offset:%d" % (vr(D), o), lg="hb"))
        L.append(mk("ds_read_b64 %s, v39 offset:%d" % (vr(D + 4, 2), o + 16), lg="hb"))
        L.append(W(lg="hb"))
        for i in range(4): L.append(mk("v_alignbit_b32 v%d, v%d, v%d, 16" % (E1 + i, D + i + 1, D + i)))
        L.append(mk("ds_write_b128 v39, %s offset:%d" % (vr(E1), o + 4160)))
        for i in range(4): L.append(mk("v_mov_b32 v%d, v%d" % (C2 + i, D + i + 1)))
        L.append(mk("ds_write_b128 v39, %s offset:%d" % (vr(C2), o + 2 * 4160)))
        for i in range(4): L.append(mk("v_alignbit_b32 v%d, v%d, v%d, 16" % (E3 + i, D + i + 2, D + i + 1)))
        L.append(mk("ds_write_b128 v39, %s offset:%d" % (vr(E3), o + 3 * 4160)))
    return L
def conv_xr():
    L = ml("s_lshl_b32 s7, s%d, 11\ns_add_u32 s6, s7, s%d\ns_add_u32 m0, s6, %d" % (sHalf, sCV, XR_OFF))
    return L + [dma(vL16, sWS, "s%d" % sXRso, j * 1024, "cv", " sc1") for j in range(2)]
def conv_reads(rr):
    L = []; b = aCF + 64 * (rr & 1)
    for i in range(8):
        a = b + 4 * i; t = "c%d_%d" % (rr, i)
        L.append(mk("ds_read_b64 a[%d:%d], v%d offset:%d" % (a, a + 1, uCA, 64 * rr + 512 * i), lg=t))
        L.append(mk("ds_read_b64 a[%d:%d], v%d offset:%d" % (a + 2, a + 3, uCA, 64 * rr + 512 * i + 8), lg=t))
        L.append(mk("ds_read_b128 a[%d:%d], v%d offset:%d" % (a + 32, a + 35, uCB, 3584 - 512 * i + 64 * rr), lg=t))
    return L

def kv_setup(p):
    p("s_lshr_b32 s3, s2, 3\ns_lshl_b32 s3, s3, 16\ns_and_b32 s4, s2, 7\ns_lshl_b32 s5, s4, 7\ns_add_u32 s5, s5, s3")
    p("v_lshrrev_b32 v9, 3, v1\nv_and_b32 v%d, 7, v1\nv_lshlrev_b32 v%d, 4, v%d\nv_lshl_add_u32 v%d, v9, 10, v%d" % (vSH, vKD, vSH, vKD, vKD))
    p("s_add_u32 s6, s5, %d\nv_add_u32 v%d, s6, v%d" % (56 * 1024, vKD + 2, vKD))
    p("s_lshl_b32 s6, s%d, 14\ns_add_u32 s5, s5, s6\nv_add_u32 v%d, s5, v%d" % (sWave, vKD + 1, vKD))
    p("v_add_u32 v%d, 0xffffe000, v%d\nv_add_u32 v%d, %d, v%d" % (vKD, vKD + 1, vKD + 3, 8192 - 1056, vKD + 1))
    p("s_lshl_b32 s6, s%d, 5\ns_add_u32 s6, s6, %d\nv_mul_u32_u24 v%d, 1056, v9\nv_lshl_add_u32 v%d, v%d, 2, v%d\nv_add_u32 v%d, s6, v%d" % (sWave, KVL, vKA, vKA, vSH, vKA, vKA, vKA))
    p("s_lshl_b32 s6, s4, 18\ns_lshl_b32 s7, s%d, 16\ns_add_u32 s6, s6, s7\ns_lshr_b32 s7, s3, 9\ns_sub_u32 s6, s6, s7\ns_add_u32 s6, s6, %d" % (sWave, WS_XR + 4080))
    p("v_lshlrev_b32 v%d, 13, v%d\nv_lshlrev_b32 v9, 4, v9\nv_sub_u32 v%d, v%d, v9\nv_add_u32 v%d, s6, v%d" % (vKO, vSH, vKO, vKO, vKO, vKO))
    p("s_lshl_b32 s6, s4, 9\ns_lshl_b32 s7, s%d, 7\ns_add_u32 s6, s6, s7\nv_lshl_add_u32 v%d, v%d, 4, s6" % (sWave, vSH, vSH))
    p("s_lshl_b32 s6, s2, 7\ns_lshl_b32 s7, s%d, 3\ns_add_u32 s6, s6, s7\ns_add_u32 s%d, s6, %d" % (sWave, sFlK, WS_FK))
    srd(p, sK, kK, 2048 * 1024); srd(p, sV, kV, 2048 * 1024); srd(p, sSh, kSH, 4096)
def kv_loads(opts):
    f = opts.get("fkv", " nt")
    L = ml("s_mul_i32 s6, s%d, 2112\ns_add_u32 s6, s6, %d\ns_mov_b32 m0, s6" % (sWave, KVL))
    L += [dma(vKD, sK, "0", 0, "kv", f), mk("s_add_u32 m0, s6, 1056"), dma(vKD + 1, sK, "0", 0, "kv", f),
          mk("s_mov_b32 m0, %d" % (KVL + 8 * 1056)), dma(vKD + 2, sK, "0", 0, "kv", f),
          mk("s_add_u32 m0, s6, %d" % (9 * 1056)), dma(vKD + 1, sV, "0", 0, "kv", f), dma(vKD + 3, sV, "0", 1056, "kv", f),
          mk("buffer_load_dwordx4 v[72:75], v%d, %s, 0 offen" % (vSH, S4(sSh)), vm="kv")]
    return L
def kv_compute():
    RK = 52; RV = 63; Wt = 76; K = 212; A = 223; V = 225
    L = []
    for j in range(11): L.append(mk("ds_read_b32 v%d, v%d offset:%d" % (RK + j, vKA, (5 + j) * 128 if j < 3 else 1056 + (j - 3) * 128), lg="kvr"))
    for t in range(8): L.append(mk("ds_read_b32 v%d, v%d offset:%d" % (RV + t, vKA, 9 * 1056 + t * 128), lg="kvr"))
    un = lambda d, s_, hi: mk(("v_and_b32 v%d, 0xffff0000, v%d" if hi else "v_lshlrev_b32 v%d, 16, v%d") % (d, s_))
    for e in range(2):
        for i in range(4): L.append(un(Wt + 4 * e + i, 72 + 2 * e + (i >> 1), i & 1))
    L.append(W(lg="kvr"))
    for e in range(2):
        o = (vNon, uPoll)[e]
        for j in range(11): L.append(un(K + j, RK + j, e))
        for t in range(8):
            a = A + (t & 1)
            L.append(mk("v_mul_f32 v%d, v%d, v%d" % (a, K + t, Wt + 4 * e + 3)))
            L.append(un(V, RV + t, e))
            for i in (2, 1, 0): L.append(mk("v_fmac_f32 v%d, v%d, v%d" % (a, K + t + 3 - i, Wt + 4 * e + i)))
            L.append(mk("v_mul_f32 v%d, v%d, v%d" % (a, a, V)))
            if t & 1: L.append(mk("v_cvt_pk_bf16_f32 v%d, v%d, v%d" % (o + 3 - (t >> 1), A + 1, A)))
    return L
def kv_stores():
    return [mk("s_mov_b32 s%d, 4096" % sT2),
            mk("buffer_store_dwordx4 %s, v%d, %s, 0 offen sc1" % (vr(vNon), vKO, S4(sWS)), vm="kvst"),
            mk("buffer_store_dwordx4 %s, v%d, %s, s%d offen sc1" % (vr(uPoll), vKO, S4(sWS), sT2), vm="kvst")]

SLOW = []
def spin(name, reload_, test, okbr):
    t = ["L_slow_%s:" % name, "s_mov_b32 s%d, 0" % sSpin, "L_spin_%s:" % name, "s_sleep 4"]
    t += [x.t for x in reload_] + ["s_waitcnt vmcnt(0)"] + [x.t for x in test]
    t += ["%s L_ok_%s" % (okbr, name), "s_add_u32 s%d, s%d, 1" % (sSpin, sSpin), "s_cmp_lt_u32 s%d, %d" % (sSpin, SPIN_MAX),
          "s_cbranch_scc1 L_spin_%s" % name, "s_branch L_ok_%s" % name]
    SLOW.append("\n".join(t))
def poll_check(name, regs, reload_, bits=64):
    L = []
    for i, r in enumerate(regs):
        op = "v_cmp_ne_u64 %%s, s[%d:%d], v[%d:%d]" % (sTag, sTag + 1, r, r + 1) if bits == 64 else "v_cmp_ne_u32 %%s, s%d, v%d" % (sTag, r)
        if i == 0: L.append(mk(op % "vcc"))
        else: L += ml(op % "s[4:5]" + "\ns_or_b64 vcc, vcc, s[4:5]")
    spin(name, reload_, L, "s_cbranch_vccz")
    return L + [mk("s_cbranch_vccnz L_slow_%s" % name), I("L_ok_%s:" % name, kind="label", cost=0)]
def nonce_get(name):
    ld = mk("global_load_dwordx2 v[%d:%d], v%d, s[%d:%d] sc1" % (vNon, vNon + 1, vNon + 2, sDbg, sDbg + 1), vm="non")
    t = ml("v_readfirstlane_b32 s%d, v%d\nv_readfirstlane_b32 s%d, v%d\ns_cmp_lg_u32 s%d, 0" % (sTag, vNon, sTag + 1, vNon + 1, sTag))
    spin(name, [ld], t, "s_cbranch_scc1")
    chk = t[:2] + [bundle(t[2].t + "\ns_cbranch_scc0 L_slow_%s" % name), I("L_ok_%s:" % name, kind="label", cost=0)]
    chk += ml("v_mov_b32 v%d, v%d\nv_mov_b32 v%d, v%d" % (vTag, vNon, vTag + 1, vNon + 1))
    return ld, chk

def g1_epilogue(tile, opts):
    A0 = acc_of(tile)
    c4 = vST + 4 * tile + 1; c1 = vST + 4 * tile + 2
    g = [A0 + (p >> 2) * 8 + (p & 3) for p in range(8)]
    u = [x + 4 for x in g]
    o = vOUT + 4 * (tile & 1)
    st = []
    for p in range(8):
        t = vTMP + p
        st.append([mk("v_mul_f32 v%d, v%d, v%d" % (g[p], g[p], c1)), mk("v_exp_f32 v%d, v%d" % (t, g[p])),
                   mk("v_mul_f32 v%d, v%d, v%d" % (u[p], g[p], u[p])), mk("v_fma_f32 v%d, v%d, v%d, v%d" % (t, t, c4, c4)),
                   mk("v_rcp_f32 v%d, v%d" % (t, t)), mk("v_mul_f32 v%d, v%d, v%d" % (u[p], u[p], t))])
    R = []; pend = []
    for step in range(18):
        for k in (5, 4, 3, 2, 1, 0):
            p = step - 2 * k
            if 0 <= p < 8:
                R.append(st[p][k])
                for q in pend: R.append(mk("v_cvt_pk_bf16_f32 v%d, v%d, v%d" % (o + (q >> 1), u[q - 1], u[q])))
                pend = [p] if (k == 5 and p & 1) else []
    for q in pend: R.append(mk("v_cvt_pk_bf16_f32 v%d, v%d, v%d" % (o + (q >> 1), u[q - 1], u[q])))
    R.append(mk("s_add_u32 s%d, s%d, %d" % (sT3, sHa, tile * 2 * 56 * 1024)))
    if not opts.get("x_nohst"): R.append(mk("buffer_store_dwordx4 %s, v%d, %s, s%d offen%s" % (vr(o), vHoff, S4(sWS), sT3, "" if opts.get("x_hplain") else " sc1"), vm="hst%d" % tile))
    return R

def common_setup(p, opts):
    p("v_and_b32 v1, 63, v0\nv_lshrrev_b32 v2, 6, v0\nv_lshlrev_b32 v%d, 4, v1\nv_readfirstlane_b32 s%d, v2" % (vL16, sWave))
    p("v_lshrrev_b32 v2, 3, v1\nv_and_b32 v3, 7, v1\nv_lshrrev_b32 v9, 4, v1\nv_mov_b32 v%d, 0" % (vNon + 2))

def phase2_setup(p, opts):
    q, n, a, b, c, d = 40, 41, 42, 43, 44, 45
    p("s_and_b32 s3, s2, 7\ns_lshr_b32 s4, s2, 3\ns_lshl_b32 s3, s3, 2\ns_and_b32 s5, s4, 3\ns_add_u32 s%d, s3, s5\ns_lshr_b32 s%d, s4, 2" % (sTB2, sDB))
    p("v_lshrrev_b32 v%d, 4, v1\nv_and_b32 v%d, 15, v1" % (q, n))
    p("v_lshrrev_b32 v%d, 3, v1\nv_and_b32 v%d, 7, v1\nv_and_b32 v%d, 1, v%d\nv_lshlrev_b32 v%d, 1, v%d\nv_xor_b32 v%d, v%d, v%d" % (a, b, c, q, c, c, c, c, b))
    p("s_lshl_b32 s7, s%d, 7\ns_mul_i32 s5, s%d, %d\ns_add_u32 s7, s7, s5" % (sDB, sWave, 448 * 1024))
    p("v_lshlrev_b32 v%d, 4, v%d\nv_lshl_add_u32 v%d, v%d, 10, v%d\nv_add_u32 v%d, s7, v%d\nv_xor_b32 v%d, 64, v%d" % (c, c, c, a, c, uWD, c, c, uWD))
    p("v_add_u32 v%d, 7168, v%d\nv_add_u32 v%d, 14336, v%d\nv_add_u32 v%d, 21504, v%d" % (uWD + 1, c, uWD + 2, uWD, uWD + 3, c))
    p("s_lshr_b32 s5, s%d, 2\ns_lshl_b32 s5, s5, 4\ns_and_b32 s6, s%d, 3\ns_lshl_b32 s6, s6, 1\ns_add_u32 s6, s5, s6" % (sTB2, sTB2))
    p("s_mul_i32 s5, s6, 57344\ns_mul_i32 s7, s%d, 14336\ns_add_u32 s5, s5, s7\nv_add_u32 v%d, s5, v%d" % (sWave, uH, vL16))
    p("v_add_u32 v%d, 57344, v%d\nv_add_u32 v%d, %d, v%d\nv_add_u32 v%d, %d, v%d" % (uH + 1, uH, uH + 2, 8 * 57344, uH, uH + 3, 9 * 57344, uH))
    p("s_lshr_b32 s5, s%d, 1\ns_lshl_b32 s5, s5, 3\ns_add_u32 s5, s5, s6\ns_add_u32 s5, s5, s%d\ns_lshl_b32 s5, s5, 4\nv_add_u32 v%d, s5, v%d" % (sWave, sHalf, c, n))
    p("v_lshlrev_b32 v%d, 10, v%d\nv_lshl_add_u32 v%d, v%d, 5, v%d\ns_lshl_b32 s7, s%d, 7\nv_add_u32 v%d, s7, v%d" % (d, c, d, q, d, sDB, uX, d))
    p("v_lshlrev_b32 v%d, 3, v%d\nv_add_u32 v%d, %d, v%d" % (c, c, uSto, WS_ST, c))
    p("v_bfe_u32 v%d, v1, 2, 2\nv_and_b32 v%d, 3, v1\nv_lshrrev_b32 v%d, 1, v%d\nv_and_b32 v%d, 1, v%d\nv_lshl_add_u32 v%d, v%d, 1, v%d" % (a, b, c, a, d, q, c, d, c))
    p("v_lshl_add_u32 v%d, v%d, 3, v%d\nv_lshlrev_b32 v%d, 7, v%d\nv_lshl_add_u32 v%d, v%d, 3, v%d\nv_add_u32 v%d, s%d, v%d" % (a, q, a, a, a, a, b, a, a, sWdL, a))
    p("v_lshl_add_u32 v%d, v%d, 5, v%d" % (uTR, c, a))
    for mt in range(1, 4): p("v_xor_b32 v%d, %d, v%d" % (uTR + mt, 32 * mt, uTR))
    p("v_add_u32 v%d, 1, v%d\nv_and_b32 v%d, 3, v%d\nv_sub_u32 v%d, v%d, v%d\nv_lshl_add_u32 v%d, v%d, 3, v%d\nv_lshlrev_b32 v%d, 1, v%d" % (a, n, b, a, a, a, b, a, q, a, a, a))
    p("v_mul_u32_u24 v%d, 4160, v%d\ns_lshl_b32 s7, s%d, 8\ns_add_u32 s7, s7, s%d\nv_add3_u32 v%d, v%d, v%d, s7" % (b, b, sHalf, sCV, uCA, a, b))
    p("v_lshlrev_b32 v%d, 5, v%d\nv_lshlrev_b32 v%d, 4, v%d\nv_sub_u32 v%d, v%d, v%d\ns_add_u32 s7, s7, %d\nv_add_u32 v%d, s7, v%d" % (a, n, b, q, a, b, a, XR_OFF + 480, uCB, a))
    p("v_mul_u32_u24 v%d, 4160, v%d\nv_lshl_add_u32 v%d, v%d, 1, v%d\nv_add_u32 v%d, s%d, v%d" % (a, q, a, n, a, uHeadA, sCV, a))
    p("v_mov_b32 v46, 0\nv_mov_b32 v47, 0\nv_lshlrev_b32 v%d, 3, v1\ns_add_u32 s7, s%d, %d\nv_add_u32 v%d, s7, v%d" % (a, sCV, XR_OFF + 4096, a, a))
    p("ds_write_b64 v%d, v[46:47]" % a)
    p("v_and_b32 v%d, 2, v%d\nv_lshlrev_b32 v%d, 3, v%d\nv_lshl_add_u32 v%d, v%d, 5, v%d\nv_and_b32 v%d, 1, v%d\nv_lshl_add_u32 v%d, v%d, 9, v%d" % (a, q, a, a, a, n, a, b, q, uYst, b, a))
    p("s_lshl_b32 s7, s%d, 11\ns_add_u32 s7, s7, s%d\ns_add_u32 s%d, s7, %d\ns_add_u32 s%d, s7, %d" % (sHalf, sCh4k, sYoff, WS_YT, sXRso, WS_XR))
    p("s_lshl_b32 s7, s2, 7\ns_lshl_b32 s3, s%d, 3\ns_add_u32 s7, s7, s3\ns_add_u32 s%d, s7, %d" % (sWave, sFlY, WS_FY))
    p("v_bfe_u32 v%d, v1, 1, 3\nv_lshlrev_b32 v%d, 7, v%d\nv_and_b32 v%d, 1, v1\nv_lshl_add_u32 v%d, v%d, 4, v%d" % (a, a, a, b, a, b, a))
    p("s_lshl_b32 s7, s%d, 12\ns_lshl_b32 s3, s%d, 10\ns_add_u32 s7, s7, s3\ns_add_u32 s7, s7, %d\nv_add_u32 v%d, s7, v%d" % (sDB, sWave, WS_FY, uFY, a))
    p("v_min_u32 v%d, 27, v1\nv_lshrrev_b32 v%d, 2, v%d\nv_lshlrev_b32 v%d, 7, v%d\nv_and_b32 v%d, 3, v%d\nv_lshl_add_u32 v%d, v%d, 3, v%d" % (a, b, a, b, b, a, a, a, a, b))
    p("s_lshr_b32 s7, s%d, 2\ns_lshl_b32 s7, s7, 5\ns_mul_i32 s3, s%d, 7\ns_add_u32 s7, s7, s3\ns_lshl_b32 s7, s7, 7\ns_add_u32 s7, s7, %d\nv_add_u32 v%d, s7, v%d" % (sTB2, sWave, WS_FH, uFH, a))
    p("v_and_b32 v%d, 31, v1\nv_lshlrev_b32 v%d, 10, v%d\ns_lshr_b32 s7, s2, 5\ns_lshl_b32 s7, s7, 7\ns_and_b32 s3, s2, 24\ns_add_u32 s7, s7, s3\ns_add_u32 s7, s7, %d\nv_add_u32 v%d, s7, v%d" % (a, a, a, WS_FK, uFK, a))
    p("v_cmp_ne_u32 vcc, 0, v1\nv_mov_b32 v%d, 0x80000000\nv_mov_b32 v%d, 0\nv_cndmask_b32 v%d, v%d, v%d, vcc" % (a, b, vFl, b, a))

def hk_srds(p):
    p("s_add_u32 s%d, s60, s%d\ns_addc_u32 s%d, s61, 0\ns_and_b32 s%d, s%d, 0xffff\ns_sub_u32 s%d, 0x200000, s%d\ns_mov_b32 s%d, 0x20000" % (sHk, sCh4k, sHk + 1, sHk + 1, sHk + 1, sHk + 2, sCh4k, sHk + 3))
    srd(p, sDp, kD, 1024)
def ids2(p):
    p("s_lshr_b32 s3, s%d, 1\ns_lshl_b32 s4, s2, 1\ns_add_u32 s4, s4, s3\ns_mul_i32 s%d, s3, %d\ns_add_u32 s%d, s%d, %d" % (sWave, sCV, CH_STRIDE, sCV, sCV, CONV))
    p("s_and_b32 s%d, s%d, 1\ns_lshl_b32 s%d, s4, 12\ns_lshl_b32 s%d, s4, 1\ns_lshl_b32 s%d, s%d, 12" % (sHalf, sWave, sCh4k, sDoff, sWdL, sWave))
    p("v_lshrrev_b32 v40, 4, v1\nv_and_b32 v41, 15, v1\nv_add_u32 v42, v40, v41\nv_add_u32 v42, -16, v42\nv_lshlrev_b32 v%d, 1, v42" % uHead)
def phase2_srds():
    L = []
    for d, lo, size in ((sWd, kWD, 1792 * 1024), (sOut, kOUT, 2048 * 1024)):
        L += ml("s_mov_b32 s%d, s%d\ns_and_b32 s%d, s%d, 0xffff\ns_mov_b32 s%d, 0x%x\ns_mov_b32 s%d, 0x20000" % (d, lo, d + 1, lo + 1, d + 2, size, d + 3))
    L += ml("s_lshl_b32 s3, s%d, 1\ns_and_b32 s7, s%d, 3\ns_lshl_b32 s7, s7, 2\ns_add_u32 s3, s3, s7\ns_lshr_b32 s7, s%d, 2\ns_add_u32 s3, s3, s7" % (sDB, sTB2, sTB2))
    L += ml("s_mul_i32 s7, s3, 37\ns_lshr_b32 s7, s7, 9\ns_mul_i32 s7, s7, 14\ns_sub_u32 s3, s3, s7\ns_lshl_b32 s3, s3, 15")
    for s in range(14):
        L += ml("s_mov_b32 s%d, s3" % (sTabW + s))
        if s < 13: L += ml("s_add_u32 s3, s3, 0x8000") + [bundle("s_cmp_eq_u32 s3, 0x70000\ns_cselect_b32 s3, 0, s3")]
    return L

class Filler:
    def __init__(self, space=2):
        self.vq = []; self.xq = []; self.last = -9; self.space = space
    def v(self, at, L): self.vq += [(at, x) for x in L]
    def x(self, at, L): self.xq += [(at, y) for y in L]
    def fill(self, gi, gap, budget):
        used = lambda: sum(y.cost for y in gap)
        nv = 0
        while self.vq and self.vq[0][0] <= gi and used() + self.vq[0][1].cost <= budget:
            at, y = self.vq[0]
            if is_vm(y) and y.t.endswith(" lds"):
                lag = gi - at
                if nv >= 1 or (gi - self.last < self.space and lag < 14): break
                nv += 1; self.last = gi
            gap.append(y); self.vq.pop(0)
            if is_m0(y): break
        while self.xq and self.xq[0][0] <= gi and used() + self.xq[0][1].cost <= budget:
            gap.append(self.xq.pop(0)[1])

def gemm1(p, opts):
    p("s_sub_u32 s3, s2, 32\ns_and_b32 s4, s3, 7\ns_lshr_b32 s5, s3, 3")
    p("s_and_b32 s6, s4, 1\ns_and_b32 s7, s5, 3\ns_lshl_b32 s34, s7, 1\ns_add_u32 s34, s34, s6\ns_lshl_b32 s6, s6, 2\ns_add_u32 s%d, s6, s7" % sTB)
    p("s_lshr_b32 s6, s4, 1\ns_mul_i32 s6, s6, 7\ns_lshr_b32 s7, s5, 2\ns_add_u32 s%d, s6, s7" % sCB)
    p("s_add_u32 s34, s34, s%d\ns_and_b32 s34, s34, 7" % sCB)
    p("v_xor_b32 v5, v9, v3\nv_lshlrev_b32 v5, 4, v5\nv_lshl_add_u32 v%d, v2, 10, v5\nv_xor_b32 v5, 64, v%d" % (vXD, vXD))
    p("v_add_u32 v%d, 7168, v5\nv_add_u32 v%d, 14336, v%d\nv_add_u32 v%d, 21504, v5" % (vXD + 1, vXD + 2, vXD, vXD + 3))
    p("s_lshr_b32 s3, s%d, 1\ns_lshl_b32 s3, s3, 2" % sWave)
    p("v_and_b32 v5, 1, v9\nv_lshlrev_b32 v5, 1, v5\nv_xor_b32 v5, s3, v5\nv_xor_b32 v5, v5, v3\nv_lshlrev_b32 v5, 4, v5")
    p("s_and_b32 s4, s%d, 1\ns_mul_i32 s4, s4, %d\ns_lshl_b32 s5, s%d, 7\ns_add_u32 s4, s4, s5" % (sWave, 32 * 3584, sCB))
    p("v_mul_u32_u24 v6, 3584, v2\nv_add3_u32 v%d, v5, v6, s4" % vWD)
    for j in range(1, 4): p("v_add_u32 v%d, %d, v%d" % (vWD + j, j * (8 * 3584 - 1024), vWD))
    p("s_lshl_b32 s35, s%d, 18\ns_lshl_b32 s4, s%d, 15\ns_add_u32 s7, s35, s4" % (sTB, sWave))
    p("s_lshl_b32 s%d, s%d, 12\ns_add_u32 s%d, s%d, 16384" % (sLdsW, sWave, sLdsX, sLdsW))
    p("s_mul_i32 s%d, s34, %d\ns_lshl_b32 s3, s34, 7\ns_add_u32 s%d, s3, s7" % (sTab + 4, 64 * 3584, sTab + 8))
    p("s_waitcnt lgkmcnt(0)")
    srd(p, sQ, kQ, 2048 * 1024)
    p("s_cmp_ge_u32 s%d, 2\ns_cselect_b32 s66, s68, s66\ns_cselect_b32 s67, s69, s67" % sWave)
    srd(p, sW, kWG, 512 * 3584)
    stamp(p, "g.karg", opts, 2)
    st0 = g1_stage(0, opts)
    for x in st0: x.t = x.t.replace("s%d offen" % sTab, "s%d offen" % (sTab + 4))
    seq(p, st0)
    stamp(p, "g.st0", opts, 2)
    p("s_mov_b32 s27, s7")
    srd(p, sWS, kWS, WS_SZ)
    p("s_mov_b32 s%d, s74\ns_mov_b32 s%d, s75" % (sDbg, sDbg + 1))
    kv_setup(p)
    ids2(p); hk_srds(p)
    seq(p, kv_loads(opts) + hk_loads(opts))
    stamp(p, "g.kvis", opts, 2)
    for s in range(1, 8):
        p("s_add_u32 s3, s34, %d\ns_and_b32 s3, s3, 7\ns_mul_i32 s%d, s3, %d\ns_lshl_b32 s3, s3, 7\ns_add_u32 s%d, s3, s27" % (s, sTab + s, 64 * 3584, sTab + 8 + s))
    p("s_lshl_b32 s%d, s%d, 13\ns_add_u32 s6, s35, 0x20000" % (sLdsXB, sWave))
    for h in range(2):
        p("s_lshl_b32 s3, s%d, 1\ns_add_u32 s3, s3, s34\ns_add_u32 s3, s3, %d\ns_and_b32 s3, s3, 7\ns_lshl_b32 s3, s3, 7\ns_add_u32 s%d, s3, s6" % (sWave, h, sXB + h))
    p("s_lshl_b32 s3, s%d, 1\ns_lshr_b32 s4, s%d, 1\ns_add_u32 s3, s3, s4\ns_lshl_b32 s3, s3, 10\ns_mul_i32 s4, s%d, %d\ns_add_u32 s%d, s3, s4" % (sCB, sWave, sTB, 16 * 57344, sHa))
    p("s_lshl_b32 s4, s%d, 11\ns_add_u32 s%d, s4, %d" % (sTB, sST, WS_ST))
    p("s_lshl_b32 s3, s%d, 13\ns_lshl_b32 s4, s%d, 11\ns_add_u32 s3, s3, s4\ns_add_u32 s3, s3, %d" % (sCB, sWave, WS_CS))
    a, b, c, d, e, f = 40, 41, 42, 43, 44, 45
    p("v_and_b32 v%d, 31, v1\nv_lshrrev_b32 v%d, 5, v1\nv_lshlrev_b32 v%d, 3, v1\nv_add_u32 v%d, s3, v%d" % (a, b, vSToff, vCSoff, vSToff))
    p("s_lshl_b32 s%d, s34, 8" % sCSw)
    p("s_lshl_b32 s3, s%d, 5\ns_add_u32 s3, s3, s%d\ns_lshl_b32 s3, s3, 7\ns_lshl_b32 s4, s%d, 3\ns_add_u32 s3, s3, s4\ns_add_u32 s%d, s3, %d" % (sTB, sCB, sWave, sFlH, WS_FH))
    p("v_bfe_u32 v%d, v1, 1, 3\nv_xor_b32 v%d, v%d, v%d\nv_lshlrev_b32 v%d, 4, v%d\nv_lshl_add_u32 v%d, v%d, 7, v%d" % (c, c, c, b, c, c, vXA, a, c))
    for ks in range(1, 4): p("v_xor_b32 v%d, %d, v%d" % (vXA + ks, 32 * ks, vXA))
    for ks in range(4): p("v_add_u32 v%d, 0x10000, v%d" % (vXA + 4 + ks, vXA + ks))
    p("v_bfe_u32 v%d, v1, 2, 2\nv_bfe_u32 v%d, v1, 1, 1\nv_and_b32 v%d, 1, v1\nv_bfe_u32 v%d, v1, 4, 1" % (a, c, d, e))
    p("v_lshrrev_b32 v%d, 1, v%d\nv_lshl_add_u32 v%d, v%d, 1, v%d\nv_xor_b32 v%d, s%d, v%d\nv_lshlrev_b32 v%d, 5, v%d" % (f, a, f, c, f, f, sWave, f, f, f))
    p("v_lshl_add_u32 v%d, v%d, 4, v%d\nv_lshl_add_u32 v%d, v%d, 3, v%d\nv_lshl_add_u32 v%d, v%d, 13, v%d" % (f, d, f, f, e, f, f, c, f))
    p("v_lshl_add_u32 v%d, v%d, 3, v%d\nv_lshl_add_u32 v%d, v%d, 7, v%d\nv_add_u32 v%d, 0x10000, v%d" % (a, b, a, vWA, a, f, vWA + 1, vWA))
    p("v_mul_u32_u24 v%d, 57344, v%d\nv_and_b32 v%d, 15, v1\nv_lshl_add_u32 v%d, v%d, 4, v%d" % (e, e, c, c, b, c))
    p("s_and_b32 s3, s%d, 1\ns_lshl_b32 s3, s3, 9\nv_lshl_add_u32 v%d, v%d, 4, v%d\nv_add_u32 v%d, s3, v%d" % (sWave, c, c, e, vHoff, c))
    stamp(p, "g.set1", opts, 2)
    phase2_setup(p, opts)
    for r in range(4): p("v_mov_b32 v%d, 0x3f803f80" % (vOnes + r))
    stamp(p, "g.set2", opts, 2)
    seq(p, g1_stage(1, opts))
    nld, nchk = nonce_get("ng")
    p.add(nld)
    stamp(p, "g.st1", opts)

    def rdW(n):
        s, ks = n >> 2, n & 3
        w, off = win((s % 3) * SLOT + ks * 2048)
        return [mk("ds_read_b64_tr_b16 a[%d:%d], v%d offset:%d" % (4 * n, 4 * n + 1, vWA + w, off), lg="W%d" % n),
                mk("ds_read_b64_tr_b16 a[%d:%d], v%d offset:%d" % (4 * n + 2, 4 * n + 3, vWA + w, off + 512), lg="W%d" % n)]
    def rdXA(n, i):
        s, ks = n >> 2, n & 3
        w, off = win((s % 3) * SLOT + 16384 + i * 4096)
        return mk("ds_read_b128 %s, v%d offset:%d" % (vr(vXF + 16 * (n & 1) + 4 * i), vXA + 4 * w + ks, off), lg="X%d_%d" % (n, i))
    def rdXB(bb, n):
        w, off = win(((8 + bb) % 3) * SLOT + (n >> 2) * 4096)
        return mk("ds_read_b128 %s, v%d offset:%d" % (vr(vXF + 4 * (n & 7)), vXA + 4 * w + (n & 3), off), lg="B%d_%d" % (bb, n))

    fr = opts.get("fr", " sc1")
    cs_loads = [mk("buffer_load_dwordx2 %s, v%d, %s, 0 offen offset:%d sc1" % (vr(vCSR + 2 * t, 2), vCSoff, S4(sWS), t * 512), vm="rec") for t in range(4)]
    st_loads = [mk("buffer_load_dwordx2 %s, v%d, %s, s%d offen offset:%d%s" % (vr(vCSR + 8 + 2 * t, 2), vSToff, S4(sWS), sST, t * 512, fr), vm="rec") for t in range(4)]
    post = poll_check("rec", [vCSR + 2 * t + 1 for t in range(8)], cs_loads + [mk(y.t.replace(fr, " sc1") if fr else y.t + " sc1") for y in st_loads], 32)
    post += ml("v_add_f32 v%d, v%d, v%d\nv_add_f32 v%d, v%d, v%d\nv_add_f32 v%d, v%d, v%d\nv_mov_b32 v%d, v%d" % (vCSR, vCSR, vCSR + 2, vCSR + 4, vCSR + 4, vCSR + 6, vCSR, vCSR, vCSR + 4, vCSR + 1, vCSR))
    for t in range(4): post += ml("v_mov_b32 v%d, v%d\nv_mov_b32 v%d, v%d" % (vST + 8 * t + 1, vCSR + 8 + 2 * t, vST + 8 * t + 5, vCSR + 8 + 2 * t))
    post += ml("v_permlane32_swap_b32 v%d, v%d" % (vCSR, vCSR + 1))
    for t in range(4): post += ml("v_permlane32_swap_b32 v%d, v%d" % (vST + 8 * t + 1, vST + 8 * t + 5))
    post += ml("s_mov_b32 s%d, 0x01000100\nv_add_f32 v%d, v%d, v%d" % (sT2, vCSR, vCSR, vCSR + 1))
    for t in range(8): post += ml("v_perm_b32 v%d, v%d, v%d, s%d" % (vST + 4 * t, vST + 4 * t + 1, vST + 4 * t + 1, sT2))
    for t in range(8): post += ml("v_and_b32 v%d, 0xffff0000, v%d" % (vST + 4 * t + 1, vST + 4 * t + 1))
    for t in range(8): post += ml("v_mul_f32 v%d, %s, v%d" % (vST + 4 * t + 1, hex(f2u(-LOG2E)), vST + 4 * t + 1))
    post += [mk("v_cvt_pk_bf16_f32 v%d, v%d, v%d" % (vCSR + 1, vCSR, vCSR)), mk("v_and_b32 v%d, 0xffff0000, v%d" % (vCSR + 1, vCSR + 1)),
             mk("v_sub_f32 v%d, v%d, v%d" % (vCSR, vCSR, vCSR + 1)), mk("v_cmp_gt_u32 vcc, 32, v1"),
             mk("v_cvt_pk_bf16_f32 v%d, v%d, v%d" % (vCSR, vCSR + 1, vCSR)),
             mk("v_mov_b32 v%d, v%d" % (vR1B, vST)), mk("v_cndmask_b32 v%d, 0, v%d, vcc" % (vR1A, vCSR)), mk("v_mov_b32 v%d, v%d" % (vR1B + 4, vST + 4))]
    cst = lambda t: ml("v_rcp_f32 v%d, v%d" % (vST + 4 * t + 2, vST + 4 * t + 1))
    cmu = lambda t: ml("v_mul_f32 v%d, %s, v%d" % (vST + 4 * t + 2, hex(f2u(LOG2E * LOG2E)), vST + 4 * t + 2))
    for t in range(4): post += cst(t)
    for t in range(4): post += cmu(t)

    if opts.get("x_norec"):
        cs_loads = []; st_loads = []; post = [y for y in post if "cbranch" not in y.t]
    F = Filler(opts.get("aspace", 2))
    RL = opts.get("recst", 5)
    for s in range(8):
        F.v(max(0, 16 * s - 3), g1_stage(s + 2, opts))
        if s == opts.get("csst", 1): F.v(0, [mk("buffer_store_dwordx2 %s, v9, %s, s%d offen sc1" % (vr(vCSA, 2), S4(sWS), sCSw), vm="csst")])
        if s == opts.get("kvst", 4) and not opts.get("x_nokvs"): F.v(0, kv_stores())
        if s == RL - 1: F.v(16 * RL - 4, cs_loads + st_loads)
        if s == 7 and opts.get("kvst", 4) < 8: F.v(16 * 7 + 8, [W(vm="kvst"), flag_store(sFlK)])
    F.x(0, ml("v_lshlrev_b32 v9, 26, v1\nv_and_b32 v9, 0x80000000, v9\nv_or_b32 v9, v9, v%d" % vCSoff))
    F.x(13, [W(vm="non")] + nchk)
    F.x(17, [mk("v_mov_b32 v%d, 0" % r) for r in (vR1A + 1, vR1A + 2, vR1A + 3)] + ml("v_mov_b32 v%d, v%d" % (vCSA + 1, vTag)))
    F.x(17, [mk("v_mov_b32 v%d, 0" % r) for r in (vR1B + 1, vR1B + 2, vR1B + 3, vR1B + 5, vR1B + 6, vR1B + 7)])
    kc = kv_compute()
    if opts.get("x_nokvr"): kc = [y for y in kc if not y.t.startswith("ds_")]
    if opts.get("x_nokvv"): kc = [y for y in kc if not y.t.startswith("v_")]
    F.x(13, kc)
    KVS = I("; kv done", cost=0); KVS.kind = "label"
    sr = phase2_srds()
    F.x(0, [KVS] + hk_build() + sr[:8])
    F.x(0, sr[8:])
    F.x(16 * (RL + 2) - 3 + opts.get("postat", 0), [W(vm="rec")] + post)
    p.wait(vm="st0")
    p("s_barrier")
    stamp(p, "g.st0in", opts)
    for x in rdW(0): p.add(x)
    for i in range(4): p.add(rdXA(0, i))
    PD = 5
    BA = opts.get("buda", 24)
    for n in range(32):
        s, ks = n >> 2, n & 3
        gaps = [[], [], [], []]
        if ks == 3: gaps[0] += [W(vm="st%d" % (s + 1), lg="*"), mk("s_barrier")]
        if n < 31:
            gaps[0] += rdW(n + 1); gaps[1] += [rdXA(n + 1, 0), rdXA(n + 1, 1)]; gaps[2] += [rdXA(n + 1, 2), rdXA(n + 1, 3)]
        else:
            gaps[0] += [rdXB(0, 0), rdXB(0, 1)]; gaps[1] += [rdXB(0, 2), rdXB(0, 3)]
        for i in range(4):
            if i in (0, 2): p.wait(lg=["W%d" % n, "X%d_%d" % (n, i + 1)])
            a = acc_of(i)
            p("v_mfma_f32_32x32x16_bf16 %s, a[%d:%d], %s, %s" % (vr(a, 16), 4 * n, 4 * n + 3, vr(vXF + 16 * (n & 1) + 4 * i), vr(a, 16) if n else "0"))
            if ks == 3 and i == 0 and any(y.vm == "st%d" % (s + 1) for _, y in F.vq): raise SystemExit("stage %d not issued" % (s + 1))
            F.fill(4 * n + i, gaps[i], BA - (4 if i in (1, 3) else 0))
            if any(y.vm == "csst" for y in gaps[i]): assert not any(y.t.startswith("v_mov_b32 v%d," % (vCSA + 1)) for y in gaps[i] + [z for _, z in F.xq]), "cs store too early"
            if any(y.vm == "kvst" for y in gaps[i]): assert KVS not in gaps[i] + [z for _, z in F.xq], "kv store too early"
            for x in gaps[i]: p.add(x)
        if ks == 3 and s < 7: stamp(p, "g.s%d" % s, opts, 2)
        if n < 4:
            p("v_mfma_f32_32x32x16_bf16 %s, %s, a[%d:%d], %s" % (vr(vCSA, 16), vr(vOnes), 4 * n, 4 * n + 3, vr(vCSA, 16) if n else "0"))
    left = len(F.xq)
    stamp(p, "g.A31", opts, 2)
    for _, x in F.xq: p.add(x)
    F.xq = []
    print("phase A: left-over x items %d, v items %d" % (left, len(F.vq)), file=sys.stderr)
    stamp(p, "g.Aend", opts)
    p.add(rdXB(0, 4))
    p("s_nop 0")
    late = [cst(4) + cst(5), cst(6) + cst(7), cmu(4) + cmu(5), cmu(6) + cmu(7)]
    for t in range(4):
        a = acc_of(t)
        p("v_mfma_f32_32x32x16_bf16 %s, %s, %s, %s" % (vr(a, 16), vr(vR1A), vr(vR1B + 4 * (t & 1)), vr(a, 16)))
        p("v_mov_b32 v%d, v%d" % (vR1B + 4 * (t & 1), vST + 4 * (t + 2)))
        for x in late[t]: p.add(x)
    ep = [g1_epilogue(t, opts) for t in range(7)]
    total = sum(x.cost for e in ep for x in e)
    kvpoll = [mk("buffer_load_dwordx2 v[%d:%d], v%d, %s, 0 offen sc1" % (uPoll, uPoll + 1, uFK, S4(sWS)), vm="kvp")]
    F.vq = [(0, y) for _, y in F.vq]; F.last = -9; F.space = opts.get("bspace", 2)
    X = lambda k, L: [] if opts.get(k) else L
    F.v(0, g1_stage(10, opts))
    F.v(29, g1_stage(11, opts))
    F.v(opts.get("kvpoll", 40), kvpoll + X("x_nowd", wd_loads(0, opts)))
    F.v(33 + 29, X("x_nowd", wd_loads(1, opts) + wd_loads(2, opts)))
    F.v(opts.get("kvchk", 84), [W(vm="kvp")] + poll_check("kv", [uPoll], kvpoll) + conv_xr())
    F.v(66 + 29, X("x_nowd", wd_loads(3, opts) + wd_loads(4, opts)))
    EF = opts.get("eflag", 99 + 16)
    ngaps = 4 * 33; done = 0; cur = 0; gi = 0
    BUD = opts.get("bud", 24)
    for bb in range(4):
        tile = 4 + bb; a = acc_of(tile)
        for n in range(-1, 32):
            gap = []
            if n == -1:
                p("v_mfma_f32_32x32x16_bf16 %s, %s, %s, 0" % (vr(a, 16), vr(vR1A), vr(vR1B + 4 * (bb & 1))))
                if bb < 2: gap.append(mk("v_mov_b32 v%d, v%d" % (vR1B + 4 * (bb & 1), vST + 4 * (tile + 2))))
            else:
                if n % 2 == 0: p.wait(lg="B%d_%d" % (bb, n + 1))
                p("v_mfma_f32_32x32x16_bf16 %s, a[%d:%d], %s, %s" % (vr(a, 16), 4 * n, 4 * n + 3, vr(vXF + 4 * (n & 7)), vr(a, 16)))
                m = n + PD
                if m == 32 and bb < 3:
                    if any(y.vm == "st%d" % (9 + bb) for _, y in F.vq): raise SystemExit("stage not issued before its wait")
                    gap += [W(vm="st%d" % (9 + bb), lg="*"), mk("s_barrier")]
                if m < 32: gap.append(rdXB(bb, m))
                elif bb < 3: gap.append(rdXB(bb + 1, m - 32))
            budget = BUD - (4 if (n % 2 == 1) else 0)
            if gi == EF:
                assert cur >= 4
                gap += [W(vm="hst3"), flag_store(sFlH)]
            F.fill(gi, gap, min(budget, sum(y.cost for y in gap) + 8))
            gi += 1
            target = total * gi / float(ngaps - opts.get("eplead", 4))
            while cur < 7 and done < target:
                if cur >= 4 and (cur - 4 >= bb or (cur - 4 == bb - 1 and n < 4)): break
                if cur < 4 and bb == 0 and n < 2: break
                x = ep[cur][0]
                if sum(y.cost for y in gap) + x.cost > budget: break
                gap.append(ep[cur].pop(0)); done += x.cost
                if not ep[cur]: cur += 1
            for x in gap: p.add(x)
        if bb < 3: stamp(p, "g.b%d" % bb, opts, 2)
    stamp(p, "g.Bend", opts)
    print("phase B: left-over v items %d, epilogue cost left %d" % (len(F.vq), total - done), file=sys.stderr)
    seq(p, [y for _, y in F.vq])
    while cur < 7:
        for x in ep[cur]: p.add(x)
        cur += 1
    for s in range(14): p("s_lshr_b32 s%d, s%d, 5" % (sTab + s, sTabW + s))
    for x in g1_epilogue(7, opts): p.add(x)

def phase2(p, opts):
    stamp(p, "p2", opts)
    for mt in range(4): p("v_add_u32 v%d, 0x10000, v%d\nv_add_u32 v%d, 0x20000, v%d" % (HI[1] + mt, uTR + mt, HI[2] + mt, uTR + mt))
    p.wait(vm="cv")
    p("s_barrier")
    stamp(p, "p2bar", opts, 4)
    for x in conv_reads(0): p.add(x)
    vq = wd_loads(5, opts) + wd_loads(6, opts)
    for s in range(7):
        vq += [W(vm="w%d" % s)] + wd_reads(s)
        if s > 0: vq += [W(lg="t%d" % (s - 1))] + wd_loads(6 + s, opts)
    vq += [W(lg="t6")] + wd_loads(13, opts)
    dq = ml("v_lshrrev_b32 v24, 4, v1\nv_and_b32 v25, 15, v1\nv_lshl_add_u32 v24, v24, 3, v25\nv_sub_u32 v24, 15, v24\nv_lshlrev_b32 v25, 4, v24\nv_and_b32 v25, 16, v25\n"
            "s_sub_u32 s3, s%d, 1\nv_lshlrev_b32 v25, v25, v%d\nv_and_b32 v25, s3, v25\nv_lshrrev_b32 v24, 1, v24" % (sHalf, uD))
    for u in range(4): dq += ml("v_cmp_eq_u32 s[4:5], %d, v24\ns_nop 0\ns_nop 0\nv_cndmask_b32 v%d, 0, v25, s[4:5]" % (u, uAD + u))
    hpollA = [mk("buffer_load_dwordx2 v[%d:%d], v%d, %s, 0 offen sc1" % (uPoll, uPoll + 1, uFH, S4(sWS)), vm="hpA")]
    hpollB = [mk("buffer_load_dwordx2 v[%d:%d], v%d, %s, 0 offen offset:32 sc1" % (uPoll, uPoll + 1, uFH, S4(sWS)), vm="hpB")]
    strec = [mk("buffer_load_dwordx2 %s, v%d, %s, 0 offen sc1" % (vr(uSt + 2, 2), uSto, S4(sWS)), vm="xin")]
    extra = [mk("buffer_load_dwordx4 %s, v%d, %s, 0 offen" % (vr(uXin), uX, S4(sQ)), vm="xin"),
             mk("buffer_load_dwordx4 %s, v%d, %s, 0 offen offset:16" % (vr(uXin + 4), uX, S4(sQ)), vm="xin")] + strec
    flagat = opts.get("hflag", 50); pollat = opts.get("hpoll", 100)
    first = set(); nm = 0
    for rr in range(4):
        rq = conv_reads(rr + 1) if rr < 3 else []
        b = aCF + 64 * (rr & 1)
        pairs = sorted([(s1, p1) for s1 in range(8) for p1 in range(8) if s1 + p1 <= 7], key=lambda x: (max(x), x[0] + x[1], x[0]))
        seen = -1; k = 0
        for (s1, p1) in pairs:
            mx = max(s1, p1)
            if mx > seen:
                p.wait(lg="c%d_%d" % (rr, mx)); seen = mx
            acc = vr(uCacc + 4 * (s1 + p1))
            p("v_mfma_f32_16x16x32_bf16 %s, a[%d:%d], a[%d:%d], %s" % (acc, b + 4 * s1, b + 4 * s1 + 3, b + 32 + 4 * p1, b + 35 + 4 * p1, acc if (s1 + p1) in first else "0"))
            first.add(s1 + p1); k += 1; nm += 1
            n = 0
            if rq and k > 2 and (k % 4 != 0): p.add(rq.pop(0)); n += 1
            if dq and n < 2: p.add(dq.pop(0)); n += 1
            while vq and n < 2:
                y = vq.pop(0); p.add(y); n += 1
                if is_m0(y): break
            if nm == flagat:
                p.wait(vm="hst7"); p.add(flag_store(sFlH, 32))
                stamp(p, "hflag", opts)
            if nm == pollat:
                for x in hpollA: p.add(x)
        assert not dq or rr > 0 or True
        stamp(p, "cv%d" % rr, opts, 4)
        if rr == 0:
            for x in dq: p.add(x)
            dq = []
            for p1 in range(8):
                acc = vr(uCacc + 4 * p1)
                p("v_mfma_f32_16x16x32_bf16 %s, %s, a[%d:%d], %s" % (acc, vr(uAD), b + 32 + 4 * p1, b + 35 + 4 * p1, acc))
                if rq: p.add(rq.pop(0))
        for x in rq: p.add(x)
    seq(p, vq)
    stamp(p, "convend", opts)
    p.wait(vm="hpA")
    for x in poll_check("hA", [uPoll], hpollA): p.add(x)
    stamp(p, "hokA", opts)
    HPRE = opts.get("hpre", 6)
    hq0 = [x for hs in range(HPRE) for x in h_loads(hs)]
    for _ in range(opts.get("h0", 2)): p.add(hq0.pop(0))
    p("s_barrier")
    p("s_lshl_b32 s7, s%d, 12\ns_add_u32 s7, s7, %d\nv_add_u32 v24, s7, v%d\ns_lshl_b32 s7, s%d, 12\ns_xor_b32 s7, s7, 4096\ns_add_u32 s7, s7, %d\nv_add_u32 v25, s7, v%d" % (sWave, XCH, vL16, sWave, XCH, vL16))
    p("s_cmp_eq_u32 s%d, 0\ns_cselect_b64 vcc, -1, 0" % sHalf)
    for i in range(16):
        p("v_cndmask_b32 v%d, v%d, v%d, vcc" % (56 + i, uCacc + i, uCacc + 16 + i))
        p("v_cndmask_b32 v%d, v%d, v%d, vcc" % (uCacc + i, uCacc + 16 + i, uCacc + i))
        if i % 4 == 3:
            p("ds_write_b128 v24, %s offset:%d" % (vr(56 + i - 3), (i >> 2) * 1024))
            if hq0: p.add(hq0.pop(0))
    stamp(p, "xw", opts, 4)
    p("s_waitcnt lgkmcnt(0)\ns_barrier")
    stamp(p, "xb", opts, 4)
    for i in range(4): p("ds_read_b128 %s, v25 offset:%d" % (vr(uCacc + 16 + 4 * i), i * 1024), lg="xr%d" % i)
    for i in range(4):
        p.wait(lg="xr%d" % i)
        for e in range(2): p("v_pk_add_f32 %s, %s, %s" % (vr(uCacc + 4 * i + 2 * e, 2), vr(uCacc + 4 * i + 2 * e, 2), vr(uCacc + 16 + 4 * i + 2 * e, 2)))
    for i in range(4):
        o = uTmp + 4 * (i >> 1) + 2 * (i & 1)
        p("v_cvt_pk_bf16_f32 v%d, v%d, v%d\nv_cvt_pk_bf16_f32 v%d, v%d, v%d" % (o, uCacc + 4 * i, uCacc + 4 * i + 1, o + 1, uCacc + 4 * i + 2, uCacc + 4 * i + 3))
    p("s_nop 1")
    for h in range(2):
        o = uTmp + 4 * h
        p("v_permlane16_swap_b32 v%d, v%d\nv_permlane16_swap_b32 v%d, v%d" % (o, o + 2, o + 1, o + 3))
    for h in range(2):
        p("buffer_store_dwordx4 %s, v%d, %s, s%d offen offset:%d sc1" % (vr(uTmp + 4 * h), uYst, S4(sWS), sYoff, h * 1024), vm="yst")
    stamp(p, "yst", opts, 4)
    for x in hq0 + extra: p.add(x)
    stamp(p, "g2go", opts)
    ypoll = [mk("buffer_load_dwordx4 %s, v%d, %s, 0 offen sc1" % (vr(uPoll), uFY, S4(sWS)), vm="yp")]
    ydma = ml("v_lshrrev_b32 v24, 3, v1\nv_lshlrev_b32 v24, 12, v24\nv_and_b32 v25, 3, v1\nv_lshl_add_u32 v24, v25, 4, v24\nv_bfe_u32 v25, v1, 2, 1\nv_lshl_add_u32 v24, v25, 8, v24\nv_add_u32 v25, %d, v24" % (32768 - 1024))
    ydma += ml("s_lshl_b32 s3, s%d, 18\ns_lshl_b32 s7, s%d, 16\ns_add_u32 s3, s3, s7\ns_lshr_b32 s7, s%d, 2\ns_lshl_b32 s7, s7, 9\ns_add_u32 s3, s3, s7\ns_and_b32 s7, s%d, 3\ns_lshl_b32 s7, s7, 6\ns_add_u32 s3, s3, s7\ns_add_u32 s3, s3, %d" % (sDB, sWave, sTB2, sTB2, WS_YT))
    ydma += ml("s_lshl_b32 s7, s%d, 11\ns_add_u32 m0, s7, %d" % (sWave, YT_L))
    xq = []
    for hs in range(28):
        ps, s = divmod(hs, 14)
        rq = wd_reads(s + 1) if (ps == 0 and 7 <= s + 1 < 14) else []
        hq = h_loads(hs + HPRE) if hs + HPRE < 28 else []
        if hs + HPRE == 14:
            p.wait(vm="hpB")
            for x in poll_check("hB", [uPoll], hpollB): p.add(x)
            stamp(p, "hokB", opts)
        if hs == 14 - HPRE - opts.get("hpb", 4): xq += hpollB
        if hs == opts.get("yflag", 6): xq += [W(vm="yst"), flag_store(sFlY)]
        if hs == 14: xq += ydma
        if hs == opts.get("ypoll", 18): xq += ypoll
        if hs == opts.get("ypoll", 18) + 4:
            p.wait(vm="yp")
            for x in poll_check("y", [uPoll, uPoll + 2], ypoll): p.add(x)
            xq += [dma(24, sWS, "s3", 0, "yt", " sc1"), dma(25, sWS, "s3", 1024, "yt", " sc1")]
        p.wait(vm="h%d" % hs, lg="t%d" % s)
        m = 0
        for e in range(2):
            nt = 2 * ps + e
            for mt in range(4):
                acc = vr(uAcc + 16 * nt + 4 * mt)
                hr = aH + 8 * (hs % 16) + 4 * e
                k, b = wfrag(s, mt)
                p("v_mfma_f32_16x16x32_bf16 %s, %s[%d:%d], a[%d:%d], %s" % (acc, k, b, b + 3, hr, hr + 3, acc if s else "0"))
                m += 1
                n = 0
                if hq and m in (1, 5): p.add(hq.pop(0)); n += 1
                if m == 1 and rq: p.wait(vm="w%d" % (s + 1))
                if rq: p.add(rq.pop(0)); n += 1
                while xq and n < (1 if xq[0].t.startswith("v_") else 2): p.add(xq.pop(0)); n += 1
        assert not rq and not hq
        if hs == 13: stamp(p, "g2A", opts)
        elif hs % 3 == 0: stamp(p, "h%d" % hs, opts, 4)
    assert not xq
    stamp(p, "g2end", opts)
    p("v_and_b32 v3, 15, v1\nv_lshrrev_b32 v2, 4, v1\nv_mul_u32_u24 v8, %d, v3\nv_lshl_add_u32 v9, v2, 4, v8" % RS)
    p("s_mul_i32 s3, s%d, %d\ns_add_u32 s3, s3, %d\nv_add_u32 v9, s3, v9" % (sWave, 64 * RS, RED))
    p("s_barrier")
    stamp(p, "rb", opts, 4)
    for nt in range(4):
        for mt in range(4):
            p("ds_write_b128 v9, %s offset:%d" % (vr(uAcc + 16 * nt + 4 * mt), nt * 16 * RS + mt * 64))
    p("v_lshl_add_u32 v8, v2, 6, v8\ns_mul_i32 s3, s%d, %d\ns_add_u32 s3, s3, %d\nv_add_u32 v8, s3, v8" % (sWave, 16 * RS, RED))
    p("v_bfe_u32 v6, v1, 2, 2\nv_lshl_add_u32 v6, v2, 4, v6\nv_lshlrev_b32 v6, 7, v6\nv_and_b32 v7, 3, v1\nv_lshl_add_u32 v6, v7, 3, v6\ns_lshl_b32 s3, s%d, 5\ns_add_u32 s3, s3, %d\nv_add_u32 v6, s3, v6" % (sWave, YT_L))
    X = 56; XN = 72; Y = 88; YR = 104
    p.wait(vm="xin")
    for x in poll_check("st", [uSt + 3], strec, 32): p.add(x)
    p("v_and_b32 v%d, 0xffff0000, v%d\nv_lshlrev_b32 v%d, 16, v%d\nv_rcp_f32 v%d, v%d" % (uSt + 1, uSt + 2, uSt, uSt + 2, uSt + 1, uSt + 1))
    for i in range(8):
        p("v_lshlrev_b32 v%d, 16, v%d\nv_and_b32 v%d, 0xffff0000, v%d" % (X + 2 * i, uXin + i, X + 2 * i + 1, uXin + i))
    p("v_mul_f32 v%d, v%d, v%d" % (uSt, uSt, uSt + 1))
    for i in range(8): p("v_pk_fma_f32 %s, %s, %s, %s op_sel:[0,1,0] op_sel_hi:[1,1,0]" % (vr(XN + 2 * i, 2), vr(X + 2 * i, 2), vr(uSt, 2), vr(uSt, 2)))
    p("s_waitcnt vmcnt(0) lgkmcnt(0)\ns_barrier")
    stamp(p, "red", opts)
    for j in range(4): p("ds_read_b64_tr_b16 v[%d:%d], v6 offset:%d" % (YR + 2 * j, YR + 2 * j + 1, j * 512), lg="y")
    for j in range(4):
        for w in range(4): p("ds_read_b128 %s, v8 offset:%d" % (vr(uAcc + 16 * w + 4 * j), w * 64 * RS + 16 * j), lg="r%d" % j)
    p.wait(lg="y")
    for i in range(8):
        p("v_lshlrev_b32 v%d, 16, v%d\nv_and_b32 v%d, 0xffff0000, v%d" % (Y + 2 * i, YR + i, Y + 2 * i + 1, YR + i))
    for i in range(8): p("v_pk_mul_f32 %s, %s, %s" % (vr(XN + 2 * i, 2), vr(XN + 2 * i, 2), vr(Y + 2 * i, 2)))
    p("s_mov_b32 s4, %s\ns_mov_b32 s5, s4\nv_mov_b32 v2, 1.0\nv_mov_b32 v3, 1.0" % hex(f2u(-LOG2E)))
    for half in range(2):
        for j in (2 * half, 2 * half + 1):
            p.wait(lg="r%d" % j)
            Fa = uAcc + 4 * j
            for h in range(2):
                p("v_pk_add_f32 %s, %s, %s" % (vr(Fa + 2 * h, 2), vr(Fa + 2 * h, 2), vr(Fa + 16 + 2 * h, 2)))
                p("v_pk_add_f32 %s, %s, %s" % (vr(Fa + 32 + 2 * h, 2), vr(Fa + 32 + 2 * h, 2), vr(Fa + 48 + 2 * h, 2)))
            for h in range(2): p("v_pk_add_f32 %s, %s, %s" % (vr(Fa + 2 * h, 2), vr(Fa + 2 * h, 2), vr(Fa + 32 + 2 * h, 2)))
        R = range(4 * half, 4 * half + 4)
        for i in R: p("v_pk_mul_f32 %s, %s, s[4:5]" % (vr(Y + 2 * i, 2), vr(uAcc + 2 * i, 2)))
        for i in R: p("v_exp_f32 v%d, v%d\nv_exp_f32 v%d, v%d" % (Y + 2 * i, Y + 2 * i, Y + 2 * i + 1, Y + 2 * i + 1))
        for i in R: p("v_pk_mul_f32 %s, %s, %s" % (vr(XN + 2 * i, 2), vr(XN + 2 * i, 2), vr(uAcc + 2 * i, 2)))
        for i in R: p("v_pk_add_f32 %s, %s, v[2:3]" % (vr(Y + 2 * i, 2), vr(Y + 2 * i, 2)))
        for i in R: p("v_rcp_f32 v%d, v%d\nv_rcp_f32 v%d, v%d" % (Y + 2 * i, Y + 2 * i, Y + 2 * i + 1, Y + 2 * i + 1))
        p("s_nop 0")
        for i in R: p("v_pk_fma_f32 %s, %s, %s, %s" % (vr(X + 2 * i, 2), vr(XN + 2 * i, 2), vr(Y + 2 * i, 2), vr(X + 2 * i, 2)))
        for i in R: p("v_cvt_pk_bf16_f32 v%d, v%d, v%d" % (uXin + i, X + 2 * i, X + 2 * i + 1))
        p("buffer_store_dwordx4 %s, v%d, %s, 0 offen offset:%d%s" % (vr(uXin + 4 * half), uX, S4(sOut), 16 * half, opts.get("fo", "")))
    stamp(p, "fin", opts)

def aux(p, opts):
    p("s_lshl_b32 s3, s2, 6\ns_lshl_b32 s4, s%d, 4\ns_add_u32 s3, s3, s4" % sWave)
    p("v_add_u32 v12, s3, v2\nv_lshlrev_b32 v10, 10, v12\nv_lshl_add_u32 v10, v3, 4, v10\nv_add_u32 v11, 8192, v10\nv_mov_b32 v13, v3")
    p("s_memrealtime s[%d:%d]" % (sTag, sTag + 1))
    p("s_waitcnt lgkmcnt(0)")
    p("s_mov_b32 s%d, s74\ns_mov_b32 s%d, s75" % (sDbg, sDbg + 1))
    p("s_or_b32 s3, s2, s%d\ns_cmp_lg_u32 s3, 0\ns_cselect_b64 exec, 0, 1" % sWave)
    p("s_or_b32 s%d, s%d, 1\nv_mov_b32 v14, s%d\nv_mov_b32 v15, s%d\ns_cbranch_execz L_aux_nt" % (sTag, sTag, sTag, sTag + 1))
    p("global_store_dwordx2 v%d, v[14:15], s[%d:%d] sc1" % (vNon + 2, sDbg, sDbg + 1))
    p.label("L_aux_nt")
    p("s_mov_b64 exec, -1")
    srd(p, sQ, kQ, 2048 * 1024)
    for g in range(2):
        for i in range(8):
            p("buffer_load_dwordx4 %s, v%d, %s, 0 offen offset:%d" % (vr(116 + 32 * g + 4 * i), 10 + g, S4(sQ), i * 128), vm="sx%d" % g)
        if g == 0:
            srd(p, sWS, kWS, WS_SZ)
            kv_setup(p); ids2(p); hk_srds(p)
            phase2_setup(p, opts)
    nld, nchk = nonce_get("na")
    p.add(nld)
    p("s_mov_b32 s5, 0x3f803f80")
    for g in range(2):
        p.wait(vm="sx%d" % g if g == 0 else "non")
        stamp(p, "a.sx%d" % g, opts, 3)
        if g == 1: seq(p, kv_loads(opts) + hk_loads(opts))
        s1 = 16 + 4 * g; s2 = s1 + 1
        for r in range(32):
            x = 116 + 32 * g + r; c = r & 1
            p("v_dot2_f32_bf16 v%d, v%d, s5, %s" % (s1 + 2 * c, x, "v%d" % (s1 + 2 * c) if r > 1 else "0"))
            p("v_dot2_f32_bf16 v%d, v%d, v%d, %s" % (s2 + 2 * c, x, x, "v%d" % (s2 + 2 * c) if r > 1 else "0"))
    for x in nchk: p.add(x)
    p("v_add_f32 v16, v16, v18\nv_add_f32 v17, v17, v19\nv_add_f32 v18, v20, v22\nv_add_f32 v19, v21, v23")
    for mod in ("quad_perm:[1,0,3,2]", "quad_perm:[2,3,0,1]", "row_half_mirror"):
        for r in range(16, 20): p("v_add_f32_dpp v%d, v%d, v%d %s row_mask:0xf bank_mask:0xf" % (r, r, r, mod))
    ops = [[], []]
    for g in range(2):
        S1 = 16 + 2 * g; S2 = S1 + 1; o = 20 + 4 * g
        ops[g] = ["v_mul_f32 v%d, %s, v%d" % (S1, hex(f2u(1.0 / 512)), S1), "v_mul_f32 v%d, %s, v%d" % (S2, hex(f2u(1.0 / 512)), S2),
                  "v_fma_f32 v%d, -v%d, v%d, v%d" % (S2, S1, S1, S2), "v_max_f32 v%d, 0, v%d" % (S2, S2),
                  "v_cvt_pk_bf16_f32 v%d, v%d, v%d" % (S2, S2, S2), "v_and_b32 v%d, 0xffff0000, v%d" % (S2, S2),
                  "v_add_f32 v%d, %s, v%d" % (S2, hex(f2u(1e-5)), S2),
                  "v_cvt_pk_bf16_f32 v%d, v%d, v%d" % (S2, S2, S2), "v_and_b32 v%d, 0xffff0000, v%d" % (S2, S2),
                  "v_sqrt_f32 v%d, v%d" % (S2, S2), "v_mov_b32 v%d, s%d" % (o + 1, sTag),
                  "v_cvt_pk_bf16_f32 v%d, -v%d, v%d" % (o, S1, S2)]
    p("v_cmp_eq_u32 vcc, 0, v13\nv_lshlrev_b32 v12, 3, v12\nv_add_u32 v12, %d, v12\nv_mov_b32 v14, 0x80000000\nv_cndmask_b32 v12, v14, v12, vcc" % WS_ST)
    for x0, x1 in zip(*ops): p(x0); p(x1)
    p("buffer_store_dwordx2 v[20:21], v12, %s, 0 offen sc1" % S4(sWS), vm="pub")
    p("buffer_store_dwordx2 v[24:25], v12, %s, 0 offen offset:64 sc1" % S4(sWS), vm="pub")
    stamp(p, "a.stats", opts)
    for x in phase2_srds(): p.add(x)
    nw = opts.get("warm", 14)
    p("s_mul_i32 s3, s2, 57344\ns_mul_i32 s4, s%d, 14336\ns_add_u32 s3, s3, s4\nv_add_u32 v10, s3, v%d" % (sWave, vL16))
    p.wait(vm="hk")
    p("s_barrier")
    for i in range(nw):
        p("s_mov_b32 s3, %d\nbuffer_load_dwordx4 %s, v10, %s, s3 offen" % (i * 1024, vr(116 + 4 * i), S4(sWd)), vm="warm")
    for x in kv_compute() + kv_stores(): p.add(x)
    stamp(p, "a.kv", opts)
    for x in hk_build(): p.add(x)
    p.wait(vm="kvst", lg="*")
    p.add(flag_store(sFlK))
    p("s_mov_b32 s%d, %d" % (sFlH, WS_FD))
    p("s_barrier")
    for s in range(5): seq(p, wd_loads(s, opts))
    for s in range(14): p("s_lshr_b32 s%d, s%d, 5" % (sTab + s, sTabW + s))
    kvpoll = [mk("buffer_load_dwordx2 v[%d:%d], v%d, %s, 0 offen sc1" % (uPoll, uPoll + 1, uFK, S4(sWS)), vm="kvp")]
    p.add(kvpoll[0])
    p.wait(vm="kvp")
    for x in poll_check("kva", [uPoll], kvpoll): p.add(x)
    seq(p, conv_xr())
    p("s_waitcnt vmcnt(0)")
    stamp(p, "a.pre", opts)

def emit(a, lines):
    for l in lines: a(l if l.endswith(":") else "  " + l)

def build(opts):
    del SLOW[:]
    name = KN + "_kernel"
    a = A()
    a(header(["; @launch grid=(256,1,1) block=(256,1,1) lds=163840"]))
    a(kernel_begin(name))
    a("s_load_dwordx8 s[80:87], s[0:1], 0\ns_load_dwordx16 s[60:75], s[0:1], 32\ns_load_dwordx2 s[76:77], s[0:1], 96")
    a("s_cmp_ge_u32 s2, 256\ns_cbranch_scc1 L_end")
    if opts.get("prof"):
        a("s_memrealtime s[78:79]\ns_memtime s[100:101]\nv_mov_b32 v255, 0\ns_waitcnt lgkmcnt(0)\nv_writelane_b32 v255, s100, 0\nv_writelane_b32 v255, s78, 62")
    p0 = Prog(); common_setup(p0, opts); c0 = p0.resolve()
    a("s_cmp_ge_u32 s2, 32\ns_cbranch_scc1 L_gemm")
    if opts.get("ipf", 1):
        a("s_getpc_b64 s[4:5]\nv_lshlrev_b32 v1, 7, v0\ns_and_b32 s4, s4, 0xffffff00\nv_min_u32 v1, L_code_end-%s-128, v1\nglobal_load_dword v200, v1, s[4:5]" % name)
    a("s_branch L_aux")
    a.label("L_gemm")
    emit(a, c0)
    p = Prog(); gemm1(p, opts); p.label("L_phase2"); phase2(p, opts)
    lines = p.resolve()
    pa = Prog(); aux(pa, opts)
    la = pa.resolve()
    pr = check_hazards(lines, "main") + check_hazards(la, "aux")
    for x in pr[:40]: print("HAZARD", x, file=sys.stderr)
    if pr: raise SystemExit("hazards")
    emit(a, lines)
    if opts.get("prof"):
        a("s_waitcnt vmcnt(0) lgkmcnt(0)\ns_memtime s[100:101]\ns_memrealtime s[78:79]\ns_load_dwordx2 s[4:5], s[0:1], 96\ns_waitcnt lgkmcnt(0)")
        a("v_writelane_b32 v255, s100, 60\nv_writelane_b32 v255, s78, 63\ns_getreg_b32 s100, hwreg(HW_REG_XCC_ID)\nv_writelane_b32 v255, s100, 61")
        a("s_lshl_b32 s6, s2, 10\ns_lshl_b32 s7, s%d, 8\ns_add_u32 s6, s6, s7\ns_add_u32 s6, s6, 0x1000000\ns_add_u32 s4, s4, s6\ns_addc_u32 s5, s5, 0" % sWave)
        a("v_lshlrev_b32 v2, 2, v1\nglobal_store_dword v2, v255, s[4:5]\ns_waitcnt vmcnt(0)")
        a("; STAMPS " + " ".join(STAMPS))
    a.label("L_end")
    a("s_endpgm")
    a.label("L_aux")
    emit(a, c0)
    emit(a, la)
    a("s_branch L_phase2")
    for t in SLOW: a(t)
    a.label("L_code_end")
    a(RODATA)
    a(kernel_desc(name, 512, 102, 256))
    return a.text()

if __name__ == "__main__":
    opts = {}
    for kv in sys.argv[2:]:
        k, _, v = kv.partition("=")
        opts[k] = int(v) if v.lstrip("-").isdigit() else (v if v else 1)
    for k in ("fw", "fx", "fd", "fk", "fkv", "fo", "fr"):
        if k in opts: opts[k] = "" if opts[k] == "none" else " " + opts[k].replace("+", " ")
    open(sys.argv[1], "w").write(build(opts))
```

```python
import sys, struct, re
from asmlib import *
from sched import *

WS_H  = 0x000000
WS_XR = 0x700000
WS_YT = 0x900000
WS_ST = 0xB00000
WS_FK = 0xB08000
WS_FH = 0xB10000
WS_FY = 0xB18000
WS_FD = 0xB20000
WS_FL = 0x20000
WS_CS = 0xB48000
WS_SZ = 0xC00000
LOG2E = 1.4426950408889634
SPIN_MAX = 1 << 16

def f2u(x): return struct.unpack("<I", struct.pack("<f", x))[0]
def vr(b, n=4, p="v"): return "%s[%d:%d]" % (p, b, b + n - 1) if n > 1 else "%s%d" % (p, b)
def S4(b): return "s[%d:%d]" % (b, b + 3)
def srd(p, d, lo, size):
    p("s_mov_b32 s%d, s%d\ns_and_b32 s%d, s%d, 0xffff\ns_mov_b32 s%d, 0x%x\ns_mov_b32 s%d, 0x20000" % (d, lo, d + 1, lo + 1, d + 2, size, d + 3))
def ml(t, **kw): return [mk(x, **kw) for x in t.split("\n")]
def bundle(t):
    b = I(t, cost=4 * len(t.split("\n"))); b.kind = "bundle"; return b

SLOT = 32768
CONV = 98304; CH_STRIDE = 21504; XR_OFF = 16640
UNIT = [141312, 0, 16384, 32768, 49152, 65536, 81920]
WUN = {t: t % 7 for t in range(14)}
def wdl(s): return UNIT[WUN[s]]
KVL = 141312
RS = 272; REDW = 32 * RS
RED = [CONV, 0]
YT_L = CONV + 4 * REDW; XCH = CONV
sQ = 8; sW = 12; sWS = 16; sWave = 20; sTB = 21; sCB = 22; sLdsX = 23; sLdsW = 24; sLdsXB = 25; sT0 = 26; sT1 = 27
sHa = 28; sST = 29; sFlK = 30; sDoff = 31; sDbg = 32; sT2 = 34; sT3 = 35; sWd = 36; sHk = 40; sOut = 44; sTag = 48
sXB = 50
sCSw = 52; sTB2 = 53; sDB = 54; sCV = 55; sXRso = 56; sYoff = 57; sFlH = 58; sFlY = 59
sTabW = 60
sHalf = 74; sCh4k = 75; sSpin = 76; sWdL = 77
sDp = 80
sTab = 84
sK = 36; sV = 44; sSh = 64
kSK = 60; kD = 62;
kBX = 64; kWG = 66; kWU = 68; kWD = 70; kOUT = 72; kDBG = 74; kWS = 76; kQ = 80; kK = 82; kV = 84; kSH = 86
vKD = 2
vTag = 6; vFl = 8
vWD = 10; vXD = 14; vXA = 18; vWA = 26; vHoff = 28; vSToff = 29; vCSoff = 30; vL16 = 31; vNon = 32
vKA = 36; vKO = 37; vSH = 38
vR1A = 40; vR1B = 44; vOnes = 44; vST = 52; vXF = 84; vACC = 116; vTMP = 212; vOUT = 220
vCSR = 180; vCSA = 196
uWD = 228; uH = 232; uTR = 236; uCA = 240; uCB = 241; uYst = 242; uFY = 243; uX = 244; uSto = 245; uFH = 246; uFK = 247
uHead = 248; uHeadA = 249; uPoll = 250; uD = 254
uAD = 40; uTmp = 32; uXin = 44; uSt = 52; uCacc = 184; uAcc = 120
vCF = 56; aH = 0
def wfrag(s, mt):
    if s < 8: return "a", 128 + 16 * s + 4 * mt
    if s < 10: return "v", 184 + 16 * (s - 8) + 4 * mt
    return "v", 56 + 16 * (s - 10) + 4 * mt

STAMPS = ["start"]
def stamp_l(name, opts, lvl=1):
    if not opts.get("prof") or opts.get("plvl", 1) == 0 or (lvl > 1 and lvl != opts.get("plvl", 1)): return []
    if name not in STAMPS: STAMPS.append(name)
    idx = STAMPS.index(name)
    assert idx < 48
    return ml("s_memtime s[100:101]\ns_waitcnt lgkmcnt(0)\nv_writelane_b32 v255, s100, %d" % idx, cost=0)
def stamp(p, name, opts, lvl=1):
    for x in stamp_l(name, opts, lvl): p.add(x)

def acc_of(t): return vACC + 16 * {0: 0, 1: 1, 2: 2, 3: 3, 4: 4, 5: 5, 6: 0, 7: 1}[t]
def win(addr): return addr >> 16, addr & 0xffff
def dma(v, srd_, so, off, tag, fl=""):
    return mk("buffer_load_dwordx4 v%d, %s, %s offen offset:%d%s lds" % (v, S4(srd_), so, off, fl), vm=tag)
def is_m0(x): return " m0," in x.t
def is_vm(x): return x.t.startswith("buffer_") or x.t.startswith("global_")
def seq(p, L):
    L = [x for x in L if x.kind != "delay"]
    for i, x in enumerate(L):
        p.add(x)
        if is_m0(x) and i + 1 < len(L) and is_vm(L[i + 1]): p("s_nop 0")
vFl0 = 9
def flag_store(so, wg=False, tag="fl"):
    return mk("buffer_store_dwordx2 v[%d:%d], v%d, %s, s%d offen sc1" % (vTag, vTag + 1, vFl0 if wg else vFl, S4(sWS), so), vm=tag)
def fl0_setup():
    return ml("s_lshl_b32 s6, s%d, 31\ns_lshl_b32 s7, s%d, 30\ns_or_b32 s6, s6, s7\ns_and_b32 s6, s6, 0x80000000\nv_or_b32 v%d, s6, v%d" % (sWave, sWave, vFl0, vFl))

def g1_stage(s, opts):
    L = []; base = (s % 3) * SLOT; tag = "st%d" % s
    fw = opts.get("fw", ""); fx = opts.get("fx", "")
    if s < 8:
        L.append(mk("s_add_u32 m0, s%d, %d" % (sLdsW, base)))
        L += [dma(vWD + j, sW, "s%d" % (sTab + s), j * 1024, tag, fw) for j in range(4)]
        L.append(mk("s_add_u32 m0, s%d, %d" % (sLdsX, base)))
        L += [dma(vXD + j, sQ, "s%d" % (sTab + 8 + s), j * 1024, tag, fx) for j in range(4)]
    else:
        for h in range(2):
            L.append(mk("s_add_u32 m0, s%d, %d" % (sLdsXB, base + h * 4096)))
            L.append(mk("s_add_u32 s%d, s%d, %d" % (sT0 + h, sXB + h, (s - 8) * 32768)))
            L += [dma(vXD + j, sQ, "s%d" % (sT0 + h), j * 1024, tag, fx) for j in range(4)]
    return L
def wd_loads(s, opts):
    return [mk("s_add_u32 m0, s%d, %d" % (sWdL, wdl(s)))] + \
           [dma(uWD + j, sWd, "s%d" % (sTabW + s), j * 1024, "w%d" % s, opts.get("fd", "")) for j in range(4)]
def h_loads(hs):
    ps, s = divmod(hs, 14)
    L = []
    for e in range(2):
        r = aH + 8 * (hs % 16) + 4 * e
        L.append(mk("buffer_load_dwordx4 a[%d:%d], v%d, %s, s%d offen sc1" % (r, r + 3, uH + 2 * ps + e, S4(sWS), sTab + s), vm="h%d" % hs))
    return L
HI = {1: 216, 2: 220}
uTR2 = 2
def wd_reads(s, inB=False):
    L = []
    w, off = win(wdl(s))
    for mt in range(4):
        k, b = wfrag(s, mt)
        reg = uTR + mt if w == 0 else (uTR2 + mt if inB else HI[w] + mt)
        L.append(mk("ds_read_b64_tr_b16 %s[%d:%d], v%d offset:%d" % (k, b, b + 1, reg, off), lg="t%d" % s))
        L.append(mk("ds_read_b64_tr_b16 %s[%d:%d], v%d offset:%d" % (k, b + 2, b + 3, reg, off + 512), lg="t%d" % s))
    return L
def hk_loads(opts):
    L = ml("s_lshl_b32 s6, s%d, 11\ns_add_u32 m0, s6, s%d\ns_add_u32 m0, m0, 32" % (sHalf, sCV))
    L += [dma(vL16, sHk, "s6", j * 1024, "hk", opts.get("fk", "")) for j in range(2)]
    L.append(mk("buffer_load_ushort v%d, v%d, %s, 0 offen" % (uHead, uHead, S4(sHk)), vm="hk"))
    L.append(mk("buffer_load_ushort v%d, off, %s, s%d" % (uD, S4(sDp), sDoff), vm="hk"))
    return L
def delay(n):
    d = I("; delay", cost=0); d.kind = "delay"; d.vm = n; return d
def hk_build(alt=0):
    D = [212, 213, 214, 215, 216, 217]; E1 = 220; E3 = 224; C2 = 52
    if alt: D = [10, 11, 12, 13, 26, 27]; E1 = 32; E3 = 32; C2 = 32
    L = ml("s_lshl_b32 s5, s%d, 11\ns_add_u32 s5, s5, s%d\nv_add_u32 v39, s5, v%d\nds_write_b16 v%d, v%d" % (sHalf, sCV, vL16, uHeadA, uHead))
    for j in range(2):
        o = 32 + j * 1024
        L.append(mk("ds_read_b128 %s, v39 offset:%d" % (vr(D[0]), o), lg="hb"))
        L.append(mk("ds_read_b64 %s, v39 offset:%d" % (vr(D[4], 2), o + 16), lg="hb"))
        L += [delay(5), W(lg="hb")]
        for E, off, ops in ((E1, 4160, ["v_alignbit_b32 v%d, v%d, v%d, 16" % (E1 + i, D[i + 1], D[i]) for i in range(4)]),
                            (C2, 8320, ["v_mov_b32 v%d, v%d" % (C2 + i, D[i + 1]) for i in range(4)]),
                            (E3, 12480, ["v_alignbit_b32 v%d, v%d, v%d, 16" % (E3 + i, D[i + 2], D[i + 1]) for i in range(4)])):
            L += [mk(x) for x in ops]
            L += [delay(1), mk("ds_write_b128 v39, %s offset:%d" % (vr(E), o + off), cost=12), delay(2)]
    return L
def conv_xr():
    L = ml("s_lshl_b32 s7, s%d, 10\ns_add_u32 m0, s7, %d" % (sWave, CONV + XR_OFF))
    L += [dma(vL16, sWS, "s%d" % sXRso, 0, "cv", " sc1")]
    L += ml("s_add_u32 s%d, s%d, 4096\ns_add_u32 m0, s7, %d" % (sXRso, sXRso, CONV + CH_STRIDE + XR_OFF))
    L += [dma(vL16, sWS, "s%d" % sXRso, 0, "cv", " sc1")]
    return L
def conv_reads(rr):
    L = []; b = vCF + 64 * (rr & 1)
    for i in range(8):
        a = b + 4 * i; t = "c%d_%d" % (rr, i)
        L.append(mk("ds_read_b64 v[%d:%d], v%d offset:%d" % (a, a + 1, uCA, 64 * rr + 512 * i), lg=t))
        L.append(mk("ds_read_b64 v[%d:%d], v%d offset:%d" % (a + 2, a + 3, uCA, 64 * rr + 512 * i + 8), lg=t))
        L.append(mk("ds_read_b128 v[%d:%d], v%d offset:%d" % (a + 32, a + 35, uCB, 3584 - 512 * i + 64 * rr), lg=t))
    return L

def kv_setup(p):
    p("s_lshr_b32 s3, s2, 3\ns_lshl_b32 s3, s3, 16\ns_and_b32 s4, s2, 7\ns_lshl_b32 s5, s4, 7\ns_add_u32 s5, s5, s3")
    p("v_lshrrev_b32 v9, 3, v1\nv_and_b32 v%d, 7, v1\nv_lshlrev_b32 v%d, 4, v%d\nv_lshl_add_u32 v%d, v9, 10, v%d" % (vSH, vKD, vSH, vKD, vKD))
    p("s_add_u32 s6, s5, %d\nv_add_u32 v%d, s6, v%d" % (56 * 1024, vKD + 2, vKD))
    p("s_lshl_b32 s6, s%d, 14\ns_add_u32 s5, s5, s6\nv_add_u32 v%d, s5, v%d" % (sWave, vKD + 1, vKD))
    p("v_add_u32 v%d, 0xffffe000, v%d\nv_add_u32 v%d, %d, v%d" % (vKD, vKD + 1, vKD + 3, 8192 - 1056, vKD + 1))
    p("s_lshl_b32 s6, s%d, 5\ns_add_u32 s6, s6, %d\nv_mul_u32_u24 v%d, 1056, v9\nv_lshl_add_u32 v%d, v%d, 2, v%d\nv_add_u32 v%d, s6, v%d" % (sWave, KVL, vKA, vKA, vSH, vKA, vKA, vKA))
    p("s_lshl_b32 s6, s4, 18\ns_lshl_b32 s7, s%d, 16\ns_add_u32 s6, s6, s7\ns_lshr_b32 s7, s3, 9\ns_sub_u32 s6, s6, s7\ns_add_u32 s6, s6, %d" % (sWave, WS_XR + 4080))
    p("v_lshlrev_b32 v%d, 13, v%d\nv_lshlrev_b32 v9, 4, v9\nv_sub_u32 v%d, v%d, v9\nv_add_u32 v%d, s6, v%d" % (vKO, vSH, vKO, vKO, vKO, vKO))
    p("s_lshl_b32 s6, s4, 9\ns_lshl_b32 s7, s%d, 7\ns_add_u32 s6, s6, s7\nv_lshl_add_u32 v%d, v%d, 4, s6" % (sWave, vSH, vSH))
    p("s_lshl_b32 s6, s2, 7\ns_lshl_b32 s7, s%d, 3\ns_add_u32 s6, s6, s7\ns_add_u32 s%d, s6, %d" % (sWave, sFlK, WS_FK))
    srd(p, sK, kK, 2048 * 1024); srd(p, sV, kV, 2048 * 1024); srd(p, sSh, kSH, 4096)
def kv_loads(opts):
    f = opts.get("fkv", " nt")
    L = ml("s_mul_i32 s6, s%d, 2112\ns_add_u32 s6, s6, %d\ns_mov_b32 m0, s6" % (sWave, KVL))
    L += [dma(vKD, sK, "0", 0, "kv", f), mk("s_add_u32 m0, s6, 1056"), dma(vKD + 1, sK, "0", 0, "kv", f),
          mk("s_mov_b32 m0, %d" % (KVL + 8 * 1056)), dma(vKD + 2, sK, "0", 0, "kv", f),
          mk("s_add_u32 m0, s6, %d" % (9 * 1056)), dma(vKD + 1, sV, "0", 0, "kv", f), dma(vKD + 3, sV, "0", 1056, "kv", f),
          mk("buffer_load_dwordx4 v[72:75], v%d, %s, 0 offen" % (vSH, S4(sSh)), vm="kv")]
    return L
def kv_compute():
    RK = 52; RV = 63; Wt = 76; K = 212; A = 223; V = 225
    L = []
    for j in range(11): L.append(mk("ds_read_b32 v%d, v%d offset:%d" % (RK + j, vKA, (5 + j) * 128 if j < 3 else 1056 + (j - 3) * 128), lg="kvr"))
    for t in range(8): L.append(mk("ds_read_b32 v%d, v%d offset:%d" % (RV + t, vKA, 9 * 1056 + t * 128), lg="kvr"))
    un = lambda d, s_, hi: mk(("v_and_b32 v%d, 0xffff0000, v%d" if hi else "v_lshlrev_b32 v%d, 16, v%d") % (d, s_))
    for e in range(2):
        for i in range(4): L.append(un(Wt + 4 * e + i, 72 + 2 * e + (i >> 1), i & 1))
    L.append(W(lg="kvr"))
    for e in range(2):
        o = (vNon, uPoll)[e]
        for j in range(11): L.append(un(K + j, RK + j, e))
        for t in range(8):
            a = A + (t & 1)
            L.append(mk("v_mul_f32 v%d, v%d, v%d" % (a, K + t, Wt + 4 * e + 3)))
            L.append(un(V, RV + t, e))
            for i in (2, 1, 0): L.append(mk("v_fmac_f32 v%d, v%d, v%d" % (a, K + t + 3 - i, Wt + 4 * e + i)))
            L.append(mk("v_mul_f32 v%d, v%d, v%d" % (a, a, V)))
            if t & 1: L.append(mk("v_cvt_pk_bf16_f32 v%d, v%d, v%d" % (o + 3 - (t >> 1), A + 1, A)))
    return L
def kv_stores():
    return [mk("s_mov_b32 s%d, 4096" % sT2),
            mk("buffer_store_dwordx4 %s, v%d, %s, 0 offen sc1" % (vr(vNon), vKO, S4(sWS)), vm="kvst"),
            mk("buffer_store_dwordx4 %s, v%d, %s, s%d offen sc1" % (vr(uPoll), vKO, S4(sWS), sT2), vm="kvst")]

SLOW = []
SPINS = []
SLEEP = {'*': 8, 'kva': 16, 'ng': 4, 'na': 4}
PROF = [0]
def spin(name, reload_, test, okbr):
    t = ["L_slow_%s:" % name, "s_mov_b32 s%d, 1" % sSpin, "L_spin_%s:" % name, "s_sleep %d" % SLEEP.get(name, SLEEP['*'])]
    if PROF[0]:
        SPINS.append(name); t.append("v_writelane_b32 v255, s%d, %d" % (sSpin, 47 + len(SPINS)))
    t += [x.t for x in reload_] + ["s_waitcnt vmcnt(0)"] + [x.t for x in test]
    t += ["%s L_ok_%s" % (okbr, name), "s_add_u32 s%d, s%d, 1" % (sSpin, sSpin), "s_cmp_lt_u32 s%d, %d" % (sSpin, SPIN_MAX),
          "s_cbranch_scc1 L_spin_%s" % name, "s_branch L_ok_%s" % name]
    SLOW.append("\n".join(t))
def poll_check(name, regs, reload_, bits=64):
    L = []
    for i, r in enumerate(regs):
        op = "v_cmp_ne_u64 %%s, s[%d:%d], v[%d:%d]" % (sTag, sTag + 1, r, r + 1) if bits == 64 else "v_cmp_ne_u32 %%s, s%d, v%d" % (sTag, r)
        if i == 0: L.append(mk(op % "vcc"))
        else: L += ml(op % "s[4:5]" + "\ns_or_b64 vcc, vcc, s[4:5]")
    spin(name, reload_, L, "s_cbranch_vccz")
    return L + [mk("s_cbranch_vccnz L_slow_%s" % name), I("L_ok_%s:" % name, kind="label", cost=0)]
def nonce_get(name):
    ld = mk("global_load_dwordx2 v[%d:%d], v%d, s[%d:%d] sc1" % (vNon, vNon + 1, vNon + 2, sDbg, sDbg + 1), vm="non")
    t = ml("v_readfirstlane_b32 s%d, v%d\nv_readfirstlane_b32 s%d, v%d\ns_cmp_lg_u32 s%d, 0" % (sTag, vNon, sTag + 1, vNon + 1, sTag))
    spin(name, [ld], t, "s_cbranch_scc1")
    chk = t[:2] + [bundle(t[2].t + "\ns_cbranch_scc0 L_slow_%s" % name), I("L_ok_%s:" % name, kind="label", cost=0)]
    chk += ml("v_mov_b32 v%d, v%d\nv_mov_b32 v%d, v%d" % (vTag, vNon, vTag + 1, vNon + 1))
    return ld, chk

def g1_epilogue(tile, opts):
    A0 = acc_of(tile)
    c4 = vST + 4 * tile + 1; c1 = vST + 4 * tile + 2
    g = [A0 + (p >> 2) * 8 + (p & 3) for p in range(8)]
    u = [x + 4 for x in g]
    o = vOUT + 4 * (tile & 1)
    st = []
    for p in range(8):
        t = vTMP + p
        st.append([mk("v_mul_f32 v%d, v%d, v%d" % (g[p], g[p], c1)), mk("v_exp_f32 v%d, v%d" % (t, g[p])),
                   mk("v_mul_f32 v%d, v%d, v%d" % (u[p], g[p], u[p])), mk("v_fma_f32 v%d, v%d, v%d, v%d" % (t, t, c4, c4)),
                   mk("v_rcp_f32 v%d, v%d" % (t, t)), mk("v_mul_f32 v%d, v%d, v%d" % (u[p], u[p], t))])
    R = []; pend = []
    for step in range(18):
        for k in (5, 4, 3, 2, 1, 0):
            p = step - 2 * k
            if 0 <= p < 8:
                R.append(st[p][k])
                for q in pend: R.append(mk("v_cvt_pk_bf16_f32 v%d, v%d, v%d" % (o + (q >> 1), u[q - 1], u[q])))
                pend = [p] if (k == 5 and p & 1) else []
    for q in pend: R.append(mk("v_cvt_pk_bf16_f32 v%d, v%d, v%d" % (o + (q >> 1), u[q - 1], u[q])))
    R.append(mk("s_add_u32 s%d, s%d, %d" % (sT3, sHa, tile * 2 * 56 * 1024)))
    if not opts.get("x_nohst"): R.append(mk("buffer_store_dwordx4 %s, v%d, %s, s%d offen%s" % (vr(o), vHoff, S4(sWS), sT3, "" if opts.get("x_hplain") else " sc1"), vm="hst%d" % tile))
    return R

def common_setup(p, opts):
    p("v_and_b32 v1, 63, v0\nv_lshrrev_b32 v2, 6, v0\nv_lshlrev_b32 v%d, 4, v1\nv_readfirstlane_b32 s%d, v2" % (vL16, sWave))
    p("v_lshrrev_b32 v2, 3, v1\nv_and_b32 v3, 7, v1\nv_lshrrev_b32 v9, 4, v1\nv_mov_b32 v%d, 0" % (vNon + 2))

def phase2_setup(p, opts):
    q, n, a, b, c, d = 40, 41, 42, 43, 44, 45
    p("s_and_b32 s3, s2, 7\ns_lshr_b32 s4, s2, 3\ns_lshl_b32 s3, s3, 2\ns_and_b32 s5, s4, 3\ns_add_u32 s%d, s3, s5\ns_lshr_b32 s%d, s4, 2" % (sTB2, sDB))
    if opts.get("dbx", 3): p("s_xor_b32 s%d, s%d, %d" % (sDB, sDB, opts.get("dbx", 3)))
    p("v_lshrrev_b32 v%d, 4, v1\nv_and_b32 v%d, 15, v1" % (q, n))
    p("v_lshrrev_b32 v%d, 3, v1\nv_and_b32 v%d, 7, v1\nv_and_b32 v%d, 1, v%d\nv_lshlrev_b32 v%d, 1, v%d\nv_xor_b32 v%d, v%d, v%d" % (a, b, c, q, c, c, c, c, b))
    p("s_lshl_b32 s7, s%d, 7\ns_mul_i32 s5, s%d, %d\ns_add_u32 s7, s7, s5" % (sDB, sWave, 448 * 1024))
    p("v_lshlrev_b32 v%d, 4, v%d\nv_lshl_add_u32 v%d, v%d, 10, v%d\nv_add_u32 v%d, s7, v%d\nv_xor_b32 v%d, 64, v%d" % (c, c, c, a, c, uWD, c, c, uWD))
    p("v_add_u32 v%d, 7168, v%d\nv_add_u32 v%d, 14336, v%d\nv_add_u32 v%d, 21504, v%d" % (uWD + 1, c, uWD + 2, uWD, uWD + 3, c))
    p("s_lshr_b32 s5, s%d, 2\ns_lshl_b32 s5, s5, 4\ns_and_b32 s6, s%d, 3\ns_lshl_b32 s6, s6, 1\ns_add_u32 s6, s5, s6" % (sTB2, sTB2))
    p("s_mul_i32 s5, s6, 57344\ns_mul_i32 s7, s%d, 14336\ns_add_u32 s5, s5, s7\nv_add_u32 v%d, s5, v%d" % (sWave, uH, vL16))
    p("v_add_u32 v%d, 57344, v%d\nv_add_u32 v%d, %d, v%d\nv_add_u32 v%d, %d, v%d" % (uH + 1, uH, uH + 2, 8 * 57344, uH, uH + 3, 9 * 57344, uH))
    p("s_lshl_b32 s5, s6, 4\ns_lshl_b32 s7, s%d, 3\ns_add_u32 s5, s5, s7\nv_lshrrev_b32 v%d, 5, v1\nv_and_b32 v%d, 3, v1\nv_lshl_add_u32 v%d, v%d, 2, v%d\nv_add_u32 v%d, s5, v%d" % (sWave, c, d, c, c, d, c, c))
    p("v_bfe_u32 v%d, v1, 2, 3\nv_lshlrev_b32 v%d, 4, v%d\nv_lshl_add_u32 v%d, v%d, 10, v%d\ns_lshl_b32 s7, s%d, 7\nv_add_u32 v%d, s7, v%d" % (d, d, d, d, c, d, sDB, uX, d))
    p("v_lshlrev_b32 v%d, 3, v%d\nv_add_u32 v%d, %d, v%d" % (c, c, uSto, WS_ST, c))
    p("v_bfe_u32 v%d, v1, 2, 2\nv_and_b32 v%d, 3, v1\nv_lshrrev_b32 v%d, 1, v%d\nv_and_b32 v%d, 1, v%d\nv_lshl_add_u32 v%d, v%d, 1, v%d" % (a, b, c, a, d, q, c, d, c))
    p("v_lshl_add_u32 v%d, v%d, 3, v%d\nv_lshlrev_b32 v%d, 7, v%d\nv_lshl_add_u32 v%d, v%d, 3, v%d\nv_add_u32 v%d, s%d, v%d" % (a, q, a, a, a, a, b, a, a, sWdL, a))
    p("v_lshl_add_u32 v%d, v%d, 5, v%d" % (uTR, c, a))
    for mt in range(1, 4): p("v_xor_b32 v%d, %d, v%d" % (uTR + mt, 32 * mt, uTR))
    p("v_add_u32 v%d, 1, v%d\nv_and_b32 v%d, 3, v%d\nv_sub_u32 v%d, v%d, v%d\nv_lshl_add_u32 v%d, v%d, 3, v%d\nv_lshlrev_b32 v%d, 1, v%d" % (a, n, b, a, a, a, b, a, q, a, a, a))
    p("v_mul_u32_u24 v%d, 4160, v%d\ns_lshl_b32 s7, s%d, 8\ns_add_u32 s7, s7, s%d\nv_add3_u32 v%d, v%d, v%d, s7" % (b, b, sHalf, sCV, uCA, a, b))
    p("v_lshlrev_b32 v%d, 5, v%d\nv_lshlrev_b32 v%d, 4, v%d\nv_sub_u32 v%d, v%d, v%d\ns_add_u32 s7, s7, %d\nv_add_u32 v%d, s7, v%d" % (a, n, b, q, a, b, a, XR_OFF + 480, uCB, a))
    p("v_mul_u32_u24 v%d, 4160, v%d\nv_lshl_add_u32 v%d, v%d, 1, v%d\nv_add_u32 v%d, s%d, v%d" % (a, q, a, n, a, uHeadA, sCV, a))
    p("v_mov_b32 v46, 0\nv_mov_b32 v47, 0\nv_lshlrev_b32 v%d, 3, v1\ns_add_u32 s7, s%d, %d\nv_add_u32 v%d, s7, v%d" % (a, sCV, XR_OFF + 4096, a, a))
    p("ds_write_b64 v%d, v[46:47]" % a)
    p("v_and_b32 v%d, 2, v%d\nv_lshlrev_b32 v%d, 3, v%d\nv_lshl_add_u32 v%d, v%d, 5, v%d\nv_and_b32 v%d, 1, v%d\nv_lshl_add_u32 v%d, v%d, 9, v%d" % (a, q, a, a, a, n, a, b, q, uYst, b, a))
    p("s_lshl_b32 s7, s%d, 11\ns_add_u32 s7, s7, s%d\ns_add_u32 s%d, s7, %d" % (sHalf, sCh4k, sYoff, WS_YT))
    p("s_lshl_b32 s7, s2, 13\ns_lshl_b32 s3, s%d, 10\ns_add_u32 s7, s7, s3\ns_add_u32 s%d, s7, %d" % (sWave, sXRso, WS_XR))
    p("s_lshl_b32 s7, s2, 7\ns_add_u32 s%d, s7, %d" % (sFlY, WS_FY))
    p("v_and_b32 v%d, 7, v1\nv_lshlrev_b32 v%d, 7, v%d" % (a, a, a))
    p("s_lshl_b32 s7, s%d, 12\ns_lshl_b32 s3, s%d, 10\ns_add_u32 s7, s7, s3\ns_add_u32 s7, s7, %d\nv_add_u32 v%d, s7, v%d" % (sDB, sWave, WS_FY, uFY, a))
    p("v_min_u32 v%d, 6, v1\nv_lshlrev_b32 v%d, 7, v%d" % (a, a, a))
    p("s_lshr_b32 s7, s%d, 2\ns_lshl_b32 s7, s7, 5\ns_mul_i32 s3, s%d, 7\ns_add_u32 s7, s7, s3\ns_lshl_b32 s7, s7, 7\ns_add_u32 s7, s7, %d\nv_add_u32 v%d, s7, v%d" % (sTB2, sWave, WS_FH, uFH, a))
    p("v_and_b32 v%d, 7, v1\nv_lshlrev_b32 v%d, 10, v%d\ns_lshr_b32 s7, s2, 5\ns_lshl_b32 s7, s7, 7\ns_and_b32 s3, s2, 24\ns_add_u32 s7, s7, s3" % (a, a, a))
    p("s_lshl_b32 s3, s%d, 13\ns_sub_u32 s7, s7, s3\ns_add_u32 s7, s7, %d\nv_sub_u32 v%d, s7, v%d" % (sWave, WS_FK + 31 * 1024, uFK, a))
    p("v_cmp_ne_u32 vcc, 0, v1\nv_mov_b32 v%d, 0x80000000\nv_mov_b32 v%d, 0\nv_cndmask_b32 v%d, v%d, v%d, vcc" % (a, b, vFl, b, a))

def hk_srds(p):
    p("s_add_u32 s%d, s60, s%d\ns_addc_u32 s%d, s61, 0\ns_and_b32 s%d, s%d, 0xffff\ns_sub_u32 s%d, 0x200000, s%d\ns_mov_b32 s%d, 0x20000" % (sHk, sCh4k, sHk + 1, sHk + 1, sHk + 1, sHk + 2, sCh4k, sHk + 3))
    srd(p, sDp, kD, 1024)
def ids2(p):
    p("s_lshr_b32 s3, s%d, 1\ns_lshl_b32 s4, s2, 1\ns_add_u32 s4, s4, s3\ns_mul_i32 s%d, s3, %d\ns_add_u32 s%d, s%d, %d" % (sWave, sCV, CH_STRIDE, sCV, sCV, CONV))
    p("s_and_b32 s%d, s%d, 1\ns_lshl_b32 s%d, s4, 12\ns_lshl_b32 s%d, s4, 1\ns_lshl_b32 s%d, s%d, 12" % (sHalf, sWave, sCh4k, sDoff, sWdL, sWave))
    p("v_lshrrev_b32 v40, 4, v1\nv_and_b32 v41, 15, v1\nv_add_u32 v42, v40, v41\nv_add_u32 v42, -16, v42\nv_lshlrev_b32 v%d, 1, v42" % uHead)
RHO = [2, 4, 1]
def phase2_srds():
    L = []
    for d, lo, size in ((sWd, kWD, 1792 * 1024), (sOut, kOUT, 2048 * 1024)):
        L += ml("s_mov_b32 s%d, s%d\ns_and_b32 s%d, s%d, 0xffff\ns_mov_b32 s%d, 0x%x\ns_mov_b32 s%d, 0x20000" % (d, lo, d + 1, lo + 1, d + 2, size, d + 3))
    L += ml("s_mul_i32 s3, s%d, %d\ns_and_b32 s7, s%d, 3\ns_mul_i32 s7, s7, %d\ns_add_u32 s3, s3, s7\ns_lshr_b32 s7, s%d, 2\ns_mul_i32 s7, s7, %d\ns_add_u32 s3, s3, s7" % (sDB, RHO[0], sTB2, RHO[1], sTB2, RHO[2]))
    L += ml("s_mul_i32 s7, s3, 4682\ns_lshr_b32 s7, s7, 16\ns_mul_i32 s7, s7, 14\ns_sub_u32 s3, s3, s7\ns_lshl_b32 s3, s3, 15")
    for s in range(14):
        L += ml("s_mov_b32 s%d, s3" % (sTabW + s))
        if s < 13: L += ml("s_add_u32 s3, s3, 0x8000") + [bundle("s_cmp_eq_u32 s3, 0x70000\ns_cselect_b32 s3, 0, s3")]
    return L

class Filler:
    def __init__(self, space=2):
        self.vq = []; self.xq = []; self.last = -9; self.space = space
    def v(self, at, L): self.vq += [(at, x) for x in L]
    def x(self, at, L): self.xq += [(at, y) for y in L]
    def fill(self, gi, gap, budget, xbudget=None):
        used = lambda: sum(y.cost for y in gap)
        nv = 0
        for q in (self.vq, self.xq):
            if q and q[0][1].kind == "delay" and q[0][0] <= gi:
                n = q.pop(0)[1].vm
                if q: q[0] = (max(q[0][0], gi + n), q[0][1])
        while self.vq and self.vq[0][0] <= gi and used() + self.vq[0][1].cost <= budget:
            at, y = self.vq[0]
            if y.kind == "delay": break
            if is_vm(y) and y.t.endswith(" lds"):
                lag = gi - at
                if nv >= 1 or (gi - self.last < self.space and lag < 14): break
                nv += 1; self.last = gi
            gap.append(y); self.vq.pop(0)
            if is_m0(y): break
        while self.xq and self.xq[0][0] <= gi and used() + self.xq[0][1].cost <= (xbudget or budget):
            if self.xq[0][1].kind == "delay": break
            gap.append(self.xq.pop(0)[1])

def gemm1(p, opts):
    p("s_sub_u32 s3, s2, 32\ns_and_b32 s4, s3, 7\ns_lshr_b32 s5, s3, 3")
    p("s_and_b32 s6, s4, 1\ns_and_b32 s7, s5, 3\ns_lshl_b32 s34, s7, 1\ns_add_u32 s34, s34, s6\ns_lshl_b32 s6, s6, 2\ns_add_u32 s%d, s6, s7" % sTB)
    p("s_lshr_b32 s6, s4, 1\ns_mul_i32 s6, s6, 7\ns_lshr_b32 s7, s5, 2\ns_add_u32 s7, s7, %d\ns_cmp_ge_u32 s7, 7\ns_cselect_b32 s5, 7, 0\ns_sub_u32 s7, s7, s5\ns_add_u32 s%d, s6, s7" % (opts.get("cbr", 0), sCB)) if opts.get("cbr") else p("s_lshr_b32 s6, s4, 1\ns_mul_i32 s6, s6, 7\ns_lshr_b32 s7, s5, 2\ns_add_u32 s%d, s6, s7" % sCB)
    p("s_add_u32 s34, s34, s%d\ns_and_b32 s34, s34, 7" % sCB)
    p("v_xor_b32 v5, v9, v3\nv_lshlrev_b32 v5, 4, v5\nv_lshl_add_u32 v%d, v2, 10, v5\nv_xor_b32 v5, 64, v%d" % (vXD, vXD))
    p("v_add_u32 v%d, 7168, v5\nv_add_u32 v%d, 14336, v%d\nv_add_u32 v%d, 21504, v5" % (vXD + 1, vXD + 2, vXD, vXD + 3))
    p("s_lshr_b32 s3, s%d, 1\ns_lshl_b32 s3, s3, 2" % sWave)
    p("v_and_b32 v5, 1, v9\nv_lshlrev_b32 v5, 1, v5\nv_xor_b32 v5, s3, v5\nv_xor_b32 v5, v5, v3\nv_lshlrev_b32 v5, 4, v5")
    p("s_and_b32 s4, s%d, 1\ns_mul_i32 s4, s4, %d\ns_lshl_b32 s5, s%d, 7\ns_add_u32 s4, s4, s5" % (sWave, 32 * 3584, sCB))
    p("v_mul_u32_u24 v6, 3584, v2\nv_add3_u32 v%d, v5, v6, s4" % vWD)
    for j in range(1, 4): p("v_add_u32 v%d, %d, v%d" % (vWD + j, j * (8 * 3584 - 1024), vWD))
    p("s_lshl_b32 s35, s%d, 18\ns_lshl_b32 s4, s%d, 15\ns_add_u32 s7, s35, s4" % (sTB, sWave))
    p("s_lshl_b32 s%d, s%d, 12\ns_add_u32 s%d, s%d, 16384" % (sLdsW, sWave, sLdsX, sLdsW))
    p("s_mul_i32 s%d, s34, %d\ns_lshl_b32 s3, s34, 7\ns_add_u32 s%d, s3, s7" % (sTab + 4, 64 * 3584, sTab + 8))
    p("s_waitcnt lgkmcnt(0)")
    srd(p, sQ, kQ, 2048 * 1024)
    p("s_cmp_ge_u32 s%d, 2\ns_cselect_b32 s66, s68, s66\ns_cselect_b32 s67, s69, s67" % sWave)
    srd(p, sW, kWG, 512 * 3584)
    stamp(p, "g.karg", opts, 2)
    st0 = g1_stage(0, opts)
    for x in st0: x.t = x.t.replace("s%d offen" % sTab, "s%d offen" % (sTab + 4))
    seq(p, st0)
    stamp(p, "g.st0", opts, 2)
    p("s_mov_b32 s27, s7")
    srd(p, sWS, kWS, WS_SZ)
    p("s_mov_b32 s%d, s74\ns_mov_b32 s%d, s75" % (sDbg, sDbg + 1))
    kv_setup(p)
    ids2(p); hk_srds(p)
    for s in range(1, 8):
        p("s_add_u32 s3, s34, %d\ns_and_b32 s3, s3, 7\ns_mul_i32 s%d, s3, %d\ns_lshl_b32 s3, s3, 7\ns_add_u32 s%d, s3, s27" % (s, sTab + s, 64 * 3584, sTab + 8 + s))
    p("s_lshl_b32 s%d, s%d, 13\ns_add_u32 s6, s35, 0x20000" % (sLdsXB, sWave))
    for h in range(2):
        p("s_lshl_b32 s3, s%d, 1\ns_add_u32 s3, s3, s34\ns_add_u32 s3, s3, %d\ns_and_b32 s3, s3, 7\ns_lshl_b32 s3, s3, 7\ns_add_u32 s%d, s3, s6" % (sWave, h, sXB + h))
    p("s_lshl_b32 s3, s%d, 1\ns_lshr_b32 s4, s%d, 1\ns_add_u32 s3, s3, s4\ns_lshl_b32 s3, s3, 10\ns_mul_i32 s4, s%d, %d\ns_add_u32 s%d, s3, s4" % (sCB, sWave, sTB, 16 * 57344, sHa))
    p("s_lshl_b32 s4, s%d, 11\ns_add_u32 s%d, s4, %d" % (sTB, sST, WS_ST))
    p("s_lshl_b32 s3, s%d, 13\ns_lshl_b32 s4, s%d, 11\ns_add_u32 s3, s3, s4\ns_add_u32 s3, s3, %d" % (sCB, sWave, WS_CS))
    a, b, c, d, e, f = 40, 41, 42, 43, 44, 45
    p("v_and_b32 v%d, 31, v1\nv_lshrrev_b32 v%d, 5, v1\nv_lshlrev_b32 v%d, 3, v1\nv_add_u32 v%d, s3, v%d" % (a, b, vSToff, vCSoff, vSToff))
    p("s_lshl_b32 s%d, s34, 8" % sCSw)
    p("s_lshl_b32 s3, s%d, 5\ns_add_u32 s3, s3, s%d\ns_lshl_b32 s3, s3, 7\ns_add_u32 s%d, s3, %d" % (sTB, sCB, sFlH, WS_FH))
    p("v_bfe_u32 v%d, v1, 1, 3\nv_xor_b32 v%d, v%d, v%d\nv_lshlrev_b32 v%d, 4, v%d\nv_lshl_add_u32 v%d, v%d, 7, v%d" % (c, c, c, b, c, c, vXA, a, c))
    for ks in range(1, 4): p("v_xor_b32 v%d, %d, v%d" % (vXA + ks, 32 * ks, vXA))
    for ks in range(4): p("v_add_u32 v%d, 0x10000, v%d" % (vXA + 4 + ks, vXA + ks))
    p("v_bfe_u32 v%d, v1, 2, 2\nv_bfe_u32 v%d, v1, 1, 1\nv_and_b32 v%d, 1, v1\nv_bfe_u32 v%d, v1, 4, 1" % (a, c, d, e))
    p("v_lshrrev_b32 v%d, 1, v%d\nv_lshl_add_u32 v%d, v%d, 1, v%d\nv_xor_b32 v%d, s%d, v%d\nv_lshlrev_b32 v%d, 5, v%d" % (f, a, f, c, f, f, sWave, f, f, f))
    p("v_lshl_add_u32 v%d, v%d, 4, v%d\nv_lshl_add_u32 v%d, v%d, 3, v%d\nv_lshl_add_u32 v%d, v%d, 13, v%d" % (f, d, f, f, e, f, f, c, f))
    p("v_lshl_add_u32 v%d, v%d, 3, v%d\nv_lshl_add_u32 v%d, v%d, 7, v%d\nv_add_u32 v%d, 0x10000, v%d" % (a, b, a, vWA, a, f, vWA + 1, vWA))
    p("v_mul_u32_u24 v%d, 57344, v%d\nv_and_b32 v%d, 15, v1\nv_lshl_add_u32 v%d, v%d, 4, v%d" % (e, e, c, c, b, c))
    p("s_and_b32 s3, s%d, 1\ns_lshl_b32 s3, s3, 9\nv_lshl_add_u32 v%d, v%d, 4, v%d\nv_add_u32 v%d, s3, v%d" % (sWave, c, c, e, vHoff, c))
    stamp(p, "g.set1", opts, 2)
    phase2_setup(p, opts)
    for r in range(4): p("v_mov_b32 v%d, 0x3f803f80" % (vOnes + r))
    stamp(p, "g.set2", opts, 2)
    KVP = opts.get("kvp", 1)
    nld, nchk = nonce_get("ng")
    HKP = opts.get("hkp", 9)
    hkl = hk_loads(opts) if HKP == 0 else []
    if KVP == 0: seq(p, kv_loads(opts) + hkl)
    stamp(p, "g.kvis", opts, 2)
    S1IN = opts.get("s1in", 0)
    NL = opts.get("nlate", 1)
    if not S1IN:
        seq(p, g1_stage(1, opts))
        if not NL: p.add(nld)
    if KVP == 1: seq(p, kv_loads(opts) + hkl)
    stamp(p, "g.st1", opts)

    def rdW(n):
        s, ks = n >> 2, n & 3
        w, off = win((s % 3) * SLOT + ks * 2048)
        return [mk("ds_read_b64_tr_b16 a[%d:%d], v%d offset:%d" % (4 * n, 4 * n + 1, vWA + w, off), lg="W%d" % n),
                mk("ds_read_b64_tr_b16 a[%d:%d], v%d offset:%d" % (4 * n + 2, 4 * n + 3, vWA + w, off + 512), lg="W%d" % n)]
    def rdXA(n, i):
        s, ks = n >> 2, n & 3
        w, off = win((s % 3) * SLOT + 16384 + i * 4096)
        return mk("ds_read_b128 %s, v%d offset:%d" % (vr(vXF + 16 * (n & 1) + 4 * i), vXA + 4 * w + ks, off), lg="X%d_%d" % (n, i))
    def rdXB(bb, n):
        w, off = win(((8 + bb) % 3) * SLOT + (n >> 2) * 4096)
        return mk("ds_read_b128 %s, v%d offset:%d" % (vr(vXF + 4 * (n & 7)), vXA + 4 * w + (n & 3), off), lg="B%d_%d" % (bb, n))

    fr = opts.get("fr", " sc1")
    cs_loads = [mk("buffer_load_dwordx2 %s, v%d, %s, 0 offen offset:%d sc1" % (vr(vCSR + 2 * t, 2), vCSoff, S4(sWS), t * 512), vm="rec") for t in range(4)]
    st_loads = [mk("buffer_load_dwordx2 %s, v%d, %s, s%d offen offset:%d%s" % (vr(vCSR + 8 + 2 * t, 2), vSToff, S4(sWS), sST, t * 512, fr), vm="rec") for t in range(4)]
    post = poll_check("rec", [vCSR + 2 * t + 1 for t in range(8)], cs_loads + [mk(y.t.replace(fr, " sc1") if fr else y.t + " sc1") for y in st_loads], 32)
    post += ml("v_add_f32 v%d, v%d, v%d\nv_add_f32 v%d, v%d, v%d\nv_add_f32 v%d, v%d, v%d\nv_mov_b32 v%d, v%d" % (vCSR, vCSR, vCSR + 2, vCSR + 4, vCSR + 4, vCSR + 6, vCSR, vCSR, vCSR + 4, vCSR + 1, vCSR))
    for t in range(4): post += ml("v_mov_b32 v%d, v%d\nv_mov_b32 v%d, v%d" % (vST + 8 * t + 1, vCSR + 8 + 2 * t, vST + 8 * t + 5, vCSR + 8 + 2 * t))
    post += ml("v_permlane32_swap_b32 v%d, v%d" % (vCSR, vCSR + 1))
    for t in range(4): post += ml("v_permlane32_swap_b32 v%d, v%d" % (vST + 8 * t + 1, vST + 8 * t + 5))
    post += ml("s_mov_b32 s%d, 0x01000100\nv_add_f32 v%d, v%d, v%d" % (sT2, vCSR, vCSR, vCSR + 1))
    for t in range(8): post += ml("v_perm_b32 v%d, v%d, v%d, s%d" % (vST + 4 * t, vST + 4 * t + 1, vST + 4 * t + 1, sT2))
    for t in range(8): post += ml("v_and_b32 v%d, 0xffff0000, v%d" % (vST + 4 * t + 1, vST + 4 * t + 1))
    for t in range(8): post += ml("v_mul_f32 v%d, %s, v%d" % (vST + 4 * t + 1, hex(f2u(-LOG2E)), vST + 4 * t + 1))
    post += [mk("v_cvt_pk_bf16_f32 v%d, v%d, v%d" % (vCSR + 1, vCSR, vCSR)), mk("v_and_b32 v%d, 0xffff0000, v%d" % (vCSR + 1, vCSR + 1)),
             mk("v_sub_f32 v%d, v%d, v%d" % (vCSR, vCSR, vCSR + 1)), mk("v_cmp_gt_u32 vcc, 32, v1"),
             mk("v_cvt_pk_bf16_f32 v%d, v%d, v%d" % (vCSR, vCSR + 1, vCSR)),
             mk("v_mov_b32 v%d, v%d" % (vR1B, vST)), mk("v_cndmask_b32 v%d, 0, v%d, vcc" % (vR1A, vCSR)), mk("v_mov_b32 v%d, v%d" % (vR1B + 4, vST + 4))]
    cst = lambda t: ml("v_rcp_f32 v%d, v%d" % (vST + 4 * t + 2, vST + 4 * t + 1))
    cmu = lambda t: ml("v_mul_f32 v%d, %s, v%d" % (vST + 4 * t + 2, hex(f2u(LOG2E * LOG2E)), vST + 4 * t + 2))
    for t in range(4): post += cst(t)
    for t in range(4): post += cmu(t)

    if opts.get("x_norec"):
        cs_loads = []; st_loads = []; post = [y for y in post if "cbranch" not in y.t]
    F = Filler(opts.get("aspace", 2))
    RL = opts.get("recst", 5)
    if S1IN: F.v(-20, g1_stage(1, opts) + [nld])
    for s in range(8):
        F.v(max(0, 16 * s - 3) if not (S1IN and s == 0) else -20, g1_stage(s + 2, opts))
        if NL and s == 0 and not S1IN: F.v(0, [nld])
        if KVP >= 2 and s + 2 == KVP: F.v(0, kv_loads(opts) + hkl)
        if HKP and HKP < 10 and s + 2 == HKP: F.v(0, hk_loads(opts))
        if s == opts.get("csst", 2 if NL else 1): F.v(0, [mk("buffer_store_dwordx2 %s, v9, %s, s%d offen sc1" % (vr(vCSA, 2), S4(sWS), sCSw), vm="csst")])
        if s == opts.get("kvst", 8) and not opts.get("x_nokvs"): F.v(0, kv_stores())
        if s == RL - 1: F.v(16 * RL - 4, cs_loads + st_loads)
        if s == 7 and opts.get("kvst", 8) < 8: F.v(16 * 7 + 8, [W(vm="kvst"), flag_store(sFlK)])
    F.x(0, ml("v_lshlrev_b32 v9, 26, v1\nv_and_b32 v9, 0x80000000, v9\nv_or_b32 v9, v9, v%d" % vCSoff))
    F.x(17, [mk("v_mov_b32 v%d, 0" % r) for r in (vR1A + 1, vR1A + 2, vR1A + 3)])
    F.x(17, [mk("v_mov_b32 v%d, 0" % r) for r in (vR1B + 1, vR1B + 2, vR1B + 3, vR1B + 5, vR1B + 6, vR1B + 7)])
    F.x(29 if NL else 13, [W(vm="non")] + nchk + ml("v_mov_b32 v%d, v%d" % (vCSA + 1, vTag)))
    kc = kv_compute()
    if opts.get("x_nokvr"): kc = [y for y in kc if not y.t.startswith("ds_")]
    if opts.get("x_nokvv"): kc = [y for y in kc if not y.t.startswith("v_")]
    F.x(13 if KVP == 0 else 16 * (KVP + 1) - 3, kc)
    KVS = I("; kv done", cost=0); KVS.kind = "label"
    sr = phase2_srds()
    F.x(0, [KVS] + (hk_build() if HKP == 0 else []) + sr[:8])
    F.x(0, sr[8:])
    F.x(16 * (RL + 2) - 3 + opts.get("postat", 0), [W(vm="rec")] + post)
    p.wait(vm="st0")
    p("s_barrier")
    stamp(p, "g.st0in", opts)
    for x in rdW(0): p.add(x)
    for i in range(4): p.add(rdXA(0, i))
    PD = 5
    BA = opts.get("buda", 24)
    for n in range(32):
        s, ks = n >> 2, n & 3
        gaps = [[], [], [], []]
        if ks == 3: gaps[0] += [W(vm="st%d" % (s + 1), lg="*"), mk("s_barrier")]
        if n < 31:
            gaps[0] += rdW(n + 1); gaps[1] += [rdXA(n + 1, 0), rdXA(n + 1, 1)]; gaps[2] += [rdXA(n + 1, 2), rdXA(n + 1, 3)]
        else:
            gaps[0] += [rdXB(0, 0), rdXB(0, 1)]; gaps[1] += [rdXB(0, 2), rdXB(0, 3)]
        for i in range(4):
            if i in (0, 2): p.wait(lg=["W%d" % n, "X%d_%d" % (n, i + 1)])
            a = acc_of(i)
            p("v_mfma_f32_32x32x16_bf16 %s, a[%d:%d], %s, %s" % (vr(a, 16), 4 * n, 4 * n + 3, vr(vXF + 16 * (n & 1) + 4 * i), vr(a, 16) if n else "0"))
            if ks == 3 and i == 0 and any(y.vm == "st%d" % (s + 1) for _, y in F.vq): raise SystemExit("stage %d not issued" % (s + 1))
            F.fill(4 * n + i, gaps[i], BA - (4 if i in (1, 3) else 0))
            if any(y.vm == "csst" for y in gaps[i]): assert not any(y.t.startswith("v_mov_b32 v%d," % (vCSA + 1)) for y in gaps[i] + [z for _, z in F.xq]), "cs store too early"
            if any(y.vm == "kvst" for y in gaps[i]): assert KVS not in gaps[i] + [z for _, z in F.xq], "kv store too early"
            for x in gaps[i]: p.add(x)
        if ks == 3 and s < 7: stamp(p, "g.s%d" % s, opts, 2)
        if n < 4:
            p("v_mfma_f32_32x32x16_bf16 %s, %s, a[%d:%d], %s" % (vr(vCSA, 16), vr(vOnes), 4 * n, 4 * n + 3, vr(vCSA, 16) if n else "0"))
    left = len(F.xq)
    stamp(p, "g.A31", opts, 2)
    for _, x in F.xq: p.add(x)
    F.xq = []
    print("phase A: left-over x items %d, v items %d" % (left, len(F.vq)), file=sys.stderr)
    stamp(p, "g.Aend", opts)
    p.add(rdXB(0, 4))
    p("s_nop 0")
    late = [cst(4) + cst(5), cst(6) + cst(7), cmu(4) + cmu(5), cmu(6) + cmu(7)]
    for t in range(4):
        a = acc_of(t)
        p("v_mfma_f32_32x32x16_bf16 %s, %s, %s, %s" % (vr(a, 16), vr(vR1A), vr(vR1B + 4 * (t & 1)), vr(a, 16)))
        p("v_mov_b32 v%d, v%d" % (vR1B + 4 * (t & 1), vST + 4 * (t + 2)))
        for x in late[t]: p.add(x)
    ep = [g1_epilogue(t, opts) for t in range(7)]
    total = sum(x.cost for e in ep for x in e)
    kvpoll = [mk("buffer_load_dwordx2 v[%d:%d], v%d, %s, 0 offen sc1" % (uPoll, uPoll + 1, uFK, S4(sWS)), vm="kvp")]
    F.vq = [(0, y) for _, y in F.vq]; F.last = -9; F.space = opts.get("bspace", 2)
    X = lambda k, L: [] if opts.get(k) else L
    XB = opts.get("xb", 0)
    ORD = [0, 1, 2, 3, 4] + [7, 8, 9][:XB]
    INB_READ = [0, 1, 2][:XB]
    chain = lambda t: ([W(vm="w%d" % t)] + wd_reads(t, True) + [delay(4), W(lg="t%d" % t)] + wd_loads(t + 7, opts)) if t in INB_READ else []
    F.x(0, [mk("v_add_u32 v%d, 0x20000, v%d" % (uTR2 + mt, uTR + mt)) for mt in range(4)])
    F.x(0, [bundle("\n".join(y.t for y in fl0_setup()[:3]))] + fl0_setup()[3:])
    F.v(0, kv_stores())
    F.v(opts.get("st10", 6), g1_stage(10, opts))
    W0 = opts.get("w0at", 24)
    if W0 < 29: F.v(W0, wd_loads(0, opts))
    F.v(29, g1_stage(11, opts)[:6] + [W(vm="kvst"), flag_store(sFlK)] + g1_stage(11, opts)[6:])
    if W0 >= 29: F.v(W0, wd_loads(0, opts))
    if HKP == 10: F.v(opts.get("hkat", 46), hk_loads(opts))
    F.v(62, wd_loads(1, opts) + wd_loads(2, opts))
    F.v(opts.get("c0", 80), chain(0))
    F.v(opts.get("kvpoll", 88), kvpoll)
    F.v(95, wd_loads(3, opts) + wd_loads(4, opts))
    F.v(opts.get("kvchk", 114), [W(vm="kvp")] + poll_check("kv", [uPoll], kvpoll) + conv_xr())
    F.v(0, chain(1) + chain(2))
    opts["_ord"] = ORD; opts["_rd"] = INB_READ
    if HKP: F.x(opts.get("hkb", 62 if HKP < 10 else 95), hk_build(1))
    EF = opts.get("eflag", 99 + 16)
    ngaps = 4 * 33; done = 0; cur = 0; gi = 0
    BUD = opts.get("bud", 24)
    for bb in range(4):
        tile = 4 + bb; a = acc_of(tile)
        for n in range(-1, 32):
            gap = []
            if n == -1:
                p("v_mfma_f32_32x32x16_bf16 %s, %s, %s, 0" % (vr(a, 16), vr(vR1A), vr(vR1B + 4 * (bb & 1))))
                if bb < 2: gap.append(mk("v_mov_b32 v%d, v%d" % (vR1B + 4 * (bb & 1), vST + 4 * (tile + 2))))
            else:
                if n % 2 == 0: p.wait(lg="B%d_%d" % (bb, n + 1))
                p("v_mfma_f32_32x32x16_bf16 %s, a[%d:%d], %s, %s" % (vr(a, 16), 4 * n, 4 * n + 3, vr(vXF + 4 * (n & 7)), vr(a, 16)))
                m = n + PD
                if m == 32 and bb < 3:
                    if any(y.vm == "st%d" % (9 + bb) for _, y in F.vq): raise SystemExit("stage not issued before its wait")
                    gap += [W(vm=["st%d" % (9 + bb)] + (["hk"] if bb == 2 else []), lg="*"), mk("s_barrier")]
                if m < 32: gap.append(rdXB(bb, m))
                elif bb < 3: gap.append(rdXB(bb + 1, m - 32))
            budget = BUD - (4 if (n % 2 == 1) else 0)
            if gi == EF:
                assert cur >= 4
                gap += [W(vm="hst3"), mk("s_barrier"), flag_store(sFlH, True), mk("s_add_u32 s%d, s%d, %d" % (sFlH, sFlH, WS_FL))]
            F.fill(gi, gap, min(budget, sum(y.cost for y in gap) + 8), min(budget, sum(y.cost for y in gap) + 12 if F.xq and F.xq[0][1].cost > 4 else sum(y.cost for y in gap) + 8))
            gi += 1
            target = total * gi / float(ngaps - opts.get("eplead", 4))
            while cur < 7 and done < target:
                if cur >= 4 and (cur - 4 >= bb or (cur - 4 == bb - 1 and n < 4)): break
                if cur < 4 and bb == 0 and n < 2: break
                x = ep[cur][0]
                if sum(y.cost for y in gap) + x.cost > budget: break
                gap.append(ep[cur].pop(0)); done += x.cost
                if not ep[cur]: cur += 1
            for x in gap: p.add(x)
            if gi % 6 == 0: stamp(p, "B%d" % gi, opts, 5)
        if bb < 3: stamp(p, "g.b%d" % bb, opts, 2)
    stamp(p, "g.Bend", opts)
    print("phase B: left-over v items %d, epilogue cost left %d" % (len(F.vq), total - done), file=sys.stderr)
    seq(p, [y for _, y in F.vq] + [y for _, y in F.xq])
    while cur < 7:
        for x in ep[cur]: p.add(x)
        cur += 1
    for s in range(14): p("s_lshr_b32 s%d, s%d, 5" % (sTab + s, sTabW + s))
    for x in g1_epilogue(7, opts): p.add(x)

def out_half(ps, opts, pk):
    eW = 24; eR = 25; eY = 26
    if ps == 0: X = list(range(12, 20)); XN = list(range(32, 40)); YR = 20; Y = [28, 29, 30, 31, 224, 225, 226, 227]
    else: X = list(range(56, 64)); XN = list(range(64, 72)); YR = 80; Y = list(range(72, 80))
    P = [list(range(uAcc + 32 * ps + 8 * w, uAcc + 32 * ps + 8 * w + 8)) for w in range(4)]
    wr = [mk("ds_write_b128 v%d, %s offset:%d" % (eW, vr(uAcc + 16 * (2 * ps + e) + 4 * mt), e * 16 * RS + mt * 64), cost=8) for e in range(2) for mt in range(4)]
    rdy = [mk("ds_read_b64_tr_b16 v[%d:%d], v%d offset:%d" % (YR + 2 * j, YR + 2 * j + 1, eY, j * 512 + 64 * ps), lg="y%d" % ps) for j in range(2)]
    rd = [mk("ds_read_b128 %s, v%d offset:%d" % (vr(P[w][4 * h]), eR, w * REDW + 16 * h), lg="r%d" % ps) for h in range(2) for w in range(4)]
    xin = uXin + 4 * ps; st = uSt + 2 * ps; F = P[0]
    un = lambda d, s_, hi: ("v_and_b32 v%d, 0xffff0000, v%d" if hi else "v_lshlrev_b32 v%d, 16, v%d") % (d, s_)
    def op2(name, d, a_, b_, c_=None, sel=""):
        R = lambda z, i, n: z if isinstance(z, str) else vr(z[i], n)
        if pk: return [mk("v_pk_%s_f32 %s, %s, %s%s%s" % (name, vr(d[2 * i], 2), R(a_, 2 * i, 2), R(b_, 2 * i, 2), (", " + R(c_, 2 * i, 2)) if c_ else "", sel)) for i in range(4)]
        return [mk("v_%s_f32 v%d, %s, %s%s" % (name, d[i], R(a_, i, 1), R(b_, i, 1), (", " + R(c_, i, 1)) if c_ else "")) for i in range(8)]
    pre = ml(un(st + 1, 40 + 2 * ps, 1) + "\n" + un(st, 40 + 2 * ps, 0) + "\nv_rcp_f32 v%d, v%d" % (st + 1, st + 1))
    pre += [mk(un(X[i], xin + (i >> 1), i & 1)) for i in range(8)]
    pre += ml("v_mul_f32 v%d, v%d, v%d" % (st, st, st + 1))
    if pk: pre += op2("fma", XN, X, vr(st, 2), vr(st, 2), " op_sel:[0,1,0] op_sel_hi:[1,1,0]")
    else: pre += op2("fma", XN, X, "v%d" % (st + 1), "v%d" % st)
    m = [W(lg="r%d" % ps)] + op2("add", F, P[0], P[1]) + op2("add", P[2], P[2], P[3]) + op2("add", F, F, P[2])
    m += op2("mul", Y, "s[4:5]" if pk else "s4", F)
    t1 = [mk("v_exp_f32 v%d, v%d" % (Y[i], Y[i])) for i in range(8)]
    t2 = op2("mul", XN, XN, F)
    m += [z for pr in zip(t1, t2) for z in pr] if not pk else t1 + t2
    m += op2("add", Y, "1.0", Y, None, " op_sel_hi:[0,1]" if pk else "")
    m += [mk("v_rcp_f32 v%d, v%d" % (Y[i], Y[i])) for i in range(8)] + [mk("s_nop 0")]
    m += op2("mul", XN, XN, Y)
    my = [W(lg="y%d" % ps)] + [mk(un(Y[i], YR + (i >> 1), i & 1)) for i in range(8)]
    my += op2("fma", X, XN, Y, X)
    my += [mk("v_cvt_pk_bf16_f32 v%d, v%d, v%d" % (xin + i, X[2 * i], X[2 * i + 1])) for i in range(4)]
    my += [mk("buffer_store_dwordx4 %s, v%d, %s, %s offen%s" % (vr(xin), uX, S4(sOut), "s%d" % sT0 if ps else "0", opts.get("fo", "")), vm="out")]
    return wr, pre, rd, m, rdy, my

def phase2(p, opts):
    ORD = opts["_ord"]; RD = opts["_rd"]
    stamp(p, "p2", opts)
    for mt in range(4): p("v_add_u32 v%d, 0x10000, v%d\nv_add_u32 v%d, 0x20000, v%d" % (HI[1] + mt, uTR + mt, HI[2] + mt, uTR + mt))
    p.wait(vm="cv", lg="*")
    p("s_barrier")
    stamp(p, "p2bar", opts, 4)
    for x in conv_reads(0): p.add(x)
    hpollA = [mk("buffer_load_dwordx2 v[%d:%d], v%d, %s, 0 offen sc1" % (uPoll, uPoll + 1, uFH, S4(sWS)), vm="hpA")]
    hpollB = [mk("s_mov_b32 s%d, %d" % (sT1, WS_FL)), mk("buffer_load_dwordx2 v[%d:%d], v%d, %s, s%d offen sc1" % (uPoll + 2, uPoll + 3, uFH, S4(sWS), sT1), vm="hpB")]
    tq = []
    for t in range(7):
        if t not in RD: tq += [("w%d" % t if t >= 5 else None, y) for y in wd_reads(t)]
    wl = lambda t: ([W(lg="t%d" % (t - 7))] if t >= 7 else []) + wd_loads(t, opts)
    rest = [t for t in range(7, 14) if t not in ORD]
    nfirst = opts.get("wfirst", 4)
    VQ = wl(5) + wl(6) + [x for t in rest[:nfirst] for x in wl(t)]
    rest = rest[nfirst:]
    LEAD = opts.get("wlead", 3)
    CHKA = I("; chkA", cost=0); CHKB = I("; chkB", cost=0)
    VQ.append(CHKA)
    for hs in range(28):
        while rest and rest[0] - 1 - LEAD <= hs: VQ += wl(rest.pop(0))
        if hs == 14: VQ.append(CHKB)
        VQ += h_loads(hs)
    state = {"A": False, "B": False, "issued": set()}
    def pace(p, done_hs):
        n = 0
        while VQ:
            y = VQ[0]
            if y is CHKA:
                if not state["A"]: return n
                VQ.pop(0); continue
            if y is CHKB:
                if not state["B"]: return n
                VQ.pop(0); continue
            if y.kind == "wait" and any(z.lg == y.lg for _, z in tq): return n
            if y.vm and y.vm[0] == "h" and int(y.vm[1:]) - 16 > done_hs: return n
            VQ.pop(0); p.add(y); n += 1
            if is_m0(y): p("s_nop 0") if False else None
            if is_vm(y): state["issued"].add(y.vm); return n
            if is_m0(y): return n
        return n
    strec = [mk("buffer_load_dwordx2 %s, v%d, %s, 0 offen offset:%d sc1" % (vr(40 + 2 * e, 2), uSto, S4(sWS), 1024 * e), vm="xin") for e in range(2)]
    extra = ml("s_mov_b32 s%d, 131072" % sT0) + [mk("buffer_load_dwordx4 %s, v%d, %s, %s offen" % (vr(uXin + 4 * e), uX, S4(sQ), "s%d" % sT0 if e else "0"), vm="xin") for e in range(2)] + strec
    dq = ml("v_lshrrev_b32 v24, 4, v1\nv_and_b32 v25, 15, v1\nv_lshl_add_u32 v24, v24, 3, v25\nv_sub_u32 v24, 15, v24\nv_lshlrev_b32 v25, 4, v24\nv_and_b32 v25, 16, v25\n"
            "s_sub_u32 s3, s%d, 1\nv_lshlrev_b32 v25, v25, v%d\nv_and_b32 v25, s3, v25\nv_lshrrev_b32 v24, 1, v24" % (sHalf, uD))
    dq += ml("v_cmp_eq_u32 s[4:5], 0, v24\nv_cmp_eq_u32 s[6:7], 1, v24\nv_cmp_eq_u32 s[34:35], 2, v24\nv_cmp_eq_u32 vcc, 3, v24")
    dq += ml("v_cndmask_b32 v%d, 0, v25, s[4:5]\nv_cndmask_b32 v%d, 0, v25, s[6:7]\nv_cndmask_b32 v%d, 0, v25, s[34:35]\nv_cndmask_b32 v%d, 0, v25, vcc" % (uAD, uAD + 1, uAD + 2, uAD + 3))
    pollat = opts.get("hpoll", 44); flagat = opts.get("hflag", 48); chkA = opts.get("hchk", 70); pollB = opts.get("hpollb", 132); SP = opts.get("csp", 4)
    ypoll = [mk("buffer_load_dwordx2 %s, v%d, %s, 0 offen sc1" % (vr(uPoll, 2), uFY, S4(sWS)), vm="yp")]
    ydma = ml("v_lshrrev_b32 v2, 3, v1\nv_lshlrev_b32 v2, 12, v2\nv_and_b32 v3, 3, v1\nv_lshl_add_u32 v2, v3, 4, v2\nv_bfe_u32 v3, v1, 2, 1\nv_lshl_add_u32 v2, v3, 8, v2\nv_add_u32 v3, %d, v2" % (32768 - 1024))
    ydma += ml("s_lshl_b32 s3, s%d, 18\ns_lshl_b32 s7, s%d, 16\ns_add_u32 s3, s3, s7\ns_lshr_b32 s7, s%d, 2\ns_lshl_b32 s7, s7, 9\ns_add_u32 s3, s3, s7\ns_and_b32 s7, s%d, 3\ns_lshl_b32 s7, s7, 6\ns_add_u32 s3, s3, s7\ns_add_u32 s3, s3, %d" % (sDB, sWave, sTB2, sTB2, WS_YT))
    ydma += ml("s_lshl_b32 s7, s%d, 11\ns_add_u32 m0, s7, %d" % (sWave, YT_L))
    adr = ml("v_and_b32 v24, 15, v1\nv_mul_u32_u24 v24, %d, v24\nv_lshrrev_b32 v25, 4, v1\nv_lshl_add_u32 v24, v25, 4, v24\ns_mul_i32 s6, s%d, %d\ns_add_u32 s6, s6, %d\nv_add_u32 v24, s6, v24" % (RS, sWave, REDW, RED[0]))
    adr += ml("v_lshrrev_b32 v25, 5, v1\nv_and_b32 v26, 3, v1\nv_lshl_add_u32 v25, v25, 2, v26\nv_mul_u32_u24 v25, %d, v25\nv_bfe_u32 v26, v1, 2, 3\nv_lshl_add_u32 v25, v26, 5, v25\ns_mul_i32 s6, s%d, %d\ns_add_u32 s6, s6, %d\nv_add_u32 v25, s6, v25" % (RS, sWave, 8 * RS, RED[0]))
    adr += ml("v_bfe_u32 v26, v1, 4, 1\nv_and_b32 v27, 3, v1\nv_lshl_add_u32 v26, v26, 2, v27\nv_bfe_u32 v27, v1, 2, 2\nv_lshl_add_u32 v26, v26, 3, v27\nv_lshlrev_b32 v26, 7, v26\nv_lshrrev_b32 v27, 5, v1\nv_lshl_add_u32 v26, v27, 3, v26\ns_lshl_b32 s6, s%d, 4\ns_add_u32 s6, s6, %d\nv_add_u32 v26, s6, v26" % (sWave, YT_L))
    chk = [W(vm="xin")] + poll_check("st", [41, 43], strec, 32)
    aq = ydma[:-2] + adr + chk
    first = set(); nm = 0
    for rr in range(4):
        rq = conv_reads(rr + 1) if rr < 3 else []
        b = vCF + 64 * (rr & 1)
        pairs = sorted([(s1, p1) for s1 in range(8) for p1 in range(8) if s1 + p1 <= 7], key=lambda x: (max(x), x[0] + x[1], x[0]))
        seen = -1; k = 0
        for (s1, p1) in pairs:
            mx = max(s1, p1)
            if mx > seen:
                p.wait(lg="c%d_%d" % (rr, mx)); seen = mx
            acc = vr(uCacc + 4 * (s1 + p1))
            p("v_mfma_f32_16x16x32_bf16 %s, %s, %s, %s" % (acc, vr(b + 4 * s1), vr(b + 32 + 4 * p1), acc if (s1 + p1) in first else "0"))
            first.add(s1 + p1); k += 1; nm += 1
            n = 0
            if rq and k > 2 and (k % 4 != 0): p.add(rq.pop(0)); n += 1
            if dq and nm > 6 and (n == 0 or nm % 2): p.add(dq.pop(0)); n += 1
            if nm % SP == 0 or (VQ and is_m0(VQ[0]) and nm % SP == SP - 1): n += pace(p, -1)
            while tq and n < 2:
                tg = tq[0][0]
                if tg and (tg not in state["issued"] or nm < opts.get("t56", 84)): break
                if tg: p.wait(vm=tg)
                p.add(tq.pop(0)[1]); n += 1
            if aq and nm > opts.get("aqat", 96) and n < 2 and not (n and aq[0].t.startswith("v_") and p.ins[-1].t.startswith("v_") and "mfma" not in p.ins[-1].t):
                p.add(aq.pop(0))
                while aq and aq[0].cost == 0: p.add(aq.pop(0))
            if nm == pollat:
                for x in hpollA: p.add(x)
            if nm == flagat:
                p.wait(vm="hst7"); p("s_barrier"); p.add(flag_store(sFlH, True))
                stamp(p, "hflag", opts)
            if nm == chkA:
                p.wait(vm="hpA")
                for x in poll_check("hA", [uPoll], hpollA): p.add(x)
                stamp(p, "hokA", opts); state["A"] = True
        stamp(p, "cv%d" % rr, opts, 4)
        if rr == 0:
            for x in dq: p.add(x)
            if dq: p("s_nop 1")
            dq = []
            for p1 in range(8):
                acc = vr(uCacc + 4 * p1)
                p("v_mfma_f32_16x16x32_bf16 %s, %s, %s, %s" % (acc, vr(uAD), vr(b + 32 + 4 * p1), acc))
                if rq: p.add(rq.pop(0))
                if p1 % 4 == 1: pace(p, -1)
            for x in extra: p.add(x)
        for x in rq: p.add(x)
    print("conv: left-over reads %d, queued loads %d" % (len(tq), len(VQ)), file=sys.stderr)
    assert not tq
    cur_hs = [-1]
    def pace2():
        if pace(p, cur_hs[0]) and is_m0(p.ins[-1]): p("s_nop 0"); pace(p, cur_hs[0])
    for x in aq: p.add(x)
    stamp(p, "convend", opts)
    p("s_lshl_b32 s7, s%d, 13\ns_add_u32 s7, s7, %d\nv_add_u32 v4, s7, v%d\ns_and_b32 s7, s%d, 2\ns_lshl_b32 s7, s7, 13\ns_lshl_b32 s6, s%d, 12\ns_add_u32 s7, s7, s6\ns_add_u32 s7, s7, %d\nv_add_u32 v5, s7, v%d" % (sWave, XCH, vL16, sWave, sHalf, XCH, vL16))
    for x in hpollB: p.add(x)
    p("s_barrier")
    for i in range(8):
        p("ds_write_b128 v4, %s offset:%d" % (vr(uCacc + 4 * i), i * 1024))
        if i % 3 == 1: pace2()
    stamp(p, "xw", opts, 4)
    p("s_waitcnt lgkmcnt(0)\ns_barrier")
    for i in range(4):
        p("ds_read_b128 %s, v5 offset:%d" % (vr(uCacc + 4 * i), i * 1024), lg="xr%d" % i)
        p("ds_read_b128 %s, v5 offset:%d" % (vr(uCacc + 16 + 4 * i), 8192 + i * 1024), lg="xr%d" % i)
    pace2()
    for i in range(4):
        p.wait(lg="xr%d" % i)
        for e in range(2): p("v_pk_add_f32 %s, %s, %s" % (vr(uCacc + 4 * i + 2 * e, 2), vr(uCacc + 4 * i + 2 * e, 2), vr(uCacc + 16 + 4 * i + 2 * e, 2)))
    for i in range(4):
        o = uTmp + 4 * (i >> 1) + 2 * (i & 1)
        p("v_cvt_pk_bf16_f32 v%d, v%d, v%d\nv_cvt_pk_bf16_f32 v%d, v%d, v%d" % (o, uCacc + 4 * i, uCacc + 4 * i + 1, o + 1, uCacc + 4 * i + 2, uCacc + 4 * i + 3))
    pace2(); p("s_nop 0")
    for h in range(2):
        o = uTmp + 4 * h
        p("v_permlane16_swap_b32 v%d, v%d\nv_permlane16_swap_b32 v%d, v%d" % (o, o + 2, o + 1, o + 3))
    for h in range(2):
        p("buffer_store_dwordx4 %s, v%d, %s, s%d offen offset:%d sc1" % (vr(uTmp + 4 * h), uYst, S4(sWS), sYoff, h * 1024), vm="yst")
    stamp(p, "g2go", opts)
    wrA, preA, rdA, mA, rdyA, myA = out_half(0, opts, False)
    wrB, preB, rdB, mB, rdyB, myB = out_half(1, opts, True)
    YF = opts.get("yflag", 6); YP = opts.get("ypoll", 15); YC = YP + opts.get("ychk", 4); RB = opts.get("rbar", 18); RY = opts.get("ybar", YC + 5)
    HB = opts.get("hb", 5); HL = opts.get("hl", 5)
    xq = []
    def X_(at, L): xq.extend((at, y) for y in L)
    X_(0, preA + [mk("s_mov_b32 s4, %s" % hex(f2u(-LOG2E))), mk("s_mov_b32 s5, s4")])
    for i, y in enumerate(wrA): X_(8 * 14 + 5 + 3 * i, [y])
    X_(8 * RB, [W(lg="*"), mk("s_barrier")] + rdA)
    X_(8 * RB + 14, mA)
    for hs in range(28):
        ps, s = divmod(hs, 14)
        cur_hs[0] = hs - 1
        while "h%d" % hs not in state["issued"] or any(y.vm == "h%d" % hs for y in VQ) or (ps == 0 and s < 13 and any(y.vm == "w%d" % (s + 1) for y in VQ)): pace2()
        rq = wd_reads(s + 1) if (ps == 0 and 7 <= s + 1 < 14) else []
        if hs == HB:
            p.wait(vm="hpB")
            for x in poll_check("hB", [uPoll + 2], hpollB): p.add(x)
            stamp(p, "hokB", opts); state["B"] = True
        if hs == YF: p.wait(vm="yst"); p("s_barrier"); p.add(flag_store(sFlY, True))
        if hs == YP: p.add(ypoll[0])
        if hs == YC:
            p.wait(vm="yp")
            for x in poll_check("y", [uPoll], ypoll): p.add(x)
            assert not any(is_m0(y) or y.t.endswith(" lds") for y in VQ)
            for x in ydma[-2:]: p.add(x)
            p("s_nop 0")
            p.add(dma(2, sWS, "s3", 0, "yt", " sc1")); p.add(dma(3, sWS, "s3", 1024, "yt", " sc1"))
            stamp(p, "yok", opts, 4)
        if hs == RY:
            p.wait(vm="yt"); p("s_barrier")
            for x in rdyA: p.add(x)
            X_(8 * RY + 6, myA)
        p.wait(vm="h%d" % hs, lg="t%d" % s)
        m = 0
        for e in range(2):
            nt = 2 * ps + e
            for mt in range(4):
                acc = vr(uAcc + 16 * nt + 4 * mt)
                hr = aH + 8 * (hs % 16) + 4 * e
                k, b = wfrag(s, mt)
                p("v_mfma_f32_16x16x32_bf16 %s, %s[%d:%d], a[%d:%d], %s" % (acc, k, b, b + 3, hr, hr + 3, acc if s else "0"))
                m += 1
                n = 0
                tgt = "h%d" % min(27, hs + HL)
                left = max([i + 1 for i, y in enumerate(VQ) if y.vm == tgt] + [0])
                for _ in range(-(-left // (9 - m))):
                    k_ = pace(p, hs - 1); n += k_
                    if k_ == 0 or is_m0(p.ins[-1]): break
                if m == 1 and rq: p.wait(vm="w%d" % (s + 1))
                if rq: p.add(rq.pop(0)); n += 1
                g = 8 * hs + m - 1
                nv = 0
                rem = 8 * 28 - g
                while xq and xq[0][0] <= g and n < 2:
                    isv = xq[0][1].t.startswith("v_")
                    if isv and nv >= 1 and len(xq) < opts.get("g2den", 1) * rem + 999 * (g < 8 * RB): break
                    p.add(xq.pop(0)[1]); n += 1; nv += isv
        assert not rq
        if hs == 13: stamp(p, "g2A", opts)
        elif hs % 3 == 0: stamp(p, "h%d" % hs, opts, 4)
    print("gemm2: left-over epilogue items %d" % len(xq), file=sys.stderr)
    stamp(p, "g2end", opts)
    p("v_add_u32 v24, %d, v24\nv_add_u32 v25, %d, v25" % (((RED[1] - RED[0]) & 0xffffffff,) * 2))
    tail = [y for _, y in xq] + preB
    nop = max(0, 6 - len(tail))
    for x in tail[:8]: p.add(x)
    tail = tail[8:]
    for x in wrB:
        p.add(x)
        for _ in range(3):
            if tail: p.add(tail.pop(0))
    for x in tail: p.add(x)
    p("s_waitcnt lgkmcnt(0)\ns_barrier")
    stamp(p, "red", opts)
    for x in rdB + rdyB + mB + myB: p.add(x)
    stamp(p, "fin", opts)

def aux(p, opts):
    p("s_lshl_b32 s3, s2, 6\ns_lshl_b32 s4, s%d, 4\ns_add_u32 s3, s3, s4" % sWave)
    p("v_add_u32 v12, s3, v2\nv_lshlrev_b32 v10, 10, v12\nv_lshl_add_u32 v10, v3, 4, v10\nv_add_u32 v11, 8192, v10\nv_mov_b32 v13, v3")
    p("s_memrealtime s[%d:%d]" % (sTag, sTag + 1))
    p("s_waitcnt lgkmcnt(0)")
    p("s_mov_b32 s%d, s74\ns_mov_b32 s%d, s75" % (sDbg, sDbg + 1))
    p("s_or_b32 s3, s2, s%d\ns_cmp_lg_u32 s3, 0\ns_cselect_b64 exec, 0, 1" % sWave)
    p("s_or_b32 s%d, s%d, 1\nv_mov_b32 v14, s%d\nv_mov_b32 v15, s%d\ns_cbranch_execz L_aux_nt" % (sTag, sTag, sTag, sTag + 1))
    p("global_store_dwordx2 v%d, v[14:15], s[%d:%d] sc1" % (vNon + 2, sDbg, sDbg + 1))
    p.label("L_aux_nt")
    p("s_mov_b64 exec, -1")
    srd(p, sQ, kQ, 2048 * 1024)
    for g in range(2):
        for i in range(8):
            p("buffer_load_dwordx4 %s, v%d, %s, 0 offen offset:%d" % (vr(116 + 32 * g + 4 * i), 10 + g, S4(sQ), i * 128), vm="sx%d" % g)
        if g == 0:
            srd(p, sWS, kWS, WS_SZ)
            kv_setup(p); ids2(p); hk_srds(p)
            phase2_setup(p, opts)
    nld, nchk = nonce_get("na")
    p.add(nld)
    p("s_mov_b32 s5, 0x3f803f80")
    for g in range(2):
        p.wait(vm="sx%d" % g if g == 0 else "non")
        stamp(p, "a.sx%d" % g, opts, 3)
        if g == 1:
            p("v_lshlrev_b32 v10, 7, v1\ns_mov_b32 s12, s60\ns_and_b32 s13, s61, 0xffff\ns_mov_b32 s14, 0x200000\ns_mov_b32 s15, 0x20000")
            p("s_mov_b32 s24, s70\ns_and_b32 s25, s71, 0xffff\ns_mov_b32 s26, %d\ns_mov_b32 s27, 0x20000" % (1792 * 1024))
            p("s_lshl_b32 s3, s2, 16\ns_lshl_b32 s4, s%d, 14\ns_add_u32 s21, s3, s4\ns_mul_i32 s3, s2, 57344\ns_mul_i32 s4, s%d, 14336\ns_add_u32 s22, s3, s4" % (sWave, sWave))

        s1 = 16 + 4 * g; s2 = s1 + 1
        for r in range(32):
            x = 116 + 32 * g + r; c = r & 1
            p("v_dot2_f32_bf16 v%d, v%d, s5, %s" % (s1 + 2 * c, x, "v%d" % (s1 + 2 * c) if r > 1 else "0"))
            p("v_dot2_f32_bf16 v%d, v%d, v%d, %s" % (s2 + 2 * c, x, x, "v%d" % (s2 + 2 * c) if r > 1 else "0"))
    for x in nchk: p.add(x)
    p("v_add_f32 v16, v16, v18\nv_add_f32 v17, v17, v19\nv_add_f32 v18, v20, v22\nv_add_f32 v19, v21, v23")
    for mod in ("quad_perm:[1,0,3,2]", "quad_perm:[2,3,0,1]", "row_half_mirror"):
        for r in range(16, 20): p("v_add_f32_dpp v%d, v%d, v%d %s row_mask:0xf bank_mask:0xf" % (r, r, r, mod))
    ops = [[], []]
    for g in range(2):
        S1 = 16 + 2 * g; S2 = S1 + 1; o = 20 + 4 * g
        ops[g] = ["v_mul_f32 v%d, %s, v%d" % (S1, hex(f2u(1.0 / 512)), S1), "v_mul_f32 v%d, %s, v%d" % (S2, hex(f2u(1.0 / 512)), S2),
                  "v_fma_f32 v%d, -v%d, v%d, v%d" % (S2, S1, S1, S2), "v_max_f32 v%d, 0, v%d" % (S2, S2),
                  "v_cvt_pk_bf16_f32 v%d, v%d, v%d" % (S2, S2, S2), "v_and_b32 v%d, 0xffff0000, v%d" % (S2, S2),
                  "v_add_f32 v%d, %s, v%d" % (S2, hex(f2u(1e-5)), S2),
                  "v_cvt_pk_bf16_f32 v%d, v%d, v%d" % (S2, S2, S2), "v_and_b32 v%d, 0xffff0000, v%d" % (S2, S2),
                  "v_sqrt_f32 v%d, v%d" % (S2, S2), "v_mov_b32 v%d, s%d" % (o + 1, sTag),
                  "v_cvt_pk_bf16_f32 v%d, -v%d, v%d" % (o, S1, S2)]
    p("v_cmp_eq_u32 vcc, 0, v13\nv_lshlrev_b32 v12, 3, v12\nv_add_u32 v12, %d, v12\nv_mov_b32 v14, 0x80000000\nv_cndmask_b32 v12, v14, v12, vcc" % WS_ST)
    for x0, x1 in zip(*ops): p(x0); p(x1)
    p("buffer_store_dwordx2 v[20:21], v12, %s, 0 offen sc1" % S4(sWS), vm="pub")
    p("buffer_store_dwordx2 v[24:25], v12, %s, 0 offen offset:64 sc1" % S4(sWS), vm="pub")
    stamp(p, "a.stats", opts)
    tW = ["buffer_load_dword v28, v10, s[24:27], s22 offen\ns_add_u32 s22, s22, 6144", "buffer_load_dword v28, v10, s[24:27], s22 offen"]
    tK = ["buffer_load_dword v28, v10, s[12:15], s21 offen\ns_add_u32 s21, s21, 8192", "buffer_load_dword v28, v10, s[12:15], s21 offen"]
    WM = opts.get("warm", 1)
    tq_ = {0: [], 1: tW + tK, 2: tW, 3: tK + tW, 4: tW + tK}[WM]
    p("s_barrier")
    seq(p, kv_loads(opts) + hk_loads(opts))
    if WM == 4: p(tq_.pop(0), vm="warm")
    for x in phase2_srds(): p.add(x)
    p.wait(vm="hk")
    p("s_barrier")
    for _ in range(opts.get("warm1", 1)):
        if tq_: p(tq_.pop(0), vm="warm")
    for x in kv_compute() + kv_stores(): p.add(x)
    stamp(p, "a.kv", opts)
    seq(p, hk_build())
    if tq_ and opts.get("warm2", 1): p(tq_.pop(0), vm="warm")
    p.wait(vm="kvst", lg="*")
    p.add(flag_store(sFlK))
    stamp(p, "a.kvfl", opts)
    for x in tq_: p(x, vm="warm")
    stamp(p, "a.warm", opts)
    p("s_lshl_b32 s3, s2, 7\ns_add_u32 s%d, s3, %d" % (sFlH, WS_FD))
    for x in fl0_setup(): p.add(x)
    p("s_barrier")
    for mt in range(4): p("v_add_u32 v%d, 0x20000, v%d" % (uTR2 + mt, uTR + mt))
    prev = {7: 0, 8: 1, 9: 2}
    for t in sorted(opts["_ord"]):
        if t in prev:
            p.wait(vm="w%d" % prev[t])
            for x in wd_reads(prev[t], True): p.add(x)
            p.wait(lg="*")
        seq(p, wd_loads(t, opts))
    for s in range(14): p("s_lshr_b32 s%d, s%d, 5" % (sTab + s, sTabW + s))
    kvpoll = [mk("buffer_load_dwordx2 v[%d:%d], v%d, %s, 0 offen sc1" % (uPoll, uPoll + 1, uFK, S4(sWS)), vm="kvp")]
    p.add(kvpoll[0])
    p.wait(vm="kvp")
    for x in poll_check("kva", [uPoll], kvpoll): p.add(x)
    seq(p, conv_xr())
    p("s_waitcnt vmcnt(0)")
    stamp(p, "a.pre", opts)

def pollf(t, opts):
    if opts["pollf"] == "atom":
        m = re.match(r"buffer_load_dwordx2 v\[(\d+):(\d+)\], (.*) sc1", t)
        if not m: return t
        return "v_mov_b32 v%s, 0\nv_mov_b32 v%s, 0\nbuffer_atomic_add_x2 v[%s:%s], %s sc0 sc1" % (m.group(1), m.group(2), m.group(1), m.group(2), m.group(3))
    return t.replace(" sc1", " " + opts["pollf"].replace("+", " "))
def emit(a, lines):
    for l in lines: a(l if l.endswith(":") else "  " + l)

def build(opts):
    del SLOW[:]
    if "rho" in opts: RHO[:] = [int(c) for c in str(opts["rho"]).rjust(3, "0")]
    PROF[0] = opts.get("prof", 0); SLEEP['*'] = opts.get("sleep", 8)
    name = KN + "_kernel"
    a = A()
    a(header(["; @launch grid=(256,1,1) block=(256,1,1) lds=163840"]))
    a(kernel_begin(name))
    a("s_load_dwordx8 s[80:87], s[0:1], 0\ns_load_dwordx16 s[60:75], s[0:1], 32\ns_load_dwordx2 s[76:77], s[0:1], 96")
    a("s_cmp_ge_u32 s2, 256\ns_cbranch_scc1 L_end")
    if opts.get("prof"):
        a("s_memrealtime s[78:79]\ns_memtime s[100:101]\nv_mov_b32 v255, 0\ns_waitcnt lgkmcnt(0)\nv_writelane_b32 v255, s100, 0\nv_writelane_b32 v255, s78, 62")
    p0 = Prog(); common_setup(p0, opts); c0 = p0.resolve()
    a("s_cmp_ge_u32 s2, 32\ns_cbranch_scc1 L_gemm")
    if opts.get("ipf", 1):
        a("s_getpc_b64 s[4:5]\nv_lshlrev_b32 v1, 7, v0\ns_and_b32 s4, s4, 0xffffff00\nv_min_u32 v1, L_code_end-%s-128, v1\nglobal_load_dword v200, v1, s[4:5]" % name)
    a("s_branch L_aux")
    a.label("L_gemm")
    emit(a, c0)
    p = Prog(); gemm1(p, opts); p.label("L_phase2"); phase2(p, opts)
    pa = Prog(); aux(pa, opts)
    for q in (p, pa):
        if opts.get("x_nochk"): q.ins = [y for y in q.ins if not ("s_cbranch_vccnz L_slow" in y.t)]
        if opts.get("x_nost"): q.ins = [y for y in q.ins if not (y.t.startswith("buffer_store") and "sc1" in y.t)]
        if opts.get("x_nofl"): q.ins = [y for y in q.ins if not (y.t.startswith("buffer_store_dwordx2") and "v[6:7]" in y.t)]
        if opts.get("x_nokv"): q.ins = [y for y in q.ins if not (y.vm in ("kv", "hk") and y.kind != "wait")]
        if opts.get("pollf"):
            for y in q.ins:
                if y.vm in ("kvp", "hpA", "hpB", "yp", "wfp") and y.t.startswith("buffer_load"): y.t = pollf(y.t, opts)
        if opts.get("x_nopoll"): q.ins = [y for y in q.ins if not (y.vm in ("rec", "kvp", "hpA", "hpB", "yp", "wfp") and y.kind != "wait")]
    lines = p.resolve()
    la = pa.resolve()
    pr = check_hazards(lines, "main") + check_hazards(la, "aux")
    for x in pr[:40]: print("HAZARD", x, file=sys.stderr)
    if pr: raise SystemExit("hazards")
    emit(a, lines)
    if opts.get("prof"):
        a("s_waitcnt vmcnt(0) lgkmcnt(0)\ns_memtime s[100:101]\ns_memrealtime s[78:79]\ns_load_dwordx2 s[4:5], s[0:1], 96\ns_waitcnt lgkmcnt(0)")
        a("v_writelane_b32 v255, s100, 60\nv_writelane_b32 v255, s78, 63\ns_getreg_b32 s100, hwreg(HW_REG_XCC_ID)\nv_writelane_b32 v255, s100, 61")
        a("s_lshl_b32 s6, s2, 10\ns_lshl_b32 s7, s%d, 8\ns_add_u32 s6, s6, s7\ns_add_u32 s6, s6, 0x1000000\ns_add_u32 s4, s4, s6\ns_addc_u32 s5, s5, 0" % sWave)
        a("v_lshlrev_b32 v2, 2, v1\nglobal_store_dword v2, v255, s[4:5]\ns_waitcnt vmcnt(0)")
        a("; STAMPS " + " ".join(STAMPS))
        a("; SPINS " + " ".join(SPINS))
    a.label("L_end")
    a("s_endpgm")
    a.label("L_aux")
    emit(a, c0)
    emit(a, la)
    a("s_branch L_phase2")
    for t in SLOW:
        if opts.get("pollf"): t = "\n".join(pollf(l, opts) if (l.startswith("buffer_load_dwordx2 v[25") or l.startswith("buffer_load_dwordx2 v[2:3]") or l.startswith("buffer_load_dwordx4 v[250")) else l for l in t.split("\n"))
        a(t)
    a.label("L_code_end")
    a(RODATA)
    a(kernel_desc(name, 512, 102, 256))
    return a.text()

if __name__ == "__main__":
    opts = {}
    for kv in sys.argv[2:]:
        k, _, v = kv.partition("=")
        opts[k] = int(v) if v.lstrip("-").isdigit() else (v if v else 1)
    for k in ("fw", "fx", "fd", "fk", "fkv", "fo", "fr"):
        if k in opts: opts[k] = "" if opts[k] == "none" else " " + opts[k].replace("+", " ")
    open(sys.argv[1], "w").write(build(opts))
```

```python
import sys, struct, re
from asmlib import *
from sched import *

WS_H  = 0x000000
WS_XR = 0x700000
WS_YT = 0x900000
WS_ST = 0xB00000
WS_FK = 0xB08000
WS_FH = 0xB10000
WS_FY = 0xB18000
WS_FD = 0xB20000
WS_FL = 0x20000
WS_CS = 0xB48000
WS_SZ = 0xC00000
LOG2E = 1.4426950408889634
SPIN_MAX = 1 << 16

def f2u(x): return struct.unpack("<I", struct.pack("<f", x))[0]
def vr(b, n=4, p="v"): return "%s[%d:%d]" % (p, b, b + n - 1) if n > 1 else "%s%d" % (p, b)
def S4(b): return "s[%d:%d]" % (b, b + 3)
def srd(p, d, lo, size):
    p("s_mov_b32 s%d, s%d\ns_and_b32 s%d, s%d, 0xffff\ns_mov_b32 s%d, 0x%x\ns_mov_b32 s%d, 0x20000" % (d, lo, d + 1, lo + 1, d + 2, size, d + 3))
def ml(t, **kw): return [mk(x, **kw) for x in t.split("\n")]
def bundle(t):
    b = I(t, cost=4 * len(t.split("\n"))); b.kind = "bundle"; return b

SLOT = 32768
CONV = 98304; CH_STRIDE = 12928; XR_OFF = 8320
UNIT = [141312, 0, 16384, 32768, 49152, 65536, 81920, 124416]
WUN = {t: t % 7 for t in range(14)}
WUN[5] = 7; PREV = {7: 0, 8: 1, 9: 2, 10: 3, 11: 4, 13: 6}
def wdl(s): return UNIT[WUN[s]]
KVL = 141312
RS = 272; REDW = 32 * RS
RED = [CONV, 0]
YT_L = CONV + 4 * REDW; XCH = CONV
sQ = 8; sW = 12; sWS = 16; sWave = 20; sTB = 21; sCB = 22; sLdsX = 23; sLdsW = 24; sLdsXB = 25; sT0 = 26; sT1 = 27
sHa = 28; sST = 29; sFlK = 30; sDoff = 31; sDbg = 32; sT2 = 34; sT3 = 35; sWd = 36; sHk = 40; sOut = 44; sTag = 48
sXB = 50
sCSw = 52; sTB2 = 53; sDB = 54; sCV = 55; sXRso = 56; sYoff = 57; sFlH = 58; sFlY = 59
sTabW = 60
sHalf = 74; sCh4k = 75; sSpin = 76; sWdL = 77
sDp = 80
sTab = 84
sK = 36; sV = 44; sSh = 64
kSK = 60; kD = 62;
kBX = 64; kWG = 66; kWU = 68; kWD = 70; kOUT = 72; kDBG = 74; kWS = 76; kQ = 80; kK = 82; kV = 84; kSH = 86
vKD = 2
vTag = 6; vFl = 8
vWD = 10; vXD = 14; vXA = 18; vWA = 26; vHoff = 28; vSToff = 29; vCSoff = 30; vL16 = 31; vNon = 32
vKA = 36; vKO = 37; vSH = 38
vR1A = 40; vR1B = 44; vOnes = 44; vST = 52; vXF = 84; vACC = 116; vTMP = 212; vOUT = 220
vCSR = 180; vCSA = 196
uWD = 228; uH = 232; uTR = 236; uCA = 240; uCB = 241; uYst = 242; uFY = 243; uX = 244; uSto = 245; uFH = 246; uFK = 247
uHead = 248; uHeadA = 249; uPoll = 250; uD = 254
uAD = 40; uTmp = 32; uXin = 44; uSt = 52; uCacc = 184; uAcc = 120
vCF = 56; aH = 0
def wfrag(s, mt):
    if s < 8: return "a", 128 + 16 * s + 4 * mt
    if s < 10: return "v", 184 + 16 * (s - 8) + 4 * mt
    return "v", 56 + 16 * (s - 10) + 4 * mt

STAMPS = ["start"]
def stamp_l(name, opts, lvl=1):
    if not opts.get("prof") or opts.get("plvl", 1) == 0 or (lvl > 1 and lvl != opts.get("plvl", 1)): return []
    if name not in STAMPS: STAMPS.append(name)
    idx = STAMPS.index(name)
    assert idx < 48
    return ml("s_memtime s[100:101]\ns_waitcnt lgkmcnt(0)\nv_writelane_b32 v255, s100, %d" % idx, cost=0)
def stamp(p, name, opts, lvl=1):
    for x in stamp_l(name, opts, lvl): p.add(x)

def acc_of(t): return vACC + 16 * {0: 0, 1: 1, 2: 2, 3: 3, 4: 4, 5: 5, 6: 0, 7: 1}[t]
def win(addr): return addr >> 16, addr & 0xffff
def dma(v, srd_, so, off, tag, fl=""):
    return mk("buffer_load_dwordx4 v%d, %s, %s offen offset:%d%s lds" % (v, S4(srd_), so, off, fl), vm=tag)
def is_m0(x): return " m0," in x.t
def is_vm(x): return x.t.startswith("buffer_") or x.t.startswith("global_")
def seq(p, L):
    L = [x for x in L if x.kind != "delay"]
    for i, x in enumerate(L):
        p.add(x)
        if is_m0(x) and i + 1 < len(L) and is_vm(L[i + 1]): p("s_nop 0")
vFl0 = 9
def flag_store(so, wg=False, tag="fl"):
    return mk("buffer_store_dwordx2 v[%d:%d], v%d, %s, s%d offen sc1" % (vTag, vTag + 1, vFl0 if wg else vFl, S4(sWS), so), vm=tag)
def fl0_setup():
    return ml("s_lshl_b32 s6, s%d, 31\ns_lshl_b32 s7, s%d, 30\ns_or_b32 s6, s6, s7\ns_and_b32 s6, s6, 0x80000000\nv_or_b32 v%d, s6, v%d" % (sWave, sWave, vFl0, vFl))

def g1_stage(s, opts):
    L = []; base = (s % 3) * SLOT; tag = "st%d" % s
    fw = opts.get("fw", ""); fx = opts.get("fx", "")
    if s < 8:
        L.append(mk("s_add_u32 m0, s%d, %d" % (sLdsW, base)))
        L += [dma(vWD + j, sW, "s%d" % (sTab + s), j * 1024, tag, fw) for j in range(4)]
        L.append(mk("s_add_u32 m0, s%d, %d" % (sLdsX, base)))
        L += [dma(vXD + j, sQ, "s%d" % (sTab + 8 + s), j * 1024, tag, fx) for j in range(4)]
    else:
        for h in range(2):
            L.append(mk("s_add_u32 m0, s%d, %d" % (sLdsXB, base + h * 4096)))
            L.append(mk("s_add_u32 s%d, s%d, %d" % (sT0 + h, sXB + h, (s - 8) * 32768)))
            L += [dma(vXD + j, sQ, "s%d" % (sT0 + h), j * 1024, tag, fx) for j in range(4)]
    return L
def wd_loads(s, opts):
    return [mk("s_add_u32 m0, s%d, %d" % (sWdL, wdl(s)))] + \
           [dma(uWD + j, sWd, "s%d" % (sTabW + s), j * 1024, "w%d" % s, opts.get("fd", "")) for j in range(4)]
def h_loads(hs):
    ps, s = divmod(hs, 14)
    L = []
    for e in range(2):
        r = aH + 8 * (hs % 16) + 4 * e
        L.append(mk("buffer_load_dwordx4 a[%d:%d], v%d, %s, s%d offen sc1" % (r, r + 3, uH + 2 * ps + e, S4(sWS), sTab + s), vm="h%d" % hs))
    return L
HI = {1: 216, 2: 220}
uTR2 = 2
def wd_reads(s, inB=False):
    L = []
    w, off = win(wdl(s))
    for mt in range(4):
        k, b = wfrag(s, mt)
        reg = uTR + mt if w == 0 else (uTR2 + mt if inB else HI[w] + mt)
        L.append(mk("ds_read_b64_tr_b16 %s[%d:%d], v%d offset:%d" % (k, b, b + 1, reg, off), lg="t%d" % s))
        L.append(mk("ds_read_b64_tr_b16 %s[%d:%d], v%d offset:%d" % (k, b + 2, b + 3, reg, off + 512), lg="t%d" % s))
    return L
def hk_loads(opts):
    L = ml("s_lshl_b32 s6, s%d, 11\ns_add_u32 m0, s6, s%d\ns_add_u32 m0, m0, 32" % (sHalf, sCV))
    L += [dma(vL16, sHk, "s6", j * 1024, "hk", opts.get("fk", "")) for j in range(2)]
    L.append(mk("buffer_load_ushort v%d, v%d, %s, 0 offen" % (uHead, uHead, S4(sHk)), vm="hk"))
    L.append(mk("buffer_load_ushort v%d, off, %s, s%d" % (uD, S4(sDp), sDoff), vm="hk"))
    return L
def delay(n):
    d = I("; delay", cost=0); d.kind = "delay"; d.vm = n; return d
def hk_build(alt=0):
    D = [212, 213, 214, 215, 216, 217]; E1 = 220; E3 = 224; C2 = 52
    if alt: D = [10, 11, 12, 13, 26, 27]; E1 = 32; E3 = 32; C2 = 32
    L = ml("s_lshl_b32 s5, s%d, 11\ns_add_u32 s5, s5, s%d\nv_add_u32 v39, s5, v%d\nds_write_b16 v%d, v%d" % (sHalf, sCV, vL16, uHeadA, uHead))
    for j in range(2):
        o = 32 + j * 1024
        L.append(mk("ds_read_b128 %s, v39 offset:%d" % (vr(D[0]), o), lg="hb"))
        L.append(mk("ds_read_b32 v%d, v39 offset:%d" % (D[4], o + 16), lg="hb"))
        L += [delay(5), W(lg="hb")]
        L += [mk("v_alignbit_b32 v%d, v%d, v%d, 16" % (E1 + i, D[i + 1], D[i])) for i in range(4)]
        L += [delay(1), mk("ds_write_b128 v39, %s offset:%d" % (vr(E1), o + 4160), cost=12), delay(2)]
    return L
def conv_xr():
    L = ml("s_lshl_b32 s7, s%d, 10\ns_add_u32 m0, s7, %d" % (sWave, CONV + XR_OFF))
    L += [dma(vL16, sWS, "s%d" % sXRso, 0, "cv", " sc1")]
    L += ml("s_add_u32 s%d, s%d, 4096\ns_add_u32 m0, s7, %d" % (sXRso, sXRso, CONV + CH_STRIDE + XR_OFF))
    L += [dma(vL16, sWS, "s%d" % sXRso, 0, "cv", " sc1")]
    return L
CAR = [uCA, 10, 11, 12]
def conv_reads(rr):
    L = []; b = vCF + 64 * (rr & 1)
    for i in range(8):
        a = b + 4 * i; t = "c%d_%d" % (rr, i)
        ar = CAR[i >> 1]; o = 16 * rr + 128 * (i & 1)
        L.append(mk("ds_read2_b32 v[%d:%d], v%d offset0:%d offset1:%d" % (a, a + 1, ar, o, o + 1), lg=t))
        L.append(mk("ds_read2_b32 v[%d:%d], v%d offset0:%d offset1:%d" % (a + 2, a + 3, ar, o + 2, o + 3), lg=t))
        L.append(mk("ds_read_b128 v[%d:%d], v%d offset:%d" % (a + 32, a + 35, uCB, 3584 - 512 * i + 64 * rr), lg=t))
    return L

def kv_setup(p):
    p("s_lshr_b32 s3, s2, 3\ns_lshl_b32 s3, s3, 16\ns_and_b32 s4, s2, 7\ns_lshl_b32 s5, s4, 7\ns_add_u32 s5, s5, s3")
    p("v_lshrrev_b32 v9, 3, v1\nv_and_b32 v%d, 7, v1\nv_lshlrev_b32 v%d, 4, v%d\nv_lshl_add_u32 v%d, v9, 10, v%d" % (vSH, vKD, vSH, vKD, vKD))
    p("s_add_u32 s6, s5, %d\nv_add_u32 v%d, s6, v%d" % (56 * 1024, vKD + 2, vKD))
    p("s_lshl_b32 s6, s%d, 14\ns_add_u32 s5, s5, s6\nv_add_u32 v%d, s5, v%d" % (sWave, vKD + 1, vKD))
    p("v_add_u32 v%d, 0xffffe000, v%d\nv_add_u32 v%d, %d, v%d" % (vKD, vKD + 1, vKD + 3, 8192 - 1056, vKD + 1))
    p("s_lshl_b32 s6, s%d, 5\ns_add_u32 s6, s6, %d\nv_mul_u32_u24 v%d, 1056, v9\nv_lshl_add_u32 v%d, v%d, 2, v%d\nv_add_u32 v%d, s6, v%d" % (sWave, KVL, vKA, vKA, vSH, vKA, vKA, vKA))
    p("s_lshl_b32 s6, s4, 18\ns_lshl_b32 s7, s%d, 16\ns_add_u32 s6, s6, s7\ns_lshr_b32 s7, s3, 9\ns_sub_u32 s6, s6, s7\ns_add_u32 s6, s6, %d" % (sWave, WS_XR + 4080))
    p("v_lshlrev_b32 v%d, 13, v%d\nv_lshlrev_b32 v9, 4, v9\nv_sub_u32 v%d, v%d, v9\nv_add_u32 v%d, s6, v%d" % (vKO, vSH, vKO, vKO, vKO, vKO))
    p("s_lshl_b32 s6, s4, 9\ns_lshl_b32 s7, s%d, 7\ns_add_u32 s6, s6, s7\nv_lshl_add_u32 v%d, v%d, 4, s6" % (sWave, vSH, vSH))
    p("s_lshl_b32 s6, s2, 7\ns_lshl_b32 s7, s%d, 3\ns_add_u32 s6, s6, s7\ns_add_u32 s%d, s6, %d" % (sWave, sFlK, WS_FK))
    srd(p, sK, kK, 2048 * 1024); srd(p, sV, kV, 2048 * 1024); srd(p, sSh, kSH, 4096)
def kv_loads(opts):
    f = opts.get("fkv", " nt")
    L = ml("s_mul_i32 s6, s%d, 2112\ns_add_u32 s6, s6, %d\ns_mov_b32 m0, s6" % (sWave, KVL))
    L += [dma(vKD, sK, "0", 0, "kv", f), mk("s_add_u32 m0, s6, 1056"), dma(vKD + 1, sK, "0", 0, "kv", f),
          mk("s_mov_b32 m0, %d" % (KVL + 8 * 1056)), dma(vKD + 2, sK, "0", 0, "kv", f),
          mk("s_add_u32 m0, s6, %d" % (9 * 1056)), dma(vKD + 1, sV, "0", 0, "kv", f), dma(vKD + 3, sV, "0", 1056, "kv", f),
          mk("buffer_load_dwordx4 v[72:75], v%d, %s, 0 offen" % (vSH, S4(sSh)), vm="kv")]
    return L
def kv_compute():
    RK = 52; RV = 63; Wt = 76; K = 212; A = 223; V = 225
    L = []
    for j in range(11): L.append(mk("ds_read_b32 v%d, v%d offset:%d" % (RK + j, vKA, (5 + j) * 128 if j < 3 else 1056 + (j - 3) * 128), lg="kvr"))
    for t in range(8): L.append(mk("ds_read_b32 v%d, v%d offset:%d" % (RV + t, vKA, 9 * 1056 + t * 128), lg="kvr"))
    un = lambda d, s_, hi: mk(("v_and_b32 v%d, 0xffff0000, v%d" if hi else "v_lshlrev_b32 v%d, 16, v%d") % (d, s_))
    for e in range(2):
        for i in range(4): L.append(un(Wt + 4 * e + i, 72 + 2 * e + (i >> 1), i & 1))
    L.append(W(lg="kvr"))
    for e in range(2):
        o = (vNon, uPoll)[e]
        for j in range(11): L.append(un(K + j, RK + j, e))
        for t in range(8):
            a = A + (t & 1)
            L.append(mk("v_mul_f32 v%d, v%d, v%d" % (a, K + t, Wt + 4 * e + 3)))
            L.append(un(V, RV + t, e))
            for i in (2, 1, 0): L.append(mk("v_fmac_f32 v%d, v%d, v%d" % (a, K + t + 3 - i, Wt + 4 * e + i)))
            L.append(mk("v_mul_f32 v%d, v%d, v%d" % (a, a, V)))
            if t & 1: L.append(mk("v_cvt_pk_bf16_f32 v%d, v%d, v%d" % (o + 3 - (t >> 1), A + 1, A)))
    return L
def kv_stores():
    return [mk("s_mov_b32 s%d, 4096" % sT2),
            mk("buffer_store_dwordx4 %s, v%d, %s, 0 offen sc1" % (vr(vNon), vKO, S4(sWS)), vm="kvst"),
            mk("buffer_store_dwordx4 %s, v%d, %s, s%d offen sc1" % (vr(uPoll), vKO, S4(sWS), sT2), vm="kvst")]

SLOW = []
SPINS = []
SLEEP = {'*': 8, 'kva': 16, 'ng': 4, 'na': 4}
PROF = [0]
def spin(name, reload_, test, okbr):
    t = ["L_slow_%s:" % name, "s_mov_b32 s%d, 1" % sSpin, "L_spin_%s:" % name, "s_sleep %d" % SLEEP.get(name, SLEEP['*'])]
    if PROF[0]:
        SPINS.append(name); t.append("v_writelane_b32 v255, s%d, %d" % (sSpin, 47 + len(SPINS)))
    t += [x.t for x in reload_] + ["s_waitcnt vmcnt(0)"] + [x.t for x in test]
    t += ["%s L_ok_%s" % (okbr, name), "s_add_u32 s%d, s%d, 1" % (sSpin, sSpin), "s_cmp_lt_u32 s%d, %d" % (sSpin, SPIN_MAX),
          "s_cbranch_scc1 L_spin_%s" % name, "s_branch L_ok_%s" % name]
    SLOW.append("\n".join(t))
def poll_check(name, regs, reload_, bits=64):
    L = []
    for i, r in enumerate(regs):
        op = "v_cmp_ne_u64 %%s, s[%d:%d], v[%d:%d]" % (sTag, sTag + 1, r, r + 1) if bits == 64 else "v_cmp_ne_u32 %%s, s%d, v%d" % (sTag, r)
        if i == 0: L.append(mk(op % "vcc"))
        else: L += ml(op % "s[4:5]" + "\ns_or_b64 vcc, vcc, s[4:5]")
    spin(name, reload_, L, "s_cbranch_vccz")
    return L + [mk("s_cbranch_vccnz L_slow_%s" % name), I("L_ok_%s:" % name, kind="label", cost=0)]
def nonce_get(name):
    ld = mk("global_load_dwordx2 v[%d:%d], v%d, s[%d:%d] sc1" % (vNon, vNon + 1, vNon + 2, sDbg, sDbg + 1), vm="non")
    t = ml("v_readfirstlane_b32 s%d, v%d\nv_readfirstlane_b32 s%d, v%d\ns_cmp_lg_u32 s%d, 0" % (sTag, vNon, sTag + 1, vNon + 1, sTag))
    spin(name, [ld], t, "s_cbranch_scc1")
    chk = t[:2] + [bundle(t[2].t + "\ns_cbranch_scc0 L_slow_%s" % name), I("L_ok_%s:" % name, kind="label", cost=0)]
    chk += ml("v_mov_b32 v%d, v%d\nv_mov_b32 v%d, v%d" % (vTag, vNon, vTag + 1, vNon + 1))
    return ld, chk

def g1_epilogue(tile, opts):
    A0 = acc_of(tile)
    c4 = vST + 4 * tile + 1; c1 = vST + 4 * tile + 2
    g = [A0 + (p >> 2) * 8 + (p & 3) for p in range(8)]
    u = [x + 4 for x in g]
    o = vOUT + 4 * (tile & 1)
    st = []
    for p in range(8):
        t = vTMP + p
        st.append([mk("v_mul_f32 v%d, v%d, v%d" % (g[p], g[p], c1)), mk("v_exp_f32 v%d, v%d" % (t, g[p])),
                   mk("v_mul_f32 v%d, v%d, v%d" % (u[p], g[p], u[p])), mk("v_fma_f32 v%d, v%d, v%d, v%d" % (t, t, c4, c4)),
                   mk("v_rcp_f32 v%d, v%d" % (t, t)), mk("v_mul_f32 v%d, v%d, v%d" % (u[p], u[p], t))])
    R = []; pend = []
    for step in range(18):
        for k in (5, 4, 3, 2, 1, 0):
            p = step - 2 * k
            if 0 <= p < 8:
                R.append(st[p][k])
                for q in pend: R.append(mk("v_cvt_pk_bf16_f32 v%d, v%d, v%d" % (o + (q >> 1), u[q - 1], u[q])))
                pend = [p] if (k == 5 and p & 1) else []
    for q in pend: R.append(mk("v_cvt_pk_bf16_f32 v%d, v%d, v%d" % (o + (q >> 1), u[q - 1], u[q])))
    R.append(mk("s_add_u32 s%d, s%d, %d" % (sT3, sHa, tile * 2 * 56 * 1024)))
    if not opts.get("x_nohst"): R.append(mk("buffer_store_dwordx4 %s, v%d, %s, s%d offen%s" % (vr(o), vHoff, S4(sWS), sT3, "" if opts.get("x_hplain") else " sc1"), vm="hst%d" % tile))
    return R

def common_setup(p, opts):
    p("v_and_b32 v1, 63, v0\nv_lshrrev_b32 v2, 6, v0\nv_lshlrev_b32 v%d, 4, v1\nv_readfirstlane_b32 s%d, v2" % (vL16, sWave))
    p("v_lshrrev_b32 v2, 3, v1\nv_and_b32 v3, 7, v1\nv_lshrrev_b32 v9, 4, v1\nv_mov_b32 v%d, 0" % (vNon + 2))

def phase2_setup(p, opts):
    q, n, a, b, c, d = 40, 41, 42, 43, 44, 45
    p("s_and_b32 s3, s2, 7\ns_lshr_b32 s4, s2, 3\ns_lshl_b32 s3, s3, 2\ns_and_b32 s5, s4, 3\ns_add_u32 s%d, s3, s5\ns_lshr_b32 s%d, s4, 2" % (sTB2, sDB))
    if opts.get("dbx", 3): p("s_xor_b32 s%d, s%d, %d" % (sDB, sDB, opts.get("dbx", 3)))
    p("v_lshrrev_b32 v%d, 4, v1\nv_and_b32 v%d, 15, v1" % (q, n))
    p("v_lshrrev_b32 v%d, 3, v1\nv_and_b32 v%d, 7, v1\nv_and_b32 v%d, 1, v%d\nv_lshlrev_b32 v%d, 1, v%d\nv_xor_b32 v%d, v%d, v%d" % (a, b, c, q, c, c, c, c, b))
    p("s_lshl_b32 s7, s%d, 7\ns_mul_i32 s5, s%d, %d\ns_add_u32 s7, s7, s5" % (sDB, sWave, 448 * 1024))
    p("v_lshlrev_b32 v%d, 4, v%d\nv_lshl_add_u32 v%d, v%d, 10, v%d\nv_add_u32 v%d, s7, v%d\nv_xor_b32 v%d, 64, v%d" % (c, c, c, a, c, uWD, c, c, uWD))
    p("v_add_u32 v%d, 7168, v%d\nv_add_u32 v%d, 14336, v%d\nv_add_u32 v%d, 21504, v%d" % (uWD + 1, c, uWD + 2, uWD, uWD + 3, c))
    p("s_lshr_b32 s5, s%d, 2\ns_lshl_b32 s5, s5, 4\ns_and_b32 s6, s%d, 3\ns_lshl_b32 s6, s6, 1\ns_add_u32 s6, s5, s6" % (sTB2, sTB2))
    p("s_mul_i32 s5, s6, 57344\ns_mul_i32 s7, s%d, 14336\ns_add_u32 s5, s5, s7\nv_add_u32 v%d, s5, v%d" % (sWave, uH, vL16))
    p("v_add_u32 v%d, 57344, v%d\nv_add_u32 v%d, %d, v%d\nv_add_u32 v%d, %d, v%d" % (uH + 1, uH, uH + 2, 8 * 57344, uH, uH + 3, 9 * 57344, uH))
    p("s_lshl_b32 s5, s6, 4\ns_lshl_b32 s7, s%d, 3\ns_add_u32 s5, s5, s7\nv_lshrrev_b32 v%d, 5, v1\nv_and_b32 v%d, 3, v1\nv_lshl_add_u32 v%d, v%d, 2, v%d\nv_add_u32 v%d, s5, v%d" % (sWave, c, d, c, c, d, c, c))
    p("v_bfe_u32 v%d, v1, 2, 3\nv_lshlrev_b32 v%d, 4, v%d\nv_lshl_add_u32 v%d, v%d, 10, v%d\ns_lshl_b32 s7, s%d, 7\nv_add_u32 v%d, s7, v%d" % (d, d, d, d, c, d, sDB, uX, d))
    p("v_lshlrev_b32 v%d, 3, v%d\nv_add_u32 v%d, %d, v%d" % (c, c, uSto, WS_ST, c))
    p("v_bfe_u32 v%d, v1, 2, 2\nv_and_b32 v%d, 3, v1\nv_lshrrev_b32 v%d, 1, v%d\nv_and_b32 v%d, 1, v%d\nv_lshl_add_u32 v%d, v%d, 1, v%d" % (a, b, c, a, d, q, c, d, c))
    p("v_lshl_add_u32 v%d, v%d, 3, v%d\nv_lshlrev_b32 v%d, 7, v%d\nv_lshl_add_u32 v%d, v%d, 3, v%d\nv_add_u32 v%d, s%d, v%d" % (a, q, a, a, a, a, b, a, a, sWdL, a))
    p("v_lshl_add_u32 v%d, v%d, 5, v%d" % (uTR, c, a))
    for mt in range(1, 4): p("v_xor_b32 v%d, %d, v%d" % (uTR + mt, 32 * mt, uTR))
    p("v_add_u32 v%d, 1, v%d\nv_and_b32 v%d, 1, v%d\nv_sub_u32 v%d, v%d, v%d\nv_lshl_add_u32 v%d, v%d, 3, v%d\nv_lshlrev_b32 v%d, 1, v%d" % (a, n, b, a, a, a, b, a, q, a, a, a))
    p("v_mul_u32_u24 v%d, 4160, v%d\ns_lshl_b32 s7, s%d, 8\ns_add_u32 s7, s7, s%d\nv_add3_u32 v%d, v%d, v%d, s7" % (b, b, sHalf, sCV, uCA, a, b))
    p("v_lshlrev_b32 v%d, 5, v%d\nv_lshlrev_b32 v%d, 4, v%d\nv_sub_u32 v%d, v%d, v%d\ns_add_u32 s7, s7, %d\nv_add_u32 v%d, s7, v%d" % (a, n, b, q, a, b, a, XR_OFF + 480, uCB, a))
    p("v_and_b32 v%d, 1, v%d\nv_mul_u32_u24 v%d, 4160, v%d\nv_lshl_add_u32 v%d, v%d, 1, v%d\nv_add_u32 v%d, s%d, v%d" % (a, q, a, a, a, n, a, uHeadA, sCV, a))
    p("v_mov_b32 v46, 0\nv_mov_b32 v47, 0\nv_lshlrev_b32 v%d, 3, v1\ns_add_u32 s7, s%d, %d\nv_add_u32 v%d, s7, v%d" % (a, sCV, XR_OFF + 4096, a, a))
    p("ds_write_b64 v%d, v[46:47]" % a)
    p("v_and_b32 v%d, 2, v%d\nv_lshlrev_b32 v%d, 3, v%d\nv_lshl_add_u32 v%d, v%d, 5, v%d\nv_and_b32 v%d, 1, v%d\nv_lshl_add_u32 v%d, v%d, 9, v%d" % (a, q, a, a, a, n, a, b, q, uYst, b, a))
    p("s_lshl_b32 s7, s%d, 11\ns_add_u32 s7, s7, s%d\ns_add_u32 s%d, s7, %d" % (sHalf, sCh4k, sYoff, WS_YT))
    p("s_lshl_b32 s7, s2, 13\ns_lshl_b32 s3, s%d, 10\ns_add_u32 s7, s7, s3\ns_add_u32 s%d, s7, %d" % (sWave, sXRso, WS_XR))
    p("s_lshl_b32 s7, s2, 7\ns_add_u32 s%d, s7, %d" % (sFlY, WS_FY))
    p("v_and_b32 v%d, 7, v1\nv_lshlrev_b32 v%d, 7, v%d" % (a, a, a))
    p("s_lshl_b32 s7, s%d, 12\ns_lshl_b32 s3, s%d, 10\ns_add_u32 s7, s7, s3\ns_add_u32 s7, s7, %d\nv_add_u32 v%d, s7, v%d" % (sDB, sWave, WS_FY, uFY, a))
    p("v_min_u32 v%d, 6, v1\nv_lshlrev_b32 v%d, 7, v%d" % (a, a, a))
    p("s_lshr_b32 s7, s%d, 2\ns_lshl_b32 s7, s7, 5\ns_mul_i32 s3, s%d, 7\ns_add_u32 s7, s7, s3\ns_lshl_b32 s7, s7, 7\ns_add_u32 s7, s7, %d\nv_add_u32 v%d, s7, v%d" % (sTB2, sWave, WS_FH, uFH, a))
    p("v_and_b32 v%d, 7, v1\nv_lshlrev_b32 v%d, 10, v%d\ns_lshr_b32 s7, s2, 5\ns_lshl_b32 s7, s7, 7\ns_and_b32 s3, s2, 24\ns_add_u32 s7, s7, s3" % (a, a, a))
    p("s_lshl_b32 s3, s%d, 13\ns_sub_u32 s7, s7, s3\ns_add_u32 s7, s7, %d\nv_sub_u32 v%d, s7, v%d" % (sWave, WS_FK + 31 * 1024, uFK, a))
    p("v_cmp_ne_u32 vcc, 0, v1\nv_mov_b32 v%d, 0x80000000\nv_mov_b32 v%d, 0\nv_cndmask_b32 v%d, v%d, v%d, vcc" % (a, b, vFl, b, a))

def hk_srds(p):
    p("s_add_u32 s%d, s60, s%d\ns_addc_u32 s%d, s61, 0\ns_and_b32 s%d, s%d, 0xffff\ns_sub_u32 s%d, 0x200000, s%d\ns_mov_b32 s%d, 0x20000" % (sHk, sCh4k, sHk + 1, sHk + 1, sHk + 1, sHk + 2, sCh4k, sHk + 3))
    srd(p, sDp, kD, 1024)
def ids2(p):
    p("s_lshr_b32 s3, s%d, 1\ns_lshl_b32 s4, s2, 1\ns_add_u32 s4, s4, s3\ns_mul_i32 s%d, s3, %d\ns_add_u32 s%d, s%d, %d" % (sWave, sCV, CH_STRIDE, sCV, sCV, CONV))
    p("s_and_b32 s%d, s%d, 1\ns_lshl_b32 s%d, s4, 12\ns_lshl_b32 s%d, s4, 1\ns_lshl_b32 s%d, s%d, 12" % (sHalf, sWave, sCh4k, sDoff, sWdL, sWave))
    p("v_bfe_u32 v40, v1, 4, 1\nv_and_b32 v41, 15, v1\nv_add_u32 v42, v40, v41\nv_add_u32 v42, -16, v42\nv_lshlrev_b32 v%d, 1, v42" % uHead)
RHO = [2, 4, 1]
def phase2_srds():
    L = []
    for d, lo, size in ((sWd, kWD, 1792 * 1024), (sOut, kOUT, 2048 * 1024)):
        L += ml("s_mov_b32 s%d, s%d\ns_and_b32 s%d, s%d, 0xffff\ns_mov_b32 s%d, 0x%x\ns_mov_b32 s%d, 0x20000" % (d, lo, d + 1, lo + 1, d + 2, size, d + 3))
    L += ml("s_mul_i32 s3, s%d, %d\ns_and_b32 s7, s%d, 3\ns_mul_i32 s7, s7, %d\ns_add_u32 s3, s3, s7\ns_lshr_b32 s7, s%d, 2\ns_mul_i32 s7, s7, %d\ns_add_u32 s3, s3, s7" % (sDB, RHO[0], sTB2, RHO[1], sTB2, RHO[2]))
    L += ml("s_mul_i32 s7, s3, 4682\ns_lshr_b32 s7, s7, 16\ns_mul_i32 s7, s7, 14\ns_sub_u32 s3, s3, s7\ns_lshl_b32 s3, s3, 15")
    for s in range(14):
        L += ml("s_mov_b32 s%d, s3" % (sTabW + s))
        if s < 13: L += ml("s_add_u32 s3, s3, 0x8000") + [bundle("s_cmp_eq_u32 s3, 0x70000\ns_cselect_b32 s3, 0, s3")]
    return L

class Filler:
    def __init__(self, space=2):
        self.vq = []; self.xq = []; self.last = -9; self.space = space
    def v(self, at, L): self.vq += [(at, x) for x in L]
    def x(self, at, L): self.xq += [(at, y) for y in L]
    def fill(self, gi, gap, budget, xbudget=None):
        used = lambda: sum(y.cost for y in gap)
        nv = 0
        for q in (self.vq, self.xq):
            if q and q[0][1].kind == "delay" and q[0][0] <= gi:
                n = q.pop(0)[1].vm
                if q: q[0] = (max(q[0][0], gi + n), q[0][1])
        while self.vq and self.vq[0][0] <= gi and used() + self.vq[0][1].cost <= budget:
            at, y = self.vq[0]
            if y.kind == "delay": break
            if is_vm(y) and y.t.endswith(" lds"):
                lag = gi - at
                if nv >= 1 or (gi - self.last < self.space and lag < 14): break
                nv += 1; self.last = gi
            gap.append(y); self.vq.pop(0)
            if is_m0(y): break
        while self.xq and self.xq[0][0] <= gi and used() + self.xq[0][1].cost <= (xbudget or budget):
            if self.xq[0][1].kind == "delay": break
            gap.append(self.xq.pop(0)[1])

def gemm1(p, opts):
    p("s_sub_u32 s3, s2, 32\ns_and_b32 s4, s3, 7\ns_lshr_b32 s5, s3, 3")
    p("s_and_b32 s6, s4, 1\ns_and_b32 s7, s5, 3\ns_lshl_b32 s34, s7, 1\ns_add_u32 s34, s34, s6\ns_lshl_b32 s6, s6, 2\ns_add_u32 s%d, s6, s7" % sTB)
    p("s_lshr_b32 s6, s4, 1\ns_mul_i32 s6, s6, 7\ns_lshr_b32 s7, s5, 2\ns_add_u32 s7, s7, %d\ns_cmp_ge_u32 s7, 7\ns_cselect_b32 s5, 7, 0\ns_sub_u32 s7, s7, s5\ns_add_u32 s%d, s6, s7" % (opts.get("cbr", 0), sCB)) if opts.get("cbr") else p("s_lshr_b32 s6, s4, 1\ns_mul_i32 s6, s6, 7\ns_lshr_b32 s7, s5, 2\ns_add_u32 s%d, s6, s7" % sCB)
    p("s_add_u32 s34, s34, s%d\ns_and_b32 s34, s34, 7" % sCB)
    p("v_xor_b32 v5, v9, v3\nv_lshlrev_b32 v5, 4, v5\nv_lshl_add_u32 v%d, v2, 10, v5\nv_xor_b32 v5, 64, v%d" % (vXD, vXD))
    p("v_add_u32 v%d, 7168, v5\nv_add_u32 v%d, 14336, v%d\nv_add_u32 v%d, 21504, v5" % (vXD + 1, vXD + 2, vXD, vXD + 3))
    p("s_lshr_b32 s3, s%d, 1\ns_lshl_b32 s3, s3, 2" % sWave)
    p("v_and_b32 v5, 1, v9\nv_lshlrev_b32 v5, 1, v5\nv_xor_b32 v5, s3, v5\nv_xor_b32 v5, v5, v3\nv_lshlrev_b32 v5, 4, v5")
    p("s_and_b32 s4, s%d, 1\ns_mul_i32 s4, s4, %d\ns_lshl_b32 s5, s%d, 7\ns_add_u32 s4, s4, s5" % (sWave, 32 * 3584, sCB))
    p("v_mul_u32_u24 v6, 3584, v2\nv_add3_u32 v%d, v5, v6, s4" % vWD)
    for j in range(1, 4): p("v_add_u32 v%d, %d, v%d" % (vWD + j, j * (8 * 3584 - 1024), vWD))
    p("s_lshl_b32 s35, s%d, 18\ns_lshl_b32 s4, s%d, 15\ns_add_u32 s7, s35, s4" % (sTB, sWave))
    p("s_lshl_b32 s%d, s%d, 12\ns_add_u32 s%d, s%d, 16384" % (sLdsW, sWave, sLdsX, sLdsW))
    p("s_mul_i32 s%d, s34, %d\ns_lshl_b32 s3, s34, 7\ns_add_u32 s%d, s3, s7" % (sTab + 4, 64 * 3584, sTab + 8))
    p("s_waitcnt lgkmcnt(0)")
    srd(p, sQ, kQ, 2048 * 1024)
    p("s_cmp_ge_u32 s%d, 2\ns_cselect_b32 s66, s68, s66\ns_cselect_b32 s67, s69, s67" % sWave)
    srd(p, sW, kWG, 512 * 3584)
    stamp(p, "g.karg", opts, 2)
    st0 = g1_stage(0, opts)
    for x in st0: x.t = x.t.replace("s%d offen" % sTab, "s%d offen" % (sTab + 4))
    seq(p, st0)
    stamp(p, "g.st0", opts, 2)
    p("s_mov_b32 s27, s7")
    srd(p, sWS, kWS, WS_SZ)
    p("s_mov_b32 s%d, s74\ns_mov_b32 s%d, s75" % (sDbg, sDbg + 1))
    kv_setup(p)
    ids2(p); hk_srds(p)
    for s in range(1, 8):
        p("s_add_u32 s3, s34, %d\ns_and_b32 s3, s3, 7\ns_mul_i32 s%d, s3, %d\ns_lshl_b32 s3, s3, 7\ns_add_u32 s%d, s3, s27" % (s, sTab + s, 64 * 3584, sTab + 8 + s))
    p("s_lshl_b32 s%d, s%d, 13\ns_add_u32 s6, s35, 0x20000" % (sLdsXB, sWave))
    for h in range(2):
        p("s_lshl_b32 s3, s%d, 1\ns_add_u32 s3, s3, s34\ns_add_u32 s3, s3, %d\ns_and_b32 s3, s3, 7\ns_lshl_b32 s3, s3, 7\ns_add_u32 s%d, s3, s6" % (sWave, h, sXB + h))
    p("s_lshl_b32 s3, s%d, 1\ns_lshr_b32 s4, s%d, 1\ns_add_u32 s3, s3, s4\ns_lshl_b32 s3, s3, 10\ns_mul_i32 s4, s%d, %d\ns_add_u32 s%d, s3, s4" % (sCB, sWave, sTB, 16 * 57344, sHa))
    p("s_lshl_b32 s4, s%d, 11\ns_add_u32 s%d, s4, %d" % (sTB, sST, WS_ST))
    p("s_lshl_b32 s3, s%d, 13\ns_lshl_b32 s4, s%d, 11\ns_add_u32 s3, s3, s4\ns_add_u32 s3, s3, %d" % (sCB, sWave, WS_CS))
    a, b, c, d, e, f = 40, 41, 42, 43, 44, 45
    p("v_and_b32 v%d, 31, v1\nv_lshrrev_b32 v%d, 5, v1\nv_lshlrev_b32 v%d, 3, v1\nv_add_u32 v%d, s3, v%d" % (a, b, vSToff, vCSoff, vSToff))
    p("s_lshl_b32 s%d, s34, 8" % sCSw)
    p("s_lshl_b32 s3, s%d, 5\ns_add_u32 s3, s3, s%d\ns_lshl_b32 s3, s3, 7\ns_add_u32 s%d, s3, %d" % (sTB, sCB, sFlH, WS_FH))
    p("v_bfe_u32 v%d, v1, 1, 3\nv_xor_b32 v%d, v%d, v%d\nv_lshlrev_b32 v%d, 4, v%d\nv_lshl_add_u32 v%d, v%d, 7, v%d" % (c, c, c, b, c, c, vXA, a, c))
    for ks in range(1, 4): p("v_xor_b32 v%d, %d, v%d" % (vXA + ks, 32 * ks, vXA))
    for ks in range(4): p("v_add_u32 v%d, 0x10000, v%d" % (vXA + 4 + ks, vXA + ks))
    p("v_bfe_u32 v%d, v1, 2, 2\nv_bfe_u32 v%d, v1, 1, 1\nv_and_b32 v%d, 1, v1\nv_bfe_u32 v%d, v1, 4, 1" % (a, c, d, e))
    p("v_lshrrev_b32 v%d, 1, v%d\nv_lshl_add_u32 v%d, v%d, 1, v%d\nv_xor_b32 v%d, s%d, v%d\nv_lshlrev_b32 v%d, 5, v%d" % (f, a, f, c, f, f, sWave, f, f, f))
    p("v_lshl_add_u32 v%d, v%d, 4, v%d\nv_lshl_add_u32 v%d, v%d, 3, v%d\nv_lshl_add_u32 v%d, v%d, 13, v%d" % (f, d, f, f, e, f, f, c, f))
    p("v_lshl_add_u32 v%d, v%d, 3, v%d\nv_lshl_add_u32 v%d, v%d, 7, v%d\nv_add_u32 v%d, 0x10000, v%d" % (a, b, a, vWA, a, f, vWA + 1, vWA))
    p("v_mul_u32_u24 v%d, 57344, v%d\nv_and_b32 v%d, 15, v1\nv_lshl_add_u32 v%d, v%d, 4, v%d" % (e, e, c, c, b, c))
    p("s_and_b32 s3, s%d, 1\ns_lshl_b32 s3, s3, 9\nv_lshl_add_u32 v%d, v%d, 4, v%d\nv_add_u32 v%d, s3, v%d" % (sWave, c, c, e, vHoff, c))
    stamp(p, "g.set1", opts, 2)
    phase2_setup(p, opts)
    for r in range(4): p("v_mov_b32 v%d, 0x3f803f80" % (vOnes + r))
    stamp(p, "g.set2", opts, 2)
    KVP = opts.get("kvp", 1)
    nld, nchk = nonce_get("ng")
    HKP = opts.get("hkp", 9)
    hkl = hk_loads(opts) if HKP == 0 else []
    if KVP == 0: seq(p, kv_loads(opts) + hkl)
    stamp(p, "g.kvis", opts, 2)
    S1IN = opts.get("s1in", 0)
    NL = opts.get("nlate", 0)
    if not S1IN:
        seq(p, g1_stage(1, opts))
        if not NL: p.add(nld)
    if KVP == 1: seq(p, kv_loads(opts) + hkl)
    if opts.get("tlb"):
        sh = opts["tlb"]
        p("v_lshlrev_b32 v52, %d, v1\nbuffer_load_dword v53, v52, %s, 0 offen" % (sh, S4(sWS)), vm="tlb")
        p("v_min_u32 v52, 0x1bff00, v52\nglobal_load_dword v54, v52, s[70:71]\nglobal_load_dword v55, v52, s[72:73]\nglobal_load_dword v56, v52, s[60:61]", vm="tlb")
    stamp(p, "g.st1", opts)

    def rdW(n):
        s, ks = n >> 2, n & 3
        w, off = win((s % 3) * SLOT + ks * 2048)
        return [mk("ds_read_b64_tr_b16 a[%d:%d], v%d offset:%d" % (4 * n, 4 * n + 1, vWA + w, off), lg="W%d" % n),
                mk("ds_read_b64_tr_b16 a[%d:%d], v%d offset:%d" % (4 * n + 2, 4 * n + 3, vWA + w, off + 512), lg="W%d" % n)]
    def rdXA(n, i):
        s, ks = n >> 2, n & 3
        w, off = win((s % 3) * SLOT + 16384 + i * 4096)
        return mk("ds_read_b128 %s, v%d offset:%d" % (vr(vXF + 16 * (n & 1) + 4 * i), vXA + 4 * w + ks, off), lg="X%d_%d" % (n, i))
    def rdXB(bb, n):
        w, off = win(((8 + bb) % 3) * SLOT + (n >> 2) * 4096)
        return mk("ds_read_b128 %s, v%d offset:%d" % (vr(vXF + 4 * (n & 7)), vXA + 4 * w + (n & 3), off), lg="B%d_%d" % (bb, n))

    fr = opts.get("fr", " sc1")
    cs_loads = [mk("buffer_load_dwordx2 %s, v%d, %s, 0 offen offset:%d sc1" % (vr(vCSR + 2 * t, 2), vCSoff, S4(sWS), t * 512), vm="rec") for t in range(4)]
    st_loads = [mk("buffer_load_dwordx2 %s, v%d, %s, s%d offen offset:%d%s" % (vr(vCSR + 8 + 2 * t, 2), vSToff, S4(sWS), sST, t * 512, fr), vm="rec") for t in range(4)]
    post = poll_check("rec", [vCSR + 2 * t + 1 for t in range(8)], cs_loads + [mk(y.t.replace(fr, " sc1") if fr else y.t + " sc1") for y in st_loads], 32)
    post += ml("v_add_f32 v%d, v%d, v%d\nv_add_f32 v%d, v%d, v%d\nv_add_f32 v%d, v%d, v%d\nv_mov_b32 v%d, v%d" % (vCSR, vCSR, vCSR + 2, vCSR + 4, vCSR + 4, vCSR + 6, vCSR, vCSR, vCSR + 4, vCSR + 1, vCSR))
    for t in range(4): post += ml("v_mov_b32 v%d, v%d\nv_mov_b32 v%d, v%d" % (vST + 8 * t + 1, vCSR + 8 + 2 * t, vST + 8 * t + 5, vCSR + 8 + 2 * t))
    post += ml("v_permlane32_swap_b32 v%d, v%d" % (vCSR, vCSR + 1))
    for t in range(4): post += ml("v_permlane32_swap_b32 v%d, v%d" % (vST + 8 * t + 1, vST + 8 * t + 5))
    post += ml("s_mov_b32 s%d, 0x01000100\nv_add_f32 v%d, v%d, v%d" % (sT2, vCSR, vCSR, vCSR + 1))
    for t in range(8): post += ml("v_perm_b32 v%d, v%d, v%d, s%d" % (vST + 4 * t, vST + 4 * t + 1, vST + 4 * t + 1, sT2))
    for t in range(8): post += ml("v_and_b32 v%d, 0xffff0000, v%d" % (vST + 4 * t + 1, vST + 4 * t + 1))
    for t in range(8): post += ml("v_mul_f32 v%d, %s, v%d" % (vST + 4 * t + 1, hex(f2u(-LOG2E)), vST + 4 * t + 1))
    post += [mk("v_cvt_pk_bf16_f32 v%d, v%d, v%d" % (vCSR + 1, vCSR, vCSR)), mk("v_and_b32 v%d, 0xffff0000, v%d" % (vCSR + 1, vCSR + 1)),
             mk("v_sub_f32 v%d, v%d, v%d" % (vCSR, vCSR, vCSR + 1)), mk("v_cmp_gt_u32 vcc, 32, v1"),
             mk("v_cvt_pk_bf16_f32 v%d, v%d, v%d" % (vCSR, vCSR + 1, vCSR)),
             mk("v_mov_b32 v%d, v%d" % (vR1B, vST)), mk("v_cndmask_b32 v%d, 0, v%d, vcc" % (vR1A, vCSR)), mk("v_mov_b32 v%d, v%d" % (vR1B + 4, vST + 4))]
    cst = lambda t: ml("v_rcp_f32 v%d, v%d" % (vST + 4 * t + 2, vST + 4 * t + 1))
    cmu = lambda t: ml("v_mul_f32 v%d, %s, v%d" % (vST + 4 * t + 2, hex(f2u(LOG2E * LOG2E)), vST + 4 * t + 2))
    for t in range(4): post += cst(t)
    for t in range(4): post += cmu(t)

    if opts.get("x_norec"):
        cs_loads = []; st_loads = []; post = [y for y in post if "cbranch" not in y.t]
    F = Filler(opts.get("aspace", 2))
    RL = opts.get("recst", 5)
    if S1IN: F.v(-20, g1_stage(1, opts) + [nld])
    for s in range(8):
        F.v(max(0, 16 * s - 3) if not (S1IN and s == 0) else -20, g1_stage(s + 2, opts))
        if NL and s == 0 and not S1IN: F.v(0, [nld])
        if KVP >= 2 and s + 2 == KVP: F.v(0, kv_loads(opts) + hkl)
        if HKP and HKP < 10 and s + 2 == HKP: F.v(0, hk_loads(opts))
        if s == opts.get("csst", 2 if NL else 1): F.v(0, [mk("buffer_store_dwordx2 %s, v9, %s, s%d offen sc1" % (vr(vCSA, 2), S4(sWS), sCSw), vm="csst")])
        if s == opts.get("kvst", 8) and not opts.get("x_nokvs"): F.v(0, kv_stores())
        if s == RL - 1: F.v(16 * RL - 4, cs_loads + st_loads)
        if s == 7 and opts.get("kvst", 8) < 8: F.v(16 * 7 + 8, [W(vm="kvst"), flag_store(sFlK)])
    F.x(0, ml("v_lshlrev_b32 v9, 26, v1\nv_and_b32 v9, 0x80000000, v9\nv_or_b32 v9, v9, v%d" % vCSoff))
    F.x(17, [mk("v_mov_b32 v%d, 0" % r) for r in (vR1A + 1, vR1A + 2, vR1A + 3)])
    F.x(17, [mk("v_mov_b32 v%d, 0" % r) for r in (vR1B + 1, vR1B + 2, vR1B + 3, vR1B + 5, vR1B + 6, vR1B + 7)])
    F.x(29 if NL else 13, [W(vm="non")] + nchk + ml("v_mov_b32 v%d, v%d" % (vCSA + 1, vTag)))
    kc = kv_compute()
    if opts.get("x_nokvr"): kc = [y for y in kc if not y.t.startswith("ds_")]
    if opts.get("x_nokvv"): kc = [y for y in kc if not y.t.startswith("v_")]
    F.x(13 if KVP == 0 else 16 * (KVP + 1) - 3, kc)
    KVS = I("; kv done", cost=0); KVS.kind = "label"
    sr = phase2_srds()
    F.x(0, [KVS] + (hk_build() if HKP == 0 else []) + sr[:8])
    F.x(0, sr[8:])
    F.x(16 * (RL + 2) - 3 + opts.get("postat", 0), [W(vm="rec")] + post)
    p.wait(vm="st0")
    p("s_barrier")
    stamp(p, "g.st0in", opts)
    for x in rdW(0): p.add(x)
    for i in range(4): p.add(rdXA(0, i))
    PD = opts.get("pd", 7); WE = opts.get("we", 4)
    BA = opts.get("buda", 24)
    for n in range(32):
        s, ks = n >> 2, n & 3
        gaps = [[], [], [], []]
        if ks == 3: gaps[0] += [W(vm="st%d" % (s + 1), lg="*"), mk("s_barrier")]
        if n < 31:
            gaps[0] += rdW(n + 1); gaps[1] += [rdXA(n + 1, 0), rdXA(n + 1, 1)]; gaps[2] += [rdXA(n + 1, 2), rdXA(n + 1, 3)]
        else:
            gaps[0] += [rdXB(0, 0), rdXB(0, 1)]; gaps[1] += [rdXB(0, 2), rdXB(0, 3)]
        for i in range(4):
            if i in (0, 2): p.wait(lg=["W%d" % n, "X%d_%d" % (n, i + 1)])
            a = acc_of(i)
            p("v_mfma_f32_32x32x16_bf16 %s, a[%d:%d], %s, %s" % (vr(a, 16), 4 * n, 4 * n + 3, vr(vXF + 16 * (n & 1) + 4 * i), vr(a, 16) if n else "0"))
            if ks == 3 and i == 0 and any(y.vm == "st%d" % (s + 1) for _, y in F.vq): raise SystemExit("stage %d not issued" % (s + 1))
            F.fill(4 * n + i, gaps[i], BA - (4 if i in (1, 3) else 0))
            if any(y.vm == "csst" for y in gaps[i]): assert not any(y.t.startswith("v_mov_b32 v%d," % (vCSA + 1)) for y in gaps[i] + [z for _, z in F.xq]), "cs store too early"
            if any(y.vm == "kvst" for y in gaps[i]): assert KVS not in gaps[i] + [z for _, z in F.xq], "kv store too early"
            for x in gaps[i]: p.add(x)
        if ks == 3 and s < 7: stamp(p, "g.s%d" % s, opts, 2)
        if n < 4:
            p("v_mfma_f32_32x32x16_bf16 %s, %s, a[%d:%d], %s" % (vr(vCSA, 16), vr(vOnes), 4 * n, 4 * n + 3, vr(vCSA, 16) if n else "0"))
    left = len(F.xq)
    stamp(p, "g.A31", opts, 2)
    for _, x in F.xq: p.add(x)
    F.xq = []
    print("phase A: left-over x items %d, v items %d" % (left, len(F.vq)), file=sys.stderr)
    stamp(p, "g.Aend", opts)
    for m_ in range(4, PD): p.add(rdXB(0, m_))
    p("s_nop 0")
    late = [cst(4) + cst(5), cst(6) + cst(7), cmu(4) + cmu(5), cmu(6) + cmu(7)]
    for t in range(4):
        a = acc_of(t)
        p("v_mfma_f32_32x32x16_bf16 %s, %s, %s, %s" % (vr(a, 16), vr(vR1A), vr(vR1B + 4 * (t & 1)), vr(a, 16)))
        p("v_mov_b32 v%d, v%d" % (vR1B + 4 * (t & 1), vST + 4 * (t + 2)))
        for x in late[t]: p.add(x)
    ep = [g1_epilogue(t, opts) for t in range(7)]
    total = sum(x.cost for e in ep for x in e)
    kvpoll = [mk("buffer_load_dwordx2 v[%d:%d], v%d, %s, 0 offen sc1" % (uPoll, uPoll + 1, uFK, S4(sWS)), vm="kvp")]
    F.vq = [(0, y) for _, y in F.vq]; F.last = -9; F.space = opts.get("bspace", 2)
    X = lambda k, L: [] if opts.get(k) else L
    XB = opts.get("xb", 1)
    ORD = [0, 1, 2, 3, 4] + ([5] if opts.get("w5", 1) else []) + [7, 8, 9][:XB]
    INB_READ = [0, 1, 2][:XB]
    chain = lambda t: ([W(vm="w%d" % t)] + wd_reads(t, True) + [delay(4), W(lg="t%d" % t)] + wd_loads(t + 7, opts)) if t in INB_READ else []
    F.x(0, [mk("v_add_u32 v%d, 0x20000, v%d" % (uTR2 + mt, uTR + mt)) for mt in range(4)])
    F.x(0, [bundle("\n".join(y.t for y in fl0_setup()[:3]))] + fl0_setup()[3:])
    F.v(0, kv_stores())
    F.v(opts.get("st10", 6), g1_stage(10, opts))
    W0 = opts.get("w0at", 22)
    if W0 < 27: F.v(W0, wd_loads(0, opts))
    B1 = 34 - PD
    F.v(B1, g1_stage(11, opts)[:6] + [W(vm="kvst"), flag_store(sFlK)] + g1_stage(11, opts)[6:])
    if W0 >= 27: F.v(W0, wd_loads(0, opts))
    if 5 in ORD: F.v(opts.get("w5at", 46), wd_loads(5, opts))
    if HKP == 10: F.v(opts.get("hkat", 46), hk_loads(opts))
    F.v(33 + B1, wd_loads(1, opts) + wd_loads(2, opts))
    F.v(opts.get("c0", 80), chain(0))
    F.v(opts.get("kvpoll", 88), kvpoll)
    F.v(66 + B1, wd_loads(3, opts) + wd_loads(4, opts))
    F.v(opts.get("kvchk", 114), [W(vm="kvp")] + poll_check("kv", [uPoll], kvpoll) + conv_xr())
    F.v(0, chain(1) + chain(2))
    opts["_ord"] = ORD; opts["_rd"] = INB_READ
    if HKP: F.x(opts.get("hkb", 62 if HKP < 10 else 95), hk_build(1))
    EF = opts.get("eflag", 99 + 16)
    ngaps = 4 * 33; done = 0; cur = 0; gi = 0
    BUD = opts.get("bud", 24)
    for bb in range(4):
        tile = 4 + bb; a = acc_of(tile)
        for n in range(-1, 32):
            gap = []
            if n == -1:
                p("v_mfma_f32_32x32x16_bf16 %s, %s, %s, 0" % (vr(a, 16), vr(vR1A), vr(vR1B + 4 * (bb & 1))))
                if bb < 2: gap.append(mk("v_mov_b32 v%d, v%d" % (vR1B + 4 * (bb & 1), vST + 4 * (tile + 2))))
            else:
                if n % WE == 0: p.wait(lg="B%d_%d" % (bb, n + WE - 1))
                p("v_mfma_f32_32x32x16_bf16 %s, a[%d:%d], %s, %s" % (vr(a, 16), 4 * n, 4 * n + 3, vr(vXF + 4 * (n & 7)), vr(a, 16)))
                m = n + PD
                if m == 32 and bb < 3:
                    if any(y.vm == "st%d" % (9 + bb) for _, y in F.vq): raise SystemExit("stage not issued before its wait")
                    gap += [W(vm=["st%d" % (9 + bb)] + (["hk"] if bb == 2 else []), lg="*"), mk("s_barrier")]
                if m < 32: gap.append(rdXB(bb, m))
                elif bb < 3: gap.append(rdXB(bb + 1, m - 32))
            budget = BUD - (4 if (n % WE == WE - 1) else 0)
            if gi == EF:
                assert cur >= 4
                gap += [W(vm="hst3"), mk("s_barrier"), flag_store(sFlH, True), mk("s_add_u32 s%d, s%d, %d" % (sFlH, sFlH, WS_FL))]
            F.fill(gi, gap, min(budget, sum(y.cost for y in gap) + 8), min(budget, sum(y.cost for y in gap) + 12 if F.xq and F.xq[0][1].cost > 4 else sum(y.cost for y in gap) + 8))
            gi += 1
            target = total * gi / float(ngaps - opts.get("eplead", 4))
            while cur < 7 and done < target:
                if cur >= 4 and (cur - 4 >= bb or (cur - 4 == bb - 1 and n < 4)): break
                if cur < 4 and bb == 0 and n < 2: break
                x = ep[cur][0]
                if sum(y.cost for y in gap) + x.cost > budget: break
                gap.append(ep[cur].pop(0)); done += x.cost
                if not ep[cur]: cur += 1
            for x in gap: p.add(x)
            if gi % 6 == 0: stamp(p, "B%d" % gi, opts, 5)
        if bb < 3: stamp(p, "g.b%d" % bb, opts, 2)
    stamp(p, "g.Bend", opts)
    print("phase B: left-over v items %d, epilogue cost left %d" % (len(F.vq), total - done), file=sys.stderr)
    seq(p, [y for _, y in F.vq] + [y for _, y in F.xq])
    while cur < 7:
        for x in ep[cur]: p.add(x)
        cur += 1
    for s in range(14): p("s_lshr_b32 s%d, s%d, 5" % (sTab + s, sTabW + s))
    for x in g1_epilogue(7, opts): p.add(x)

def out_half(ps, opts, pk):
    eW = 24; eR = 25; eY = 26
    if ps == 0: X = list(range(12, 20)); XN = list(range(32, 40)); YR = 20; Y = [28, 29, 30, 31, 224, 225, 226, 227]
    else: X = list(range(56, 64)); XN = list(range(64, 72)); YR = 80; Y = list(range(72, 80))
    P = [list(range(uAcc + 32 * ps + 8 * w, uAcc + 32 * ps + 8 * w + 8)) for w in range(4)]
    wr = [mk("ds_write_b128 v%d, %s offset:%d" % (eW, vr(uAcc + 16 * (2 * ps + e) + 4 * mt), e * 16 * RS + mt * 64), cost=8) for e in range(2) for mt in range(4)]
    rdy = [mk("ds_read_b64_tr_b16 v[%d:%d], v%d offset:%d" % (YR + 2 * j, YR + 2 * j + 1, eY, j * 512 + 64 * ps), lg="y%d" % ps) for j in range(2)]
    rd = [mk("ds_read_b128 %s, v%d offset:%d" % (vr(P[w][4 * h]), eR, w * REDW + 16 * h), lg="r%d" % ps) for h in range(2) for w in range(4)]
    xin = uXin + 4 * ps; st = uSt + 2 * ps; F = P[0]
    un = lambda d, s_, hi: ("v_and_b32 v%d, 0xffff0000, v%d" if hi else "v_lshlrev_b32 v%d, 16, v%d") % (d, s_)
    def op2(name, d, a_, b_, c_=None, sel=""):
        R = lambda z, i, n: z if isinstance(z, str) else vr(z[i], n)
        if pk: return [mk("v_pk_%s_f32 %s, %s, %s%s%s" % (name, vr(d[2 * i], 2), R(a_, 2 * i, 2), R(b_, 2 * i, 2), (", " + R(c_, 2 * i, 2)) if c_ else "", sel)) for i in range(4)]
        return [mk("v_%s_f32 v%d, %s, %s%s" % (name, d[i], R(a_, i, 1), R(b_, i, 1), (", " + R(c_, i, 1)) if c_ else "")) for i in range(8)]
    pre = ml(un(st + 1, 40 + 2 * ps, 1) + "\n" + un(st, 40 + 2 * ps, 0) + "\nv_rcp_f32 v%d, v%d" % (st + 1, st + 1))
    pre += [mk(un(X[i], xin + (i >> 1), i & 1)) for i in range(8)]
    pre += ml("v_mul_f32 v%d, v%d, v%d" % (st, st, st + 1))
    if pk: pre += op2("fma", XN, X, vr(st, 2), vr(st, 2), " op_sel:[0,1,0] op_sel_hi:[1,1,0]")
    else: pre += op2("fma", XN, X, "v%d" % (st + 1), "v%d" % st)
    m = [W(lg="r%d" % ps)] + op2("add", F, P[0], P[1]) + op2("add", P[2], P[2], P[3]) + op2("add", F, F, P[2])
    m += op2("mul", Y, "s[4:5]" if pk else "s4", F)
    t1 = [mk("v_exp_f32 v%d, v%d" % (Y[i], Y[i])) for i in range(8)]
    t2 = op2("mul", XN, XN, F)
    m += [z for pr in zip(t1, t2) for z in pr] if not pk else t1 + t2
    m += op2("add", Y, "1.0", Y, None, " op_sel_hi:[0,1]" if pk else "")
    m += [mk("v_rcp_f32 v%d, v%d" % (Y[i], Y[i])) for i in range(8)] + [mk("s_nop 0")]
    m += op2("mul", XN, XN, Y)
    my = [W(lg="y%d" % ps)] + [mk(un(Y[i], YR + (i >> 1), i & 1)) for i in range(8)]
    my += op2("fma", X, XN, Y, X)
    my += [mk("v_cvt_pk_bf16_f32 v%d, v%d, v%d" % (xin + i, X[2 * i], X[2 * i + 1])) for i in range(4)]
    my += [mk("buffer_store_dwordx4 %s, v%d, %s, %s offen%s" % (vr(xin), uX, S4(sOut), "s%d" % sT0 if ps else "0", opts.get("fo", "")), vm="out")]
    return wr, pre, rd, m, rdy, my

def phase2(p, opts):
    ORD = opts["_ord"]; RD = opts["_rd"]
    stamp(p, "p2", opts)
    for mt in range(4): p("v_add_u32 v%d, 0x10000, v%d\nv_add_u32 v%d, 0x20000, v%d" % (HI[1] + mt, uTR + mt, HI[2] + mt, uTR + mt))
    for i in range(1, 4): p("v_add_u32 v%d, %d, v%d" % (CAR[i], 1024 * i, uCA))
    p.wait(vm="cv", lg="*")
    p("s_barrier")
    stamp(p, "p2bar", opts, 4)
    for x in conv_reads(0): p.add(x)
    hpollA = [mk("buffer_load_dwordx2 v[%d:%d], v%d, %s, 0 offen sc1" % (uPoll, uPoll + 1, uFH, S4(sWS)), vm="hpA")]
    hpollB = [mk("s_mov_b32 s%d, %d" % (sT1, WS_FL)), mk("buffer_load_dwordx2 v[%d:%d], v%d, %s, s%d offen sc1" % (uPoll + 2, uPoll + 3, uFH, S4(sWS), sT1), vm="hpB")]
    tq = []
    for t in range(7):
        if t not in RD: tq += [("w%d" % t if t not in ORD else None, y) for y in wd_reads(t)]
    wl = lambda t: ([W(lg="t%d" % PREV[t])] if t in PREV else []) + wd_loads(t, opts)
    rest = [t for t in range(7, 14) if t not in ORD]
    nfirst = opts.get("wfirst", 4)
    VQ = (wl(5) if 5 not in ORD else []) + wl(6) + [x for t in rest[:nfirst] for x in wl(t)]
    rest = rest[nfirst:]
    LEAD = opts.get("wlead", 3)
    CHKA = I("; chkA", cost=0); CHKB = I("; chkB", cost=0)
    VQ.append(CHKA)
    for hs in range(28):
        while rest and rest[0] - 1 - LEAD <= hs: VQ += wl(rest.pop(0))
        if hs == 14: VQ.append(CHKB)
        VQ += h_loads(hs)
    state = {"A": False, "B": False, "issued": set()}
    def pace(p, done_hs):
        n = 0
        while VQ:
            y = VQ[0]
            if y is CHKA:
                if not state["A"]: return n
                VQ.pop(0); continue
            if y is CHKB:
                if not state["B"]: return n
                VQ.pop(0); continue
            if y.kind == "wait" and any(z.lg == y.lg for _, z in tq): return n
            if y.vm and y.vm[0] == "h" and int(y.vm[1:]) - 16 > done_hs: return n
            VQ.pop(0); p.add(y); n += 1
            if is_m0(y): p("s_nop 0") if False else None
            if is_vm(y): state["issued"].add(y.vm); return n
            if is_m0(y): return n
        return n
    strec = [mk("buffer_load_dwordx2 %s, v%d, %s, 0 offen offset:%d sc1" % (vr(40 + 2 * e, 2), uSto, S4(sWS), 1024 * e), vm="xin") for e in range(2)]
    extra = ml("s_mov_b32 s%d, 131072" % sT0) + [mk("buffer_load_dwordx4 %s, v%d, %s, %s offen" % (vr(uXin + 4 * e), uX, S4(sQ), "s%d" % sT0 if e else "0"), vm="xin") for e in range(2)] + strec
    dq = ml("v_lshrrev_b32 v24, 4, v1\nv_and_b32 v25, 15, v1\nv_lshl_add_u32 v24, v24, 3, v25\nv_sub_u32 v24, 15, v24\nv_lshlrev_b32 v25, 4, v24\nv_and_b32 v25, 16, v25\n"
            "s_sub_u32 s3, s%d, 1\nv_lshlrev_b32 v25, v25, v%d\nv_and_b32 v25, s3, v25\nv_lshrrev_b32 v24, 1, v24" % (sHalf, uD))
    dq += ml("v_cmp_eq_u32 s[4:5], 0, v24\nv_cmp_eq_u32 s[6:7], 1, v24\nv_cmp_eq_u32 s[34:35], 2, v24\nv_cmp_eq_u32 vcc, 3, v24")
    dq += ml("v_cndmask_b32 v%d, 0, v25, s[4:5]\nv_cndmask_b32 v%d, 0, v25, s[6:7]\nv_cndmask_b32 v%d, 0, v25, s[34:35]\nv_cndmask_b32 v%d, 0, v25, vcc" % (uAD, uAD + 1, uAD + 2, uAD + 3))
    pollat = opts.get("hpoll", 24); flagat = opts.get("hflag", 60); chkA = opts.get("hchk", 62); pollB = opts.get("hpollb", 132); SP = opts.get("csp", 4)
    ypoll = [mk("buffer_load_dwordx2 %s, v%d, %s, 0 offen sc1" % (vr(uPoll, 2), uFY, S4(sWS)), vm="yp")]
    ydma = ml("v_lshrrev_b32 v2, 3, v1\nv_lshlrev_b32 v2, 12, v2\nv_and_b32 v3, 3, v1\nv_lshl_add_u32 v2, v3, 4, v2\nv_bfe_u32 v3, v1, 2, 1\nv_lshl_add_u32 v2, v3, 8, v2\nv_add_u32 v3, %d, v2" % (32768 - 1024))
    ydma += ml("s_lshl_b32 s3, s%d, 18\ns_lshl_b32 s7, s%d, 16\ns_add_u32 s3, s3, s7\ns_lshr_b32 s7, s%d, 2\ns_lshl_b32 s7, s7, 9\ns_add_u32 s3, s3, s7\ns_and_b32 s7, s%d, 3\ns_lshl_b32 s7, s7, 6\ns_add_u32 s3, s3, s7\ns_add_u32 s3, s3, %d" % (sDB, sWave, sTB2, sTB2, WS_YT))
    ydma += ml("s_lshl_b32 s7, s%d, 11\ns_add_u32 m0, s7, %d" % (sWave, YT_L))
    adr = ml("v_and_b32 v24, 15, v1\nv_mul_u32_u24 v24, %d, v24\nv_lshrrev_b32 v25, 4, v1\nv_lshl_add_u32 v24, v25, 4, v24\ns_mul_i32 s6, s%d, %d\ns_add_u32 s6, s6, %d\nv_add_u32 v24, s6, v24" % (RS, sWave, REDW, RED[0]))
    adr += ml("v_lshrrev_b32 v25, 5, v1\nv_and_b32 v26, 3, v1\nv_lshl_add_u32 v25, v25, 2, v26\nv_mul_u32_u24 v25, %d, v25\nv_bfe_u32 v26, v1, 2, 3\nv_lshl_add_u32 v25, v26, 5, v25\ns_mul_i32 s6, s%d, %d\ns_add_u32 s6, s6, %d\nv_add_u32 v25, s6, v25" % (RS, sWave, 8 * RS, RED[0]))
    adr += ml("v_bfe_u32 v26, v1, 4, 1\nv_and_b32 v27, 3, v1\nv_lshl_add_u32 v26, v26, 2, v27\nv_bfe_u32 v27, v1, 2, 2\nv_lshl_add_u32 v26, v26, 3, v27\nv_lshlrev_b32 v26, 7, v26\nv_lshrrev_b32 v27, 5, v1\nv_lshl_add_u32 v26, v27, 3, v26\ns_lshl_b32 s6, s%d, 4\ns_add_u32 s6, s6, %d\nv_add_u32 v26, s6, v26" % (sWave, YT_L))
    chk = [W(vm="xin")] + poll_check("st", [41, 43], strec, 32)
    aq = ydma[:-2] + adr + chk
    first = set(); nm = 0
    for rr in range(4):
        rq = conv_reads(rr + 1) if rr < 3 else []
        b = vCF + 64 * (rr & 1)
        pairs = sorted([(s1, p1) for s1 in range(8) for p1 in range(8) if s1 + p1 <= 7], key=lambda x: (max(x), x[0] + x[1], x[0]))
        seen = -1; k = 0
        for (s1, p1) in pairs:
            mx = max(s1, p1)
            if mx > seen:
                p.wait(lg="c%d_%d" % (rr, mx)); seen = mx
            acc = vr(uCacc + 4 * (s1 + p1))
            p("v_mfma_f32_16x16x32_bf16 %s, %s, %s, %s" % (acc, vr(b + 4 * s1), vr(b + 32 + 4 * p1), acc if (s1 + p1) in first else "0"))
            first.add(s1 + p1); k += 1; nm += 1
            n = 0
            if rq and k > 2 and (k % 4 != 0): p.add(rq.pop(0)); n += 1
            if dq and nm > 6 and (n == 0 or nm % 2): p.add(dq.pop(0)); n += 1
            if nm % SP == 0 or (VQ and is_m0(VQ[0]) and nm % SP == SP - 1): n += pace(p, -1)
            while tq and n < 2:
                tg = tq[0][0]
                if tg and (tg not in state["issued"] or nm < opts.get("t56", 84)): break
                if tg: p.wait(vm=tg)
                p.add(tq.pop(0)[1]); n += 1
            if aq and nm > opts.get("aqat", 96) and n < 2 and not (n and aq[0].t.startswith("v_") and p.ins[-1].t.startswith("v_") and "mfma" not in p.ins[-1].t):
                p.add(aq.pop(0))
                while aq and aq[0].cost == 0: p.add(aq.pop(0))
            if nm == pollat:
                for x in hpollA: p.add(x)
            if nm == flagat:
                p.wait(vm="hst7"); p("s_barrier"); p.add(flag_store(sFlH, True))
                stamp(p, "hflag", opts)
            if nm == chkA:
                p.wait(vm="hpA")
                for x in poll_check("hA", [uPoll], hpollA): p.add(x)
                stamp(p, "hokA", opts); state["A"] = True
        stamp(p, "cv%d" % rr, opts, 4)
        if rr == 0:
            for x in dq: p.add(x)
            if dq: p("s_nop 1")
            dq = []
            for p1 in range(8):
                acc = vr(uCacc + 4 * p1)
                p("v_mfma_f32_16x16x32_bf16 %s, %s, %s, %s" % (acc, vr(uAD), vr(b + 32 + 4 * p1), acc))
                if rq: p.add(rq.pop(0))
                if p1 % 4 == 1: pace(p, -1)
            for x in extra: p.add(x)
        for x in rq: p.add(x)
    print("conv: left-over reads %d, queued loads %d" % (len(tq), len(VQ)), file=sys.stderr)
    assert not tq
    cur_hs = [-1]
    def pace2():
        if pace(p, cur_hs[0]) and is_m0(p.ins[-1]): p("s_nop 0"); pace(p, cur_hs[0])
    for x in aq: p.add(x)
    stamp(p, "convend", opts)
    p("s_lshl_b32 s7, s%d, 13\ns_add_u32 s7, s7, %d\nv_add_u32 v4, s7, v%d\ns_and_b32 s7, s%d, 2\ns_lshl_b32 s7, s7, 13\ns_lshl_b32 s6, s%d, 12\ns_add_u32 s7, s7, s6\ns_add_u32 s7, s7, %d\nv_add_u32 v5, s7, v%d" % (sWave, XCH, vL16, sWave, sHalf, XCH, vL16))
    for x in hpollB: p.add(x)
    p("s_barrier")
    for i in range(8):
        p("ds_write_b128 v4, %s offset:%d" % (vr(uCacc + 4 * i), i * 1024))
        if i % 3 == 1: pace2()
    stamp(p, "xw", opts, 4)
    p("s_waitcnt lgkmcnt(0)\ns_barrier")
    for i in range(4):
        p("ds_read_b128 %s, v5 offset:%d" % (vr(uCacc + 4 * i), i * 1024), lg="xr%d" % i)
        p("ds_read_b128 %s, v5 offset:%d" % (vr(uCacc + 16 + 4 * i), 8192 + i * 1024), lg="xr%d" % i)
    pace2()
    for i in range(4):
        p.wait(lg="xr%d" % i)
        for e in range(2): p("v_pk_add_f32 %s, %s, %s" % (vr(uCacc + 4 * i + 2 * e, 2), vr(uCacc + 4 * i + 2 * e, 2), vr(uCacc + 16 + 4 * i + 2 * e, 2)))
    for i in range(4):
        o = uTmp + 4 * (i >> 1) + 2 * (i & 1)
        p("v_cvt_pk_bf16_f32 v%d, v%d, v%d\nv_cvt_pk_bf16_f32 v%d, v%d, v%d" % (o, uCacc + 4 * i, uCacc + 4 * i + 1, o + 1, uCacc + 4 * i + 2, uCacc + 4 * i + 3))
    pace2(); p("s_nop 0")
    for h in range(2):
        o = uTmp + 4 * h
        p("v_permlane16_swap_b32 v%d, v%d\nv_permlane16_swap_b32 v%d, v%d" % (o, o + 2, o + 1, o + 3))
    for h in range(2):
        p("buffer_store_dwordx4 %s, v%d, %s, s%d offen offset:%d sc1" % (vr(uTmp + 4 * h), uYst, S4(sWS), sYoff, h * 1024), vm="yst")
    stamp(p, "g2go", opts)
    wrA, preA, rdA, mA, rdyA, myA = out_half(0, opts, False)
    wrB, preB, rdB, mB, rdyB, myB = out_half(1, opts, True)
    YF = opts.get("yflag", 5); YP = opts.get("ypoll", 19); YC = YP + opts.get("ychk", 4); RB = opts.get("rbar", 18); RY = opts.get("ybar", YC + 5)
    HB = opts.get("hb", 5); HL = opts.get("hl", 5)
    xq = []
    def X_(at, L): xq.extend((at, y) for y in L)
    X_(0, preA + [mk("s_mov_b32 s4, %s" % hex(f2u(-LOG2E))), mk("s_mov_b32 s5, s4")])
    for i, y in enumerate(wrA): X_(8 * 14 + 5 + 3 * i, [y])
    X_(8 * RB, [W(lg="*"), mk("s_barrier")] + rdA)
    X_(8 * RB + 14, mA)
    for hs in range(28):
        ps, s = divmod(hs, 14)
        cur_hs[0] = hs - 1
        while "h%d" % hs not in state["issued"] or any(y.vm == "h%d" % hs for y in VQ) or (ps == 0 and s < 13 and any(y.vm == "w%d" % (s + 1) for y in VQ)): pace2()
        rq = wd_reads(s + 1) if (ps == 0 and 7 <= s + 1 < 14) else []
        if hs == HB:
            p.wait(vm="hpB")
            for x in poll_check("hB", [uPoll + 2], hpollB): p.add(x)
            stamp(p, "hokB", opts); state["B"] = True
        if hs == YF: p.wait(vm="yst"); p("s_barrier"); p.add(flag_store(sFlY, True))
        if hs == YP: p.add(ypoll[0])
        if hs == YC:
            p.wait(vm="yp")
            for x in poll_check("y", [uPoll], ypoll): p.add(x)
            assert not any(is_m0(y) or y.t.endswith(" lds") for y in VQ)
            for x in ydma[-2:]: p.add(x)
            p("s_nop 0")
            p.add(dma(2, sWS, "s3", 0, "yt", " sc1")); p.add(dma(3, sWS, "s3", 1024, "yt", " sc1"))
            stamp(p, "yok", opts, 4)
        if hs == RY and not opts.get("ytail", 1):
            p.wait(vm="yt"); p("s_barrier")
            for x in rdyA: p.add(x)
            X_(8 * RY + 6, myA)
        p.wait(vm="h%d" % hs, lg="t%d" % s)
        m = 0
        for e in range(2):
            nt = 2 * ps + e
            for mt in range(4):
                acc = vr(uAcc + 16 * nt + 4 * mt)
                hr = aH + 8 * (hs % 16) + 4 * e
                k, b = wfrag(s, mt)
                p("v_mfma_f32_16x16x32_bf16 %s, %s[%d:%d], a[%d:%d], %s" % (acc, k, b, b + 3, hr, hr + 3, acc if s else "0"))
                m += 1
                n = 0
                tgt = "h%d" % min(27, hs + HL)
                left = max([i + 1 for i, y in enumerate(VQ) if y.vm == tgt] + [0])
                for _ in range(-(-left // (9 - m))):
                    k_ = pace(p, hs - 1); n += k_
                    if k_ == 0 or is_m0(p.ins[-1]): break
                if m == 1 and rq: p.wait(vm="w%d" % (s + 1))
                if rq: p.add(rq.pop(0)); n += 1
                g = 8 * hs + m - 1
                nv = 0
                rem = 8 * 28 - g
                while xq and xq[0][0] <= g and n < 2:
                    isv = xq[0][1].t.startswith("v_")
                    if isv and nv >= 1 and len(xq) < opts.get("g2den", 1) * rem + 999 * (g < 8 * RB): break
                    p.add(xq.pop(0)[1]); n += 1; nv += isv
        assert not rq
        if hs == 13: stamp(p, "g2A", opts)
        elif hs % 3 == 0: stamp(p, "h%d" % hs, opts, 4)
    print("gemm2: left-over epilogue items %d" % len(xq), file=sys.stderr)
    stamp(p, "g2end", opts)
    p("v_add_u32 v24, %d, v24\nv_add_u32 v25, %d, v25" % (((RED[1] - RED[0]) & 0xffffffff,) * 2))
    tail = [y for _, y in xq] + preB
    nop = max(0, 6 - len(tail))
    for x in tail[:8]: p.add(x)
    tail = tail[8:]
    for x in wrB:
        p.add(x)
        for _ in range(3):
            if tail: p.add(tail.pop(0))
    for x in tail: p.add(x)
    p.wait(vm="yt", lg="*"); p("s_barrier")
    stamp(p, "red", opts)
    if opts.get("ytail", 1):
        myA = out_half(0, opts, True)[5]
        for x in rdyA + rdB + rdyB + myA[:-1] + mB + myB[:-1] + [myA[-1], myB[-1]]: p.add(x)
    else:
        for x in rdB + rdyB + mB + myB: p.add(x)
    stamp(p, "fin", opts)

def aux(p, opts):
    p("s_lshl_b32 s3, s2, 6\ns_lshl_b32 s4, s%d, 4\ns_add_u32 s3, s3, s4" % sWave)
    p("v_add_u32 v12, s3, v2\nv_lshlrev_b32 v10, 10, v12\nv_lshl_add_u32 v10, v3, 4, v10\nv_add_u32 v11, 8192, v10\nv_mov_b32 v13, v3")
    p("s_memrealtime s[%d:%d]" % (sTag, sTag + 1))
    p("s_waitcnt lgkmcnt(0)")
    p("s_mov_b32 s%d, s74\ns_mov_b32 s%d, s75" % (sDbg, sDbg + 1))
    p("s_lshr_b32 s3, s2, %d\ns_or_b32 s3, s3, s%d\ns_cmp_lg_u32 s3, 0\ns_cselect_b64 exec, 0, 1" % (3 if opts.get("cas", 1) else 0, sWave))
    p("s_or_b32 s%d, s%d, 1\nv_mov_b32 v16, s%d\nv_mov_b32 v17, s%d\nv_mov_b32 v18, 0\nv_mov_b32 v19, 0\ns_cbranch_execz L_aux_nt" % (sTag, sTag, sTag, sTag + 1))
    p("global_atomic_cmpswap_x2 v%d, v[16:19], s[%d:%d] sc1" % (vNon + 2, sDbg, sDbg + 1))
    p.label("L_aux_nt")
    p("s_mov_b64 exec, -1")
    srd(p, sQ, kQ, 2048 * 1024)
    for g in range(2):
        for i in range(8):
            p("buffer_load_dwordx4 %s, v%d, %s, 0 offen offset:%d" % (vr(116 + 32 * g + 4 * i), 10 + g, S4(sQ), i * 128), vm="sx%d" % g)
        if g == 0:
            srd(p, sWS, kWS, WS_SZ)
            kv_setup(p); ids2(p); hk_srds(p)
            phase2_setup(p, opts)
    nld, nchk = nonce_get("na")
    p.add(nld)
    p("s_mov_b32 s5, 0x3f803f80")
    for g in range(2):
        p.wait(vm="sx%d" % g if g == 0 else "non")
        stamp(p, "a.sx%d" % g, opts, 3)
        if g == 1:
            p("v_lshlrev_b32 v10, 7, v1\ns_mov_b32 s12, s60\ns_and_b32 s13, s61, 0xffff\ns_mov_b32 s14, 0x200000\ns_mov_b32 s15, 0x20000")
            p("s_mov_b32 s24, s70\ns_and_b32 s25, s71, 0xffff\ns_mov_b32 s26, %d\ns_mov_b32 s27, 0x20000" % (1792 * 1024))
            p("s_lshl_b32 s3, s2, 16\ns_lshl_b32 s4, s%d, 14\ns_add_u32 s21, s3, s4\ns_mul_i32 s3, s2, 57344\ns_mul_i32 s4, s%d, 14336\ns_add_u32 s22, s3, s4" % (sWave, sWave))

        s1 = 16 + 4 * g; s2 = s1 + 1
        for r in range(32):
            x = 116 + 32 * g + r; c = r & 1
            p("v_dot2_f32_bf16 v%d, v%d, s5, %s" % (s1 + 2 * c, x, "v%d" % (s1 + 2 * c) if r > 1 else "0"))
            p("v_dot2_f32_bf16 v%d, v%d, v%d, %s" % (s2 + 2 * c, x, x, "v%d" % (s2 + 2 * c) if r > 1 else "0"))
    for x in nchk: p.add(x)
    p("v_add_f32 v16, v16, v18\nv_add_f32 v17, v17, v19\nv_add_f32 v18, v20, v22\nv_add_f32 v19, v21, v23")
    for mod in ("quad_perm:[1,0,3,2]", "quad_perm:[2,3,0,1]", "row_half_mirror"):
        for r in range(16, 20): p("v_add_f32_dpp v%d, v%d, v%d %s row_mask:0xf bank_mask:0xf" % (r, r, r, mod))
    ops = [[], []]
    for g in range(2):
        S1 = 16 + 2 * g; S2 = S1 + 1; o = 20 + 4 * g
        ops[g] = ["v_mul_f32 v%d, %s, v%d" % (S1, hex(f2u(1.0 / 512)), S1), "v_mul_f32 v%d, %s, v%d" % (S2, hex(f2u(1.0 / 512)), S2),
                  "v_fma_f32 v%d, -v%d, v%d, v%d" % (S2, S1, S1, S2), "v_max_f32 v%d, 0, v%d" % (S2, S2),
                  "v_cvt_pk_bf16_f32 v%d, v%d, v%d" % (S2, S2, S2), "v_and_b32 v%d, 0xffff0000, v%d" % (S2, S2),
                  "v_add_f32 v%d, %s, v%d" % (S2, hex(f2u(1e-5)), S2),
                  "v_cvt_pk_bf16_f32 v%d, v%d, v%d" % (S2, S2, S2), "v_and_b32 v%d, 0xffff0000, v%d" % (S2, S2),
                  "v_sqrt_f32 v%d, v%d" % (S2, S2), "v_mov_b32 v%d, s%d" % (o + 1, sTag),
                  "v_cvt_pk_bf16_f32 v%d, -v%d, v%d" % (o, S1, S2)]
    p("v_cmp_eq_u32 vcc, 0, v13\nv_lshlrev_b32 v12, 3, v12\nv_add_u32 v12, %d, v12\nv_mov_b32 v14, 0x80000000\nv_cndmask_b32 v12, v14, v12, vcc" % WS_ST)
    for x0, x1 in zip(*ops): p(x0); p(x1)
    p("buffer_store_dwordx2 v[20:21], v12, %s, 0 offen sc1" % S4(sWS), vm="pub")
    p("buffer_store_dwordx2 v[24:25], v12, %s, 0 offen offset:64 sc1" % S4(sWS), vm="pub")
    stamp(p, "a.stats", opts)
    tW = ["buffer_load_dword v28, v10, s[24:27], s22 offen\ns_add_u32 s22, s22, 6144", "buffer_load_dword v28, v10, s[24:27], s22 offen"]
    tK = ["buffer_load_dword v28, v10, s[12:15], s21 offen\ns_add_u32 s21, s21, 8192", "buffer_load_dword v28, v10, s[12:15], s21 offen"]
    WM = opts.get("warm", 1)
    tq_ = {0: [], 1: tW + tK, 2: tW, 3: tK + tW, 4: tW + tK}[WM]
    p("s_barrier")
    seq(p, kv_loads(opts) + hk_loads(opts))
    if WM == 4: p(tq_.pop(0), vm="warm")
    for x in phase2_srds(): p.add(x)
    p.wait(vm="hk")
    p("s_barrier")
    for _ in range(opts.get("warm1", 1)):
        if tq_: p(tq_.pop(0), vm="warm")
    for x in kv_compute() + kv_stores(): p.add(x)
    stamp(p, "a.kv", opts)
    seq(p, hk_build())
    if tq_ and opts.get("warm2", 1): p(tq_.pop(0), vm="warm")
    p.wait(vm="kvst", lg="*")
    p.add(flag_store(sFlK))
    stamp(p, "a.kvfl", opts)
    for x in tq_: p(x, vm="warm")
    stamp(p, "a.warm", opts)
    p("s_lshl_b32 s3, s2, 7\ns_add_u32 s%d, s3, %d" % (sFlH, WS_FD))
    for x in fl0_setup(): p.add(x)
    p("s_barrier")
    for mt in range(4): p("v_add_u32 v%d, 0x20000, v%d" % (uTR2 + mt, uTR + mt))
    prev = PREV
    for t in sorted(opts["_ord"]):
        if t in prev:
            p.wait(vm="w%d" % prev[t])
            for x in wd_reads(prev[t], True): p.add(x)
            p.wait(lg="*")
        seq(p, wd_loads(t, opts))
    for s in range(14): p("s_lshr_b32 s%d, s%d, 5" % (sTab + s, sTabW + s))
    kvpoll = [mk("buffer_load_dwordx2 v[%d:%d], v%d, %s, 0 offen sc1" % (uPoll, uPoll + 1, uFK, S4(sWS)), vm="kvp")]
    p.add(kvpoll[0])
    p.wait(vm="kvp")
    for x in poll_check("kva", [uPoll], kvpoll): p.add(x)
    seq(p, conv_xr())
    p("s_waitcnt vmcnt(0)")
    stamp(p, "a.pre", opts)

def pollf(t, opts):
    if opts["pollf"] == "atom":
        m = re.match(r"buffer_load_dwordx2 v\[(\d+):(\d+)\], (.*) sc1", t)
        if not m: return t
        return "v_mov_b32 v%s, 0\nv_mov_b32 v%s, 0\nbuffer_atomic_add_x2 v[%s:%s], %s sc0 sc1" % (m.group(1), m.group(2), m.group(1), m.group(2), m.group(3))
    return t.replace(" sc1", " " + opts["pollf"].replace("+", " "))
def emit(a, lines):
    for l in lines: a(l if l.endswith(":") else "  " + l)

def build(opts):
    del SLOW[:]
    if "rho" in opts: RHO[:] = [int(c) for c in str(opts["rho"]).rjust(3, "0")]
    PROF[0] = opts.get("prof", 0); SLEEP['*'] = opts.get("sleep", 4)
    name = KN + "_kernel"
    a = A()
    a(header(["; @launch grid=(256,1,1) block=(256,1,1) lds=163840"]))
    a(kernel_begin(name))
    a("s_load_dwordx8 s[80:87], s[0:1], 0\ns_load_dwordx16 s[60:75], s[0:1], 32\ns_load_dwordx2 s[76:77], s[0:1], 96")
    a("s_cmp_ge_u32 s2, 256\ns_cbranch_scc1 L_end")
    if opts.get("prof"):
        a("s_memrealtime s[78:79]\ns_memtime s[100:101]\nv_mov_b32 v255, 0\ns_waitcnt lgkmcnt(0)\nv_writelane_b32 v255, s100, 0\nv_writelane_b32 v255, s78, 62")
    p0 = Prog(); common_setup(p0, opts); c0 = p0.resolve()
    a("s_cmp_ge_u32 s2, 32\ns_cbranch_scc1 L_gemm")
    if opts.get("ipf", 1):
        a("s_getpc_b64 s[4:5]\nv_lshlrev_b32 v1, 7, v0\ns_and_b32 s4, s4, 0xffffff00\nv_min_u32 v1, L_code_end-%s-128, v1\nglobal_load_dword v200, v1, s[4:5]" % name)
    a("s_branch L_aux")
    a.label("L_gemm")
    emit(a, c0)
    p = Prog(); gemm1(p, opts); p.label("L_phase2"); phase2(p, opts)
    pa = Prog(); aux(pa, opts)
    for q in (p, pa):
        if opts.get("x_nochk"): q.ins = [y for y in q.ins if not ("s_cbranch_vccnz L_slow" in y.t)]
        if opts.get("x_nost"): q.ins = [y for y in q.ins if not (y.t.startswith("buffer_store") and "sc1" in y.t)]
        if opts.get("x_nofl"): q.ins = [y for y in q.ins if not (y.t.startswith("buffer_store_dwordx2") and "v[6:7]" in y.t)]
        if opts.get("x_nokv"): q.ins = [y for y in q.ins if not (y.vm in ("kv", "hk") and y.kind != "wait")]
        if opts.get("pollf"):
            for y in q.ins:
                if y.vm in ("kvp", "hpA", "hpB", "yp", "wfp") and y.t.startswith("buffer_load"): y.t = pollf(y.t, opts)
        if opts.get("x_nohb"): q.ins = [y for y in q.ins if not ("v39" in y.t or y.t.startswith("v_alignbit") or y.lg == "hb")]
        if opts.get("x_nowb"): q.ins = [y for y in q.ins if not (y.vm in ("w0", "w1", "w2", "w3", "w4", "w7") and y.kind != "wait")]
        if opts.get("x_drop"):
            dr = str(opts["x_drop"]).split("+")
            q.ins = [y for y in q.ins if not (y.kind != "wait" and y.vm in dr)]
        if opts.get("x_dropw"):
            dr = str(opts["x_dropw"]).split("+")
            q.ins = [y for y in q.ins if not (y.kind == "wait" and y.vm in dr)]
        if opts.get("x_nopoll"): q.ins = [y for y in q.ins if not (y.vm in ("rec", "kvp", "hpA", "hpB", "yp", "wfp") and y.kind != "wait")]
    lines = p.resolve()
    la = pa.resolve()
    pr = check_hazards(lines, "main") + check_hazards(la, "aux")
    for x in pr[:40]: print("HAZARD", x, file=sys.stderr)
    if pr: raise SystemExit("hazards")
    emit(a, lines)
    if opts.get("prof"):
        a("s_waitcnt vmcnt(0) lgkmcnt(0)\ns_memtime s[100:101]\ns_memrealtime s[78:79]\ns_load_dwordx2 s[4:5], s[0:1], 96\ns_waitcnt lgkmcnt(0)")
        a("v_writelane_b32 v255, s100, 60\nv_writelane_b32 v255, s78, 63\ns_getreg_b32 s100, hwreg(HW_REG_XCC_ID)\nv_writelane_b32 v255, s100, 61")
        a("s_lshl_b32 s6, s2, 10\ns_lshl_b32 s7, s%d, 8\ns_add_u32 s6, s6, s7\ns_add_u32 s6, s6, 0x1000000\ns_add_u32 s4, s4, s6\ns_addc_u32 s5, s5, 0" % sWave)
        a("v_lshlrev_b32 v2, 2, v1\nglobal_store_dword v2, v255, s[4:5]\ns_waitcnt vmcnt(0)")
        a("; STAMPS " + " ".join(STAMPS))
        a("; SPINS " + " ".join(SPINS))
    a.label("L_end")
    a("s_endpgm")
    a.label("L_aux")
    emit(a, c0)
    emit(a, la)
    a("s_branch L_phase2")
    for t in SLOW:
        if opts.get("pollf"): t = "\n".join(pollf(l, opts) if (l.startswith("buffer_load_dwordx2 v[25") or l.startswith("buffer_load_dwordx2 v[2:3]") or l.startswith("buffer_load_dwordx4 v[250")) else l for l in t.split("\n"))
        a(t)
    a.label("L_code_end")
    a(RODATA)
    a(kernel_desc(name, 512, 102, 256))
    return a.text()

if __name__ == "__main__":
    opts = {}
    for kv in sys.argv[2:]:
        k, _, v = kv.partition("=")
        opts[k] = int(v) if v.lstrip("-").isdigit() else (v if v else 1)
    for k in ("fw", "fx", "fd", "fk", "fkv", "fo", "fr"):
        if k in opts: opts[k] = "" if opts[k] == "none" else " " + opts[k].replace("+", " ")
    open(sys.argv[1], "w").write(build(opts))
```

```python
import sys, struct, re
from asmlib import *
from sched import *

WS_H  = 0x000000
WS_XR = 0x700000
WS_YT = 0x900000
WS_ST = 0xB00000
WS_FK = 0xB08000
WS_FH = 0xB10000
WS_FY = 0xB18000
WS_FD = 0xB20000
WS_FL = 0x20000
WS_CS = 0xB48000
WS_SZ = 0xC00000
LOG2E = 1.4426950408889634
SPIN_MAX = 1 << 16

def f2u(x): return struct.unpack("<I", struct.pack("<f", x))[0]
def vr(b, n=4, p="v"): return "%s[%d:%d]" % (p, b, b + n - 1) if n > 1 else "%s%d" % (p, b)
def S4(b): return "s[%d:%d]" % (b, b + 3)
def srd(p, d, lo, size):
    p("s_mov_b32 s%d, s%d\ns_and_b32 s%d, s%d, 0xffff\ns_mov_b32 s%d, 0x%x\ns_mov_b32 s%d, 0x20000" % (d, lo, d + 1, lo + 1, d + 2, size, d + 3))
def ml(t, **kw): return [mk(x, **kw) for x in t.split("\n")]
def bundle(t):
    b = I(t, cost=4 * len(t.split("\n"))); b.kind = "bundle"; return b

SLOT = 32768
CONV = 98304; CH_STRIDE = 12928; XR_OFF = 8320
UNIT = [141312, 0, 16384, 32768, 49152, 65536, 81920, 124416]
WUN = {t: t % 7 for t in range(14)}
WUN[5] = 7; PREV = {7: 0, 8: 1, 9: 2, 10: 3, 11: 4, 13: 6}
def wdl(s): return UNIT[WUN[s]]
KVL = 141312
RS = 272; REDW = 32 * RS
RED = [CONV, 0]
YT_L = CONV + 4 * REDW; XCH = CONV
sQ = 8; sW = 12; sWS = 16; sWave = 20; sTB = 21; sCB = 22; sLdsX = 23; sLdsW = 24; sLdsXB = 25; sT0 = 26; sT1 = 27
sHa = 28; sST = 29; sFlK = 30; sDoff = 31; sDbg = 32; sT2 = 34; sT3 = 35; sWd = 36; sHk = 40; sOut = 44; sTag = 48
sXB = 50
sCSw = 52; sTB2 = 53; sDB = 54; sCV = 55; sXRso = 56; sYoff = 57; sFlH = 58; sFlY = 59
sTabW = 60
sHalf = 74; sCh4k = 75; sSpin = 76; sWdL = 77
sDp = 80
sTab = 84
sK = 36; sV = 44; sSh = 64
kSK = 60; kD = 62;
kBX = 64; kWG = 66; kWU = 68; kWD = 70; kOUT = 72; kDBG = 74; kWS = 76; kQ = 80; kK = 82; kV = 84; kSH = 86
vKD = 2
vTag = 6; vFl = 8
vWD = 10; vXD = 14; vXA = 18; vWA = 26; vHoff = 28; vSToff = 29; vCSoff = 30; vL16 = 31; vNon = 32
vKA = 36; vKO = 37; vSH = 38
vR1A = 40; vR1B = 44; vOnes = 44; vST = 52; vXF = 84; vACC = 116; vTMP = 212; vOUT = 220
vCSR = 180; vCSA = 196
uWD = 228; uH = 232; uTR = 236; uCA = 240; uCB = 241; uYst = 242; uFY = 243; uX = 244; uSto = 245; uFH = 246; uFK = 247
uHead = 248; uHeadA = 249; uPoll = 250; uD = 254
uAD = 40; uTmp = 32; uXin = 44; uSt = 52; uCacc = 184; uAcc = 120
vCF = 56; aH = 0
def wfrag(s, mt):
    if s < 8: return "a", 128 + 16 * s + 4 * mt
    if s < 10: return "v", 184 + 16 * (s - 8) + 4 * mt
    return "v", 56 + 16 * (s - 10) + 4 * mt

STAMPS = ["start"]
def stamp_l(name, opts, lvl=1):
    if not opts.get("prof") or opts.get("plvl", 1) == 0 or (lvl > 1 and lvl != opts.get("plvl", 1)): return []
    if name not in STAMPS: STAMPS.append(name)
    idx = STAMPS.index(name)
    assert idx < 48
    return ml("s_memtime s[100:101]\ns_waitcnt lgkmcnt(0)\nv_writelane_b32 v255, s100, %d" % idx, cost=0)
def stamp(p, name, opts, lvl=1):
    for x in stamp_l(name, opts, lvl): p.add(x)

def acc_of(t): return vACC + 16 * {0: 0, 1: 1, 2: 2, 3: 3, 4: 4, 5: 5, 6: 0, 7: 1}[t]
def win(addr): return addr >> 16, addr & 0xffff
def dma(v, srd_, so, off, tag, fl=""):
    return mk("buffer_load_dwordx4 v%d, %s, %s offen offset:%d%s lds" % (v, S4(srd_), so, off, fl), vm=tag)
def is_m0(x): return " m0," in x.t
def is_vm(x): return x.t.startswith("buffer_") or x.t.startswith("global_")
def seq(p, L):
    L = [x for x in L if x.kind != "delay"]
    for i, x in enumerate(L):
        p.add(x)
        if is_m0(x) and i + 1 < len(L) and is_vm(L[i + 1]): p("s_nop 0")
vFl0 = 9
def flag_store(so, wg=False, tag="fl"):
    return mk("buffer_store_dwordx2 v[%d:%d], v%d, %s, s%d offen sc1" % (vTag, vTag + 1, vFl0 if wg else vFl, S4(sWS), so), vm=tag)
def fl0_setup():
    return ml("s_lshl_b32 s6, s%d, 31\ns_lshl_b32 s7, s%d, 30\ns_or_b32 s6, s6, s7\ns_and_b32 s6, s6, 0x80000000\nv_or_b32 v%d, s6, v%d" % (sWave, sWave, vFl0, vFl))

def g1_stage(s, opts):
    L = []; base = (s % 3) * SLOT; tag = "st%d" % s
    fw = opts.get("fw", ""); fx = opts.get("fx", "")
    if s < 8:
        L.append(mk("s_add_u32 m0, s%d, %d" % (sLdsW, base)))
        L += [dma(vWD + j, sW, "s%d" % (sTab + s), j * 1024, tag, fw) for j in range(4)]
        L.append(mk("s_add_u32 m0, s%d, %d" % (sLdsX, base)))
        L += [dma(vXD + j, sQ, "s%d" % (sTab + 8 + s), j * 1024, tag, fx) for j in range(4)]
    else:
        for h in range(2):
            L.append(mk("s_add_u32 m0, s%d, %d" % (sLdsXB, base + h * 4096)))
            L.append(mk("s_add_u32 s%d, s%d, %d" % (sT0 + h, sXB + h, (s - 8) * 32768)))
            L += [dma(vXD + j, sQ, "s%d" % (sT0 + h), j * 1024, tag, fx) for j in range(4)]
    return L
def wd_loads(s, opts):
    return [mk("s_add_u32 m0, s%d, %d" % (sWdL, wdl(s)))] + \
           [dma(uWD + j, sWd, "s%d" % (sTabW + s), j * 1024, "w%d" % s, opts.get("fd", "")) for j in range(4)]
def h_loads(hs):
    ps, s = divmod(hs, 14)
    L = []
    for e in range(2):
        r = aH + 8 * (hs % 16) + 4 * e
        L.append(mk("buffer_load_dwordx4 a[%d:%d], v%d, %s, s%d offen sc1" % (r, r + 3, uH + 2 * ps + e, S4(sWS), sTab + s), vm="h%d" % hs))
    return L
HI = {1: 216, 2: 220}
uTR2 = 2
def wd_reads(s, inB=False):
    L = []
    w, off = win(wdl(s))
    for mt in range(4):
        k, b = wfrag(s, mt)
        reg = uTR + mt if w == 0 else (uTR2 + mt if inB else HI[w] + mt)
        L.append(mk("ds_read_b64_tr_b16 %s[%d:%d], v%d offset:%d" % (k, b, b + 1, reg, off), lg="t%d" % s))
        L.append(mk("ds_read_b64_tr_b16 %s[%d:%d], v%d offset:%d" % (k, b + 2, b + 3, reg, off + 512), lg="t%d" % s))
    return L
def hk_loads(opts):
    L = ml("s_lshl_b32 s6, s%d, 11\ns_add_u32 m0, s6, s%d\ns_add_u32 m0, m0, 32" % (sHalf, sCV))
    L += [dma(vL16, sHk, "s6", j * 1024, "hk", opts.get("fk", "")) for j in range(2)]
    L.append(mk("buffer_load_ushort v%d, v%d, %s, 0 offen" % (uHead, uHead, S4(sHk)), vm="hk"))
    L.append(mk("buffer_load_ushort v%d, off, %s, s%d" % (uD, S4(sDp), sDoff), vm="hk"))
    return L
def delay(n):
    d = I("; delay", cost=0); d.kind = "delay"; d.vm = n; return d
def hk_build(alt=0):
    D = [212, 213, 214, 215, 216, 217]; E1 = 220; E3 = 224; C2 = 52
    if alt: D = [10, 11, 12, 13, 26, 27]; E1 = 32; E3 = 32; C2 = 32
    L = ml("s_lshl_b32 s5, s%d, 11\ns_add_u32 s5, s5, s%d\nv_add_u32 v39, s5, v%d\nds_write_b16 v%d, v%d" % (sHalf, sCV, vL16, uHeadA, uHead))
    for j in range(2):
        o = 32 + j * 1024
        L.append(mk("ds_read_b128 %s, v39 offset:%d" % (vr(D[0]), o), lg="hb"))
        L.append(mk("ds_read_b32 v%d, v39 offset:%d" % (D[4], o + 16), lg="hb"))
        L += [delay(5), W(lg="hb")]
        L += [mk("v_alignbit_b32 v%d, v%d, v%d, 16" % (E1 + i, D[i + 1], D[i])) for i in range(4)]
        L += [delay(1), mk("ds_write_b128 v39, %s offset:%d" % (vr(E1), o + 4160), cost=12), delay(2)]
    return L
def conv_xr():
    L = ml("s_lshl_b32 s7, s%d, 10\ns_add_u32 m0, s7, %d" % (sWave, CONV + XR_OFF))
    L += [dma(vL16, sWS, "s%d" % sXRso, 0, "cv", " sc1")]
    L += ml("s_add_u32 s%d, s%d, 4096\ns_add_u32 m0, s7, %d" % (sXRso, sXRso, CONV + CH_STRIDE + XR_OFF))
    L += [dma(vL16, sWS, "s%d" % sXRso, 0, "cv", " sc1")]
    return L
CAR = [uCA, 10, 11, 12]
def conv_reads(rr):
    L = []; b = vCF + 64 * (rr & 1)
    for i in range(8):
        a = b + 4 * i; t = "c%d_%d" % (rr, i)
        ar = CAR[i >> 1]; o = 16 * rr + 128 * (i & 1)
        L.append(mk("ds_read2_b32 v[%d:%d], v%d offset0:%d offset1:%d" % (a, a + 1, ar, o, o + 1), lg=t))
        L.append(mk("ds_read2_b32 v[%d:%d], v%d offset0:%d offset1:%d" % (a + 2, a + 3, ar, o + 2, o + 3), lg=t))
        L.append(mk("ds_read_b128 v[%d:%d], v%d offset:%d" % (a + 32, a + 35, uCB, 3584 - 512 * i + 64 * rr), lg=t))
    return L

def kv_setup(p):
    p("s_lshr_b32 s3, s2, 3\ns_lshl_b32 s3, s3, 16\ns_and_b32 s4, s2, 7\ns_lshl_b32 s5, s4, 7\ns_add_u32 s5, s5, s3")
    p("v_lshrrev_b32 v9, 3, v1\nv_and_b32 v%d, 7, v1\nv_lshlrev_b32 v%d, 4, v%d\nv_lshl_add_u32 v%d, v9, 10, v%d" % (vSH, vKD, vSH, vKD, vKD))
    p("s_add_u32 s6, s5, %d\nv_add_u32 v%d, s6, v%d" % (56 * 1024, vKD + 2, vKD))
    p("s_lshl_b32 s6, s%d, 14\ns_add_u32 s5, s5, s6\nv_add_u32 v%d, s5, v%d" % (sWave, vKD + 1, vKD))
    p("v_add_u32 v%d, 0xffffe000, v%d\nv_add_u32 v%d, %d, v%d" % (vKD, vKD + 1, vKD + 3, 8192 - 1056, vKD + 1))
    p("s_lshl_b32 s6, s%d, 5\ns_add_u32 s6, s6, %d\nv_mul_u32_u24 v%d, 1056, v9\nv_lshl_add_u32 v%d, v%d, 2, v%d\nv_add_u32 v%d, s6, v%d" % (sWave, KVL, vKA, vKA, vSH, vKA, vKA, vKA))
    p("s_lshl_b32 s6, s4, 18\ns_lshl_b32 s7, s%d, 16\ns_add_u32 s6, s6, s7\ns_lshr_b32 s7, s3, 9\ns_sub_u32 s6, s6, s7\ns_add_u32 s6, s6, %d" % (sWave, WS_XR + 4080))
    p("v_lshlrev_b32 v%d, 13, v%d\nv_lshlrev_b32 v9, 4, v9\nv_sub_u32 v%d, v%d, v9\nv_add_u32 v%d, s6, v%d" % (vKO, vSH, vKO, vKO, vKO, vKO))
    p("s_lshl_b32 s6, s4, 9\ns_lshl_b32 s7, s%d, 7\ns_add_u32 s6, s6, s7\nv_lshl_add_u32 v%d, v%d, 4, s6" % (sWave, vSH, vSH))
    p("s_lshl_b32 s6, s2, 7\ns_lshl_b32 s7, s%d, 3\ns_add_u32 s6, s6, s7\ns_add_u32 s%d, s6, %d" % (sWave, sFlK, WS_FK))
    srd(p, sK, kK, 2048 * 1024); srd(p, sV, kV, 2048 * 1024); srd(p, sSh, kSH, 4096)
def kv_loads(opts):
    f = opts.get("fkv", " nt")
    L = ml("s_mul_i32 s6, s%d, 2112\ns_add_u32 s6, s6, %d\ns_mov_b32 m0, s6" % (sWave, KVL))
    L += [dma(vKD, sK, "0", 0, "kv", f), mk("s_add_u32 m0, s6, 1056"), dma(vKD + 1, sK, "0", 0, "kv", f),
          mk("s_mov_b32 m0, %d" % (KVL + 8 * 1056)), dma(vKD + 2, sK, "0", 0, "kv", f),
          mk("s_add_u32 m0, s6, %d" % (9 * 1056)), dma(vKD + 1, sV, "0", 0, "kv", f), dma(vKD + 3, sV, "0", 1056, "kv", f),
          mk("buffer_load_dwordx4 v[72:75], v%d, %s, 0 offen" % (vSH, S4(sSh)), vm="kv")]
    return L
def kv_compute():
    RK = 52; RV = 63; Wt = 76; K = 212; A = 223; V = 225
    L = []
    for j in range(11): L.append(mk("ds_read_b32 v%d, v%d offset:%d" % (RK + j, vKA, (5 + j) * 128 if j < 3 else 1056 + (j - 3) * 128), lg="kvr"))
    for t in range(8): L.append(mk("ds_read_b32 v%d, v%d offset:%d" % (RV + t, vKA, 9 * 1056 + t * 128), lg="kvr"))
    un = lambda d, s_, hi: mk(("v_and_b32 v%d, 0xffff0000, v%d" if hi else "v_lshlrev_b32 v%d, 16, v%d") % (d, s_))
    for e in range(2):
        for i in range(4): L.append(un(Wt + 4 * e + i, 72 + 2 * e + (i >> 1), i & 1))
    L.append(W(lg="kvr"))
    for e in range(2):
        o = (vNon, uPoll)[e]
        for j in range(11): L.append(un(K + j, RK + j, e))
        for t in range(8):
            a = A + (t & 1)
            L.append(mk("v_mul_f32 v%d, v%d, v%d" % (a, K + t, Wt + 4 * e + 3)))
            L.append(un(V, RV + t, e))
            for i in (2, 1, 0): L.append(mk("v_fmac_f32 v%d, v%d, v%d" % (a, K + t + 3 - i, Wt + 4 * e + i)))
            L.append(mk("v_mul_f32 v%d, v%d, v%d" % (a, a, V)))
            if t & 1: L.append(mk("v_cvt_pk_bf16_f32 v%d, v%d, v%d" % (o + 3 - (t >> 1), A + 1, A)))
    return L
def kv_stores():
    return [mk("s_mov_b32 s%d, 4096" % sT2),
            mk("buffer_store_dwordx4 %s, v%d, %s, 0 offen sc1" % (vr(vNon), vKO, S4(sWS)), vm="kvst"),
            mk("buffer_store_dwordx4 %s, v%d, %s, s%d offen sc1" % (vr(uPoll), vKO, S4(sWS), sT2), vm="kvst")]

SLOW = []
SPINS = []
SLEEP = {'*': 8, 'kva': 16, 'ng': 4, 'na': 4}
PROF = [0]
def spin(name, reload_, test, okbr):
    t = ["L_slow_%s:" % name, "s_mov_b32 s%d, 1" % sSpin, "L_spin_%s:" % name, "s_sleep %d" % SLEEP.get(name, SLEEP['*'])]
    if PROF[0]:
        SPINS.append(name); t.append("v_writelane_b32 v255, s%d, %d" % (sSpin, 47 + len(SPINS)))
    t += [x.t for x in reload_] + ["s_waitcnt vmcnt(0)"] + [x.t for x in test]
    t += ["%s L_ok_%s" % (okbr, name), "s_add_u32 s%d, s%d, 1" % (sSpin, sSpin), "s_cmp_lt_u32 s%d, %d" % (sSpin, SPIN_MAX),
          "s_cbranch_scc1 L_spin_%s" % name, "s_branch L_ok_%s" % name]
    SLOW.append("\n".join(t))
def poll_check(name, regs, reload_, bits=64):
    L = []
    for i, r in enumerate(regs):
        op = "v_cmp_ne_u64 %%s, s[%d:%d], v[%d:%d]" % (sTag, sTag + 1, r, r + 1) if bits == 64 else "v_cmp_ne_u32 %%s, s%d, v%d" % (sTag, r)
        if i == 0: L.append(mk(op % "vcc"))
        else: L += ml(op % "s[4:5]" + "\ns_or_b64 vcc, vcc, s[4:5]")
    spin(name, reload_, L, "s_cbranch_vccz")
    return L + [mk("s_cbranch_vccnz L_slow_%s" % name), I("L_ok_%s:" % name, kind="label", cost=0)]
def nonce_get(name):
    ld = mk("global_load_dwordx2 v[%d:%d], v%d, s[%d:%d] sc1" % (vNon, vNon + 1, vNon + 2, sDbg, sDbg + 1), vm="non")
    t = ml("v_readfirstlane_b32 s%d, v%d\nv_readfirstlane_b32 s%d, v%d\ns_cmp_lg_u32 s%d, 0" % (sTag, vNon, sTag + 1, vNon + 1, sTag))
    spin(name, [ld], t, "s_cbranch_scc1")
    chk = t[:2] + [bundle(t[2].t + "\ns_cbranch_scc0 L_slow_%s" % name), I("L_ok_%s:" % name, kind="label", cost=0)]
    chk += ml("v_mov_b32 v%d, v%d\nv_mov_b32 v%d, v%d" % (vTag, vNon, vTag + 1, vNon + 1))
    return ld, chk

def g1_epilogue(tile, opts):
    A0 = acc_of(tile)
    c4 = vST + 4 * tile + 1; c1 = vST + 4 * tile + 2
    g = [A0 + (p >> 2) * 8 + (p & 3) for p in range(8)]
    u = [x + 4 for x in g]
    o = vOUT + 4 * (tile & 1)
    st = []
    for p in range(8):
        t = vTMP + p
        st.append([mk("v_mul_f32 v%d, v%d, v%d" % (g[p], g[p], c1)), mk("v_exp_f32 v%d, v%d" % (t, g[p])),
                   mk("v_mul_f32 v%d, v%d, v%d" % (u[p], g[p], u[p])), mk("v_fma_f32 v%d, v%d, v%d, v%d" % (t, t, c4, c4)),
                   mk("v_rcp_f32 v%d, v%d" % (t, t)), mk("v_mul_f32 v%d, v%d, v%d" % (u[p], u[p], t))])
    R = []; pend = []
    for step in range(18):
        for k in (5, 4, 3, 2, 1, 0):
            p = step - 2 * k
            if 0 <= p < 8:
                R.append(st[p][k])
                for q in pend: R.append(mk("v_cvt_pk_bf16_f32 v%d, v%d, v%d" % (o + (q >> 1), u[q - 1], u[q])))
                pend = [p] if (k == 5 and p & 1) else []
    for q in pend: R.append(mk("v_cvt_pk_bf16_f32 v%d, v%d, v%d" % (o + (q >> 1), u[q - 1], u[q])))
    R.append(mk("s_add_u32 s%d, s%d, %d" % (sT3, sHa, tile * 2 * 56 * 1024)))
    if not opts.get("x_nohst"): R.append(mk("buffer_store_dwordx4 %s, v%d, %s, s%d offen%s" % (vr(o), vHoff, S4(sWS), sT3, "" if opts.get("x_hplain") else " sc1"), vm="hst%d" % tile))
    return R

def common_setup(p, opts):
    p("v_and_b32 v1, 63, v0\nv_lshrrev_b32 v2, 6, v0\nv_lshlrev_b32 v%d, 4, v1\nv_readfirstlane_b32 s%d, v2" % (vL16, sWave))
    p("v_lshrrev_b32 v2, 3, v1\nv_and_b32 v3, 7, v1\nv_lshrrev_b32 v9, 4, v1\nv_mov_b32 v%d, 0" % (vNon + 2))

def phase2_setup(p, opts):
    q, n, a, b, c, d = 40, 41, 42, 43, 44, 45
    p("s_and_b32 s3, s2, 7\ns_lshr_b32 s4, s2, 3\ns_lshl_b32 s3, s3, 2\ns_and_b32 s5, s4, 3\ns_add_u32 s%d, s3, s5\ns_lshr_b32 s%d, s4, 2" % (sTB2, sDB))
    if opts.get("dbx", 3): p("s_xor_b32 s%d, s%d, %d" % (sDB, sDB, opts.get("dbx", 3)))
    p("v_lshrrev_b32 v%d, 4, v1\nv_and_b32 v%d, 15, v1" % (q, n))
    p("v_lshrrev_b32 v%d, 3, v1\nv_and_b32 v%d, 7, v1\nv_and_b32 v%d, 1, v%d\nv_lshlrev_b32 v%d, 1, v%d\nv_xor_b32 v%d, v%d, v%d" % (a, b, c, q, c, c, c, c, b))
    p("s_lshl_b32 s7, s%d, 7\ns_mul_i32 s5, s%d, %d\ns_add_u32 s7, s7, s5" % (sDB, sWave, 448 * 1024))
    if opts.get("x_wsame"): p("s_mov_b32 s7, s5")
    p("v_lshlrev_b32 v%d, 4, v%d\nv_lshl_add_u32 v%d, v%d, 10, v%d\nv_add_u32 v%d, s7, v%d\nv_xor_b32 v%d, 64, v%d" % (c, c, c, a, c, uWD, c, c, uWD))
    p("v_add_u32 v%d, 7168, v%d\nv_add_u32 v%d, 14336, v%d\nv_add_u32 v%d, 21504, v%d" % (uWD + 1, c, uWD + 2, uWD, uWD + 3, c))
    p("s_lshr_b32 s5, s%d, 2\ns_lshl_b32 s5, s5, 4\ns_and_b32 s6, s%d, 3\ns_lshl_b32 s6, s6, 1\ns_add_u32 s6, s5, s6" % (sTB2, sTB2))
    if opts.get("x_hsame"): p("s_and_b32 s6, s6, 0xfffffff0")
    p("s_mul_i32 s5, s6, 57344\ns_mul_i32 s7, s%d, 14336\ns_add_u32 s5, s5, s7\nv_add_u32 v%d, s5, v%d" % (sWave, uH, vL16))
    p("v_add_u32 v%d, 57344, v%d\nv_add_u32 v%d, %d, v%d\nv_add_u32 v%d, %d, v%d" % (uH + 1, uH, uH + 2, 8 * 57344, uH, uH + 3, 9 * 57344, uH))
    p("s_lshl_b32 s5, s6, 4\ns_lshl_b32 s7, s%d, 3\ns_add_u32 s5, s5, s7\nv_lshrrev_b32 v%d, 5, v1\nv_and_b32 v%d, 3, v1\nv_lshl_add_u32 v%d, v%d, 2, v%d\nv_add_u32 v%d, s5, v%d" % (sWave, c, d, c, c, d, c, c))
    p("v_bfe_u32 v%d, v1, 2, 3\nv_lshlrev_b32 v%d, 4, v%d\nv_lshl_add_u32 v%d, v%d, 10, v%d\ns_lshl_b32 s7, s%d, 7\nv_add_u32 v%d, s7, v%d" % (d, d, d, d, c, d, sDB, uX, d))
    p("v_lshlrev_b32 v%d, 3, v%d\nv_add_u32 v%d, %d, v%d" % (c, c, uSto, WS_ST, c))
    p("v_bfe_u32 v%d, v1, 2, 2\nv_and_b32 v%d, 3, v1\nv_lshrrev_b32 v%d, 1, v%d\nv_and_b32 v%d, 1, v%d\nv_lshl_add_u32 v%d, v%d, 1, v%d" % (a, b, c, a, d, q, c, d, c))
    p("v_lshl_add_u32 v%d, v%d, 3, v%d\nv_lshlrev_b32 v%d, 7, v%d\nv_lshl_add_u32 v%d, v%d, 3, v%d\nv_add_u32 v%d, s%d, v%d" % (a, q, a, a, a, a, b, a, a, sWdL, a))
    p("v_lshl_add_u32 v%d, v%d, 5, v%d" % (uTR, c, a))
    for mt in range(1, 4): p("v_xor_b32 v%d, %d, v%d" % (uTR + mt, 32 * mt, uTR))
    p("v_add_u32 v%d, 1, v%d\nv_and_b32 v%d, 1, v%d\nv_sub_u32 v%d, v%d, v%d\nv_lshl_add_u32 v%d, v%d, 3, v%d\nv_lshlrev_b32 v%d, 1, v%d" % (a, n, b, a, a, a, b, a, q, a, a, a))
    p("v_mul_u32_u24 v%d, 4160, v%d\ns_lshl_b32 s7, s%d, 8\ns_add_u32 s7, s7, s%d\nv_add3_u32 v%d, v%d, v%d, s7" % (b, b, sHalf, sCV, uCA, a, b))
    p("v_lshlrev_b32 v%d, 5, v%d\nv_lshlrev_b32 v%d, 4, v%d\nv_sub_u32 v%d, v%d, v%d\ns_add_u32 s7, s7, %d\nv_add_u32 v%d, s7, v%d" % (a, n, b, q, a, b, a, XR_OFF + 480, uCB, a))
    p("v_and_b32 v%d, 1, v%d\nv_mul_u32_u24 v%d, 4160, v%d\nv_lshl_add_u32 v%d, v%d, 1, v%d\nv_add_u32 v%d, s%d, v%d" % (a, q, a, a, a, n, a, uHeadA, sCV, a))
    p("v_mov_b32 v46, 0\nv_mov_b32 v47, 0\nv_lshlrev_b32 v%d, 3, v1\ns_add_u32 s7, s%d, %d\nv_add_u32 v%d, s7, v%d" % (a, sCV, XR_OFF + 4096, a, a))
    p("ds_write_b64 v%d, v[46:47]" % a)
    p("v_and_b32 v%d, 2, v%d\nv_lshlrev_b32 v%d, 3, v%d\nv_lshl_add_u32 v%d, v%d, 5, v%d\nv_and_b32 v%d, 1, v%d\nv_lshl_add_u32 v%d, v%d, 9, v%d" % (a, q, a, a, a, n, a, b, q, uYst, b, a))
    p("s_lshl_b32 s7, s%d, 11\ns_add_u32 s7, s7, s%d\ns_add_u32 s%d, s7, %d" % (sHalf, sCh4k, sYoff, WS_YT))
    p("s_lshl_b32 s7, s2, 13\ns_lshl_b32 s3, s%d, 10\ns_add_u32 s7, s7, s3\ns_add_u32 s%d, s7, %d" % (sWave, sXRso, WS_XR))
    p("s_lshl_b32 s7, s2, 7\ns_add_u32 s%d, s7, %d" % (sFlY, WS_FY))
    p("v_and_b32 v%d, 7, v1\nv_lshlrev_b32 v%d, 7, v%d" % (a, a, a))
    p("s_lshl_b32 s7, s%d, 12\ns_lshl_b32 s3, s%d, 10\ns_add_u32 s7, s7, s3\ns_add_u32 s7, s7, %d\nv_add_u32 v%d, s7, v%d" % (sDB, sWave, WS_FY, uFY, a))
    p("v_min_u32 v%d, 6, v1\nv_lshlrev_b32 v%d, 7, v%d" % (a, a, a))
    p("s_lshr_b32 s7, s%d, 2\ns_lshl_b32 s7, s7, 5\ns_mul_i32 s3, s%d, 7\ns_add_u32 s7, s7, s3\ns_lshl_b32 s7, s7, 7\ns_add_u32 s7, s7, %d\nv_add_u32 v%d, s7, v%d" % (sTB2, sWave, WS_FH, uFH, a))
    p("v_and_b32 v%d, 7, v1\nv_lshlrev_b32 v%d, 10, v%d\ns_lshr_b32 s7, s2, 5\ns_lshl_b32 s7, s7, 7\ns_and_b32 s3, s2, 24\ns_add_u32 s7, s7, s3" % (a, a, a))
    p("s_lshl_b32 s3, s%d, 13\ns_sub_u32 s7, s7, s3\ns_add_u32 s7, s7, %d\nv_sub_u32 v%d, s7, v%d" % (sWave, WS_FK + 31 * 1024, uFK, a))
    p("v_cmp_ne_u32 vcc, 0, v1\nv_mov_b32 v%d, 0x80000000\nv_mov_b32 v%d, 0\nv_cndmask_b32 v%d, v%d, v%d, vcc" % (a, b, vFl, b, a))

def hk_srds(p):
    p("s_add_u32 s%d, s60, s%d\ns_addc_u32 s%d, s61, 0\ns_and_b32 s%d, s%d, 0xffff\ns_sub_u32 s%d, 0x200000, s%d\ns_mov_b32 s%d, 0x20000" % (sHk, sCh4k, sHk + 1, sHk + 1, sHk + 1, sHk + 2, sCh4k, sHk + 3))
    srd(p, sDp, kD, 1024)
def ids2(p):
    p("s_lshr_b32 s3, s%d, 1\ns_lshl_b32 s4, s2, 1\ns_add_u32 s4, s4, s3\ns_mul_i32 s%d, s3, %d\ns_add_u32 s%d, s%d, %d" % (sWave, sCV, CH_STRIDE, sCV, sCV, CONV))
    p("s_and_b32 s%d, s%d, 1\ns_lshl_b32 s%d, s4, 12\ns_lshl_b32 s%d, s4, 1\ns_lshl_b32 s%d, s%d, 12" % (sHalf, sWave, sCh4k, sDoff, sWdL, sWave))
    p("v_bfe_u32 v40, v1, 4, 1\nv_and_b32 v41, 15, v1\nv_add_u32 v42, v40, v41\nv_add_u32 v42, -16, v42\nv_lshlrev_b32 v%d, 1, v42" % uHead)
RHO = [2, 4, 1]
def phase2_srds():
    L = []
    for d, lo, size in ((sWd, kWD, 1792 * 1024), (sOut, kOUT, 2048 * 1024)):
        L += ml("s_mov_b32 s%d, s%d\ns_and_b32 s%d, s%d, 0xffff\ns_mov_b32 s%d, 0x%x\ns_mov_b32 s%d, 0x20000" % (d, lo, d + 1, lo + 1, d + 2, size, d + 3))
    L += ml("s_mul_i32 s3, s%d, %d\ns_and_b32 s7, s%d, 3\ns_mul_i32 s7, s7, %d\ns_add_u32 s3, s3, s7\ns_lshr_b32 s7, s%d, 2\ns_mul_i32 s7, s7, %d\ns_add_u32 s3, s3, s7" % (sDB, RHO[0], sTB2, RHO[1], sTB2, RHO[2]))
    L += ml("s_mul_i32 s7, s3, 4682\ns_lshr_b32 s7, s7, 16\ns_mul_i32 s7, s7, 14\ns_sub_u32 s3, s3, s7\ns_lshl_b32 s3, s3, 15")
    for s in range(14):
        L += ml("s_mov_b32 s%d, s3" % (sTabW + s))
        if s < 13: L += ml("s_add_u32 s3, s3, 0x8000") + [bundle("s_cmp_eq_u32 s3, 0x70000\ns_cselect_b32 s3, 0, s3")]
    return L

class Filler:
    def __init__(self, space=2):
        self.vq = []; self.xq = []; self.last = -9; self.space = space
    def v(self, at, L): self.vq += [(at, x) for x in L]
    def x(self, at, L): self.xq += [(at, y) for y in L]
    def fill(self, gi, gap, budget, xbudget=None):
        used = lambda: sum(y.cost for y in gap)
        nv = 0
        for q in (self.vq, self.xq):
            if q and q[0][1].kind == "delay" and q[0][0] <= gi:
                n = q.pop(0)[1].vm
                if q: q[0] = (max(q[0][0], gi + n), q[0][1])
        while self.vq and self.vq[0][0] <= gi and used() + self.vq[0][1].cost <= budget:
            at, y = self.vq[0]
            if y.kind == "delay": break
            if is_vm(y) and y.t.endswith(" lds"):
                lag = gi - at
                if nv >= 1 or (gi - self.last < self.space and lag < 14): break
                nv += 1; self.last = gi
            gap.append(y); self.vq.pop(0)
            if is_m0(y): break
        while self.xq and self.xq[0][0] <= gi and used() + self.xq[0][1].cost <= (xbudget or budget):
            if self.xq[0][1].kind == "delay": break
            gap.append(self.xq.pop(0)[1])

def gemm1(p, opts):
    p("s_sub_u32 s3, s2, 32\ns_and_b32 s4, s3, 7\ns_lshr_b32 s5, s3, 3")
    p("s_and_b32 s6, s4, 1\ns_and_b32 s7, s5, 3\ns_lshl_b32 s34, s7, 1\ns_add_u32 s34, s34, s6\ns_lshl_b32 s6, s6, 2\ns_add_u32 s%d, s6, s7" % sTB)
    p("s_lshr_b32 s6, s4, 1\ns_mul_i32 s6, s6, 7\ns_lshr_b32 s7, s5, 2\ns_add_u32 s7, s7, %d\ns_cmp_ge_u32 s7, 7\ns_cselect_b32 s5, 7, 0\ns_sub_u32 s7, s7, s5\ns_add_u32 s%d, s6, s7" % (opts.get("cbr", 0), sCB)) if opts.get("cbr") else p("s_lshr_b32 s6, s4, 1\ns_mul_i32 s6, s6, 7\ns_lshr_b32 s7, s5, 2\ns_add_u32 s%d, s6, s7" % sCB)
    p("s_add_u32 s34, s34, s%d\ns_and_b32 s34, s34, 7" % sCB)
    p("v_xor_b32 v5, v9, v3\nv_lshlrev_b32 v5, 4, v5\nv_lshl_add_u32 v%d, v2, 10, v5\nv_xor_b32 v5, 64, v%d" % (vXD, vXD))
    p("v_add_u32 v%d, 7168, v5\nv_add_u32 v%d, 14336, v%d\nv_add_u32 v%d, 21504, v5" % (vXD + 1, vXD + 2, vXD, vXD + 3))
    p("s_lshr_b32 s3, s%d, 1\ns_lshl_b32 s3, s3, 2" % sWave)
    p("v_and_b32 v5, 1, v9\nv_lshlrev_b32 v5, 1, v5\nv_xor_b32 v5, s3, v5\nv_xor_b32 v5, v5, v3\nv_lshlrev_b32 v5, 4, v5")
    p("s_and_b32 s4, s%d, 1\ns_mul_i32 s4, s4, %d\ns_lshl_b32 s5, s%d, 7\ns_add_u32 s4, s4, s5" % (sWave, 32 * 3584, sCB))
    p("v_mul_u32_u24 v6, 3584, v2\nv_add3_u32 v%d, v5, v6, s4" % vWD)
    for j in range(1, 4): p("v_add_u32 v%d, %d, v%d" % (vWD + j, j * (8 * 3584 - 1024), vWD))
    p("s_lshl_b32 s35, s%d, 18\ns_lshl_b32 s4, s%d, 15\ns_add_u32 s7, s35, s4" % (sTB, sWave))
    p("s_lshl_b32 s%d, s%d, 12\ns_add_u32 s%d, s%d, 16384" % (sLdsW, sWave, sLdsX, sLdsW))
    p("s_mul_i32 s%d, s34, %d\ns_lshl_b32 s3, s34, 7\ns_add_u32 s%d, s3, s7" % (sTab + 4, 64 * 3584, sTab + 8))
    p("s_waitcnt lgkmcnt(0)")
    srd(p, sQ, kQ, 2048 * 1024)
    p("s_cmp_ge_u32 s%d, 2\ns_cselect_b32 s66, s68, s66\ns_cselect_b32 s67, s69, s67" % sWave)
    srd(p, sW, kWG, 512 * 3584)
    stamp(p, "g.karg", opts, 2)
    st0 = g1_stage(0, opts)
    for x in st0: x.t = x.t.replace("s%d offen" % sTab, "s%d offen" % (sTab + 4))
    seq(p, st0)
    stamp(p, "g.st0", opts, 2)
    p("s_mov_b32 s27, s7")
    srd(p, sWS, kWS, WS_SZ)
    p("s_mov_b32 s%d, s74\ns_mov_b32 s%d, s75" % (sDbg, sDbg + 1))
    kv_setup(p)
    ids2(p); hk_srds(p)
    for s in range(1, 8):
        p("s_add_u32 s3, s34, %d\ns_and_b32 s3, s3, 7\ns_mul_i32 s%d, s3, %d\ns_lshl_b32 s3, s3, 7\ns_add_u32 s%d, s3, s27" % (s, sTab + s, 64 * 3584, sTab + 8 + s))
    p("s_lshl_b32 s%d, s%d, 13\ns_add_u32 s6, s35, %d" % (sLdsXB, sWave, 0 if opts.get("x_xsame") else 0x20000))
    for h in range(2):
        p("s_lshl_b32 s3, s%d, 1\ns_add_u32 s3, s3, s34\ns_add_u32 s3, s3, %d\ns_and_b32 s3, s3, 7\ns_lshl_b32 s3, s3, 7\ns_add_u32 s%d, s3, s6" % (sWave, h, sXB + h))
    p("s_lshl_b32 s3, s%d, 1\ns_lshr_b32 s4, s%d, 1\ns_add_u32 s3, s3, s4\ns_lshl_b32 s3, s3, 10\ns_mul_i32 s4, s%d, %d\ns_add_u32 s%d, s3, s4" % (sCB, sWave, sTB, 16 * 57344, sHa))
    p("s_lshl_b32 s4, s%d, 11\ns_add_u32 s%d, s4, %d" % (sTB, sST, WS_ST))
    p("s_lshl_b32 s3, s%d, 13\ns_lshl_b32 s4, s%d, 11\ns_add_u32 s3, s3, s4\ns_add_u32 s3, s3, %d" % (sCB, sWave, WS_CS))
    a, b, c, d, e, f = 40, 41, 42, 43, 44, 45
    p("v_and_b32 v%d, 31, v1\nv_lshrrev_b32 v%d, 5, v1\nv_lshlrev_b32 v%d, 3, v1\nv_add_u32 v%d, s3, v%d" % (a, b, vSToff, vCSoff, vSToff))
    p("s_lshl_b32 s%d, s34, 8" % sCSw)
    p("s_lshl_b32 s3, s%d, 5\ns_add_u32 s3, s3, s%d\ns_lshl_b32 s3, s3, 7\ns_add_u32 s%d, s3, %d" % (sTB, sCB, sFlH, WS_FH))
    p("v_bfe_u32 v%d, v1, 1, 3\nv_xor_b32 v%d, v%d, v%d\nv_lshlrev_b32 v%d, 4, v%d\nv_lshl_add_u32 v%d, v%d, 7, v%d" % (c, c, c, b, c, c, vXA, a, c))
    for ks in range(1, 4): p("v_xor_b32 v%d, %d, v%d" % (vXA + ks, 32 * ks, vXA))
    for ks in range(4): p("v_add_u32 v%d, 0x10000, v%d" % (vXA + 4 + ks, vXA + ks))
    p("v_bfe_u32 v%d, v1, 2, 2\nv_bfe_u32 v%d, v1, 1, 1\nv_and_b32 v%d, 1, v1\nv_bfe_u32 v%d, v1, 4, 1" % (a, c, d, e))
    p("v_lshrrev_b32 v%d, 1, v%d\nv_lshl_add_u32 v%d, v%d, 1, v%d\nv_xor_b32 v%d, s%d, v%d\nv_lshlrev_b32 v%d, 5, v%d" % (f, a, f, c, f, f, sWave, f, f, f))
    p("v_lshl_add_u32 v%d, v%d, 4, v%d\nv_lshl_add_u32 v%d, v%d, 3, v%d\nv_lshl_add_u32 v%d, v%d, 13, v%d" % (f, d, f, f, e, f, f, c, f))
    p("v_lshl_add_u32 v%d, v%d, 3, v%d\nv_lshl_add_u32 v%d, v%d, 7, v%d\nv_add_u32 v%d, 0x10000, v%d" % (a, b, a, vWA, a, f, vWA + 1, vWA))
    p("v_mul_u32_u24 v%d, 57344, v%d\nv_and_b32 v%d, 15, v1\nv_lshl_add_u32 v%d, v%d, 4, v%d" % (e, e, c, c, b, c))
    p("s_and_b32 s3, s%d, 1\ns_lshl_b32 s3, s3, 9\nv_lshl_add_u32 v%d, v%d, 4, v%d\nv_add_u32 v%d, s3, v%d" % (sWave, c, c, e, vHoff, c))
    stamp(p, "g.set1", opts, 2)
    phase2_setup(p, opts)
    for r in range(4): p("v_mov_b32 v%d, 0x3f803f80" % (vOnes + r))
    stamp(p, "g.set2", opts, 2)
    KVP = opts.get("kvp", 1)
    nld, nchk = nonce_get("ng")
    HKP = opts.get("hkp", 9)
    hkl = hk_loads(opts) if HKP == 0 else []
    if KVP == 0: seq(p, kv_loads(opts) + hkl)
    stamp(p, "g.kvis", opts, 2)
    S1IN = opts.get("s1in", 0)
    NL = opts.get("nlate", 0)
    if not S1IN:
        seq(p, g1_stage(1, opts))
        if not NL: p.add(nld)
    if KVP == 1: seq(p, kv_loads(opts) + hkl)
    if opts.get("tlb"):
        sh = opts["tlb"]
        p("v_lshlrev_b32 v52, %d, v1\nbuffer_load_dword v53, v52, %s, 0 offen" % (sh, S4(sWS)), vm="tlb")
        p("v_min_u32 v52, 0x1bff00, v52\nglobal_load_dword v54, v52, s[70:71]\nglobal_load_dword v55, v52, s[72:73]\nglobal_load_dword v56, v52, s[60:61]", vm="tlb")
    stamp(p, "g.st1", opts)

    def rdW(n):
        s, ks = n >> 2, n & 3
        w, off = win((s % 3) * SLOT + ks * 2048)
        return [mk("ds_read_b64_tr_b16 a[%d:%d], v%d offset:%d" % (4 * n, 4 * n + 1, vWA + w, off), lg="W%d" % n),
                mk("ds_read_b64_tr_b16 a[%d:%d], v%d offset:%d" % (4 * n + 2, 4 * n + 3, vWA + w, off + 512), lg="W%d" % n)]
    def rdXA(n, i):
        s, ks = n >> 2, n & 3
        w, off = win((s % 3) * SLOT + 16384 + i * 4096)
        return mk("ds_read_b128 %s, v%d offset:%d" % (vr(vXF + 16 * (n & 1) + 4 * i), vXA + 4 * w + ks, off), lg="X%d_%d" % (n, i))
    def rdXB(bb, n):
        w, off = win(((8 + bb) % 3) * SLOT + (n >> 2) * 4096)
        return mk("ds_read_b128 %s, v%d offset:%d" % (vr(vXF + 4 * (n & 7)), vXA + 4 * w + (n & 3), off), lg="B%d_%d" % (bb, n))

    fr = opts.get("fr", " sc1")
    cs_loads = [mk("buffer_load_dwordx2 %s, v%d, %s, 0 offen offset:%d sc1" % (vr(vCSR + 2 * t, 2), vCSoff, S4(sWS), t * 512), vm="rec") for t in range(4)]
    st_loads = [mk("buffer_load_dwordx2 %s, v%d, %s, s%d offen offset:%d%s" % (vr(vCSR + 8 + 2 * t, 2), vSToff, S4(sWS), sST, t * 512, fr), vm="rec") for t in range(4)]
    post = poll_check("rec", [vCSR + 2 * t + 1 for t in range(8)], cs_loads + [mk(y.t.replace(fr, " sc1") if fr else y.t + " sc1") for y in st_loads], 32)
    post += ml("v_add_f32 v%d, v%d, v%d\nv_add_f32 v%d, v%d, v%d\nv_add_f32 v%d, v%d, v%d\nv_mov_b32 v%d, v%d" % (vCSR, vCSR, vCSR + 2, vCSR + 4, vCSR + 4, vCSR + 6, vCSR, vCSR, vCSR + 4, vCSR + 1, vCSR))
    for t in range(4): post += ml("v_mov_b32 v%d, v%d\nv_mov_b32 v%d, v%d" % (vST + 8 * t + 1, vCSR + 8 + 2 * t, vST + 8 * t + 5, vCSR + 8 + 2 * t))
    post += ml("v_permlane32_swap_b32 v%d, v%d" % (vCSR, vCSR + 1))
    for t in range(4): post += ml("v_permlane32_swap_b32 v%d, v%d" % (vST + 8 * t + 1, vST + 8 * t + 5))
    post += ml("s_mov_b32 s%d, 0x01000100\nv_add_f32 v%d, v%d, v%d" % (sT2, vCSR, vCSR, vCSR + 1))
    for t in range(8): post += ml("v_perm_b32 v%d, v%d, v%d, s%d" % (vST + 4 * t, vST + 4 * t + 1, vST + 4 * t + 1, sT2))
    for t in range(8): post += ml("v_and_b32 v%d, 0xffff0000, v%d" % (vST + 4 * t + 1, vST + 4 * t + 1))
    for t in range(8): post += ml("v_mul_f32 v%d, %s, v%d" % (vST + 4 * t + 1, hex(f2u(-LOG2E)), vST + 4 * t + 1))
    post += [mk("v_cvt_pk_bf16_f32 v%d, v%d, v%d" % (vCSR + 1, vCSR, vCSR)), mk("v_and_b32 v%d, 0xffff0000, v%d" % (vCSR + 1, vCSR + 1)),
             mk("v_sub_f32 v%d, v%d, v%d" % (vCSR, vCSR, vCSR + 1)), mk("v_cmp_gt_u32 vcc, 32, v1"),
             mk("v_cvt_pk_bf16_f32 v%d, v%d, v%d" % (vCSR, vCSR + 1, vCSR)),
             mk("v_mov_b32 v%d, v%d" % (vR1B, vST)), mk("v_cndmask_b32 v%d, 0, v%d, vcc" % (vR1A, vCSR)), mk("v_mov_b32 v%d, v%d" % (vR1B + 4, vST + 4))]
    cst = lambda t: ml("v_rcp_f32 v%d, v%d" % (vST + 4 * t + 2, vST + 4 * t + 1))
    cmu = lambda t: ml("v_mul_f32 v%d, %s, v%d" % (vST + 4 * t + 2, hex(f2u(LOG2E * LOG2E)), vST + 4 * t + 2))
    for t in range(4): post += cst(t)
    for t in range(4): post += cmu(t)

    if opts.get("x_norec"):
        cs_loads = []; st_loads = []; post = [y for y in post if "cbranch" not in y.t]
    F = Filler(opts.get("aspace", 2))
    RL = opts.get("recst", 5)
    if S1IN: F.v(-20, g1_stage(1, opts) + [nld])
    for s in range(8):
        F.v(max(0, 16 * s - 3) if not (S1IN and s == 0) else -20, g1_stage(s + 2, opts))
        if NL and s == 0 and not S1IN: F.v(0, [nld])
        if KVP >= 2 and s + 2 == KVP: F.v(0, kv_loads(opts) + hkl)
        if HKP and HKP < 10 and s + 2 == HKP: F.v(0, hk_loads(opts))
        if s == opts.get("csst", 2 if NL else 1): F.v(0, [mk("buffer_store_dwordx2 %s, v9, %s, s%d offen sc1" % (vr(vCSA, 2), S4(sWS), sCSw), vm="csst")])
        if s == opts.get("kvst", 8) and not opts.get("x_nokvs"): F.v(0, kv_stores())
        if s == RL - 1: F.v(16 * RL - 4, cs_loads + st_loads)
        if s == 7 and opts.get("kvst", 8) < 8: F.v(16 * 7 + 8, [W(vm="kvst"), flag_store(sFlK)])
    F.x(0, ml("v_lshlrev_b32 v9, 26, v1\nv_and_b32 v9, 0x80000000, v9\nv_or_b32 v9, v9, v%d" % vCSoff))
    F.x(17, [mk("v_mov_b32 v%d, 0" % r) for r in (vR1A + 1, vR1A + 2, vR1A + 3)])
    F.x(17, [mk("v_mov_b32 v%d, 0" % r) for r in (vR1B + 1, vR1B + 2, vR1B + 3, vR1B + 5, vR1B + 6, vR1B + 7)])
    F.x(29 if NL else 13, [W(vm="non")] + nchk + ml("v_mov_b32 v%d, v%d" % (vCSA + 1, vTag)))
    kc = kv_compute()
    if opts.get("x_nokvr"): kc = [y for y in kc if not y.t.startswith("ds_")]
    if opts.get("x_nokvv"): kc = [y for y in kc if not y.t.startswith("v_")]
    F.x(13 if KVP == 0 else 16 * (KVP + 1) - 3, kc)
    KVS = I("; kv done", cost=0); KVS.kind = "label"
    sr = phase2_srds()
    F.x(0, [KVS] + (hk_build() if HKP == 0 else []) + sr[:8])
    F.x(0, sr[8:])
    F.x(16 * (RL + 2) - 3 + opts.get("postat", 0), [W(vm="rec")] + post)
    p.wait(vm="st0")
    p("s_barrier")
    stamp(p, "g.st0in", opts)
    for x in rdW(0): p.add(x)
    for i in range(4): p.add(rdXA(0, i))
    PD = opts.get("pd", 7); WE = opts.get("we", 4)
    BA = opts.get("buda", 24)
    for n in range(32):
        s, ks = n >> 2, n & 3
        gaps = [[], [], [], []]
        if ks == 3: gaps[0] += [W(vm="st%d" % (s + 1), lg="*"), mk("s_barrier")]
        if n < 31:
            gaps[0] += rdW(n + 1); gaps[1] += [rdXA(n + 1, 0), rdXA(n + 1, 1)]; gaps[2] += [rdXA(n + 1, 2), rdXA(n + 1, 3)]
        else:
            gaps[0] += [rdXB(0, 0), rdXB(0, 1)]; gaps[1] += [rdXB(0, 2), rdXB(0, 3)]
        for i in range(4):
            if i in (0, 2): p.wait(lg=["W%d" % n, "X%d_%d" % (n, i + 1)])
            a = acc_of(i)
            p("v_mfma_f32_32x32x16_bf16 %s, a[%d:%d], %s, %s" % (vr(a, 16), 4 * n, 4 * n + 3, vr(vXF + 16 * (n & 1) + 4 * i), vr(a, 16) if n else "0"))
            if ks == 3 and i == 0 and any(y.vm == "st%d" % (s + 1) for _, y in F.vq): raise SystemExit("stage %d not issued" % (s + 1))
            F.fill(4 * n + i, gaps[i], BA - (4 if i in (1, 3) else 0))
            if any(y.vm == "csst" for y in gaps[i]): assert not any(y.t.startswith("v_mov_b32 v%d," % (vCSA + 1)) for y in gaps[i] + [z for _, z in F.xq]), "cs store too early"
            if any(y.vm == "kvst" for y in gaps[i]): assert KVS not in gaps[i] + [z for _, z in F.xq], "kv store too early"
            for x in gaps[i]: p.add(x)
        if ks == 3 and s < 7: stamp(p, "g.s%d" % s, opts, 2)
        if n < 4:
            p("v_mfma_f32_32x32x16_bf16 %s, %s, a[%d:%d], %s" % (vr(vCSA, 16), vr(vOnes), 4 * n, 4 * n + 3, vr(vCSA, 16) if n else "0"))
    left = len(F.xq)
    stamp(p, "g.A31", opts, 2)
    for _, x in F.xq: p.add(x)
    F.xq = []
    print("phase A: left-over x items %d, v items %d" % (left, len(F.vq)), file=sys.stderr)
    stamp(p, "g.Aend", opts)
    for m_ in range(4, PD): p.add(rdXB(0, m_))
    p("s_nop 0")
    late = [cst(4) + cst(5), cst(6) + cst(7), cmu(4) + cmu(5), cmu(6) + cmu(7)]
    for t in range(4):
        a = acc_of(t)
        p("v_mfma_f32_32x32x16_bf16 %s, %s, %s, %s" % (vr(a, 16), vr(vR1A), vr(vR1B + 4 * (t & 1)), vr(a, 16)))
        p("v_mov_b32 v%d, v%d" % (vR1B + 4 * (t & 1), vST + 4 * (t + 2)))
        for x in late[t]: p.add(x)
    ep = [g1_epilogue(t, opts) for t in range(7)]
    total = sum(x.cost for e in ep for x in e)
    kvpoll = [mk("buffer_load_dwordx2 v[%d:%d], v%d, %s, 0 offen sc1" % (uPoll, uPoll + 1, uFK, S4(sWS)), vm="kvp")]
    F.vq = [(0, y) for _, y in F.vq]; F.last = -9; F.space = opts.get("bspace", 2)
    X = lambda k, L: [] if opts.get(k) else L
    XB = opts.get("xb", 1)
    ORD = [0, 1, 2, 3, 4] + ([5] if opts.get("w5", 1) else []) + [7, 8, 9][:XB]
    INB_READ = [0, 1, 2][:XB]
    chain = lambda t: ([W(vm="w%d" % t)] + wd_reads(t, True) + [delay(4), W(lg="t%d" % t)] + wd_loads(t + 7, opts)) if t in INB_READ else []
    F.x(0, [mk("v_add_u32 v%d, 0x20000, v%d" % (uTR2 + mt, uTR + mt)) for mt in range(4)])
    F.x(0, [bundle("\n".join(y.t for y in fl0_setup()[:3]))] + fl0_setup()[3:])
    F.v(0, kv_stores())
    F.v(opts.get("st10", 6), g1_stage(10, opts))
    W0 = opts.get("w0at", 22)
    if W0 < 27: F.v(W0, wd_loads(0, opts))
    B1 = 34 - PD
    F.v(B1, g1_stage(11, opts)[:6] + [W(vm="kvst"), flag_store(sFlK)] + g1_stage(11, opts)[6:])
    if W0 >= 27: F.v(W0, wd_loads(0, opts))
    if 5 in ORD: F.v(opts.get("w5at", 46), wd_loads(5, opts))
    if HKP == 10: F.v(opts.get("hkat", 46), hk_loads(opts))
    F.v(33 + B1, wd_loads(1, opts) + wd_loads(2, opts))
    F.v(opts.get("c0", 80), chain(0))
    F.v(opts.get("kvpoll", 88), kvpoll)
    F.v(66 + B1, wd_loads(3, opts) + wd_loads(4, opts))
    F.v(opts.get("kvchk", 114), [W(vm="kvp")] + poll_check("kv", [uPoll], kvpoll) + conv_xr())
    F.v(0, chain(1) + chain(2))
    opts["_ord"] = ORD; opts["_rd"] = INB_READ
    if HKP: F.x(opts.get("hkb", 62 if HKP < 10 else 95), hk_build(1))
    EF = opts.get("eflag", 99 + 16)
    ngaps = 4 * 33; done = 0; cur = 0; gi = 0
    BUD = opts.get("bud", 24)
    for bb in range(4):
        tile = 4 + bb; a = acc_of(tile)
        for n in range(-1, 32):
            gap = []
            if n == -1:
                p("v_mfma_f32_32x32x16_bf16 %s, %s, %s, 0" % (vr(a, 16), vr(vR1A), vr(vR1B + 4 * (bb & 1))))
                if bb < 2: gap.append(mk("v_mov_b32 v%d, v%d" % (vR1B + 4 * (bb & 1), vST + 4 * (tile + 2))))
            else:
                if n % WE == 0: p.wait(lg="B%d_%d" % (bb, n + WE - 1))
                p("v_mfma_f32_32x32x16_bf16 %s, a[%d:%d], %s, %s" % (vr(a, 16), 4 * n, 4 * n + 3, vr(vXF + 4 * (n & 7)), vr(a, 16)))
                m = n + PD
                if m == 32 and bb < 3:
                    if any(y.vm == "st%d" % (9 + bb) for _, y in F.vq): raise SystemExit("stage not issued before its wait")
                    gap += [W(vm=["st%d" % (9 + bb)] + (["hk"] if bb == 2 else []), lg="*"), mk("s_barrier")]
                if m < 32: gap.append(rdXB(bb, m))
                elif bb < 3: gap.append(rdXB(bb + 1, m - 32))
            budget = BUD - (4 if (n % WE == WE - 1) else 0)
            if gi == EF:
                assert cur >= 4
                gap += [W(vm="hst3"), mk("s_barrier"), flag_store(sFlH, True), mk("s_add_u32 s%d, s%d, %d" % (sFlH, sFlH, WS_FL))]
            F.fill(gi, gap, min(budget, sum(y.cost for y in gap) + 8), min(budget, sum(y.cost for y in gap) + 12 if F.xq and F.xq[0][1].cost > 4 else sum(y.cost for y in gap) + 8))
            gi += 1
            target = total * gi / float(ngaps - opts.get("eplead", 4))
            while cur < 7 and done < target:
                if cur >= 4 and (cur - 4 >= bb or (cur - 4 == bb - 1 and n < 4)): break
                if cur < 4 and bb == 0 and n < 2: break
                x = ep[cur][0]
                if sum(y.cost for y in gap) + x.cost > budget: break
                gap.append(ep[cur].pop(0)); done += x.cost
                if not ep[cur]: cur += 1
            for x in gap: p.add(x)
            if gi % 6 == 0: stamp(p, "B%d" % gi, opts, 5)
            if opts.get("prof") and "ls0" in opts:
                k_, r_ = divmod(gi - opts["ls0"], opts.get("lsd", 4))
                if r_ == 0 and 0 <= k_ < 8: p("s_memtime s[%d:%d]" % (84 + 2 * k_, 85 + 2 * k_))
        if bb < 3: stamp(p, "g.b%d" % bb, opts, 2)
    if opts.get("prof") and "ls0" in opts:
        p("s_waitcnt lgkmcnt(0)")
        for k_ in range(8):
            nm_ = "L%d" % (opts["ls0"] + k_ * opts.get("lsd", 4))
            if opts["ls0"] + k_ * opts.get("lsd", 4) > 132: break
            STAMPS.append(nm_); p("v_writelane_b32 v255, s%d, %d" % (84 + 2 * k_, len(STAMPS) - 1))
    stamp(p, "g.Bend", opts)
    print("phase B: left-over v items %d, epilogue cost left %d" % (len(F.vq), total - done), file=sys.stderr)
    seq(p, [y for _, y in F.vq] + [y for _, y in F.xq])
    while cur < 7:
        for x in ep[cur]: p.add(x)
        cur += 1
    for s in range(14): p("s_lshr_b32 s%d, s%d, 5" % (sTab + s, sTabW + s))
    for x in g1_epilogue(7, opts): p.add(x)

def out_half(ps, opts, pk):
    eW = 24; eR = 25; eY = 26
    if ps == 0: X = list(range(12, 20)); XN = list(range(32, 40)); YR = 20; Y = [28, 29, 30, 31, 224, 225, 226, 227]
    else: X = list(range(56, 64)); XN = list(range(64, 72)); YR = 80; Y = list(range(72, 80))
    P = [list(range(uAcc + 32 * ps + 8 * w, uAcc + 32 * ps + 8 * w + 8)) for w in range(4)]
    wr = [mk("ds_write_b128 v%d, %s offset:%d" % (eW, vr(uAcc + 16 * (2 * ps + e) + 4 * mt), e * 16 * RS + mt * 64), cost=8) for e in range(2) for mt in range(4)]
    rdy = [mk("ds_read_b64_tr_b16 v[%d:%d], v%d offset:%d" % (YR + 2 * j, YR + 2 * j + 1, eY + ps, j * 512), lg="y%d" % ps) for j in range(2)]
    rd = [mk("ds_read_b128 %s, v%d offset:%d" % (vr(P[w][4 * h]), eR, w * REDW + 16 * h), lg="r%d" % ps) for h in range(2) for w in range(4)]
    xin = uXin + 4 * ps; st = uSt + 2 * ps; F = P[0]
    un = lambda d, s_, hi: ("v_and_b32 v%d, 0xffff0000, v%d" if hi else "v_lshlrev_b32 v%d, 16, v%d") % (d, s_)
    def op2(name, d, a_, b_, c_=None, sel=""):
        R = lambda z, i, n: z if isinstance(z, str) else vr(z[i], n)
        if pk: return [mk("v_pk_%s_f32 %s, %s, %s%s%s" % (name, vr(d[2 * i], 2), R(a_, 2 * i, 2), R(b_, 2 * i, 2), (", " + R(c_, 2 * i, 2)) if c_ else "", sel)) for i in range(4)]
        return [mk("v_%s_f32 v%d, %s, %s%s" % (name, d[i], R(a_, i, 1), R(b_, i, 1), (", " + R(c_, i, 1)) if c_ else "")) for i in range(8)]
    pre = ml(un(st + 1, 40 + 2 * ps, 1) + "\n" + un(st, 40 + 2 * ps, 0) + "\nv_rcp_f32 v%d, v%d" % (st + 1, st + 1))
    pre += [mk(un(X[i], xin + (i >> 1), i & 1)) for i in range(8)]
    pre += ml("v_mul_f32 v%d, v%d, v%d" % (st, st, st + 1))
    if pk: pre += op2("fma", XN, X, vr(st, 2), vr(st, 2), " op_sel:[0,1,0] op_sel_hi:[1,1,0]")
    else: pre += op2("fma", XN, X, "v%d" % (st + 1), "v%d" % st)
    m = [W(lg="r%d" % ps)] + op2("add", F, P[0], P[1]) + op2("add", P[2], P[2], P[3]) + op2("add", F, F, P[2])
    m += op2("mul", Y, "s[4:5]" if pk else "s4", F)
    t1 = [mk("v_exp_f32 v%d, v%d" % (Y[i], Y[i])) for i in range(8)]
    t2 = op2("mul", XN, XN, F)
    m += [z for pr in zip(t1, t2) for z in pr] if not pk else t1 + t2
    m += op2("add", Y, "1.0", Y, None, " op_sel_hi:[0,1]" if pk else "")
    m += [mk("v_rcp_f32 v%d, v%d" % (Y[i], Y[i])) for i in range(8)] + [mk("s_nop 0")]
    m += op2("mul", XN, XN, Y)
    my = [W(lg="y%d" % ps)] + [mk(un(Y[i], YR + (i >> 1), i & 1)) for i in range(8)]
    my += op2("fma", X, XN, Y, X)
    my += [mk("v_cvt_pk_bf16_f32 v%d, v%d, v%d" % (xin + i, X[2 * i], X[2 * i + 1])) for i in range(4)]
    my += [mk("buffer_store_dwordx4 %s, v%d, %s, %s offen%s" % (vr(xin), uX, S4(sOut), "s%d" % sT0 if ps else "0", opts.get("fo", " sc1")), vm="out")]
    return wr, pre, rd, m, rdy, my

def phase2(p, opts):
    ORD = opts["_ord"]; RD = opts["_rd"]
    stamp(p, "p2", opts)
    for mt in range(4): p("v_add_u32 v%d, 0x10000, v%d\nv_add_u32 v%d, 0x20000, v%d" % (HI[1] + mt, uTR + mt, HI[2] + mt, uTR + mt))
    for i in range(1, 4): p("v_add_u32 v%d, %d, v%d" % (CAR[i], 1024 * i, uCA))
    p.wait(vm="cv", lg="*")
    p("s_barrier")
    stamp(p, "p2bar", opts, 4)
    for x in conv_reads(0): p.add(x)
    hpollA = [mk("buffer_load_dwordx2 v[%d:%d], v%d, %s, 0 offen sc1" % (uPoll, uPoll + 1, uFH, S4(sWS)), vm="hpA")]
    hpollB = [mk("s_mov_b32 s%d, %d" % (sT1, WS_FL)), mk("buffer_load_dwordx2 v[%d:%d], v%d, %s, s%d offen sc1" % (uPoll + 2, uPoll + 3, uFH, S4(sWS), sT1), vm="hpB")]
    tq = []
    for t in range(7):
        if t not in RD: tq += [("w%d" % t if t not in ORD else None, y) for y in wd_reads(t)]
    wl = lambda t: ([W(lg="t%d" % PREV[t])] if t in PREV else []) + wd_loads(t, opts)
    rest = [t for t in range(7, 14) if t not in ORD]
    nfirst = opts.get("wfirst", 4)
    VQ = (wl(5) if 5 not in ORD else []) + wl(6) + [x for t in rest[:nfirst] for x in wl(t)]
    rest = rest[nfirst:]
    LEAD = opts.get("wlead", 3)
    CHKA = I("; chkA", cost=0); CHKB = I("; chkB", cost=0)
    VQ.append(CHKA)
    for hs in range(28):
        while rest and rest[0] - 1 - LEAD <= hs: VQ += wl(rest.pop(0))
        if hs == 14: VQ.append(CHKB)
        VQ += h_loads(hs)
    state = {"A": False, "B": False, "issued": set()}
    def pace(p, done_hs):
        n = 0
        while VQ:
            y = VQ[0]
            if y is CHKA:
                if not state["A"]: return n
                VQ.pop(0); continue
            if y is CHKB:
                if not state["B"]: return n
                VQ.pop(0); continue
            if y.kind == "wait" and any(z.lg == y.lg for _, z in tq): return n
            if y.vm and y.vm[0] == "h" and int(y.vm[1:]) - 16 > done_hs: return n
            VQ.pop(0); p.add(y); n += 1
            if is_m0(y): p("s_nop 0") if False else None
            if is_vm(y): state["issued"].add(y.vm); return n
            if is_m0(y): return n
        return n
    strec = [mk("buffer_load_dwordx2 %s, v%d, %s, 0 offen offset:%d sc1" % (vr(40 + 2 * e, 2), uSto, S4(sWS), 1024 * e), vm="xin") for e in range(2)]
    extra = ml("s_mov_b32 s%d, 131072" % sT0) + [mk("buffer_load_dwordx4 %s, v%d, %s, %s offen" % (vr(uXin + 4 * e), uX, S4(sQ), "s%d" % sT0 if e else "0"), vm="xin") for e in range(2)] + strec
    dq = ml("v_lshrrev_b32 v24, 4, v1\nv_and_b32 v25, 15, v1\nv_lshl_add_u32 v24, v24, 3, v25\nv_sub_u32 v24, 15, v24\nv_lshlrev_b32 v25, 4, v24\nv_and_b32 v25, 16, v25\n"
            "s_sub_u32 s3, s%d, 1\nv_lshlrev_b32 v25, v25, v%d\nv_and_b32 v25, s3, v25\nv_lshrrev_b32 v24, 1, v24" % (sHalf, uD))
    dq += ml("v_cmp_eq_u32 s[4:5], 0, v24\nv_cmp_eq_u32 s[6:7], 1, v24\nv_cmp_eq_u32 s[34:35], 2, v24\nv_cmp_eq_u32 vcc, 3, v24")
    dq += ml("v_cndmask_b32 v%d, 0, v25, s[4:5]\nv_cndmask_b32 v%d, 0, v25, s[6:7]\nv_cndmask_b32 v%d, 0, v25, s[34:35]\nv_cndmask_b32 v%d, 0, v25, vcc" % (uAD, uAD + 1, uAD + 2, uAD + 3))
    pollat = opts.get("hpoll", 24); flagat = opts.get("hflag", 60); chkA = opts.get("hchk", 62); pollB = opts.get("hpollb", 132); SP = opts.get("csp", 4)
    ypoll = [mk("buffer_load_dwordx2 %s, v%d, %s, 0 offen sc1" % (vr(uPoll, 2), uFY, S4(sWS)), vm="yp")]
    ydma = ml("s_lshl_b32 s7, s%d, 1\nv_xor_b32 v3, s7, v1\nv_lshrrev_b32 v2, 3, v1\nv_lshlrev_b32 v2, 12, v2\nv_and_b32 v27, 3, v3\nv_lshl_add_u32 v2, v27, 4, v2\nv_bfe_u32 v3, v3, 2, 1\nv_lshl_add_u32 v2, v3, 8, v2\nv_xor_b32 v3, 16, v2\nv_add_u32 v3, %d, v3" % (sWave, 32768 - 1024))
    ydma += ml("s_lshl_b32 s3, s%d, 18\ns_lshl_b32 s7, s%d, 16\ns_add_u32 s3, s3, s7\ns_lshr_b32 s7, s%d, 2\ns_lshl_b32 s7, s7, 9\ns_add_u32 s3, s3, s7\ns_and_b32 s7, s%d, 3\ns_lshl_b32 s7, s7, 6\ns_add_u32 s3, s3, s7\ns_add_u32 s3, s3, %d" % (sDB, sWave, sTB2, sTB2, WS_YT))
    ydma += ml("s_lshl_b32 s7, s%d, 11\ns_add_u32 m0, s7, %d" % (sWave, YT_L))
    adr = ml("v_and_b32 v24, 15, v1\nv_mul_u32_u24 v24, %d, v24\nv_lshrrev_b32 v25, 4, v1\nv_lshl_add_u32 v24, v25, 4, v24\ns_mul_i32 s6, s%d, %d\ns_add_u32 s6, s6, %d\nv_add_u32 v24, s6, v24" % (RS, sWave, REDW, RED[0]))
    adr += ml("v_lshrrev_b32 v25, 5, v1\nv_and_b32 v26, 3, v1\nv_lshl_add_u32 v25, v25, 2, v26\nv_mul_u32_u24 v25, %d, v25\nv_bfe_u32 v26, v1, 2, 3\nv_lshl_add_u32 v25, v26, 5, v25\ns_mul_i32 s6, s%d, %d\ns_add_u32 s6, s6, %d\nv_add_u32 v25, s6, v25" % (RS, sWave, 8 * RS, RED[0]))
    adr += ml("v_bfe_u32 v26, v1, 4, 1\nv_and_b32 v27, 3, v1\nv_lshl_add_u32 v26, v26, 2, v27\nv_xor_b32 v23, s%d, v26\nv_bfe_u32 v27, v1, 2, 2\nv_lshl_add_u32 v26, v26, 3, v27\nv_lshlrev_b32 v26, 7, v26\nv_lshl_add_u32 v26, v23, 4, v26\nv_lshrrev_b32 v27, 5, v1\nv_lshl_add_u32 v26, v27, 3, v26\nv_xor_b32 v27, 64, v26\nv_add_u32 v26, %d, v26\nv_add_u32 v27, %d, v27" % (sWave, YT_L, YT_L))
    chk = [W(vm="xin")] + poll_check("st", [41, 43], strec, 32)
    aq = ydma[:-2] + adr + chk
    first = set(); nm = 0
    for rr in range(4):
        rq = conv_reads(rr + 1) if rr < 3 else []
        b = vCF + 64 * (rr & 1)
        pairs = sorted([(s1, p1) for s1 in range(8) for p1 in range(8) if s1 + p1 <= 7], key=lambda x: (max(x), x[0] + x[1], x[0]))
        seen = -1; k = 0
        for (s1, p1) in pairs:
            mx = max(s1, p1)
            if mx > seen:
                p.wait(lg="c%d_%d" % (rr, mx)); seen = mx
            acc = vr(uCacc + 4 * (s1 + p1))
            p("v_mfma_f32_16x16x32_bf16 %s, %s, %s, %s" % (acc, vr(b + 4 * s1), vr(b + 32 + 4 * p1), acc if (s1 + p1) in first else "0"))
            first.add(s1 + p1); k += 1; nm += 1
            n = 0
            if rq and k > 2 and (k % 4 != 0): p.add(rq.pop(0)); n += 1
            if dq and nm > 6 and (n == 0 or nm % 2): p.add(dq.pop(0)); n += 1
            if nm % SP == 0 or (VQ and is_m0(VQ[0]) and nm % SP == SP - 1): n += pace(p, -1)
            while tq and n < 2:
                tg = tq[0][0]
                if tg and (tg not in state["issued"] or nm < opts.get("t56", 84)): break
                if tg: p.wait(vm=tg)
                p.add(tq.pop(0)[1]); n += 1
            if aq and nm > opts.get("aqat", 96) and n < 2 and not (n and aq[0].t.startswith("v_") and p.ins[-1].t.startswith("v_") and "mfma" not in p.ins[-1].t):
                p.add(aq.pop(0))
                while aq and aq[0].cost == 0: p.add(aq.pop(0))
            if nm == pollat:
                for x in hpollA: p.add(x)
            if nm == flagat:
                p.wait(vm="hst7"); p("s_barrier"); p.add(flag_store(sFlH, True))
                stamp(p, "hflag", opts)
            if nm == chkA:
                p.wait(vm="hpA")
                for x in poll_check("hA", [uPoll], hpollA): p.add(x)
                stamp(p, "hokA", opts); state["A"] = True
        stamp(p, "cv%d" % rr, opts, 4)
        if rr == 0:
            for x in dq: p.add(x)
            if dq: p("s_nop 1")
            dq = []
            for p1 in range(8):
                acc = vr(uCacc + 4 * p1)
                p("v_mfma_f32_16x16x32_bf16 %s, %s, %s, %s" % (acc, vr(uAD), vr(b + 32 + 4 * p1), acc))
                if rq: p.add(rq.pop(0))
                if p1 % 4 == 1: pace(p, -1)
            for x in extra: p.add(x)
        for x in rq: p.add(x)
    print("conv: left-over reads %d, queued loads %d" % (len(tq), len(VQ)), file=sys.stderr)
    assert not tq
    cur_hs = [-1]
    def pace2():
        if pace(p, cur_hs[0]) and is_m0(p.ins[-1]): p("s_nop 0"); pace(p, cur_hs[0])
    for x in aq: p.add(x)
    stamp(p, "convend", opts)
    p("s_lshl_b32 s7, s%d, 13\ns_add_u32 s7, s7, %d\nv_add_u32 v4, s7, v%d\ns_and_b32 s7, s%d, 2\ns_lshl_b32 s7, s7, 13\ns_lshl_b32 s6, s%d, 12\ns_add_u32 s7, s7, s6\ns_add_u32 s7, s7, %d\nv_add_u32 v5, s7, v%d" % (sWave, XCH, vL16, sWave, sHalf, XCH, vL16))
    for x in hpollB: p.add(x)
    p("s_barrier")
    for i in range(8):
        p("ds_write_b128 v4, %s offset:%d" % (vr(uCacc + 4 * i), i * 1024))
        if i % 3 == 1: pace2()
    stamp(p, "xw", opts, 4)
    p("s_waitcnt lgkmcnt(0)\ns_barrier")
    for i in range(4):
        p("ds_read_b128 %s, v5 offset:%d" % (vr(uCacc + 4 * i), i * 1024), lg="xr%d" % i)
        p("ds_read_b128 %s, v5 offset:%d" % (vr(uCacc + 16 + 4 * i), 8192 + i * 1024), lg="xr%d" % i)
    pace2()
    for i in range(4):
        p.wait(lg="xr%d" % i)
        for e in range(2): p("v_pk_add_f32 %s, %s, %s" % (vr(uCacc + 4 * i + 2 * e, 2), vr(uCacc + 4 * i + 2 * e, 2), vr(uCacc + 16 + 4 * i + 2 * e, 2)))
    for i in range(4):
        o = uTmp + 4 * (i >> 1) + 2 * (i & 1)
        p("v_cvt_pk_bf16_f32 v%d, v%d, v%d\nv_cvt_pk_bf16_f32 v%d, v%d, v%d" % (o, uCacc + 4 * i, uCacc + 4 * i + 1, o + 1, uCacc + 4 * i + 2, uCacc + 4 * i + 3))
    pace2(); p("s_nop 0")
    for h in range(2):
        o = uTmp + 4 * h
        p("v_permlane16_swap_b32 v%d, v%d\nv_permlane16_swap_b32 v%d, v%d" % (o, o + 2, o + 1, o + 3))
    for h in range(2):
        p("buffer_store_dwordx4 %s, v%d, %s, s%d offen offset:%d sc1" % (vr(uTmp + 4 * h), uYst, S4(sWS), sYoff, h * 1024), vm="yst")
    stamp(p, "g2go", opts)
    wrA, preA, rdA, mA, rdyA, myA = out_half(0, opts, False)
    wrB, preB, rdB, mB, rdyB, myB = out_half(1, opts, True)
    YF = opts.get("yflag", 5); YP = opts.get("ypoll", 19); YC = YP + opts.get("ychk", 4); RB = opts.get("rbar", 18); RY = opts.get("ybar", YC + 5)
    HB = opts.get("hb", 5); HL = opts.get("hl", 5)
    xq = []
    def X_(at, L): xq.extend((at, y) for y in L)
    X_(0, preA + [mk("s_mov_b32 s4, %s" % hex(f2u(-LOG2E))), mk("s_mov_b32 s5, s4")])
    for i, y in enumerate(wrA): X_(8 * 14 + 5 + 3 * i, [y])
    X_(8 * RB, [W(lg="*"), mk("s_barrier")] + rdA)
    X_(8 * RB + 14, mA)
    for hs in range(28):
        ps, s = divmod(hs, 14)
        cur_hs[0] = hs - 1
        while "h%d" % hs not in state["issued"] or any(y.vm == "h%d" % hs for y in VQ) or (ps == 0 and s < 13 and any(y.vm == "w%d" % (s + 1) for y in VQ)): pace2()
        rq = wd_reads(s + 1) if (ps == 0 and 7 <= s + 1 < 14) else []
        if hs == HB:
            p.wait(vm="hpB")
            for x in poll_check("hB", [uPoll + 2], hpollB): p.add(x)
            stamp(p, "hokB", opts); state["B"] = True
        if hs == YF: p.wait(vm="yst"); p("s_barrier"); p.add(flag_store(sFlY, True))
        if hs == YP: p.add(ypoll[0])
        if hs == opts.get("otlb", -1): p("s_mov_b64 exec, 1\nbuffer_load_dword v23, v%d, %s, 0 offen\ns_mov_b64 exec, -1" % (uX, S4(sOut)), vm="otlb")
        if hs == YC:
            p.wait(vm="yp")
            for x in poll_check("y", [uPoll], ypoll): p.add(x)
            assert not any(is_m0(y) or y.t.endswith(" lds") for y in VQ)
            for x in ydma[-2:]: p.add(x)
            p("s_nop 0")
            p.add(dma(2, sWS, "s3", 0, "yt", " sc1")); p.add(dma(3, sWS, "s3", 1024, "yt", " sc1"))
            stamp(p, "yok", opts, 4)
        if hs == RY and not opts.get("ytail", 1):
            p.wait(vm="yt"); p("s_barrier")
            for x in rdyA: p.add(x)
            X_(8 * RY + 6, myA)
        p.wait(vm="h%d" % hs, lg="t%d" % s)
        m = 0
        for e in range(2):
            nt = 2 * ps + e
            for mt in range(4):
                acc = vr(uAcc + 16 * nt + 4 * mt)
                hr = aH + 8 * (hs % 16) + 4 * e
                k, b = wfrag(s, mt)
                p("v_mfma_f32_16x16x32_bf16 %s, %s[%d:%d], a[%d:%d], %s" % (acc, k, b, b + 3, hr, hr + 3, acc if s else "0"))
                m += 1
                n = 0
                tgt = "h%d" % min(27, hs + HL)
                left = max([i + 1 for i, y in enumerate(VQ) if y.vm == tgt] + [0])
                for _ in range(-(-left // (9 - m))):
                    k_ = pace(p, hs - 1); n += k_
                    if k_ == 0 or is_m0(p.ins[-1]): break
                if m == 1 and rq: p.wait(vm="w%d" % (s + 1))
                if rq: p.add(rq.pop(0)); n += 1
                g = 8 * hs + m - 1
                nv = 0
                rem = 8 * 28 - g
                while xq and xq[0][0] <= g and n < 2:
                    isv = xq[0][1].t.startswith("v_")
                    if isv and nv >= 1 and len(xq) < opts.get("g2den", 1) * rem + 999 * (g < 8 * RB): break
                    p.add(xq.pop(0)[1]); n += 1; nv += isv
        assert not rq
        if hs == 13: stamp(p, "g2A", opts)
        elif hs % 3 == 0: stamp(p, "h%d" % hs, opts, 4)
    print("gemm2: left-over epilogue items %d" % len(xq), file=sys.stderr)
    stamp(p, "g2end", opts)
    p("v_add_u32 v24, %d, v24\nv_add_u32 v25, %d, v25" % (((RED[1] - RED[0]) & 0xffffffff,) * 2))
    tail = [y for _, y in xq] + preB
    nop = max(0, 6 - len(tail))
    for x in tail[:8]: p.add(x)
    tail = tail[8:]
    for x in wrB:
        p.add(x)
        for _ in range(3):
            if tail: p.add(tail.pop(0))
    for x in tail: p.add(x)
    p.wait(vm="yt", lg="*"); p("s_barrier")
    stamp(p, "red", opts)
    if opts.get("ytail", 1):
        myA = out_half(0, opts, True)[5]
        for x in rdyA + rdB + rdyB + myA[:-1]: p.add(x)
        if opts.get("oearly", 1): p.add(myA[-1])
        for x in mB + myB[:-1]: p.add(x)
        stamp(p, "prest", opts)
        if not opts.get("oearly", 1): p.add(myA[-1])
        p.add(myB[-1])
    else:
        for x in rdB + rdyB + mB + myB: p.add(x)
    stamp(p, "fin", opts)

def aux(p, opts):
    p("s_lshl_b32 s3, s2, 6\ns_lshl_b32 s4, s%d, 4\ns_add_u32 s3, s3, s4" % sWave)
    p("v_add_u32 v12, s3, v2\nv_lshlrev_b32 v10, 10, v12\nv_lshl_add_u32 v10, v3, 4, v10\nv_add_u32 v11, 8192, v10\nv_mov_b32 v13, v3")
    p("s_memrealtime s[%d:%d]" % (sTag, sTag + 1))
    p("s_waitcnt lgkmcnt(0)")
    p("s_mov_b32 s%d, s74\ns_mov_b32 s%d, s75" % (sDbg, sDbg + 1))
    p("s_lshr_b32 s3, s2, %d\ns_or_b32 s3, s3, s%d\ns_cmp_lg_u32 s3, 0\ns_cselect_b64 exec, 0, 1" % (3 if opts.get("cas", 1) else 0, sWave))
    p("s_or_b32 s%d, s%d, 1\nv_mov_b32 v16, s%d\nv_mov_b32 v17, s%d\nv_mov_b32 v18, 0\nv_mov_b32 v19, 0\ns_cbranch_execz L_aux_nt" % (sTag, sTag, sTag, sTag + 1))
    p("global_atomic_cmpswap_x2 v%d, v[16:19], s[%d:%d] sc1" % (vNon + 2, sDbg, sDbg + 1))
    p.label("L_aux_nt")
    p("s_mov_b64 exec, -1")
    srd(p, sQ, kQ, 2048 * 1024)
    for g in range(2):
        for i in range(8):
            p("buffer_load_dwordx4 %s, v%d, %s, 0 offen offset:%d" % (vr(116 + 32 * g + 4 * i), 10 + g, S4(sQ), i * 128), vm="sx%d" % g)
        if g == 0:
            srd(p, sWS, kWS, WS_SZ)
            kv_setup(p); ids2(p); hk_srds(p)
            phase2_setup(p, opts)
    nld, nchk = nonce_get("na")
    p.add(nld)
    p("s_mov_b32 s5, 0x3f803f80")
    for g in range(2):
        p.wait(vm="sx%d" % g if g == 0 else "non")
        stamp(p, "a.sx%d" % g, opts, 3)
        if g == 1:
            p("v_lshlrev_b32 v10, 7, v1\ns_mov_b32 s12, s60\ns_and_b32 s13, s61, 0xffff\ns_mov_b32 s14, 0x200000\ns_mov_b32 s15, 0x20000")
            p("s_mov_b32 s24, s70\ns_and_b32 s25, s71, 0xffff\ns_mov_b32 s26, %d\ns_mov_b32 s27, 0x20000" % (1792 * 1024))
            p("s_lshl_b32 s3, s2, 16\ns_lshl_b32 s4, s%d, 14\ns_add_u32 s21, s3, s4\ns_mul_i32 s3, s2, 57344\ns_mul_i32 s4, s%d, 14336\ns_add_u32 s22, s3, s4" % (sWave, sWave))

        s1 = 16 + 4 * g; s2 = s1 + 1
        for r in range(32):
            x = 116 + 32 * g + r; c = r & 1
            p("v_dot2_f32_bf16 v%d, v%d, s5, %s" % (s1 + 2 * c, x, "v%d" % (s1 + 2 * c) if r > 1 else "0"))
            p("v_dot2_f32_bf16 v%d, v%d, v%d, %s" % (s2 + 2 * c, x, x, "v%d" % (s2 + 2 * c) if r > 1 else "0"))
    for x in nchk: p.add(x)
    p("v_add_f32 v16, v16, v18\nv_add_f32 v17, v17, v19\nv_add_f32 v18, v20, v22\nv_add_f32 v19, v21, v23")
    for mod in ("quad_perm:[1,0,3,2]", "quad_perm:[2,3,0,1]", "row_half_mirror"):
        for r in range(16, 20): p("v_add_f32_dpp v%d, v%d, v%d %s row_mask:0xf bank_mask:0xf" % (r, r, r, mod))
    ops = [[], []]
    for g in range(2):
        S1 = 16 + 2 * g; S2 = S1 + 1; o = 20 + 4 * g
        ops[g] = ["v_mul_f32 v%d, %s, v%d" % (S1, hex(f2u(1.0 / 512)), S1), "v_mul_f32 v%d, %s, v%d" % (S2, hex(f2u(1.0 / 512)), S2),
                  "v_fma_f32 v%d, -v%d, v%d, v%d" % (S2, S1, S1, S2), "v_max_f32 v%d, 0, v%d" % (S2, S2),
                  "v_cvt_pk_bf16_f32 v%d, v%d, v%d" % (S2, S2, S2), "v_and_b32 v%d, 0xffff0000, v%d" % (S2, S2),
                  "v_add_f32 v%d, %s, v%d" % (S2, hex(f2u(1e-5)), S2),
                  "v_cvt_pk_bf16_f32 v%d, v%d, v%d" % (S2, S2, S2), "v_and_b32 v%d, 0xffff0000, v%d" % (S2, S2),
                  "v_sqrt_f32 v%d, v%d" % (S2, S2), "v_mov_b32 v%d, s%d" % (o + 1, sTag),
                  "v_cvt_pk_bf16_f32 v%d, -v%d, v%d" % (o, S1, S2)]
    p("v_cmp_eq_u32 vcc, 0, v13\nv_lshlrev_b32 v12, 3, v12\nv_add_u32 v12, %d, v12\nv_mov_b32 v14, 0x80000000\nv_cndmask_b32 v12, v14, v12, vcc" % WS_ST)
    for x0, x1 in zip(*ops): p(x0); p(x1)
    p("buffer_store_dwordx2 v[20:21], v12, %s, 0 offen sc1" % S4(sWS), vm="pub")
    p("buffer_store_dwordx2 v[24:25], v12, %s, 0 offen offset:64 sc1" % S4(sWS), vm="pub")
    stamp(p, "a.stats", opts)
    tW = ["buffer_load_dword v28, v10, s[24:27], s22 offen\ns_add_u32 s22, s22, 6144", "buffer_load_dword v28, v10, s[24:27], s22 offen"]
    tK = ["buffer_load_dword v28, v10, s[12:15], s21 offen\ns_add_u32 s21, s21, 8192", "buffer_load_dword v28, v10, s[12:15], s21 offen"]
    WM = opts.get("warm", 1)
    tq_ = {0: [], 1: tW + tK, 2: tW, 3: tK + tW, 4: tW + tK}[WM]
    p("s_barrier")
    seq(p, kv_loads(opts) + hk_loads(opts))
    if WM == 4: p(tq_.pop(0), vm="warm")
    for x in phase2_srds(): p.add(x)
    p.wait(vm="hk")
    p("s_barrier")
    for _ in range(opts.get("warm1", 1)):
        if tq_: p(tq_.pop(0), vm="warm")
    for x in kv_compute() + kv_stores(): p.add(x)
    stamp(p, "a.kv", opts)
    seq(p, hk_build())
    if tq_ and opts.get("warm2", 1): p(tq_.pop(0), vm="warm")
    p.wait(vm="kvst", lg="*")
    p.add(flag_store(sFlK))
    stamp(p, "a.kvfl", opts)
    for x in tq_: p(x, vm="warm")
    stamp(p, "a.warm", opts)
    p("s_lshl_b32 s3, s2, 7\ns_add_u32 s%d, s3, %d" % (sFlH, WS_FD))
    for x in fl0_setup(): p.add(x)
    p("s_barrier")
    for mt in range(4): p("v_add_u32 v%d, 0x20000, v%d" % (uTR2 + mt, uTR + mt))
    prev = PREV
    for t in sorted(opts["_ord"]):
        if t in prev:
            p.wait(vm="w%d" % prev[t])
            for x in wd_reads(prev[t], True): p.add(x)
            p.wait(lg="*")
        seq(p, wd_loads(t, opts))
    for s in range(14): p("s_lshr_b32 s%d, s%d, 5" % (sTab + s, sTabW + s))
    kvpoll = [mk("buffer_load_dwordx2 v[%d:%d], v%d, %s, 0 offen sc1" % (uPoll, uPoll + 1, uFK, S4(sWS)), vm="kvp")]
    p.add(kvpoll[0])
    p.wait(vm="kvp")
    for x in poll_check("kva", [uPoll], kvpoll): p.add(x)
    seq(p, conv_xr())
    p("s_waitcnt vmcnt(0)")
    stamp(p, "a.pre", opts)

def pollf(t, opts):
    if opts["pollf"] == "atom":
        m = re.match(r"buffer_load_dwordx2 v\[(\d+):(\d+)\], (.*) sc1", t)
        if not m: return t
        return "v_mov_b32 v%s, 0\nv_mov_b32 v%s, 0\nbuffer_atomic_add_x2 v[%s:%s], %s sc0 sc1" % (m.group(1), m.group(2), m.group(1), m.group(2), m.group(3))
    return t.replace(" sc1", " " + opts["pollf"].replace("+", " "))
def emit(a, lines):
    for l in lines: a(l if l.endswith(":") else "  " + l)

def build(opts):
    del SLOW[:]
    if "rho" in opts: RHO[:] = [int(c) for c in str(opts["rho"]).rjust(3, "0")]
    PROF[0] = opts.get("prof", 0); SLEEP['*'] = opts.get("sleep", 4)
    name = KN + "_kernel"
    a = A()
    a(header(["; @launch grid=(256,1,1) block=(256,1,1) lds=163840"]))
    a(kernel_begin(name))
    a("s_load_dwordx8 s[80:87], s[0:1], 0\ns_load_dwordx16 s[60:75], s[0:1], 32\ns_load_dwordx2 s[76:77], s[0:1], 96")
    a("s_cmp_ge_u32 s2, 256\ns_cbranch_scc1 L_end")
    if opts.get("prof"):
        a("s_memrealtime s[78:79]\ns_memtime s[100:101]\nv_mov_b32 v255, 0\ns_waitcnt lgkmcnt(0)\nv_writelane_b32 v255, s100, 0\nv_writelane_b32 v255, s78, 62")
    p0 = Prog(); common_setup(p0, opts); c0 = p0.resolve()
    a("s_cmp_ge_u32 s2, 32\ns_cbranch_scc1 L_gemm")
    if opts.get("ipf", 1):
        a("s_getpc_b64 s[4:5]\nv_lshlrev_b32 v1, 7, v0\ns_and_b32 s4, s4, 0xffffff00\nv_min_u32 v1, L_code_end-%s-128, v1\nglobal_load_dword v200, v1, s[4:5]" % name)
    a("s_branch L_aux")
    a.label("L_gemm")
    emit(a, c0)
    p = Prog(); gemm1(p, opts); p.label("L_phase2"); phase2(p, opts)
    pa = Prog(); aux(pa, opts)
    for q in (p, pa):
        if opts.get("x_nochk"): q.ins = [y for y in q.ins if not ("s_cbranch_vccnz L_slow" in y.t)]
        if opts.get("x_nost"): q.ins = [y for y in q.ins if not (y.t.startswith("buffer_store") and "sc1" in y.t)]
        if opts.get("x_nofl"): q.ins = [y for y in q.ins if not (y.t.startswith("buffer_store_dwordx2") and "v[6:7]" in y.t)]
        if opts.get("x_nokv"): q.ins = [y for y in q.ins if not (y.vm in ("kv", "hk") and y.kind != "wait")]
        if opts.get("pollf"):
            for y in q.ins:
                if y.vm in ("kvp", "hpA", "hpB", "yp", "wfp") and y.t.startswith("buffer_load"): y.t = pollf(y.t, opts)
        if opts.get("x_nohb"): q.ins = [y for y in q.ins if not ("v39" in y.t or y.t.startswith("v_alignbit") or y.lg == "hb")]
        if opts.get("x_nowb"): q.ins = [y for y in q.ins if not (y.vm in ("w0", "w1", "w2", "w3", "w4", "w7") and y.kind != "wait")]
        if opts.get("x_drop"):
            dr = str(opts["x_drop"]).split("+")
            q.ins = [y for y in q.ins if not (y.kind != "wait" and y.vm in dr)]
        if opts.get("x_dropw"):
            dr = str(opts["x_dropw"]).split("+")
            q.ins = [y for y in q.ins if not (y.kind == "wait" and y.vm in dr)]
        if opts.get("x_nopoll"): q.ins = [y for y in q.ins if not (y.vm in ("rec", "kvp", "hpA", "hpB", "yp", "wfp") and y.kind != "wait")]
    lines = p.resolve()
    la = pa.resolve()
    pr = check_hazards(lines, "main") + check_hazards(la, "aux")
    for x in pr[:40]: print("HAZARD", x, file=sys.stderr)
    if pr: raise SystemExit("hazards")
    emit(a, lines)
    if opts.get("prof"):
        a("s_waitcnt vmcnt(0) lgkmcnt(0)\ns_memtime s[100:101]\ns_memrealtime s[78:79]\ns_load_dwordx2 s[4:5], s[0:1], 96\ns_waitcnt lgkmcnt(0)")
        a("v_writelane_b32 v255, s100, 60\nv_writelane_b32 v255, s78, 63\ns_getreg_b32 s100, hwreg(HW_REG_XCC_ID)\nv_writelane_b32 v255, s100, 61")
        a("s_lshl_b32 s6, s2, 10\ns_lshl_b32 s7, s%d, 8\ns_add_u32 s6, s6, s7\ns_add_u32 s6, s6, 0x1000000\ns_add_u32 s4, s4, s6\ns_addc_u32 s5, s5, 0" % sWave)
        a("v_lshlrev_b32 v2, 2, v1\nglobal_store_dword v2, v255, s[4:5]\ns_waitcnt vmcnt(0)")
        a("; STAMPS " + " ".join(STAMPS))
        a("; SPINS " + " ".join(SPINS))
    a.label("L_end")
    a("s_endpgm")
    a.label("L_aux")
    emit(a, c0)
    emit(a, la)
    a("s_branch L_phase2")
    for t in SLOW:
        if opts.get("pollf"): t = "\n".join(pollf(l, opts) if (l.startswith("buffer_load_dwordx2 v[25") or l.startswith("buffer_load_dwordx2 v[2:3]") or l.startswith("buffer_load_dwordx4 v[250")) else l for l in t.split("\n"))
        a(t)
    a.label("L_code_end")
    a(RODATA)
    a(kernel_desc(name, 512, 102, 256))
    return a.text()

if __name__ == "__main__":
    opts = {}
    for kv in sys.argv[2:]:
        k, _, v = kv.partition("=")
        opts[k] = int(v) if v.lstrip("-").isdigit() else (v if v else 1)
    for k in ("fw", "fx", "fd", "fk", "fkv", "fo", "fr"):
        if k in opts: opts[k] = "" if opts[k] == "none" else " " + opts[k].replace("+", " ")
    open(sys.argv[1], "w").write(build(opts))
```

```python
import re

class I:
    __slots__ = ("t", "vm", "lg", "cost", "kind")
    def __init__(self, t, vm=None, lg=None, cost=4, kind=None):
        self.t = t; self.vm = vm; self.lg = lg; self.cost = cost; self.kind = kind

TRANS = ("v_exp_f32", "v_log_f32", "v_rcp_f32", "v_rsq_f32", "v_sqrt_f32", "v_sin_f32", "v_cos_f32")

def regs_of(op):
    op = op.strip()
    op = op.lstrip("-")
    m = re.match(r"^abs\((.*)\)$", op)
    if m: op = m.group(1)
    m = re.match(r"^([vas])\[(\d+):(\d+)\]$", op)
    if m:
        return {(m.group(1), i) for i in range(int(m.group(2)), int(m.group(3)) + 1)}
    m = re.match(r"^([vas])(\d+)$", op)
    if m:
        return {(m.group(1), int(m.group(2)))}
    if op == "vcc": return {("s", "vcc")}
    if op == "m0": return {("s", "m0")}
    if op == "exec": return {("s", "exec")}
    return set()

def parse(t):
    t = t.split(";")[0].strip()
    if not t or t.endswith(":") or t.startswith("."):
        return None
    parts = t.split(None, 1)
    mn = parts[0]
    ops = []
    if len(parts) > 1:
        rest = parts[1]
        cur = ""; depth = 0
        for ch in rest:
            if ch == "[": depth += 1
            if ch == "]": depth -= 1
            if ch == "," and depth == 0:
                ops.append(cur.strip()); cur = ""
            else:
                cur += ch
        ops.append(cur.strip())
        ops = [o.split()[0] if o and not o.startswith("hwreg") else o for o in ops]
    R = [regs_of(o) for o in ops]
    defs = set(); uses = set()
    lds = " lds" in (" " + t + " ") and mn.startswith("buffer_load")
    if mn.startswith("buffer_store") or mn.startswith("global_store") or mn.startswith("ds_write") or lds \
       or (mn.startswith("buffer_atomic") and "sc0" not in t) or (mn.startswith("global_atomic") and "sc0" not in t):
        for r in R: uses |= r
        if lds: uses.add(("s", "m0"))
    elif mn.startswith("s_cmp") or mn.startswith("s_cbranch") or mn in ("s_waitcnt", "s_nop", "s_barrier", "s_branch", "s_endpgm", "s_sleep", "s_setprio"):
        for r in R: uses |= r
    elif mn.startswith("v_permlane") and "swap" in mn:
        defs = R[0] | R[1]; uses = R[0] | R[1]
    else:
        if R:
            defs = set(R[0])
            for r in R[1:]: uses |= r
        if mn.startswith("v_fmac") or mn.startswith("v_dot2c") or mn.startswith("s_addk") or mn.startswith("v_writelane"):
            uses |= R[0]
        if mn.startswith("v_add_co") or mn.startswith("v_addc_co") or mn.startswith("v_sub_co"):
            defs |= R[1]
        if mn.startswith("v_cndmask") and len(R) == 3:
            uses.add(("s", "vcc"))
        if "saveexec" in mn:
            defs.add(("s", "exec"))
        if "dpp" in mn or "row_" in t or "quad_perm" in t:
            uses |= R[0]
    return mn, defs, uses

def is_valu(mn):
    return mn.startswith("v_") and not mn.startswith("v_mfma")
def is_mfma(mn):
    return mn.startswith("v_mfma")
def is_vmem(mn):
    return mn.startswith("buffer_") or mn.startswith("global_")
def mfma_passes(mn):
    return 8 if "32x32" in mn else 4

def states(mn, t):
    if mn == "s_nop":
        return int(t.split()[1]) + 1
    return 1

def check_hazards(lines, name=""):
    P = []
    ins = []
    for n, t in enumerate(lines):
        p = parse(t)
        if p: ins.append((n, t, p))
    for i, (n, t, (mn, d, u)) in enumerate(ins):
        dist = 0
        j = i - 1
        while j >= 0 and dist < 21:
            n2, t2, (mn2, d2, u2) = ins[j]
            need = 0
            vd2 = {r for r in d2 if r[0] in "va"}
            sd2 = {r for r in d2 if r[0] == "s"}
            if is_valu(mn2) and is_mfma(mn) and (vd2 & u): need = max(need, 2)
            if is_mfma(mn2):
                ps = mfma_passes(mn2)
                if is_mfma(mn):
                    ops = [o.strip() for o in re.split(r",\s*(?![^\[]*\])", t.split(None, 1)[1])]
                    ab = regs_of(ops[1]) | regs_of(ops[2]); c = regs_of(ops[3].split()[0])
                    if vd2 & ab: need = max(need, {4: 8, 8: 12}[ps])
                    if vd2 & c and (c != vd2 or mn != mn2): need = max(need, {4: 6, 8: 10}[ps])
                    if (vd2 & d) and not (vd2 & c): need = max(need, {4: 6, 8: 10}[ps])
                elif is_valu(mn) or is_vmem(mn) or mn.startswith("ds_"):
                    if vd2 & (u | d): need = max(need, {4: 8, 8: 12}[ps])
                    if is_valu(mn):
                        ops2 = [o.strip() for o in re.split(r",\s*(?![^\[]*\])", t2.split(None, 1)[1])]
                        c2 = regs_of(ops2[3].split()[0])
                        if c2 & d: need = max(need, {4: 3, 8: 7}[ps])
            if mn2.split("_e")[0] in TRANS or mn2 in TRANS:
                if is_valu(mn) and mn not in TRANS and (vd2 & u): need = max(need, 1)
                if is_valu(mn) and mn in TRANS and (vd2 & u): need = max(need, 1)
            if is_valu(mn2) and sd2:
                if is_vmem(mn) and (sd2 & u): need = max(need, 5)
                if is_valu(mn) and (sd2 & u): need = max(need, 2)
                if mn.startswith("v_readlane") and (sd2 & u): need = max(need, 4)
            if is_valu(mn2) and ("s", "exec") in d2 and is_mfma(mn): need = max(need, 4)
            if is_valu(mn2) and (mn.startswith("v_readfirstlane") or mn.startswith("v_readlane")) and (vd2 & u): need = max(need, 1)
            if is_valu(mn2) and mn.startswith("v_permlane") and (vd2 & u): need = max(need, 2)
            if is_valu(mn2) and is_valu(mn) and ("dpp" in mn or "quad_perm" in t or "row_" in t) and (vd2 & u): need = max(need, 2)
            if not is_valu(mn2) and ("s", "m0") in d2 and ("s", "m0") in u and is_vmem(mn): need = max(need, 1)
            if (mn2.startswith("buffer_store") or mn2.startswith("global_store")) and ("x4" in mn2 or "x3" in mn2):
                dat = regs_of(t2.split(None, 1)[1].split(",")[0 if mn2.startswith("buffer") else 1].strip()) if True else set()
                ops2 = [o.strip() for o in re.split(r",\s*(?![^\[]*\])", t2.split(None, 1)[1])]
                dat = regs_of(ops2[0] if mn2.startswith("buffer") else ops2[1])
                if dat & d: need = max(need, 2 if is_valu(mn) else 1)
            if need > dist:
                P.append("%s line %d: '%s' needs %d states after '%s' (has %d)" % (name, n, t.strip(), need, t2.strip(), dist))
            dist += states(mn2, t2)
            j -= 1
    return P

class Prog:
    def __init__(self):
        self.ins = []
    def __call__(self, t, vm=None, lg=None, cost=None):
        for line in t.split("\n"):
            line = line.strip()
            if not line: continue
            self.ins.append(mk(line, vm, lg, cost))
    def add(self, i):
        self.ins.append(i)
    def wait(self, vm=None, lg=None):
        self.ins.append(I("WAIT", vm=vm, lg=lg, kind="wait"))
    def label(self, n):
        self.ins.append(I(n + ":", kind="label", cost=0))
    def resolve(self):
        out = []
        vmq = []; lgq = []
        for i in self.ins:
            if i.kind == "wait":
                parts = []
                for tag, q, nm, mx in ((i.vm, vmq, "vmcnt", 63), (i.lg, lgq, "lgkmcnt", 15)):
                    if tag is None: continue
                    tags = tag if isinstance(tag, (list, tuple)) else [tag]
                    if "*" in tags:
                        n = 0
                    else:
                        last = -1
                        for k, x in enumerate(q):
                            if x in tags: last = k
                        if last < 0: continue
                        n = len(q) - 1 - last
                    if n > mx: n = mx
                    del q[:len(q) - n]
                    parts.append("%s(%d)" % (nm, n))
                if parts: out.append("s_waitcnt " + " ".join(parts))
                continue
            if i.kind == "bundle":
                out += i.t.split("\n"); continue
            if "\n" in i.t:
                vmq.append(i.vm); out += i.t.split("\n"); continue
            mn = i.t.split()[0]
            if is_vmem(mn): vmq.append(i.vm)
            if mn.startswith("ds_"): lgq.append(i.lg)
            if mn == "s_waitcnt":
                m = re.search(r"vmcnt\((\d+)\)", i.t)
                if m: del vmq[:max(0, len(vmq) - int(m.group(1)))]
                m = re.search(r"lgkmcnt\((\d+)\)", i.t)
                if m: del lgq[:max(0, len(lgq) - int(m.group(1)))]
            out.append(i.t)
        return out

def mk(line, vm=None, lg=None, cost=None):
    mn = line.split()[0]
    if cost is None:
        cost = 8 if mn in TRANS else 4
    return I(line, vm=vm, lg=lg, cost=cost)

def W(vm=None, lg=None):
    return I("WAIT", vm=vm, lg=lg, kind="wait")

def fix_hazards(lines, name=""):
    for _ in range(50):
        P = check_hazards(lines, name)
        if not P: return lines
        m = re.match(r".* line (\d+): .* needs (\d+) states .*\(has (\d+)\)$", P[0])
        n, need, has = int(m.group(1)), int(m.group(2)), int(m.group(3))
        for q in P:
            m2 = re.match(r".* line (\d+): .* needs (\d+) states .*\(has (\d+)\)$", q)
            if int(m2.group(1)) == n and int(m2.group(2)) - int(m2.group(3)) > need - has: need, has = int(m2.group(2)), int(m2.group(3))
        import sys
        print("auto nop %d before: %s" % (need - has, lines[n]), file=sys.stderr)
        lines = lines[:n] + ["s_nop %d" % (need - has - 1)] + lines[n:]
    return lines
```

```python
import sys, struct, re
from asmlib import *
from sched import *

WS_H  = 0x000000
WS_XR = 0x700000
WS_YT = 0x900000
WS_ST = 0xB00000
WS_FK = 0xB08000
WS_FH = 0xB10000
WS_FY = 0xB18000
WS_FD = 0xB20000
WS_FL = 0x20000
WS_CS = 0xB48000
WS_SZ = 0xC00000
LOG2E = 1.4426950408889634
SPIN_MAX = 1 << 16

def f2u(x): return struct.unpack("<I", struct.pack("<f", x))[0]
def vr(b, n=4, p="v"): return "%s[%d:%d]" % (p, b, b + n - 1) if n > 1 else "%s%d" % (p, b)
def S4(b): return "s[%d:%d]" % (b, b + 3)
def srd(p, d, lo, size):
    p("s_mov_b32 s%d, s%d\ns_and_b32 s%d, s%d, 0xffff\ns_mov_b32 s%d, 0x%x\ns_mov_b32 s%d, 0x20000" % (d, lo, d + 1, lo + 1, d + 2, size, d + 3))
def ml(t, **kw): return [mk(x, **kw) for x in t.split("\n")]
def bundle(t):
    b = I(t, cost=4 * len(t.split("\n"))); b.kind = "bundle"; return b

SLOT = 32768
CONV = 98304; CH_STRIDE = 12928; XR_OFF = 8320
UNIT = [141312, 0, 16384, 32768, 49152, 65536, 81920, 124416]
WUN = {t: t % 7 for t in range(14)}
WUN[5] = 7; PREV = {7: 0, 8: 1, 9: 2, 10: 3, 11: 4, 13: 6}
def wdl(s): return UNIT[WUN[s]]
KVL = 141312
RS = 272; REDW = 32 * RS
RED = [CONV, 0]
YT_L = CONV + 4 * REDW; XCH = CONV
sQ = 8; sW = 12; sWS = 16; sWave = 20; sTB = 21; sCB = 22; sLdsX = 23; sLdsW = 24; sLdsXB = 25; sT0 = 26; sT1 = 27
sHa = 28; sST = 29; sFlK = 30; sDoff = 31; sDbg = 32; sT2 = 34; sT3 = 35; sWd = 36; sHk = 40; sOut = 44; sTag = 48
sXB = 50
sCSw = 52; sTB2 = 53; sDB = 54; sCV = 55; sXRso = 56; sYoff = 57; sFlH = 58; sFlY = 59
sTabW = 60
sHalf = 74; sCh4k = 75; sSpin = 76; sWdL = 77
sDp = 80
sTab = 84
sK = 36; sV = 44; sSh = 64
kSK = 60; kD = 62;
kBX = 64; kWG = 66; kWU = 68; kWD = 70; kOUT = 72; kDBG = 74; kWS = 76; kQ = 80; kK = 82; kV = 84; kSH = 86
vKD = 2
vTag = 6; vFl = 8
vWD = 10; vXD = 14; vXA = 18; vWA = 26; vHoff = 28; vSToff = 29; vCSoff = 30; vL16 = 31; vNon = 32
vKA = 36; vKO = 37; vSH = 38
vR1A = 40; vR1B = 44; vOnes = 180; vST = 52; vXF = 84; vACC = 116; vTMP = 212; vOUT = 220
vCSR = 180; vCSA = 196
uWD = 228; uH = 232; uTR = 236; uCA = 240; uCB = 241; uYst = 242; uFY = 243; uX = 244; uSto = 245; uFH = 246; uFK = 247
uHead = 248; uHeadA = 249; uPoll = 250; uD = 254
uAD = 40; uTmp = 32; uXin = 44; uSt = 52; uCacc = 184; uAcc = 120
vCF = 56; aH = 0
def wfrag(s, mt):
    if s < 8: return "a", 128 + 16 * s + 4 * mt
    if s < 10: return "v", 184 + 16 * (s - 8) + 4 * mt
    return "v", 56 + 16 * (s - 10) + 4 * mt

STAMPS = ["start"]
def stamp_l(name, opts, lvl=1):
    if not opts.get("prof") or opts.get("plvl", 1) == 0 or (lvl > 1 and lvl != opts.get("plvl", 1)): return []
    if name not in STAMPS: STAMPS.append(name)
    idx = STAMPS.index(name)
    assert idx < 48
    return ml("s_memtime s[100:101]\ns_waitcnt lgkmcnt(0)\nv_writelane_b32 v255, s100, %d" % idx, cost=0)
def stamp(p, name, opts, lvl=1):
    for x in stamp_l(name, opts, lvl): p.add(x)

def acc_of(t): return vACC + 16 * {0: 0, 1: 1, 2: 2, 3: 3, 4: 4, 5: 5, 6: 0, 7: 1}[t]
def win(addr): return addr >> 16, addr & 0xffff
def dma(v, srd_, so, off, tag, fl=""):
    return mk("buffer_load_dwordx4 v%d, %s, %s offen offset:%d%s lds" % (v, S4(srd_), so, off, fl), vm=tag)
def is_m0(x): return " m0," in x.t
def is_vm(x): return x.t.startswith("buffer_") or x.t.startswith("global_")
def seq(p, L):
    L = [x for x in L if x.kind != "delay"]
    for i, x in enumerate(L):
        p.add(x)
        if is_m0(x) and i + 1 < len(L) and is_vm(L[i + 1]): p("s_nop 0")
vFl0 = 9
def flag_store(so, wg=False, tag="fl"):
    return mk("buffer_store_dwordx2 v[%d:%d], v%d, %s, s%d offen sc1" % (vTag, vTag + 1, vFl0 if wg else vFl, S4(sWS), so), vm=tag)
def fl0_setup():
    return ml("s_lshl_b32 s6, s%d, 31\ns_lshl_b32 s7, s%d, 30\ns_or_b32 s6, s6, s7\ns_and_b32 s6, s6, 0x80000000\nv_or_b32 v%d, s6, v%d" % (sWave, sWave, vFl0, vFl))

def g1_stage(s, opts):
    L = []; base = (s % 3) * SLOT; tag = "st%d" % s
    fw = opts.get("fw", ""); fx = opts.get("fx", "")
    if s < 8:
        L.append(mk("s_add_u32 m0, s%d, %d" % (sLdsW, base)))
        L += [dma(vWD + j, sW, "s%d" % (sTab + s), j * 1024, tag, fw) for j in range(4)]
        L.append(mk("s_add_u32 m0, s%d, %d" % (sLdsX, base)))
        L += [dma(vXD + j, sQ, "s%d" % (sTab + 8 + s), j * 1024, tag, fx) for j in range(4)]
    else:
        for h in range(2):
            L.append(mk("s_add_u32 m0, s%d, %d" % (sLdsXB, base + h * 4096)))
            L.append(mk("s_add_u32 s%d, s%d, %d" % (sT0 + h, sXB + h, (s - 8) * 32768)))
            L += [dma(vXD + j, sQ, "s%d" % (sT0 + h), j * 1024, tag, fx) for j in range(4)]
    return L
def wd_loads(s, opts):
    return [mk("s_add_u32 m0, s%d, %d" % (sWdL, wdl(s)))] + \
           [dma(uWD + j, sWd, "s%d" % (sTabW + s), j * 1024, "w%d" % s, opts.get("fd", "")) for j in range(4)]
def h_loads(hs):
    ps, s = divmod(hs, 14)
    L = []
    for e in range(2):
        r = aH + 8 * (hs % 16) + 4 * e
        L.append(mk("buffer_load_dwordx4 a[%d:%d], v%d, %s, s%d offen offset:%d sc1" % (r, r + 3, uH + ps, S4(sWS), sTab + s, e * 1024), vm="h%d" % hs))
    return L
HI = {1: 216, 2: 220}
uTR2 = 2
def wd_reads(s, inB=False):
    L = []
    w, off = win(wdl(s))
    for f in range(4):
        e, mt = f >> 1, f & 1
        k, b = wfrag(s, f)
        reg = uTR + mt if w == 0 else (uTR2 + mt if inB else HI[w] + mt)
        L.append(mk("ds_read_b64_tr_b16 %s[%d:%d], v%d offset:%d" % (k, b, b + 1, reg, off + e * 2048), lg="t%d" % s))
        L.append(mk("ds_read_b64_tr_b16 %s[%d:%d], v%d offset:%d" % (k, b + 2, b + 3, reg, off + e * 2048 + 512), lg="t%d" % s))
    return L
def hk_loads(opts):
    L = ml("s_lshl_b32 s6, s%d, 11\ns_add_u32 m0, s6, s%d\ns_add_u32 m0, m0, 32" % (sHalf, sCV))
    L += [dma(vL16, sHk, "s6", j * 1024, "hk", opts.get("fk", "")) for j in range(2)]
    L.append(mk("buffer_load_ushort v%d, v%d, %s, 0 offen" % (uHead, uHead, S4(sHk)), vm="hk"))
    L.append(mk("buffer_load_ushort v%d, off, %s, s%d" % (uD, S4(sDp), sDoff), vm="hk"))
    return L
def delay(n):
    d = I("; delay", cost=0); d.kind = "delay"; d.vm = n; return d
def hk_build(alt=0):
    D = [212, 213, 214, 215, 216, 217]; E1 = 220; E3 = 224; C2 = 52
    if alt: D = [10, 11, 12, 13, 26, 27]; E1 = 32; E3 = 32; C2 = 32
    L = ml("s_lshl_b32 s5, s%d, 11\ns_add_u32 s5, s5, s%d\nv_add_u32 v39, s5, v%d\nds_write_b16 v%d, v%d" % (sHalf, sCV, vL16, uHeadA, uHead))
    for j in range(2):
        o = 32 + j * 1024
        L.append(mk("ds_read_b128 %s, v39 offset:%d" % (vr(D[0]), o), lg="hb"))
        L.append(mk("ds_read_b32 v%d, v39 offset:%d" % (D[4], o + 16), lg="hb"))
        L += [delay(5), W(lg="hb")]
        L += [mk("v_alignbit_b32 v%d, v%d, v%d, 16" % (E1 + i, D[i + 1], D[i])) for i in range(4)]
        L += [delay(1), mk("ds_write_b128 v39, %s offset:%d" % (vr(E1), o + 4160), cost=12), delay(2)]
    return L
def conv_xr():
    L = ml("s_lshl_b32 s7, s%d, 10\ns_add_u32 m0, s7, %d" % (sWave, CONV + XR_OFF))
    L += [dma(vL16, sWS, "s%d" % sXRso, 0, "cv", " sc1")]
    L += ml("s_add_u32 s%d, s%d, 4096\ns_add_u32 m0, s7, %d" % (sXRso, sXRso, CONV + CH_STRIDE + XR_OFF))
    L += [dma(vL16, sWS, "s%d" % sXRso, 0, "cv", " sc1")]
    return L
CAR = [uCA, 10, 11, 12]
def conv_reads(rr):
    L = []; b = vCF + 64 * (rr & 1)
    for i in range(8):
        a = b + 4 * i; t = "c%d_%d" % (rr, i)
        ar = CAR[i >> 1]; o = 16 * rr + 128 * (i & 1)
        L.append(mk("ds_read2_b32 v[%d:%d], v%d offset0:%d offset1:%d" % (a, a + 1, ar, o, o + 1), lg=t))
        L.append(mk("ds_read2_b32 v[%d:%d], v%d offset0:%d offset1:%d" % (a + 2, a + 3, ar, o + 2, o + 3), lg=t))
        L.append(mk("ds_read_b128 v[%d:%d], v%d offset:%d" % (a + 32, a + 35, uCB, 3584 - 512 * i + 64 * rr), lg=t))
    return L

def kv_setup(p):
    p("s_lshr_b32 s3, s2, 3\ns_lshl_b32 s3, s3, 16\ns_and_b32 s4, s2, 7\ns_lshl_b32 s5, s4, 7\ns_add_u32 s5, s5, s3")
    p("v_lshrrev_b32 v9, 3, v1\nv_and_b32 v%d, 7, v1\nv_lshlrev_b32 v%d, 4, v%d\nv_lshl_add_u32 v%d, v9, 10, v%d" % (vSH, vKD, vSH, vKD, vKD))
    p("s_add_u32 s6, s5, %d\nv_add_u32 v%d, s6, v%d" % (56 * 1024, vKD + 2, vKD))
    p("s_lshl_b32 s6, s%d, 14\ns_add_u32 s5, s5, s6\nv_add_u32 v%d, s5, v%d" % (sWave, vKD + 1, vKD))
    p("v_add_u32 v%d, 0xffffe000, v%d\nv_add_u32 v%d, %d, v%d" % (vKD, vKD + 1, vKD + 3, 8192 - 1056, vKD + 1))
    p("s_lshl_b32 s6, s%d, 5\ns_add_u32 s6, s6, %d\nv_mul_u32_u24 v%d, 1056, v9\nv_lshl_add_u32 v%d, v%d, 2, v%d\nv_add_u32 v%d, s6, v%d" % (sWave, KVL, vKA, vKA, vSH, vKA, vKA, vKA))
    p("s_lshl_b32 s6, s4, 18\ns_lshl_b32 s7, s%d, 16\ns_add_u32 s6, s6, s7\ns_lshr_b32 s7, s3, 9\ns_sub_u32 s6, s6, s7\ns_add_u32 s6, s6, %d" % (sWave, WS_XR + 4080))
    p("v_lshlrev_b32 v%d, 13, v%d\nv_lshlrev_b32 v9, 4, v9\nv_sub_u32 v%d, v%d, v9\nv_add_u32 v%d, s6, v%d" % (vKO, vSH, vKO, vKO, vKO, vKO))
    p("s_lshl_b32 s6, s4, 9\ns_lshl_b32 s7, s%d, 7\ns_add_u32 s6, s6, s7\nv_lshl_add_u32 v%d, v%d, 4, s6" % (sWave, vSH, vSH))
    p("s_lshl_b32 s6, s2, 7\ns_lshl_b32 s7, s%d, 3\ns_add_u32 s6, s6, s7\ns_add_u32 s%d, s6, %d" % (sWave, sFlK, WS_FK))
    srd(p, sK, kK, 2048 * 1024); srd(p, sV, kV, 2048 * 1024); srd(p, sSh, kSH, 4096)
def kv_loads(opts):
    f = opts.get("fkv", "")
    L = ml("s_mul_i32 s6, s%d, 2112\ns_add_u32 s6, s6, %d\ns_mov_b32 m0, s6" % (sWave, KVL))
    L += [dma(vKD, sK, "0", 0, "kv", f), mk("s_add_u32 m0, s6, 1056"), dma(vKD + 1, sK, "0", 0, "kv", f),
          mk("s_mov_b32 m0, %d" % (KVL + 8 * 1056)), dma(vKD + 2, sK, "0", 0, "kv", f),
          mk("s_add_u32 m0, s6, %d" % (9 * 1056)), dma(vKD + 1, sV, "0", 0, "kv", f), dma(vKD + 3, sV, "0", 1056, "kv", f),
          mk("buffer_load_dwordx4 v[72:75], v%d, %s, 0 offen" % (vSH, S4(sSh)), vm="kv")]
    return L
def kv_compute():
    RK = 52; RV = 63; Wt = 76; K = 212; A = 223; V = 225
    L = []
    for j in range(11): L.append(mk("ds_read_b32 v%d, v%d offset:%d" % (RK + j, vKA, (5 + j) * 128 if j < 3 else 1056 + (j - 3) * 128), lg="kvr"))
    for t in range(8): L.append(mk("ds_read_b32 v%d, v%d offset:%d" % (RV + t, vKA, 9 * 1056 + t * 128), lg="kvr"))
    un = lambda d, s_, hi: mk(("v_and_b32 v%d, 0xffff0000, v%d" if hi else "v_lshlrev_b32 v%d, 16, v%d") % (d, s_))
    for e in range(2):
        for i in range(4): L.append(un(Wt + 4 * e + i, 72 + 2 * e + (i >> 1), i & 1))
    L.append(W(lg="kvr"))
    for e in range(2):
        o = (vNon, uPoll)[e]
        for j in range(11): L.append(un(K + j, RK + j, e))
        for t in range(8):
            a = A + (t & 1)
            L.append(mk("v_mul_f32 v%d, v%d, v%d" % (a, K + t, Wt + 4 * e + 3)))
            L.append(un(V, RV + t, e))
            for i in (2, 1, 0): L.append(mk("v_fmac_f32 v%d, v%d, v%d" % (a, K + t + 3 - i, Wt + 4 * e + i)))
            L.append(mk("v_mul_f32 v%d, v%d, v%d" % (a, a, V)))
            if t & 1: L.append(mk("v_cvt_pk_bf16_f32 v%d, v%d, v%d" % (o + 3 - (t >> 1), A + 1, A)))
    return L
def kv_stores():
    return [mk("s_mov_b32 s%d, 4096" % sT2),
            mk("buffer_store_dwordx4 %s, v%d, %s, 0 offen sc1" % (vr(vNon), vKO, S4(sWS)), vm="kvst"),
            mk("buffer_store_dwordx4 %s, v%d, %s, s%d offen sc1" % (vr(uPoll), vKO, S4(sWS), sT2), vm="kvst")]

SLOW = []
SPINS = []
SLEEP = {'*': 8, 'kva': 16, 'ng': 4, 'na': 4}
PROF = [0]
def spin(name, reload_, test, okbr):
    t = ["L_slow_%s:" % name, "s_mov_b32 s%d, 1" % sSpin, "L_spin_%s:" % name, "s_sleep %d" % SLEEP.get(name, SLEEP['*'])]
    if PROF[0]:
        SPINS.append(name); t.append("v_writelane_b32 v255, s%d, %d" % (sSpin, 47 + len(SPINS)))
    t += [x.t for x in reload_] + ["s_waitcnt vmcnt(0)"] + [x.t for x in test]
    t += ["%s L_ok_%s" % (okbr, name), "s_add_u32 s%d, s%d, 1" % (sSpin, sSpin), "s_cmp_lt_u32 s%d, %d" % (sSpin, SPIN_MAX),
          "s_cbranch_scc1 L_spin_%s" % name, "s_branch L_ok_%s" % name]
    SLOW.append("\n".join(t))
def poll_check(name, regs, reload_, bits=64):
    L = []
    for i, r in enumerate(regs):
        op = "v_cmp_ne_u64 %%s, s[%d:%d], v[%d:%d]" % (sTag, sTag + 1, r, r + 1) if bits == 64 else "v_cmp_ne_u32 %%s, s%d, v%d" % (sTag, r)
        if i == 0: L.append(mk(op % "vcc"))
        else: L += ml(op % "s[4:5]" + "\ns_or_b64 vcc, vcc, s[4:5]")
    spin(name, reload_, L, "s_cbranch_vccz")
    return L + [mk("s_cbranch_vccnz L_slow_%s" % name), I("L_ok_%s:" % name, kind="label", cost=0)]
def nonce_get(name):
    ld = mk("global_load_dwordx2 v[%d:%d], v%d, s[%d:%d] sc1" % (vNon, vNon + 1, vNon + 2, sDbg, sDbg + 1), vm="non")
    t = ml("v_readfirstlane_b32 s%d, v%d\nv_readfirstlane_b32 s%d, v%d\ns_cmp_lg_u32 s%d, 0" % (sTag, vNon, sTag + 1, vNon + 1, sTag))
    spin(name, [ld], t, "s_cbranch_scc1")
    chk = t[:2] + [bundle(t[2].t + "\ns_cbranch_scc0 L_slow_%s" % name), I("L_ok_%s:" % name, kind="label", cost=0)]
    chk += ml("v_mov_b32 v%d, v%d\nv_mov_b32 v%d, v%d" % (vTag, vNon, vTag + 1, vNon + 1))
    return ld, chk

def g1_epilogue(tile, opts):
    A0 = acc_of(tile)
    c4 = vST + 4 * tile + 1; c1 = vST + 4 * tile + 2
    g = [A0 + (p >> 2) * 8 + (p & 3) for p in range(8)]
    u = [x + 4 for x in g]
    o = vOUT + 4 * (tile & 1)
    st = []
    for p in range(8):
        t = vTMP + p
        st.append([mk("v_mul_f32 v%d, v%d, v%d" % (g[p], g[p], c1)), mk("v_exp_f32 v%d, v%d" % (t, g[p])),
                   mk("v_mul_f32 v%d, v%d, v%d" % (u[p], g[p], u[p])), mk("v_fma_f32 v%d, v%d, v%d, v%d" % (t, t, c4, c4)),
                   mk("v_rcp_f32 v%d, v%d" % (t, t)), mk("v_mul_f32 v%d, v%d, v%d" % (u[p], u[p], t))])
    R = []; pend = []
    for step in range(18):
        for k in (5, 4, 3, 2, 1, 0):
            p = step - 2 * k
            if 0 <= p < 8:
                R.append(st[p][k])
                for q in pend: R.append(mk("v_cvt_pk_bf16_f32 v%d, v%d, v%d" % (o + (q >> 1), u[q - 1], u[q])))
                pend = [p] if (k == 5 and p & 1) else []
    for q in pend: R.append(mk("v_cvt_pk_bf16_f32 v%d, v%d, v%d" % (o + (q >> 1), u[q - 1], u[q])))
    R.append(mk("s_add_u32 s%d, s%d, %d" % (sT3, sHa, tile * 112 * 1024)))
    if not opts.get("x_nohst"): R.append(mk("buffer_store_dwordx4 %s, v%d, %s, s%d offen%s" % (vr(o), vL16, S4(sWS), sT3, "" if opts.get("x_hplain") else " sc1"), vm="hst%d" % tile))
    return R

def common_setup(p, opts):
    p("v_and_b32 v1, 63, v0\nv_lshrrev_b32 v2, 6, v0\nv_lshlrev_b32 v%d, 4, v1\nv_readfirstlane_b32 s%d, v2" % (vL16, sWave))
    p("v_lshrrev_b32 v2, 3, v1\nv_and_b32 v3, 7, v1\nv_lshrrev_b32 v9, 4, v1\nv_mov_b32 v%d, 0" % (vNon + 2))

def phase2_setup(p, opts):
    q, n, a, b, c, d = 40, 41, 42, 43, 44, 45
    p("s_and_b32 s3, s2, 7\ns_lshr_b32 s4, s2, 3\ns_lshl_b32 s3, s3, 2\ns_and_b32 s5, s4, 3\ns_add_u32 s%d, s3, s5\ns_lshr_b32 s%d, s4, 2" % (sTB2, sDB))
    if opts.get("dbx", 3): p("s_xor_b32 s%d, s%d, %d" % (sDB, sDB, opts.get("dbx", 3)))
    p("v_lshrrev_b32 v%d, 4, v1\nv_and_b32 v%d, 15, v1" % (q, n))
    p("v_lshrrev_b32 v%d, 3, v1\nv_and_b32 v%d, 7, v1\nv_and_b32 v%d, 1, v%d\nv_lshlrev_b32 v%d, 2, v%d\nv_xor_b32 v%d, v%d, v%d" % (a, b, c, q, c, c, c, c, b))
    p("s_lshl_b32 s7, s%d, 7\ns_mul_i32 s5, s%d, %d\ns_add_u32 s7, s7, s5" % (sDB, sWave, 448 * 1024))
    p("v_lshlrev_b32 v%d, 4, v%d\nv_lshl_add_u32 v%d, v%d, 10, v%d\nv_add_u32 v%d, s7, v%d" % (c, c, c, a, c, uWD, c))
    for j in range(1, 4): p("v_add_u32 v%d, %d, v%d" % (uWD + j, 7168 * j, uWD))
    p("s_lshr_b32 s5, s%d, 2\ns_lshl_b32 s5, s5, 4\ns_and_b32 s6, s%d, 3\ns_lshl_b32 s6, s6, 1\ns_add_u32 s6, s5, s6" % (sTB2, sTB2))
    p("s_mul_i32 s5, s6, 57344\ns_mul_i32 s7, s%d, 28672\ns_add_u32 s5, s5, s7\nv_add_u32 v%d, s5, v%d\nv_add_u32 v%d, %d, v%d" % (sWave, uH, vL16, uH + 1, 8 * 57344, uH))
    p("s_lshl_b32 s5, s6, 4\ns_lshl_b32 s7, s%d, 3\ns_add_u32 s5, s5, s7\nv_lshrrev_b32 v%d, 5, v1\nv_and_b32 v%d, 3, v1\nv_lshl_add_u32 v%d, v%d, 2, v%d\nv_add_u32 v%d, s5, v%d" % (sWave, c, d, c, c, d, c, c))
    p("v_bfe_u32 v%d, v1, 2, 3\nv_lshlrev_b32 v%d, 4, v%d\nv_lshl_add_u32 v%d, v%d, 10, v%d\ns_lshl_b32 s7, s%d, 7\nv_add_u32 v%d, s7, v%d" % (d, d, d, d, c, d, sDB, uX, d))
    p("v_lshlrev_b32 v%d, 3, v%d\nv_add_u32 v%d, %d, v%d" % (c, c, uSto, WS_ST, c))
    p("v_bfe_u32 v%d, v1, 2, 2\nv_lshrrev_b32 v%d, 5, v1\nv_lshl_add_u32 v%d, v%d, 3, v%d\nv_lshlrev_b32 v%d, 7, v%d\nv_lshrrev_b32 v%d, 1, v%d\nv_lshl_add_u32 v%d, v%d, 6, v%d" % (a, b, b, b, a, b, b, a, a, b, a, b))
    p("v_and_b32 v%d, 1, v%d\nv_lshl_add_u32 v%d, v%d, 5, v%d\nv_and_b32 v%d, 3, v1\nv_lshl_add_u32 v%d, v%d, 3, v%d\nv_add_u32 v%d, s%d, v%d\nv_xor_b32 v%d, 64, v%d" % (a, q, b, a, b, a, b, a, b, uTR, sWdL, b, uTR + 1, uTR))
    p("v_add_u32 v%d, 1, v%d\nv_and_b32 v%d, 1, v%d\nv_sub_u32 v%d, v%d, v%d\nv_lshl_add_u32 v%d, v%d, 3, v%d\nv_lshlrev_b32 v%d, 1, v%d" % (a, n, b, a, a, a, b, a, q, a, a, a))
    p("v_mul_u32_u24 v%d, 4160, v%d\ns_lshl_b32 s7, s%d, 8\ns_add_u32 s7, s7, s%d\nv_add3_u32 v%d, v%d, v%d, s7" % (b, b, sHalf, sCV, uCA, a, b))
    p("v_lshlrev_b32 v%d, 5, v%d\nv_lshlrev_b32 v%d, 4, v%d\nv_sub_u32 v%d, v%d, v%d\ns_add_u32 s7, s7, %d\nv_add_u32 v%d, s7, v%d" % (a, n, b, q, a, b, a, XR_OFF + 480, uCB, a))
    p("v_and_b32 v%d, 1, v%d\nv_mul_u32_u24 v%d, 4160, v%d\nv_lshl_add_u32 v%d, v%d, 1, v%d\nv_add_u32 v%d, s%d, v%d" % (a, q, a, a, a, n, a, uHeadA, sCV, a))
    p("v_mov_b32 v46, 0\nv_mov_b32 v47, 0\nv_lshlrev_b32 v%d, 3, v1\ns_add_u32 s7, s%d, %d\nv_add_u32 v%d, s7, v%d" % (a, sCV, XR_OFF + 4096, a, a))
    p("ds_write_b64 v%d, v[46:47]" % a)
    p("v_and_b32 v%d, 2, v%d\nv_lshlrev_b32 v%d, 3, v%d\nv_and_b32 v%d, 1, v%d\nv_lshl_add_u32 v%d, v%d, 5, v%d\nv_bfe_u32 v%d, v%d, 1, 2\nv_lshl_add_u32 v%d, v%d, 7, v%d\nv_lshrrev_b32 v%d, 3, v%d\nv_lshl_add_u32 v%d, v%d, 6, v%d\nv_and_b32 v%d, 1, v%d\nv_lshl_add_u32 v%d, v%d, 9, v%d" % (a, q, a, a, b, n, a, b, a, b, n, a, b, a, b, n, a, b, a, b, q, uYst, b, a))
    p("s_lshl_b32 s7, s%d, 11\ns_add_u32 s7, s7, s%d\ns_add_u32 s%d, s7, %d" % (sHalf, sCh4k, sYoff, WS_YT))
    p("s_lshl_b32 s7, s2, 13\ns_lshl_b32 s3, s%d, 10\ns_add_u32 s7, s7, s3\ns_add_u32 s%d, s7, %d" % (sWave, sXRso, WS_XR))
    p("s_lshl_b32 s7, s2, 7\ns_add_u32 s%d, s7, %d" % (sFlY, WS_FY))
    p("v_and_b32 v%d, 7, v1\nv_lshlrev_b32 v%d, 7, v%d" % (a, a, a))
    p("s_lshl_b32 s7, s%d, 12\ns_lshl_b32 s3, s%d, 10\ns_add_u32 s7, s7, s3\ns_add_u32 s7, s7, %d\nv_add_u32 v%d, s7, v%d" % (sDB, sWave, WS_FY, uFY, a))
    p("v_min_u32 v%d, 6, v1\nv_lshlrev_b32 v%d, 7, v%d" % (a, a, a))
    p("s_lshr_b32 s7, s%d, 2\ns_lshl_b32 s7, s7, 5\ns_mul_i32 s3, s%d, 7\ns_add_u32 s7, s7, s3\ns_lshl_b32 s7, s7, 7\ns_add_u32 s7, s7, %d\nv_add_u32 v%d, s7, v%d" % (sTB2, sWave, WS_FH, uFH, a))
    p("v_and_b32 v%d, 7, v1\nv_lshlrev_b32 v%d, 10, v%d\ns_lshr_b32 s7, s2, 5\ns_lshl_b32 s7, s7, 7\ns_and_b32 s3, s2, 24\ns_add_u32 s7, s7, s3" % (a, a, a))
    p("s_lshl_b32 s3, s%d, 13\ns_sub_u32 s7, s7, s3\ns_add_u32 s7, s7, %d\nv_sub_u32 v%d, s7, v%d" % (sWave, WS_FK + 31 * 1024, uFK, a))
    p("v_cmp_ne_u32 vcc, 0, v1\nv_mov_b32 v%d, 0x80000000\nv_mov_b32 v%d, 0\nv_cndmask_b32 v%d, v%d, v%d, vcc" % (a, b, vFl, b, a))

def hk_srds(p):
    p("s_add_u32 s%d, s60, s%d\ns_addc_u32 s%d, s61, 0\ns_and_b32 s%d, s%d, 0xffff\ns_sub_u32 s%d, 0x200000, s%d\ns_mov_b32 s%d, 0x20000" % (sHk, sCh4k, sHk + 1, sHk + 1, sHk + 1, sHk + 2, sCh4k, sHk + 3))
    srd(p, sDp, kD, 1024)
def ids2(p):
    p("s_lshr_b32 s3, s%d, 1\ns_lshl_b32 s4, s2, 1\ns_add_u32 s4, s4, s3\ns_mul_i32 s%d, s3, %d\ns_add_u32 s%d, s%d, %d" % (sWave, sCV, CH_STRIDE, sCV, sCV, CONV))
    p("s_and_b32 s%d, s%d, 1\ns_lshl_b32 s%d, s4, 12\ns_lshl_b32 s%d, s4, 1\ns_lshl_b32 s%d, s%d, 12" % (sHalf, sWave, sCh4k, sDoff, sWdL, sWave))
    p("v_bfe_u32 v40, v1, 4, 1\nv_and_b32 v41, 15, v1\nv_add_u32 v42, v40, v41\nv_add_u32 v42, -16, v42\nv_lshlrev_b32 v%d, 1, v42" % uHead)
RHO = [2, 4, 1]
def phase2_srds():
    L = []
    for d, lo, size in ((sWd, kWD, 1792 * 1024), (sOut, kOUT, 2048 * 1024)):
        L += ml("s_mov_b32 s%d, s%d\ns_and_b32 s%d, s%d, 0xffff\ns_mov_b32 s%d, 0x%x\ns_mov_b32 s%d, 0x20000" % (d, lo, d + 1, lo + 1, d + 2, size, d + 3))
    L += ml("s_mul_i32 s3, s%d, %d\ns_and_b32 s7, s%d, 3\ns_mul_i32 s7, s7, %d\ns_add_u32 s3, s3, s7\ns_lshr_b32 s7, s%d, 2\ns_mul_i32 s7, s7, %d\ns_add_u32 s3, s3, s7" % (sDB, RHO[0], sTB2, RHO[1], sTB2, RHO[2]))
    L += ml("s_mul_i32 s7, s3, 4682\ns_lshr_b32 s7, s7, 16\ns_mul_i32 s7, s7, 14\ns_sub_u32 s3, s3, s7\ns_lshl_b32 s3, s3, 15")
    for s in range(14):
        L += ml("s_mov_b32 s%d, s3" % (sTabW + s))
        if s < 13: L += ml("s_add_u32 s3, s3, 0x8000") + [bundle("s_cmp_eq_u32 s3, 0x70000\ns_cselect_b32 s3, 0, s3")]
    return L

class Filler:
    def __init__(self, space=2):
        self.vq = []; self.xq = []; self.last = -9; self.space = space
    def v(self, at, L): self.vq += [(at, x) for x in L]
    def x(self, at, L): self.xq += [(at, y) for y in L]
    def fill(self, gi, gap, budget, xbudget=None, novm=False):
        used = lambda: sum(y.cost for y in gap)
        nv = 0
        for q in (self.vq, self.xq):
            if q and q[0][1].kind == "delay" and q[0][0] <= gi:
                n = q.pop(0)[1].vm
                if q: q[0] = (max(q[0][0], gi + n), q[0][1])
        while not novm and self.vq and self.vq[0][0] <= gi and used() + self.vq[0][1].cost <= budget:
            at, y = self.vq[0]
            if y.kind == "delay": break
            if is_vm(y) and y.t.endswith(" lds"):
                lag = gi - at
                if nv >= 1 or (gi - self.last < self.space and lag < 14): break
                nv += 1; self.last = gi
            gap.append(y); self.vq.pop(0)
            if is_m0(y): break
        while self.xq and self.xq[0][0] <= gi and used() + self.xq[0][1].cost <= (xbudget or budget):
            if self.xq[0][1].kind == "delay": break
            gap.append(self.xq.pop(0)[1])

def gemm1(p, opts):
    p("s_sub_u32 s3, s2, 32\ns_and_b32 s4, s3, 7\ns_lshr_b32 s5, s3, 3")
    p("s_and_b32 s6, s4, 1\ns_and_b32 s7, s5, 3\ns_lshl_b32 s34, s7, 1\ns_add_u32 s34, s34, s6\ns_lshl_b32 s6, s6, 2\ns_add_u32 s%d, s6, s7" % sTB)
    p("s_lshr_b32 s6, s4, 1\ns_mul_i32 s6, s6, 7\ns_lshr_b32 s7, s5, 2\ns_add_u32 s7, s7, %d\ns_cmp_ge_u32 s7, 7\ns_cselect_b32 s5, 7, 0\ns_sub_u32 s7, s7, s5\ns_add_u32 s%d, s6, s7" % (opts.get("cbr", 0), sCB)) if opts.get("cbr") else p("s_lshr_b32 s6, s4, 1\ns_mul_i32 s6, s6, 7\ns_lshr_b32 s7, s5, 2\ns_add_u32 s%d, s6, s7" % sCB)
    SG = opts.get("sig", 1)
    if SG == 0: p("s_mov_b32 s34, 0")
    elif SG == 1: p("s_and_b32 s34, s4, 1\ns_lshl_b32 s34, s34, 2\ns_and_b32 s6, s4, 6\ns_add_u32 s34, s34, s6\ns_and_b32 s34, s34, 7")
    elif SG == 2: p("s_add_u32 s34, s34, s%d\ns_and_b32 s34, s34, 7" % sCB)
    elif SG == 3: p("s_and_b32 s34, s4, 1\ns_lshl_b32 s34, s34, 2\ns_and_b32 s6, s4, 6\ns_add_u32 s34, s34, s6\ns_and_b32 s6, s%d, 1\ns_add_u32 s34, s34, s6\ns_and_b32 s34, s34, 7" % sTB)
    elif SG == 4: p("s_and_b32 s34, s4, 1\ns_lshl_b32 s34, s34, 2\ns_and_b32 s6, s4, 6\ns_add_u32 s34, s34, s6\ns_and_b32 s6, s%d, 1\ns_lshl_b32 s6, s6, 2\ns_add_u32 s34, s34, s6\ns_and_b32 s34, s34, 7" % sCB)
    p("v_xor_b32 v5, v9, v3\nv_lshlrev_b32 v5, 4, v5\nv_lshl_add_u32 v%d, v2, 10, v5\nv_xor_b32 v5, 64, v%d" % (vXD, vXD))
    p("v_add_u32 v%d, 7168, v5\nv_add_u32 v%d, 14336, v%d\nv_add_u32 v%d, 21504, v5" % (vXD + 1, vXD + 2, vXD, vXD + 3))
    p("s_lshr_b32 s3, s%d, 1\ns_lshl_b32 s3, s3, 2" % sWave)
    p("v_and_b32 v5, 1, v9\nv_lshlrev_b32 v5, 1, v5\nv_xor_b32 v5, s3, v5\nv_xor_b32 v5, v5, v3\nv_lshlrev_b32 v5, 4, v5")
    p("s_and_b32 s4, s%d, 1\ns_mul_i32 s4, s4, %d\ns_lshl_b32 s5, s%d, 7\ns_add_u32 s4, s4, s5" % (sWave, 32 * 3584, sCB))
    p("v_mul_u32_u24 v6, 3584, v2\nv_add3_u32 v%d, v5, v6, s4" % vWD)
    for j in range(1, 4): p("v_add_u32 v%d, %d, v%d" % (vWD + j, j * (8 * 3584 - 1024), vWD))
    p("s_lshl_b32 s35, s%d, 18\ns_lshl_b32 s4, s%d, 15\ns_add_u32 s7, s35, s4" % (sTB, sWave))
    p("s_lshl_b32 s%d, s%d, 12\ns_add_u32 s%d, s%d, 16384" % (sLdsW, sWave, sLdsX, sLdsW))
    p("s_mul_i32 s%d, s34, %d\ns_lshl_b32 s3, s34, 7\ns_add_u32 s%d, s3, s7" % (sTab + 4, 64 * 3584, sTab + 8))
    p("s_waitcnt lgkmcnt(0)")
    srd(p, sQ, kQ, 2048 * 1024)
    p("s_cmp_ge_u32 s%d, 2\ns_cselect_b32 s66, s68, s66\ns_cselect_b32 s67, s69, s67" % sWave)
    srd(p, sW, kWG, 512 * 3584)
    stamp(p, "g.karg", opts, 2)
    st0 = g1_stage(0, opts)
    for x in st0: x.t = x.t.replace("s%d offen" % sTab, "s%d offen" % (sTab + 4))
    seq(p, st0)
    stamp(p, "g.st0", opts, 2)
    p("s_mov_b32 s27, s7")
    srd(p, sWS, kWS, WS_SZ)
    p("s_mov_b32 s%d, s74\ns_mov_b32 s%d, s75" % (sDbg, sDbg + 1))
    kv_setup(p)
    ids2(p); hk_srds(p)
    for s in range(1, 8):
        p("s_add_u32 s3, s34, %d\ns_and_b32 s3, s3, 7\ns_mul_i32 s%d, s3, %d\ns_lshl_b32 s3, s3, 7\ns_add_u32 s%d, s3, s27" % (s, sTab + s, 64 * 3584, sTab + 8 + s))
    p("s_lshl_b32 s%d, s%d, 13\ns_add_u32 s6, s35, %d" % (sLdsXB, sWave, 0 if opts.get("x_xsame") else 0x20000))
    for h in range(2):
        p("s_lshl_b32 s3, s%d, 1\ns_add_u32 s3, s3, s34\ns_add_u32 s3, s3, %d\ns_and_b32 s3, s3, 7\ns_lshl_b32 s3, s3, 7\ns_add_u32 s%d, s3, s6" % (sWave, h, sXB + h))
    p("s_lshl_b32 s3, s%d, 2\ns_add_u32 s3, s3, s%d\ns_lshl_b32 s3, s3, 10\ns_mul_i32 s4, s%d, %d\ns_add_u32 s%d, s3, s4" % (sCB, sWave, sTB, 16 * 57344, sHa))
    p("s_lshl_b32 s4, s%d, 11\ns_add_u32 s%d, s4, %d" % (sTB, sST, WS_ST))
    a, b, c, d, e, f = 40, 41, 42, 43, 44, 45
    p("v_and_b32 v%d, 31, v1\nv_lshrrev_b32 v%d, 5, v1\nv_lshlrev_b32 v%d, 3, v1" % (a, b, vSToff))
    p("s_lshl_b32 s3, s%d, 5\ns_add_u32 s3, s3, s%d\ns_lshl_b32 s3, s3, 7\ns_add_u32 s%d, s3, %d" % (sTB, sCB, sFlH, WS_FH))
    p("v_bfe_u32 v%d, v1, 1, 3\nv_xor_b32 v%d, v%d, v%d\nv_lshlrev_b32 v%d, 4, v%d\nv_lshl_add_u32 v%d, v%d, 7, v%d" % (c, c, c, b, c, c, vXA, a, c))
    for ks in range(1, 4): p("v_xor_b32 v%d, %d, v%d" % (vXA + ks, 32 * ks, vXA))
    for ks in range(4): p("v_add_u32 v%d, 0x10000, v%d" % (vXA + 4 + ks, vXA + ks))
    p("v_bfe_u32 v%d, v1, 2, 2\nv_bfe_u32 v%d, v1, 1, 1\nv_and_b32 v%d, 1, v1\nv_bfe_u32 v%d, v1, 4, 1" % (a, c, d, e))
    p("v_lshrrev_b32 v%d, 1, v%d\nv_lshl_add_u32 v%d, v%d, 1, v%d\nv_xor_b32 v%d, s%d, v%d\nv_lshlrev_b32 v%d, 5, v%d" % (f, a, f, c, f, f, sWave, f, f, f))
    p("v_lshl_add_u32 v%d, v%d, 4, v%d\nv_lshl_add_u32 v%d, v%d, 3, v%d\nv_lshl_add_u32 v%d, v%d, 13, v%d" % (f, d, f, f, e, f, f, c, f))
    p("v_lshl_add_u32 v%d, v%d, 3, v%d\nv_lshl_add_u32 v%d, v%d, 7, v%d\nv_add_u32 v%d, 0x10000, v%d" % (a, b, a, vWA, a, f, vWA + 1, vWA))
    stamp(p, "g.set1", opts, 2)
    phase2_setup(p, opts)
    for r in range(4): p("v_mov_b32 v%d, 0x3f803f80" % (vOnes + r))
    stamp(p, "g.set2", opts, 2)
    KVP = opts.get("kvp", 1)
    nld, nchk = nonce_get("ng")
    HKP = opts.get("hkp", 9)
    hkl = hk_loads(opts) if HKP == 0 else []
    if KVP == 0: seq(p, kv_loads(opts) + hkl)
    stamp(p, "g.kvis", opts, 2)
    S1IN = opts.get("s1in", 0)
    NL = opts.get("nlate", 1)
    if not S1IN:
        seq(p, g1_stage(1, opts))
        if not NL: p.add(nld)
    if KVP == 1: seq(p, kv_loads(opts) + hkl)
    if opts.get("tlb"):
        sh = opts["tlb"]
        p("v_lshlrev_b32 v52, %d, v1\nbuffer_load_dword v53, v52, %s, 0 offen" % (sh, S4(sWS)), vm="tlb")
        p("v_min_u32 v52, 0x1bff00, v52\nglobal_load_dword v54, v52, s[70:71]\nglobal_load_dword v55, v52, s[72:73]\nglobal_load_dword v56, v52, s[60:61]", vm="tlb")
    stamp(p, "g.st1", opts)

    def rdW(n):
        s, ks = n >> 2, n & 3
        w, off = win((s % 3) * SLOT + ks * 2048)
        return [mk("ds_read_b64_tr_b16 a[%d:%d], v%d offset:%d" % (4 * n, 4 * n + 1, vWA + w, off), lg="W%d" % n),
                mk("ds_read_b64_tr_b16 a[%d:%d], v%d offset:%d" % (4 * n + 2, 4 * n + 3, vWA + w, off + 512), lg="W%d" % n)]
    def rdXA(n, i):
        s, ks = n >> 2, n & 3
        w, off = win((s % 3) * SLOT + 16384 + i * 4096)
        return mk("ds_read_b128 %s, v%d offset:%d" % (vr(vXF + 16 * (n & 1) + 4 * i), vXA + 4 * w + ks, off), lg="X%d_%d" % (n, i))
    def rdXB(bb, n):
        w, off = win(((8 + bb) % 3) * SLOT + (n >> 2) * 4096)
        return mk("ds_read_b128 %s, v%d offset:%d" % (vr(vXF + 4 * (n & 7)), vXA + 4 * w + (n & 3), off), lg="B%d_%d" % (bb, n))

    fr = opts.get("fr", " sc1")
    st_loads = [mk("buffer_load_dwordx2 %s, v%d, %s, s%d offen offset:%d%s" % (vr(vCSR + 8 + 2 * t, 2), vSToff, S4(sWS), sST, t * 512, fr), vm="rec") for t in range(4)]
    post = poll_check("rec", [vCSR + 8 + 2 * t + 1 for t in range(4)], [mk(y.t.replace(fr, " sc1") if fr else y.t + " sc1") for y in st_loads], 32)
    for t in range(4): post += ml("v_mov_b32 v%d, v%d\nv_mov_b32 v%d, v%d" % (vST + 8 * t + 1, vCSR + 8 + 2 * t, vST + 8 * t + 5, vCSR + 8 + 2 * t))
    post += ml("s_mov_b32 s%d, 0x01000100" % sT2)
    for t in range(4): post += ml("v_permlane32_swap_b32 v%d, v%d" % (vST + 8 * t + 1, vST + 8 * t + 5))
    for t in range(8): post += ml("v_perm_b32 v%d, v%d, v%d, s%d" % (vST + 4 * t, vST + 4 * t + 1, vST + 4 * t + 1, sT2))
    for t in range(8): post += ml("v_and_b32 v%d, 0xffff0000, v%d" % (vST + 4 * t + 1, vST + 4 * t + 1))
    for t in range(8): post += ml("v_mul_f32 v%d, %s, v%d" % (vST + 4 * t + 1, hex(f2u(-LOG2E)), vST + 4 * t + 1))
    post += ml("v_mov_b32 v%d, v%d\nv_mov_b32 v%d, v%d\nv_cmp_gt_u32 vcc, 32, v1" % (vR1B, vST, vR1B + 4, vST + 4))
    csfin = ml("v_cvt_pk_bf16_f32 v%d, v%d, v%d\nv_and_b32 v%d, 0xffff0000, v%d\nv_sub_f32 v%d, v%d, v%d\nv_cvt_pk_bf16_f32 v%d, v%d, v%d\nv_cndmask_b32 v%d, 0, v%d, vcc"
               % (184, vCSA, vCSA, 184, 184, 185, vCSA, 184, 184, 184, 185, vR1A, 184))
    cst = lambda t: ml("v_rcp_f32 v%d, v%d" % (vST + 4 * t + 2, vST + 4 * t + 1))
    cmu = lambda t: ml("v_mul_f32 v%d, %s, v%d" % (vST + 4 * t + 2, hex(f2u(LOG2E * LOG2E)), vST + 4 * t + 2))
    for t in range(4): post += cst(t)
    for t in range(4): post += cmu(t)

    if opts.get("x_norec"):
        st_loads = []; post = [y for y in post if "cbranch" not in y.t]
    F = Filler(opts.get("aspace", 2))
    RL = opts.get("recst", 5)
    if S1IN: F.v(-20, g1_stage(1, opts) + [nld])
    for s in range(8):
        F.v(max(0, 16 * s - 3) if not (S1IN and s == 0) else -20, g1_stage(s + 2, opts))
        if NL and s == 0 and not S1IN: F.v(0, [nld])
        if KVP >= 2 and s + 2 == KVP: F.v(0, kv_loads(opts) + hkl)
        if HKP and HKP < 10 and s + 2 == HKP: F.v(0, hk_loads(opts))
        if s == opts.get("kvst", 8) and not opts.get("x_nokvs"): F.v(0, kv_stores())
        if s == RL - 1: F.v(16 * RL - 4, st_loads)
        if s == 7 and opts.get("kvst", 8) < 8: F.v(16 * 7 + 8, [W(vm="kvst"), flag_store(sFlK)])
    F.x(0, [mk("v_mov_b32 v%d, 0" % r) for r in (vR1A + 1, vR1A + 2, vR1A + 3)])
    F.x(0, [mk("v_mov_b32 v%d, 0" % r) for r in (vR1B + 1, vR1B + 2, vR1B + 3, vR1B + 5, vR1B + 6, vR1B + 7)])
    F.x(29 if NL else 13, [W(vm="non")] + nchk)
    kc = kv_compute()
    if opts.get("x_nokvr"): kc = [y for y in kc if not y.t.startswith("ds_")]
    if opts.get("x_nokvv"): kc = [y for y in kc if not y.t.startswith("v_")]
    F.x(13 if KVP == 0 else 16 * (KVP + 1) - 3, kc)
    KVS = I("; kv done", cost=0); KVS.kind = "label"
    sr = phase2_srds()
    F.x(0, [KVS] + (hk_build() if HKP == 0 else []) + sr[:8])
    F.x(0, sr[8:])
    F.x(16 * (RL + 2) - 3 + opts.get("postat", 0), [W(vm="rec")] + post)
    p.wait(vm="st0")
    p("s_barrier")
    stamp(p, "g.st0in", opts)
    for x in rdW(0): p.add(x)
    for i in range(4): p.add(rdXA(0, i))
    PD = opts.get("pd", 7); WE = opts.get("we", 4)
    BA = opts.get("buda", 24)
    for n in range(32):
        s, ks = n >> 2, n & 3
        gaps = [[], [], [], []]
        if ks == 3: gaps[0] += [W(vm="st%d" % (s + 1), lg="*"), mk("s_barrier")]
        if n < 31:
            gaps[0] += rdW(n + 1); gaps[1] += [rdXA(n + 1, 0), rdXA(n + 1, 1)]; gaps[2] += [rdXA(n + 1, 2), rdXA(n + 1, 3)]
        else:
            gaps[0] += [rdXB(0, 0), rdXB(0, 1)]; gaps[1] += [rdXB(0, 2), rdXB(0, 3)]
        for i in range(4):
            if i in (0, 2): p.wait(lg=["W%d" % n, "X%d_%d" % (n, i + 1)])
            if i == 0:
                p("v_mfma_f32_32x32x16_bf16 %s, %s, a[%d:%d], %s" % (vr(vCSA, 16), vr(vOnes), 4 * n, 4 * n + 3, vr(vCSA, 16) if n else "0"))
                g5 = []; F.fill(4 * n, g5, BA, novm=True)
                for x in g5: p.add(x)
            if n == 31 and i == 3: gaps[i] += csfin
            a = acc_of(i)
            p("v_mfma_f32_32x32x16_bf16 %s, a[%d:%d], %s, %s" % (vr(a, 16), 4 * n, 4 * n + 3, vr(vXF + 16 * (n & 1) + 4 * i), vr(a, 16) if n else "0"))
            if ks == 3 and i == 0 and any(y.vm == "st%d" % (s + 1) for _, y in F.vq): raise SystemExit("stage %d not issued" % (s + 1))
            F.fill(4 * n + i, gaps[i], BA - (4 if i in (1, 3) else 0))
            if any(y.vm == "kvst" for y in gaps[i]): assert KVS not in gaps[i] + [z for _, z in F.xq], "kv store too early"
            for x in gaps[i]: p.add(x)
        if ks == 3 and s < 7: stamp(p, "g.s%d" % s, opts, 2)
    left = len(F.xq)
    stamp(p, "g.A31", opts, 2)
    for _, x in F.xq: p.add(x)
    F.xq = []
    print("phase A: left-over x items %d, v items %d" % (left, len(F.vq)), file=sys.stderr)
    stamp(p, "g.Aend", opts)
    for m_ in range(4, PD): p.add(rdXB(0, m_))
    p("s_nop 0")
    late = [cst(4) + cst(5), cst(6) + cst(7), cmu(4) + cmu(5), cmu(6) + cmu(7)]
    for t in range(4):
        a = acc_of(t)
        p("v_mfma_f32_32x32x16_bf16 %s, %s, %s, %s" % (vr(a, 16), vr(vR1A), vr(vR1B + 4 * (t & 1)), vr(a, 16)))
        p("v_mov_b32 v%d, v%d" % (vR1B + 4 * (t & 1), vST + 4 * (t + 2)))
        for x in late[t]: p.add(x)
    ep = [g1_epilogue(t, opts) for t in range(7)]
    total = sum(x.cost for e in ep for x in e)
    kvpoll = [mk("buffer_load_dwordx2 v[%d:%d], v%d, %s, 0 offen sc1" % (uPoll, uPoll + 1, uFK, S4(sWS)), vm="kvp")]
    F.vq = [(0, y) for _, y in F.vq]; F.last = -9; F.space = opts.get("bspace", 2)
    X = lambda k, L: [] if opts.get(k) else L
    XB = opts.get("xb", 1)
    ORD = [0, 1, 2, 3, 4] + ([5] if opts.get("w5", 1) else []) + [7, 8, 9][:XB]
    EB = opts.get("ebar", 1)
    ORD += [6, 12][:EB * opts.get("en", 2)]
    INB_READ = [0, 1, 2][:XB]
    chain = lambda t: ([W(vm="w%d" % t)] + wd_reads(t, True) + [delay(4), W(lg="t%d" % t)] + wd_loads(t + 7, opts)) if t in INB_READ else []
    F.x(0, [mk("v_add_u32 v%d, 0x20000, v%d" % (uTR2 + mt, uTR + mt)) for mt in range(2)])
    F.x(0, [bundle("\n".join(y.t for y in fl0_setup()[:3]))] + fl0_setup()[3:])
    F.v(0, kv_stores())
    F.v(opts.get("st10", 6), g1_stage(10, opts))
    W0 = opts.get("w0at", 22)
    if W0 < 27: F.v(W0, wd_loads(0, opts))
    B1 = 34 - PD
    F.v(B1, g1_stage(11, opts)[:6] + [W(vm="kvst"), flag_store(sFlK)] + g1_stage(11, opts)[6:])
    if W0 >= 27: F.v(W0, wd_loads(0, opts))
    if 5 in ORD: F.v(opts.get("w5at", 46), wd_loads(5, opts))
    if HKP == 10: F.v(opts.get("hkat", 46), hk_loads(opts))
    F.v(33 + B1, wd_loads(1, opts) + wd_loads(2, opts))
    F.v(opts.get("c0", 80), chain(0))
    F.v(opts.get("kvpoll", 88), kvpoll)
    F.v(66 + B1, wd_loads(3, opts) + wd_loads(4, opts))
    F.v(opts.get("kvchk", 114), [W(vm="kvp")] + poll_check("kv", [uPoll], kvpoll) + conv_xr())
    F.v(0, chain(1) + chain(2))
    opts["_ord"] = ORD; opts["_rd"] = INB_READ
    if HKP: F.x(opts.get("hkb", 62 if HKP < 10 else 95), hk_build(1))
    EF = opts.get("eflag", 99 + 16)
    ngaps = 4 * 33; done = 0; cur = 0; gi = 0
    BUD = opts.get("bud", 24)
    for bb in range(4):
        tile = 4 + bb; a = acc_of(tile)
        for n in range(-1, 32):
            gap = []
            if n == -1:
                p("v_mfma_f32_32x32x16_bf16 %s, %s, %s, 0" % (vr(a, 16), vr(vR1A), vr(vR1B + 4 * (bb & 1))))
                if bb < 2: gap.append(mk("v_mov_b32 v%d, v%d" % (vR1B + 4 * (bb & 1), vST + 4 * (tile + 2))))
            else:
                if n % WE == 0: p.wait(lg="B%d_%d" % (bb, n + WE - 1))
                p("v_mfma_f32_32x32x16_bf16 %s, a[%d:%d], %s, %s" % (vr(a, 16), 4 * n, 4 * n + 3, vr(vXF + 4 * (n & 7)), vr(a, 16)))
                m = n + PD
                if m == 32 and bb < 3:
                    if any(y.vm == "st%d" % (9 + bb) for _, y in F.vq): raise SystemExit("stage not issued before its wait")
                    gap += [W(vm=["st%d" % (9 + bb)] + (["hk"] if bb == 2 else []), lg="*"), mk("s_barrier")]
                if m < 32: gap.append(rdXB(bb, m))
                elif bb < 3: gap.append(rdXB(bb + 1, m - 32))
            budget = BUD - (4 if (n % WE == WE - 1) else 0)
            if EB and bb == 3 and n == 33 - PD + 1:
                gap += [W(lg="*"), mk("s_barrier")]
                F.v(gi, [x for t in ORD if t in (6, 12) for x in wd_loads(t, opts)])
            if gi == EF:
                assert cur >= 4
                gap += [W(vm="hst3"), mk("s_barrier"), flag_store(sFlH, True), mk("s_add_u32 s%d, s%d, %d" % (sFlH, sFlH, WS_FL))]
            F.fill(gi, gap, min(budget, sum(y.cost for y in gap) + 8), min(budget, sum(y.cost for y in gap) + 12 if F.xq and F.xq[0][1].cost > 4 else sum(y.cost for y in gap) + 8))
            gi += 1
            target = total * gi / float(ngaps - opts.get("eplead", 4))
            while cur < 7 and done < target:
                if cur >= 4 and (cur - 4 >= bb or (cur - 4 == bb - 1 and n < 4)): break
                if cur < 4 and bb == 0 and n < 2: break
                x = ep[cur][0]
                if sum(y.cost for y in gap) + x.cost > budget: break
                gap.append(ep[cur].pop(0)); done += x.cost
                if not ep[cur]: cur += 1
            for x in gap: p.add(x)
            if gi % 6 == 0: stamp(p, "B%d" % gi, opts, 5)
            if opts.get("prof") and "ls0" in opts:
                k_, r_ = divmod(gi - opts["ls0"], opts.get("lsd", 4))
                if r_ == 0 and 0 <= k_ < 8: p("s_memtime s[%d:%d]" % (84 + 2 * k_, 85 + 2 * k_))
        if bb < 3: stamp(p, "g.b%d" % bb, opts, 2)
    if opts.get("prof") and "ls0" in opts:
        p("s_waitcnt lgkmcnt(0)")
        for k_ in range(8):
            nm_ = "L%d" % (opts["ls0"] + k_ * opts.get("lsd", 4))
            if opts["ls0"] + k_ * opts.get("lsd", 4) > 132: break
            STAMPS.append(nm_); p("v_writelane_b32 v255, s%d, %d" % (84 + 2 * k_, len(STAMPS) - 1))
    stamp(p, "g.Bend", opts)
    print("phase B: left-over v items %d, epilogue cost left %d" % (len(F.vq), total - done), file=sys.stderr)
    vl = [y for _, y in F.vq if y.kind != "delay"]
    rest_ = [y for _, y in F.xq if y.kind != "delay"] + [x for e_ in ep[cur:] for x in e_]
    rest_ += [mk("s_lshr_b32 s%d, s%d, 4" % (sTab + s, sTabW + s)) for s in range(14)] + g1_epilogue(7, opts)
    k_ = max(2, (len(rest_) - 4) // (len(vl) + 1))
    for i, x in enumerate(rest_):
        if i == len(rest_) - 1: seq(p, vl); vl = []
        p.add(x)
        if vl and i % k_ == k_ - 1: p.add(vl.pop(0))

def out_half(ps, opts, pk):
    eW = 24; eR = 25; eY = 26
    if ps == 0: X = list(range(12, 20)); XN = list(range(32, 40)); YR = 20; Y = [28, 29, 30, 31, 224, 225, 226, 227]
    else: X = list(range(56, 64)); XN = list(range(64, 72)); YR = 80; Y = list(range(72, 80))
    P = [list(range(uAcc + 32 * ps + 8 * w, uAcc + 32 * ps + 8 * w + 8)) for w in range(4)]
    wr = [mk("ds_write_b128 v%d, %s offset:%d" % (eW, vr(uAcc + 32 * ps + 16 * mt + 4 * j), 128 * mt + 32 * j), cost=16) for mt in range(2) for j in range(4)]
    rdy = [mk("ds_read_b64_tr_b16 v[%d:%d], v%d offset:%d" % (YR + 2 * j, YR + 2 * j + 1, eY + ps, j * 512), lg="y%d" % ps) for j in range(2)]
    rd = [mk("ds_read_b128 %s, v%d offset:%d" % (vr(P[w][4 * h]), eR, w * REDW + 16 * h), lg="r%d" % ps) for h in range(2) for w in range(4)]
    xin = uXin + 4 * ps; st = uSt + 2 * ps; F = P[0]
    un = lambda d, s_, hi: ("v_and_b32 v%d, 0xffff0000, v%d" if hi else "v_lshlrev_b32 v%d, 16, v%d") % (d, s_)
    def op2(name, d, a_, b_, c_=None, sel=""):
        R = lambda z, i, n: z if isinstance(z, str) else vr(z[i], n)
        if pk: return [mk("v_pk_%s_f32 %s, %s, %s%s%s" % (name, vr(d[2 * i], 2), R(a_, 2 * i, 2), R(b_, 2 * i, 2), (", " + R(c_, 2 * i, 2)) if c_ else "", sel)) for i in range(4)]
        return [mk("v_%s_f32 v%d, %s, %s%s" % (name, d[i], R(a_, i, 1), R(b_, i, 1), (", " + R(c_, i, 1)) if c_ else "")) for i in range(8)]
    pre = ml(un(st + 1, 40 + 2 * ps, 1) + "\n" + un(st, 40 + 2 * ps, 0) + "\nv_rcp_f32 v%d, v%d" % (st + 1, st + 1))
    pre += [mk(un(X[i], xin + (i >> 1), i & 1)) for i in range(8)]
    if opts.get("x_eps"): pre += ml("v_mul_f32 v%d, %s, v%d" % (st + 1, hex(f2u(1.0 + opts["x_eps"] / 1000.0)), st + 1))
    pre += ml("v_mul_f32 v%d, v%d, v%d" % (st, st, st + 1))
    if pk: pre += op2("fma", XN, X, vr(st, 2), vr(st, 2), " op_sel:[0,1,0] op_sel_hi:[1,1,0]")
    else: pre += op2("fma", XN, X, "v%d" % (st + 1), "v%d" % st)
    m = [W(lg="r%d" % ps)] + op2("add", F, P[0], P[1]) + op2("add", P[2], P[2], P[3]) + op2("add", F, F, P[2])
    m += op2("mul", Y, "s[4:5]" if pk else "s4", F)
    t1 = [mk("v_exp_f32 v%d, v%d" % (Y[i], Y[i])) for i in range(8)]
    t2 = op2("mul", XN, XN, F)
    m += [z for pr in zip(t1, t2) for z in pr] if not pk else t1 + t2
    m += op2("add", Y, "1.0", Y, None, " op_sel_hi:[0,1]" if pk else "")
    m += [mk("v_rcp_f32 v%d, v%d" % (Y[i], Y[i])) for i in range(8)] + [mk("s_nop 0")]
    m += op2("mul", XN, XN, Y)
    my = [W(lg="y%d" % ps)] + [mk(un(Y[i], YR + (i >> 1), i & 1)) for i in range(8)]
    my += op2("fma", X, XN, Y, X)
    my += [mk("v_cvt_pk_bf16_f32 v%d, v%d, v%d" % (xin + i, X[2 * i], X[2 * i + 1])) for i in range(4)]
    my += [mk("buffer_store_dwordx4 %s, v%d, %s, %s offen%s" % (vr(xin), uX, S4(sOut), "s%d" % sT0 if ps else "0", opts.get("fo", " sc1")), vm="out")]
    return wr, pre, rd, m, rdy, my

def phase2(p, opts):
    ORD = opts["_ord"]; RD = opts["_rd"]
    stamp(p, "p2", opts)
    for mt in range(2): p("v_add_u32 v%d, 0x10000, v%d\nv_add_u32 v%d, 0x20000, v%d" % (HI[1] + mt, uTR + mt, HI[2] + mt, uTR + mt))
    for i in range(1, 4): p("v_add_u32 v%d, %d, v%d" % (CAR[i], 1024 * i, uCA))
    p.wait(vm="cv", lg="*")
    p("s_barrier")
    stamp(p, "p2bar", opts, 4)
    for x in conv_reads(0): p.add(x)
    hpollA = [mk("buffer_load_dwordx2 v[%d:%d], v%d, %s, 0 offen sc1" % (uPoll, uPoll + 1, uFH, S4(sWS)), vm="hpA")]
    hpollB = [mk("s_mov_b32 s%d, %d" % (sT1, WS_FL)), mk("buffer_load_dwordx2 v[%d:%d], v%d, %s, s%d offen sc1" % (uPoll + 2, uPoll + 3, uFH, S4(sWS), sT1), vm="hpB")]
    tq = []
    for t in range(7):
        if t not in RD: tq += [("w%d" % t if (t not in ORD or t == 6) else None, y) for y in wd_reads(t)]
    wl = lambda t: ([W(lg="t%d" % PREV[t])] if t in PREV else []) + wd_loads(t, opts)
    rest = [t for t in range(7, 14) if t not in ORD]
    nfirst = opts.get("wfirst", 4)
    VQ = (wl(5) if 5 not in ORD else []) + (wl(6) if 6 not in ORD else []) + [x for t in rest[:nfirst] for x in wl(t)]
    rest = rest[nfirst:]
    LEAD = opts.get("wlead", 3)
    CHKA = I("; chkA", cost=0); CHKB = I("; chkB", cost=0)
    VQ.append(CHKA)
    for hs in range(28):
        while rest and rest[0] - 1 - LEAD <= hs: VQ += wl(rest.pop(0))
        if hs == 14: VQ.append(CHKB)
        VQ += h_loads(hs)
    state = {"A": False, "B": False, "issued": {"w%d" % t for t in ORD}}
    def pace(p, done_hs):
        n = 0
        while VQ:
            y = VQ[0]
            if y is CHKA:
                if not state["A"]: return n
                VQ.pop(0); continue
            if y is CHKB:
                if not state["B"]: return n
                VQ.pop(0); continue
            if y.kind == "wait" and any(z.lg == y.lg for _, z in tq): return n
            if y.vm and y.vm[0] == "h" and int(y.vm[1:]) - 16 > done_hs: return n
            VQ.pop(0); p.add(y); n += 1
            if is_m0(y): p("s_nop 0") if False else None
            if is_vm(y): state["issued"].add(y.vm); return n
            if is_m0(y): return n
        return n
    strec = [mk("buffer_load_dwordx2 %s, v%d, %s, 0 offen offset:%d sc1" % (vr(40 + 2 * e, 2), uSto, S4(sWS), 1024 * e), vm="xin") for e in range(2)]
    extra = ml("s_mov_b32 s%d, 131072" % sT0) + [mk("buffer_load_dwordx4 %s, v%d, %s, %s offen" % (vr(uXin + 4 * e), uX, S4(sQ), "s%d" % sT0 if e else "0"), vm="xin") for e in range(2)] + strec
    dq = ml("v_lshrrev_b32 v24, 4, v1\nv_and_b32 v25, 15, v1\nv_lshl_add_u32 v24, v24, 3, v25\nv_sub_u32 v24, 15, v24\nv_lshlrev_b32 v25, 4, v24\nv_and_b32 v25, 16, v25\n"
            "s_sub_u32 s3, s%d, 1\nv_lshlrev_b32 v25, v25, v%d\nv_and_b32 v25, s3, v25\nv_lshrrev_b32 v24, 1, v24" % (sHalf, uD))
    dq += ml("v_cmp_eq_u32 s[4:5], 0, v24\nv_cmp_eq_u32 s[6:7], 1, v24\nv_cmp_eq_u32 s[34:35], 2, v24\nv_cmp_eq_u32 vcc, 3, v24")
    dq += ml("v_cndmask_b32 v%d, 0, v25, s[4:5]\nv_cndmask_b32 v%d, 0, v25, s[6:7]\nv_cndmask_b32 v%d, 0, v25, s[34:35]\nv_cndmask_b32 v%d, 0, v25, vcc" % (uAD, uAD + 1, uAD + 2, uAD + 3))
    pollat = opts.get("hpoll", 24); flagat = opts.get("hflag", 60); chkA = opts.get("hchk", 62); pollB = opts.get("hpollb", 132); SP = opts.get("csp", 4)
    ypoll = [mk("buffer_load_dwordx2 %s, v%d, %s, 0 offen sc1" % (vr(uPoll, 2), uFY, S4(sWS)), vm="yp")]
    ydma = ml("s_lshl_b32 s7, s%d, 1\nv_xor_b32 v3, s7, v1\nv_lshrrev_b32 v2, 3, v1\nv_lshlrev_b32 v2, 12, v2\nv_and_b32 v3, 7, v3\nv_lshl_add_u32 v2, v3, 4, v2\nv_xor_b32 v3, 16, v2\nv_add_u32 v3, %d, v3" % (sWave, 32768 - 1024))
    ydma += ml("s_lshl_b32 s3, s%d, 18\ns_lshl_b32 s7, s%d, 16\ns_add_u32 s3, s3, s7\ns_lshl_b32 s7, s%d, 7\ns_add_u32 s3, s3, s7\ns_add_u32 s3, s3, %d" % (sDB, sWave, sTB2, WS_YT))
    ydma += ml("s_lshl_b32 s7, s%d, 11\ns_add_u32 m0, s7, %d" % (sWave, YT_L))
    adr = ml("v_and_b32 v24, 31, v1\nv_mul_u32_u24 v24, %d, v24\nv_lshrrev_b32 v25, 5, v1\nv_lshl_add_u32 v24, v25, 4, v24\ns_mul_i32 s6, s%d, %d\ns_add_u32 s6, s6, %d\nv_add_u32 v24, s6, v24" % (RS, sWave, REDW, RED[0]))
    adr += ml("v_lshrrev_b32 v25, 5, v1\nv_and_b32 v26, 3, v1\nv_lshl_add_u32 v25, v25, 2, v26\nv_mul_u32_u24 v25, %d, v25\nv_bfe_u32 v26, v1, 2, 3\nv_lshl_add_u32 v25, v26, 5, v25\ns_mul_i32 s6, s%d, %d\ns_add_u32 s6, s6, %d\nv_add_u32 v25, s6, v25" % (RS, sWave, 8 * RS, RED[0]))
    adr += ml("v_bfe_u32 v26, v1, 4, 1\nv_and_b32 v27, 3, v1\nv_lshl_add_u32 v26, v26, 2, v27\nv_xor_b32 v23, s%d, v26\nv_bfe_u32 v27, v1, 2, 2\nv_lshl_add_u32 v26, v26, 3, v27\nv_lshlrev_b32 v26, 7, v26\nv_lshl_add_u32 v26, v23, 4, v26\nv_lshrrev_b32 v27, 5, v1\nv_lshl_add_u32 v26, v27, 3, v26\nv_xor_b32 v27, 64, v26\nv_add_u32 v26, %d, v26\nv_add_u32 v27, %d, v27" % (sWave, YT_L, YT_L))
    chk = [W(vm="xin")] + poll_check("st", [41, 43], strec, 32)
    aq = ydma[:-2] + adr + chk
    first = set(); nm = 0
    for rr in range(4):
        rq = conv_reads(rr + 1) if rr < 3 else []
        b = vCF + 64 * (rr & 1)
        pairs = sorted([(s1, p1) for s1 in range(8) for p1 in range(8) if s1 + p1 <= 7], key=lambda x: (max(x), x[0] + x[1], x[0]))
        seen = -1; k = 0
        for (s1, p1) in pairs:
            mx = max(s1, p1)
            if mx > seen:
                p.wait(lg="c%d_%d" % (rr, mx)); seen = mx
            acc = vr(uCacc + 4 * (s1 + p1))
            p("v_mfma_f32_16x16x32_bf16 %s, %s, %s, %s" % (acc, vr(b + 4 * s1), vr(b + 32 + 4 * p1), acc if (s1 + p1) in first else "0"))
            first.add(s1 + p1); k += 1; nm += 1
            n = 0
            if rq and k > 2 and (k % 4 != 0): p.add(rq.pop(0)); n += 1
            if dq and nm > 6 and (n == 0 or nm % 2): p.add(dq.pop(0)); n += 1
            if nm % SP == 0 or (VQ and is_m0(VQ[0]) and nm % SP == SP - 1): n += pace(p, -1)
            while tq and n < 2:
                tg = tq[0][0]
                if tg and (tg not in state["issued"] or nm < opts.get("t56", 84)): break
                if tg: p.wait(vm=tg)
                p.add(tq.pop(0)[1]); n += 1
            if aq and nm > opts.get("aqat", 96) and n < 2 and not (n and aq[0].t.startswith("v_") and p.ins[-1].t.startswith("v_") and "mfma" not in p.ins[-1].t):
                p.add(aq.pop(0))
                while aq and aq[0].cost == 0: p.add(aq.pop(0))
            if nm == pollat:
                for x in hpollA: p.add(x)
            if nm == flagat:
                p.wait(vm="hst7"); p("s_barrier"); p.add(flag_store(sFlH, True))
                stamp(p, "hflag", opts)
            if nm == chkA:
                p.wait(vm="hpA")
                for x in poll_check("hA", [uPoll], hpollA): p.add(x)
                stamp(p, "hokA", opts); state["A"] = True
        stamp(p, "cv%d" % rr, opts, 4)
        if rr == 0:
            for x in dq: p.add(x)
            if dq: p("s_nop 1")
            dq = []
            for p1 in range(8):
                acc = vr(uCacc + 4 * p1)
                p("v_mfma_f32_16x16x32_bf16 %s, %s, %s, %s" % (acc, vr(uAD), vr(b + 32 + 4 * p1), acc))
                if rq: p.add(rq.pop(0))
                if p1 % 4 == 1: pace(p, -1)
            for x in extra: p.add(x)
        for x in rq: p.add(x)
    print("conv: left-over reads %d, queued loads %d" % (len(tq), len(VQ)), file=sys.stderr)
    assert not tq
    cur_hs = [-1]
    def pace2():
        if pace(p, cur_hs[0]) and is_m0(p.ins[-1]): p("s_nop 0"); pace(p, cur_hs[0])
    for x in aq: p.add(x)
    stamp(p, "convend", opts)
    p("s_lshl_b32 s7, s%d, 13\ns_add_u32 s7, s7, %d\nv_add_u32 v4, s7, v%d\ns_and_b32 s7, s%d, 2\ns_lshl_b32 s7, s7, 13\ns_lshl_b32 s6, s%d, 12\ns_add_u32 s7, s7, s6\ns_add_u32 s7, s7, %d\nv_add_u32 v5, s7, v%d" % (sWave, XCH, vL16, sWave, sHalf, XCH, vL16))
    for x in hpollB: p.add(x)
    p("s_barrier")
    for i in range(8):
        p("ds_write_b128 v4, %s offset:%d" % (vr(uCacc + 4 * i), i * 1024))
        if i % 3 == 1: pace2()
    stamp(p, "xw", opts, 4)
    p("s_waitcnt lgkmcnt(0)\ns_barrier")
    for i in range(4):
        p("ds_read_b128 %s, v5 offset:%d" % (vr(uCacc + 4 * i), i * 1024), lg="xr%d" % i)
        p("ds_read_b128 %s, v5 offset:%d" % (vr(uCacc + 16 + 4 * i), 8192 + i * 1024), lg="xr%d" % i)
    pace2()
    for i in range(4):
        p.wait(lg="xr%d" % i)
        for e in range(2): p("v_pk_add_f32 %s, %s, %s" % (vr(uCacc + 4 * i + 2 * e, 2), vr(uCacc + 4 * i + 2 * e, 2), vr(uCacc + 16 + 4 * i + 2 * e, 2)))
    for i in range(4):
        o = uTmp + 4 * (i >> 1) + 2 * (i & 1)
        p("v_cvt_pk_bf16_f32 v%d, v%d, v%d\nv_cvt_pk_bf16_f32 v%d, v%d, v%d" % (o, uCacc + 4 * i, uCacc + 4 * i + 1, o + 1, uCacc + 4 * i + 2, uCacc + 4 * i + 3))
    pace2(); p("s_nop 0")
    for h in range(2):
        o = uTmp + 4 * h
        p("v_permlane16_swap_b32 v%d, v%d\nv_permlane16_swap_b32 v%d, v%d" % (o, o + 2, o + 1, o + 3))
    for h in range(2):
        p("buffer_store_dwordx4 %s, v%d, %s, s%d offen offset:%d sc1" % (vr(uTmp + 4 * h), uYst, S4(sWS), sYoff, h * 1024), vm="yst")
    stamp(p, "g2go", opts)
    wrA, preA, rdA, mA, rdyA, myA = out_half(0, opts, False)
    wrB, preB, rdB, mB, rdyB, myB = out_half(1, opts, True)
    YF = opts.get("yflag", 5); YP = opts.get("ypoll", 19); YC = YP + opts.get("ychk", 4); RB = opts.get("rbar", 18); RY = opts.get("ybar", YC + 5)
    HB = opts.get("hb", 5); HL = opts.get("hl", 5)
    xq = []
    def X_(at, L): xq.extend((at, y) for y in L)
    X_(0, preA + [mk("s_mov_b32 s4, %s" % hex(f2u(-LOG2E))), mk("s_mov_b32 s5, s4")])
    for i, y in enumerate(wrA): X_(4 * 14 + 5 + i, [y])
    X_(4 * RB, [W(lg="*"), mk("s_barrier")] + rdA)
    X_(4 * RB + 6, mA)
    GB = opts.get("gbud", 24)
    for hs in range(28):
        ps, s = divmod(hs, 14)
        cur_hs[0] = hs - 1
        while "h%d" % hs not in state["issued"] or any(y.vm == "h%d" % hs for y in VQ) or (ps == 0 and s < 13 and any(y.vm == "w%d" % (s + 1) for y in VQ)): pace2()
        rq = wd_reads(s + 1) if (ps == 0 and 7 <= s + 1 < 14) else []
        if hs == HB:
            p.wait(vm="hpB")
            for x in poll_check("hB", [uPoll + 2], hpollB): p.add(x)
            stamp(p, "hokB", opts); state["B"] = True
        if hs == YF: p.wait(vm="yst"); p("s_barrier"); p.add(flag_store(sFlY, True))
        if hs == YP: p.add(ypoll[0])
        if hs == YC:
            p.wait(vm="yp")
            for x in poll_check("y", [uPoll], ypoll): p.add(x)
            assert not any(is_m0(y) or y.t.endswith(" lds") for y in VQ)
            for x in ydma[-2:]: p.add(x)
            p("s_nop 0")
            p.add(dma(2, sWS, "s3", 0, "yt", " sc1")); p.add(dma(3, sWS, "s3", 1024, "yt", " sc1"))
            stamp(p, "yok", opts, 4)
        RT = opts.get("rtail", 0)
        if hs < 28 - RT: work = [(hs, e, mt) for e in range(2) for mt in range(2)]
        else:
            j = hs - (28 - RT); allw = [(h_, e, mt) for mt in range(2) for h_ in range(28 - RT, 28) for e in range(2)]
            work = allw[4 * j:4 * j + 4]
            if j == RT // 2:
                X_(4 * hs, [mk("v_add_u32 v24, %d, v24" % ((RED[1] - RED[0]) & 0xffffffff))])
                nw_ = min(4, 2 * RT - 3)
                for i, y in enumerate(wrB[:nw_]): X_(4 * hs + 3 + i, [y])
                wrB = wrB[nw_:]
        p.wait(vm="h%d" % max(h_ for h_, _, _ in work), lg="t%d" % s)
        for m, (h_, e, mt) in enumerate(work):
            acc = vr(uAcc + 32 * ps + 16 * mt, 16)
            hr = aH + 8 * (h_ % 16) + 4 * e
            k, b = wfrag(h_ % 14, 2 * e + mt)
            p("v_mfma_f32_32x32x16_bf16 %s, %s[%d:%d], a[%d:%d], %s" % (acc, k, b, b + 3, hr, hr + 3, acc if (s or e) else "0"))
            i0_ = len(p.ins)
            used = lambda: sum(y.cost for y in p.ins[i0_:]) + (4 if m == 3 else 0)
            tgt = "h%d" % min(27, hs + HL)
            left = max([i + 1 for i, y in enumerate(VQ) if y.vm == tgt] + [0])
            for _ in range(-(-left // (4 - m))):
                k_ = pace(p, hs - 1)
                if k_ == 0: break
                if is_m0(p.ins[-1]):
                    if rq: p.add(rq.pop(0)) if (m or True) and not (m == 0) else p("s_nop 0")
                    else: p("s_nop 0")
            if m == 0 and rq: p.wait(vm="w%d" % (s + 1))
            for _ in range(-(-len(rq) // (4 - m))): p.add(rq.pop(0))
            g = 4 * hs + m
            while xq and xq[0][0] <= g and used() + xq[0][1].cost <= GB: p.add(xq.pop(0)[1])
        assert not rq
        if hs == 13: stamp(p, "g2A", opts)
        elif hs % 3 == 0: stamp(p, "h%d" % hs, opts, 4)
    print("gemm2: left-over epilogue items %d" % len(xq), file=sys.stderr)
    stamp(p, "g2end", opts)
    if len(wrB) == 8: p("v_add_u32 v24, %d, v24" % ((RED[1] - RED[0]) & 0xffffffff))
    p("v_add_u32 v25, %d, v25" % ((RED[1] - RED[0]) & 0xffffffff))
    tail = [y for _, y in xq] + preB
    nop = max(0, 6 - len(tail))
    for x in tail[:12]: p.add(x)
    tail = tail[12:]
    for x in wrB:
        p.add(x)
        for _ in range(3):
            if tail: p.add(tail.pop(0))
    for x in tail: p.add(x)
    p.wait(vm="yt", lg="*"); p("s_barrier")
    stamp(p, "red", opts)
    if opts.get("ytail", 1):
        myA = out_half(0, opts, True)[5]
        for x in rdyA + rdB + rdyB + myA[:-1]: p.add(x)
        if opts.get("oearly", 1): p.add(myA[-1])
        for x in mB + myB[:-1]: p.add(x)
        stamp(p, "prest", opts)
        if not opts.get("oearly", 1): p.add(myA[-1])
        p.add(myB[-1])
    else:
        for x in rdB + rdyB + mB + myB: p.add(x)
    stamp(p, "fin", opts)

def aux(p, opts):
    p("s_lshl_b32 s3, s2, 6\ns_lshl_b32 s4, s%d, 4\ns_add_u32 s3, s3, s4" % sWave)
    p("v_add_u32 v12, s3, v2\nv_lshlrev_b32 v10, 10, v12\nv_lshl_add_u32 v10, v3, 4, v10\nv_add_u32 v11, 8192, v10\nv_mov_b32 v13, v3")
    p("s_memrealtime s[%d:%d]" % (sTag, sTag + 1))
    p("s_waitcnt lgkmcnt(0)")
    p("s_mov_b32 s%d, s74\ns_mov_b32 s%d, s75" % (sDbg, sDbg + 1))
    p("s_lshr_b32 s3, s2, %d\ns_or_b32 s3, s3, s%d\ns_cmp_lg_u32 s3, 0\ns_cselect_b64 exec, 0, 1" % (3 if opts.get("cas", 1) else 0, sWave))
    p("s_or_b32 s%d, s%d, 1\nv_mov_b32 v16, s%d\nv_mov_b32 v17, s%d\nv_mov_b32 v18, 0\nv_mov_b32 v19, 0\ns_cbranch_execz L_aux_nt" % (sTag, sTag, sTag, sTag + 1))
    p("global_atomic_cmpswap_x2 v%d, v[16:19], s[%d:%d] sc1" % (vNon + 2, sDbg, sDbg + 1))
    p.label("L_aux_nt")
    p("s_mov_b64 exec, -1")
    srd(p, sQ, kQ, 2048 * 1024)
    for g in range(2):
        for i in range(8):
            p("buffer_load_dwordx4 %s, v%d, %s, 0 offen offset:%d" % (vr(116 + 32 * g + 4 * i), 10 + g, S4(sQ), i * 128), vm="sx%d" % g)
        if g == 0:
            srd(p, sWS, kWS, WS_SZ)
            kv_setup(p); ids2(p); hk_srds(p)
            phase2_setup(p, opts)
    nld, nchk = nonce_get("na")
    p.add(nld)
    p("s_mov_b32 s5, 0x3f803f80")
    for g in range(2):
        p.wait(vm="sx%d" % g if g == 0 else "non")
        stamp(p, "a.sx%d" % g, opts, 3)
        if g == 1:
            p("v_lshlrev_b32 v10, 7, v1\ns_mov_b32 s12, s60\ns_and_b32 s13, s61, 0xffff\ns_mov_b32 s14, 0x200000\ns_mov_b32 s15, 0x20000")
            p("s_mov_b32 s24, s70\ns_and_b32 s25, s71, 0xffff\ns_mov_b32 s26, %d\ns_mov_b32 s27, 0x20000" % (1792 * 1024))
            p("s_lshl_b32 s3, s2, 16\ns_lshl_b32 s4, s%d, 14\ns_add_u32 s21, s3, s4\ns_mul_i32 s3, s2, 57344\ns_mul_i32 s4, s%d, 14336\ns_add_u32 s22, s3, s4" % (sWave, sWave))

        s1 = 16 + 4 * g; s2 = s1 + 1
        for r in range(32):
            x = 116 + 32 * g + r; c = r & 1
            p("v_dot2_f32_bf16 v%d, v%d, s5, %s" % (s1 + 2 * c, x, "v%d" % (s1 + 2 * c) if r > 1 else "0"))
            p("v_dot2_f32_bf16 v%d, v%d, v%d, %s" % (s2 + 2 * c, x, x, "v%d" % (s2 + 2 * c) if r > 1 else "0"))
    for x in nchk: p.add(x)
    p("v_add_f32 v16, v16, v18\nv_add_f32 v17, v17, v19\nv_add_f32 v18, v20, v22\nv_add_f32 v19, v21, v23")
    for mod in ("quad_perm:[1,0,3,2]", "quad_perm:[2,3,0,1]", "row_half_mirror"):
        for r in range(16, 20): p("v_add_f32_dpp v%d, v%d, v%d %s row_mask:0xf bank_mask:0xf" % (r, r, r, mod))
    ops = [[], []]
    for g in range(2):
        S1 = 16 + 2 * g; S2 = S1 + 1; o = 20 + 4 * g
        ops[g] = ["v_mul_f32 v%d, %s, v%d" % (S1, hex(f2u(1.0 / 512)), S1), "v_mul_f32 v%d, %s, v%d" % (S2, hex(f2u(1.0 / 512)), S2),
                  "v_fma_f32 v%d, -v%d, v%d, v%d" % (S2, S1, S1, S2), "v_max_f32 v%d, 0, v%d" % (S2, S2),
                  "v_cvt_pk_bf16_f32 v%d, v%d, v%d" % (S2, S2, S2), "v_and_b32 v%d, 0xffff0000, v%d" % (S2, S2),
                  "v_add_f32 v%d, %s, v%d" % (S2, hex(f2u(1e-5)), S2),
                  "v_cvt_pk_bf16_f32 v%d, v%d, v%d" % (S2, S2, S2), "v_and_b32 v%d, 0xffff0000, v%d" % (S2, S2),
                  "v_sqrt_f32 v%d, v%d" % (S2, S2), "v_mov_b32 v%d, s%d" % (o + 1, sTag),
                  "v_cvt_pk_bf16_f32 v%d, -v%d, v%d" % (o, S1, S2)]
    p("v_cmp_eq_u32 vcc, 0, v13\nv_lshlrev_b32 v12, 3, v12\nv_add_u32 v12, %d, v12\nv_mov_b32 v14, 0x80000000\nv_cndmask_b32 v12, v14, v12, vcc" % WS_ST)
    for x0, x1 in zip(*ops): p(x0); p(x1)
    p("buffer_store_dwordx2 v[20:21], v12, %s, 0 offen sc1" % S4(sWS), vm="pub")
    p("buffer_store_dwordx2 v[24:25], v12, %s, 0 offen offset:64 sc1" % S4(sWS), vm="pub")
    stamp(p, "a.stats", opts)
    tW = ["buffer_load_dword v28, v10, s[24:27], s22 offen\ns_add_u32 s22, s22, 6144", "buffer_load_dword v28, v10, s[24:27], s22 offen"]
    tK = ["buffer_load_dword v28, v10, s[12:15], s21 offen\ns_add_u32 s21, s21, 8192", "buffer_load_dword v28, v10, s[12:15], s21 offen"]
    WM = opts.get("warm", 1)
    tq_ = {0: [], 1: tW + tK, 2: tW, 3: tK + tW, 4: tW + tK}[WM]
    p("s_barrier")
    seq(p, kv_loads(opts) + hk_loads(opts))
    if WM == 4: p(tq_.pop(0), vm="warm")
    for x in phase2_srds(): p.add(x)
    p.wait(vm="hk")
    p("s_barrier")
    for _ in range(opts.get("warm1", 1)):
        if tq_: p(tq_.pop(0), vm="warm")
    for x in kv_compute() + kv_stores(): p.add(x)
    stamp(p, "a.kv", opts)
    seq(p, hk_build())
    if tq_ and opts.get("warm2", 1): p(tq_.pop(0), vm="warm")
    p.wait(vm="kvst", lg="*")
    p.add(flag_store(sFlK))
    stamp(p, "a.kvfl", opts)
    for x in tq_: p(x, vm="warm")
    stamp(p, "a.warm", opts)
    p("s_lshl_b32 s3, s2, 7\ns_add_u32 s%d, s3, %d" % (sFlH, WS_FD))
    for x in fl0_setup(): p.add(x)
    p("s_barrier")
    for mt in range(2): p("v_add_u32 v%d, 0x20000, v%d" % (uTR2 + mt, uTR + mt))
    prev = PREV
    for t in sorted(opts["_ord"]):
        if t in prev:
            p.wait(vm="w%d" % prev[t])
            for x in wd_reads(prev[t], True): p.add(x)
            p.wait(lg="*")
        seq(p, wd_loads(t, opts))
    for s in range(14): p("s_lshr_b32 s%d, s%d, 4" % (sTab + s, sTabW + s))
    kvpoll = [mk("buffer_load_dwordx2 v[%d:%d], v%d, %s, 0 offen sc1" % (uPoll, uPoll + 1, uFK, S4(sWS)), vm="kvp")]
    p.add(kvpoll[0])
    p.wait(vm="kvp")
    for x in poll_check("kva", [uPoll], kvpoll): p.add(x)
    seq(p, conv_xr())
    p("s_waitcnt vmcnt(0)")
    stamp(p, "a.pre", opts)

def pollf(t, opts):
    if opts["pollf"] == "atom":
        m = re.match(r"buffer_load_dwordx2 v\[(\d+):(\d+)\], (.*) sc1", t)
        if not m: return t
        return "v_mov_b32 v%s, 0\nv_mov_b32 v%s, 0\nbuffer_atomic_add_x2 v[%s:%s], %s sc0 sc1" % (m.group(1), m.group(2), m.group(1), m.group(2), m.group(3))
    return t.replace(" sc1", " " + opts["pollf"].replace("+", " "))
def emit(a, lines):
    for l in lines: a(l if l.endswith(":") else "  " + l)

def build(opts):
    del SLOW[:]
    if "rho" in opts: RHO[:] = [int(c) for c in str(opts["rho"]).rjust(3, "0")]
    PROF[0] = opts.get("prof", 0); SLEEP['*'] = opts.get("sleep", 4)
    name = KN + "_kernel"
    a = A()
    a(header(["; @launch grid=(256,1,1) block=(256,1,1) lds=163840"]))
    a(kernel_begin(name))
    a("s_load_dwordx8 s[80:87], s[0:1], 0\ns_load_dwordx16 s[60:75], s[0:1], 32\ns_load_dwordx2 s[76:77], s[0:1], 96")
    a("s_cmp_ge_u32 s2, 256\ns_cbranch_scc1 L_end")
    if opts.get("prof"):
        a("s_memrealtime s[78:79]\ns_memtime s[100:101]\nv_mov_b32 v255, 0\ns_waitcnt lgkmcnt(0)\nv_writelane_b32 v255, s100, 0\nv_writelane_b32 v255, s78, 62")
    p0 = Prog(); common_setup(p0, opts); c0 = p0.resolve()
    a("s_cmp_ge_u32 s2, 32\ns_cbranch_scc1 L_gemm")
    if opts.get("ipf", 1):
        a("s_getpc_b64 s[4:5]\nv_lshlrev_b32 v1, 7, v0\ns_and_b32 s4, s4, 0xffffff00\nv_min_u32 v1, L_code_end-%s-128, v1\nglobal_load_dword v200, v1, s[4:5]" % name)
    a("s_branch L_aux")
    a.label("L_gemm")
    emit(a, c0)
    p = Prog(); gemm1(p, opts); p.label("L_phase2"); phase2(p, opts)
    pa = Prog(); aux(pa, opts)
    for q in (p, pa):
        if opts.get("x_nochk"): q.ins = [y for y in q.ins if not ("s_cbranch_vccnz L_slow" in y.t)]
        if opts.get("x_nost"): q.ins = [y for y in q.ins if not (y.t.startswith("buffer_store") and "sc1" in y.t)]
        if opts.get("x_nofl"): q.ins = [y for y in q.ins if not (y.t.startswith("buffer_store_dwordx2") and "v[6:7]" in y.t)]
        if opts.get("x_nokv"): q.ins = [y for y in q.ins if not (y.vm in ("kv", "hk") and y.kind != "wait")]
        if opts.get("pollf"):
            for y in q.ins:
                if y.vm in ("kvp", "hpA", "hpB", "yp", "wfp") and y.t.startswith("buffer_load"): y.t = pollf(y.t, opts)
        if opts.get("x_nohb"): q.ins = [y for y in q.ins if not ("v39" in y.t or y.t.startswith("v_alignbit") or y.lg == "hb")]
        if opts.get("x_nowb"): q.ins = [y for y in q.ins if not (y.vm in ("w0", "w1", "w2", "w3", "w4", "w7") and y.kind != "wait")]
        if opts.get("x_drop"):
            dr = str(opts["x_drop"]).split("+")
            q.ins = [y for y in q.ins if not (y.kind != "wait" and y.vm in dr)]
        if opts.get("x_dropw"):
            dr = str(opts["x_dropw"]).split("+")
            q.ins = [y for y in q.ins if not (y.kind == "wait" and y.vm in dr)]
        if opts.get("x_nopoll"): q.ins = [y for y in q.ins if not (y.vm in ("rec", "kvp", "hpA", "hpB", "yp", "wfp") and y.kind != "wait")]
    if opts.get("prof") and "q0" in opts:
        regs = [12, 14, 22, 24, 50, 80, 82, 98]
        i0 = [i for i, y in enumerate(p.ins) if y.t == "L_phase2:"][0]
        out = p.ins[:i0 + 1]; cnt = 0; mf = 0; k = 0
        for y in p.ins[i0 + 1:]:
            out.append(y)
            ism = "v_mfma" in y.t
            mf += ism
            if (mf >= opts.get("qm", 0) and y.kind != "label") if opts.get("qi") else ism:
                cnt += 1
                if k < 8 and cnt == opts["q0"] + k * opts.get("qd", 8):
                    out.append(mk("s_memtime s[%d:%d]" % (regs[k], regs[k] + 1))); k += 1
        out.append(mk("s_waitcnt lgkmcnt(0)"))
        for j in range(k):
            STAMPS.append("Q%d" % (opts["q0"] + j * opts.get("qd", 8))); out.append(mk("v_writelane_b32 v255, s%d, %d" % (regs[j], len(STAMPS) - 1)))
        p.ins = out
    lines = p.resolve()
    la = pa.resolve()
    lines = fix_hazards(lines, "main")
    pr = check_hazards(lines, "main") + check_hazards(la, "aux")
    for x in pr[:40]: print("HAZARD", x, file=sys.stderr)
    if pr: raise SystemExit("hazards")
    emit(a, lines)
    if opts.get("prof"):
        a("s_waitcnt vmcnt(0) lgkmcnt(0)\ns_memtime s[100:101]\ns_memrealtime s[78:79]\ns_load_dwordx2 s[4:5], s[0:1], 96\ns_waitcnt lgkmcnt(0)")
        a("v_writelane_b32 v255, s100, 60\nv_writelane_b32 v255, s78, 63\ns_getreg_b32 s100, hwreg(HW_REG_XCC_ID)\nv_writelane_b32 v255, s100, 61")
        a("s_lshl_b32 s6, s2, 10\ns_lshl_b32 s7, s%d, 8\ns_add_u32 s6, s6, s7\ns_add_u32 s6, s6, 0x1000000\ns_add_u32 s4, s4, s6\ns_addc_u32 s5, s5, 0" % sWave)
        a("v_lshlrev_b32 v2, 2, v1\nglobal_store_dword v2, v255, s[4:5]\ns_waitcnt vmcnt(0)")
        a("; STAMPS " + " ".join(STAMPS))
        a("; SPINS " + " ".join(SPINS))
    a.label("L_end")
    a("s_endpgm")
    a.label("L_aux")
    emit(a, c0)
    emit(a, la)
    a("s_branch L_phase2")
    for t in SLOW:
        if opts.get("pollf"): t = "\n".join(pollf(l, opts) if (l.startswith("buffer_load_dwordx2 v[25") or l.startswith("buffer_load_dwordx2 v[2:3]") or l.startswith("buffer_load_dwordx4 v[250")) else l for l in t.split("\n"))
        a(t)
    a.label("L_code_end")
    a(RODATA)
    a(kernel_desc(name, 512, 102, 256))
    return a.text()

if __name__ == "__main__":
    opts = {}
    for kv in sys.argv[2:]:
        k, _, v = kv.partition("=")
        opts[k] = int(v) if v.lstrip("-").isdigit() else (v if v else 1)
    for k in ("fw", "fx", "fd", "fk", "fkv", "fo", "fr"):
        if k in opts: opts[k] = "" if opts[k] == "none" else " " + opts[k].replace("+", " ")
    open(sys.argv[1], "w").write(build(opts))
```

```python
import re

class I:
    __slots__ = ("t", "vm", "lg", "cost", "kind")
    def __init__(self, t, vm=None, lg=None, cost=4, kind=None):
        self.t = t; self.vm = vm; self.lg = lg; self.cost = cost; self.kind = kind

TRANS = ("v_exp_f32", "v_log_f32", "v_rcp_f32", "v_rsq_f32", "v_sqrt_f32", "v_sin_f32", "v_cos_f32")

def regs_of(op):
    op = op.strip()
    op = op.lstrip("-")
    m = re.match(r"^abs\((.*)\)$", op)
    if m: op = m.group(1)
    m = re.match(r"^([vas])\[(\d+):(\d+)\]$", op)
    if m:
        return {(m.group(1), i) for i in range(int(m.group(2)), int(m.group(3)) + 1)}
    m = re.match(r"^([vas])(\d+)$", op)
    if m:
        return {(m.group(1), int(m.group(2)))}
    if op == "vcc": return {("s", "vcc")}
    if op == "m0": return {("s", "m0")}
    if op == "exec": return {("s", "exec")}
    return set()

def parse(t):
    t = t.split(";")[0].strip()
    if not t or t.endswith(":") or t.startswith("."):
        return None
    parts = t.split(None, 1)
    mn = parts[0]
    ops = []
    if len(parts) > 1:
        rest = parts[1]
        cur = ""; depth = 0
        for ch in rest:
            if ch == "[": depth += 1
            if ch == "]": depth -= 1
            if ch == "," and depth == 0:
                ops.append(cur.strip()); cur = ""
            else:
                cur += ch
        ops.append(cur.strip())
        ops = [o.split()[0] if o and not o.startswith("hwreg") else o for o in ops]
    R = [regs_of(o) for o in ops]
    defs = set(); uses = set()
    lds = " lds" in (" " + t + " ") and mn.startswith("buffer_load")
    if mn.startswith("buffer_store") or mn.startswith("global_store") or mn.startswith("ds_write") or lds \
       or (mn.startswith("buffer_atomic") and "sc0" not in t) or (mn.startswith("global_atomic") and "sc0" not in t):
        for r in R: uses |= r
        if lds: uses.add(("s", "m0"))
    elif mn.startswith("s_cmp") or mn.startswith("s_cbranch") or mn in ("s_waitcnt", "s_nop", "s_barrier", "s_branch", "s_endpgm", "s_sleep", "s_setprio"):
        for r in R: uses |= r
    elif mn.startswith("v_permlane") and "swap" in mn:
        defs = R[0] | R[1]; uses = R[0] | R[1]
    else:
        if R:
            defs = set(R[0])
            for r in R[1:]: uses |= r
        if mn.startswith("v_fmac") or mn.startswith("v_dot2c") or mn.startswith("s_addk") or mn.startswith("v_writelane"):
            uses |= R[0]
        if mn.startswith("v_add_co") or mn.startswith("v_addc_co") or mn.startswith("v_sub_co"):
            defs |= R[1]
        if mn.startswith("v_cndmask") and len(R) == 3:
            uses.add(("s", "vcc"))
        if "saveexec" in mn:
            defs.add(("s", "exec"))
        if "dpp" in mn or "row_" in t or "quad_perm" in t:
            uses |= R[0]
    return mn, defs, uses

def is_valu(mn):
    return mn.startswith("v_") and not mn.startswith("v_mfma")
def is_mfma(mn):
    return mn.startswith("v_mfma")
def is_vmem(mn):
    return mn.startswith("buffer_") or mn.startswith("global_")
def mfma_passes(mn):
    return 8 if "32x32" in mn else (2 if "4x4x4" in mn else 4)

def states(mn, t):
    if mn == "s_nop":
        return int(t.split()[1]) + 1
    return 1

def check_hazards(lines, name=""):
    P = []
    ins = []
    for n, t in enumerate(lines):
        p = parse(t)
        if p: ins.append((n, t, p))
    for i, (n, t, (mn, d, u)) in enumerate(ins):
        dist = 0
        j = i - 1
        while j >= 0 and dist < 21:
            n2, t2, (mn2, d2, u2) = ins[j]
            need = 0
            vd2 = {r for r in d2 if r[0] in "va"}
            sd2 = {r for r in d2 if r[0] == "s"}
            if is_valu(mn2) and is_mfma(mn) and (vd2 & u): need = max(need, 2)
            if is_mfma(mn2):
                ps = mfma_passes(mn2)
                if is_mfma(mn):
                    ops = [o.strip() for o in re.split(r",\s*(?![^\[]*\])", t.split(None, 1)[1])]
                    ab = regs_of(ops[1]) | regs_of(ops[2]); c = regs_of(ops[3].split()[0])
                    if vd2 & ab: need = max(need, {2: 5, 4: 8, 8: 12}[ps])
                    if vd2 & c and ps == 2: need = max(need, 2)
                    if vd2 & c and (c != vd2 or mn != mn2): need = max(need, {2: 4, 4: 6, 8: 10}[ps])
                    if (vd2 & d) and not (vd2 & c): need = max(need, {2: 4, 4: 6, 8: 10}[ps])
                elif is_valu(mn) or is_vmem(mn) or mn.startswith("ds_"):
                    if vd2 & (u | d): need = max(need, {2: 5, 4: 8, 8: 12}[ps])
                    if is_valu(mn):
                        ops2 = [o.strip() for o in re.split(r",\s*(?![^\[]*\])", t2.split(None, 1)[1])]
                        c2 = regs_of(ops2[3].split()[0])
                        if c2 & d: need = max(need, {2: 1, 4: 3, 8: 7}[ps])
            if mn2.split("_e")[0] in TRANS or mn2 in TRANS:
                if is_valu(mn) and mn not in TRANS and (vd2 & u): need = max(need, 1)
                if is_valu(mn) and mn in TRANS and (vd2 & u): need = max(need, 1)
            if is_valu(mn2) and sd2:
                if is_vmem(mn) and (sd2 & u): need = max(need, 5)
                if is_valu(mn) and (sd2 & u): need = max(need, 2)
                if mn.startswith("v_readlane") and (sd2 & u): need = max(need, 4)
            if is_valu(mn2) and ("s", "exec") in d2 and is_mfma(mn): need = max(need, 4)
            if is_valu(mn2) and (mn.startswith("v_readfirstlane") or mn.startswith("v_readlane")) and (vd2 & u): need = max(need, 1)
            if is_valu(mn2) and mn.startswith("v_permlane") and (vd2 & u): need = max(need, 2)
            if is_valu(mn2) and is_valu(mn) and ("dpp" in mn or "quad_perm" in t or "row_" in t) and (vd2 & u): need = max(need, 2)
            if not is_valu(mn2) and ("s", "m0") in d2 and ("s", "m0") in u and is_vmem(mn): need = max(need, 1)
            if (mn2.startswith("buffer_store") or mn2.startswith("global_store")) and ("x4" in mn2 or "x3" in mn2):
                dat = regs_of(t2.split(None, 1)[1].split(",")[0 if mn2.startswith("buffer") else 1].strip()) if True else set()
                ops2 = [o.strip() for o in re.split(r",\s*(?![^\[]*\])", t2.split(None, 1)[1])]
                dat = regs_of(ops2[0] if mn2.startswith("buffer") else ops2[1])
                if dat & d: need = max(need, 2 if is_valu(mn) else 1)
            if need > dist:
                P.append("%s line %d: '%s' needs %d states after '%s' (has %d)" % (name, n, t.strip(), need, t2.strip(), dist))
            dist += states(mn2, t2)
            j -= 1
    return P

class Prog:
    def __init__(self):
        self.ins = []
    def __call__(self, t, vm=None, lg=None, cost=None):
        for line in t.split("\n"):
            line = line.strip()
            if not line: continue
            self.ins.append(mk(line, vm, lg, cost))
    def add(self, i):
        self.ins.append(i)
    def wait(self, vm=None, lg=None):
        self.ins.append(I("WAIT", vm=vm, lg=lg, kind="wait"))
    def label(self, n):
        self.ins.append(I(n + ":", kind="label", cost=0))
    def resolve(self):
        out = []
        vmq = []; lgq = []
        for i in self.ins:
            if i.kind == "wait":
                parts = []
                for tag, q, nm, mx in ((i.vm, vmq, "vmcnt", 63), (i.lg, lgq, "lgkmcnt", 15)):
                    if tag is None: continue
                    tags = tag if isinstance(tag, (list, tuple)) else [tag]
                    if "*" in tags:
                        n = 0
                    else:
                        last = -1
                        for k, x in enumerate(q):
                            if x in tags: last = k
                        if last < 0: continue
                        n = len(q) - 1 - last
                    if n > mx: n = mx
                    del q[:len(q) - n]
                    parts.append("%s(%d)" % (nm, n))
                if parts: out.append("s_waitcnt " + " ".join(parts))
                continue
            if i.kind == "bundle":
                out += i.t.split("\n"); continue
            if "\n" in i.t:
                vmq.append(i.vm); out += i.t.split("\n"); continue
            mn = i.t.split()[0]
            if is_vmem(mn): vmq.append(i.vm)
            if mn.startswith("ds_"): lgq.append(i.lg)
            if mn == "s_waitcnt":
                m = re.search(r"vmcnt\((\d+)\)", i.t)
                if m: del vmq[:max(0, len(vmq) - int(m.group(1)))]
                m = re.search(r"lgkmcnt\((\d+)\)", i.t)
                if m: del lgq[:max(0, len(lgq) - int(m.group(1)))]
            out.append(i.t)
        return out

def mk(line, vm=None, lg=None, cost=None):
    mn = line.split()[0]
    if cost is None:
        cost = 8 if mn in TRANS else 4
    return I(line, vm=vm, lg=lg, cost=cost)

def W(vm=None, lg=None):
    return I("WAIT", vm=vm, lg=lg, kind="wait")

def fix_hazards(lines, name=""):
    for _ in range(50):
        P = check_hazards(lines, name)
        if not P: return lines
        m = re.match(r".* line (\d+): .* needs (\d+) states .*\(has (\d+)\)$", P[0])
        n, need, has = int(m.group(1)), int(m.group(2)), int(m.group(3))
        for q in P:
            m2 = re.match(r".* line (\d+): .* needs (\d+) states .*\(has (\d+)\)$", q)
            if int(m2.group(1)) == n and int(m2.group(2)) - int(m2.group(3)) > need - has: need, has = int(m2.group(2)), int(m2.group(3))
        import sys
        print("auto nop %d before: %s" % (need - has, lines[n]), file=sys.stderr)
        lines = lines[:n] + ["s_nop %d" % (need - has - 1)] + lines[n:]
    return lines
```

```python
import sys, struct, re
from asmlib import *
from sched import *

WS_H  = 0x000000
WS_XR = 0x700000
WS_YT = 0x900000
WS_ST = 0xB00000
WS_FK = 0xB08000
WS_FH = 0xB10000
WS_FY = 0xB18000
WS_FD = 0xB20000
WS_FL = 0x20000
WS_CS = 0xB48000
WS_SZ = 0xC00000
LOG2E = 1.4426950408889634
SPIN_MAX = 1 << 16

def f2u(x): return struct.unpack("<I", struct.pack("<f", x))[0]
def vr(b, n=4, p="v"): return "%s[%d:%d]" % (p, b, b + n - 1) if n > 1 else "%s%d" % (p, b)
def S4(b): return "s[%d:%d]" % (b, b + 3)
def srd(p, d, lo, size):
    p("s_mov_b32 s%d, s%d\ns_and_b32 s%d, s%d, 0xffff\ns_mov_b32 s%d, 0x%x\ns_mov_b32 s%d, 0x20000" % (d, lo, d + 1, lo + 1, d + 2, size, d + 3))
def ml(t, **kw): return [mk(x, **kw) for x in t.split("\n")]
def bundle(t):
    b = I(t, cost=4 * len(t.split("\n"))); b.kind = "bundle"; return b

SLOT = 32768
CONV = 98304; CH_STRIDE = 12928; XR_OFF = 8320
UNIT = [141312, 0, 16384, 32768, 49152, 65536, 81920, 124416]
WUN = {t: t % 7 for t in range(14)}
WUN[5] = 7; PREV = {7: 0, 8: 1, 9: 2, 10: 3, 11: 4, 13: 6}
def wdl(s): return UNIT[WUN[s]]
KVL = 141312
RS = 272; REDW = 32 * RS
RED = [CONV, 0]
YT_L = CONV + 4 * REDW; XCH = CONV
sQ = 8; sW = 12; sWS = 16; sWave = 20; sTB = 21; sCB = 22; sLdsX = 23; sLdsW = 24; sLdsXB = 25; sT0 = 26; sT1 = 27
sHa = 28; sST = 29; sFlK = 30; sDoff = 31; sDbg = 32; sT2 = 34; sT3 = 35; sWd = 36; sHk = 40; sOut = 44; sTag = 48
sXB = 50
sCSw = 52; sTB2 = 53; sDB = 54; sCV = 55; sXRso = 56; sYoff = 57; sFlH = 58; sFlY = 59
sTabW = 60
sHalf = 74; sCh4k = 75; sSpin = 76; sWdL = 77
sDp = 80
sTab = 84
sK = 36; sV = 44; sSh = 64
kSK = 60; kD = 62;
kBX = 64; kWG = 66; kWU = 68; kWD = 70; kOUT = 72; kDBG = 74; kWS = 76; kQ = 80; kK = 82; kV = 84; kSH = 86
vKD = 2
vTag = 6; vFl = 8
vWD = 10; vXD = 14; vXA = 18; vWA = 26; vHoff = 28; vSToff = 29; vCSoff = 30; vL16 = 31; vNon = 32
vKA = 36; vKO = 37; vSH = 38
vR1A = 40; vR1B = 44; vOnes = 180; vST = 52; vXF = 84; vACC = 116; vTMP = 212; vOUT = 220
vCSR = 180; vCSA = 196
uWD = 228; uH = 232; uTR = 236; uCA = 240; uCB = 241; uYst = 242; uFY = 243; uX = 244; uSto = 245; uFH = 246; uFK = 247
uHead = 248; uHeadA = 249; uPoll = 250; uD = 254
uAD = 40; uTmp = 32; uXin = 44; uSt = 52; uCacc = 184; uAcc = 120
vCF = 56; aH = 0
def wfrag(s, mt):
    if s < 8: return "a", 128 + 16 * s + 4 * mt
    if s < 10: return "v", 184 + 16 * (s - 8) + 4 * mt
    return "v", 56 + 16 * (s - 10) + 4 * mt

STAMPS = ["start"]
def stamp_l(name, opts, lvl=1):
    if not opts.get("prof") or opts.get("plvl", 1) == 0 or (lvl > 1 and lvl != opts.get("plvl", 1)): return []
    if name not in STAMPS: STAMPS.append(name)
    idx = STAMPS.index(name)
    assert idx < 48
    return ml("s_memtime s[100:101]\ns_waitcnt lgkmcnt(0)\nv_writelane_b32 v255, s100, %d" % idx, cost=0)
def stamp(p, name, opts, lvl=1):
    for x in stamp_l(name, opts, lvl): p.add(x)

def acc_of(t): return vACC + 16 * {0: 0, 1: 1, 2: 2, 3: 3, 4: 4, 5: 5, 6: 0, 7: 1}[t]
def win(addr): return addr >> 16, addr & 0xffff
def dma(v, srd_, so, off, tag, fl=""):
    return mk("buffer_load_dwordx4 v%d, %s, %s offen offset:%d%s lds" % (v, S4(srd_), so, off, fl), vm=tag)
def is_m0(x): return " m0," in x.t
def is_vm(x): return x.t.startswith("buffer_") or x.t.startswith("global_")
def seq(p, L):
    L = [x for x in L if x.kind != "delay"]
    for i, x in enumerate(L):
        p.add(x)
        if is_m0(x) and i + 1 < len(L) and is_vm(L[i + 1]): p("s_nop 0")
vFl0 = 9
def flag_store(so, wg=False, tag="fl"):
    return mk("buffer_store_dwordx2 v[%d:%d], v%d, %s, s%d offen sc1" % (vTag, vTag + 1, vFl0 if wg else vFl, S4(sWS), so), vm=tag)
def fl0_setup():
    return ml("s_lshl_b32 s6, s%d, 31\ns_lshl_b32 s7, s%d, 30\ns_or_b32 s6, s6, s7\ns_and_b32 s6, s6, 0x80000000\nv_or_b32 v%d, s6, v%d" % (sWave, sWave, vFl0, vFl))

def g1_stage(s, opts):
    L = []; base = (s % 3) * SLOT; tag = "st%d" % s
    fw = opts.get("fw", ""); fx = opts.get("fx", "")
    if s < 8:
        L.append(mk("s_add_u32 m0, s%d, %d" % (sLdsW, base)))
        L += [dma(vWD + j, sW, "s%d" % (sTab + s), j * 1024, tag, fw) for j in range(4)]
        L.append(mk("s_add_u32 m0, s%d, %d" % (sLdsX, base)))
        L += [dma(vXD + j, sQ, "s%d" % (sTab + 8 + s), j * 1024, tag, fx) for j in range(4)]
    else:
        for h in range(2):
            L.append(mk("s_add_u32 m0, s%d, %d" % (sLdsXB, base + h * 4096)))
            L.append(mk("s_add_u32 s%d, s%d, %d" % (sT0 + h, sXB + h, (s - 8) * 32768)))
            L += [dma(vXD + j, sQ, "s%d" % (sT0 + h), j * 1024, tag, fx) for j in range(4)]
    return L
def wd_loads(s, opts):
    return [mk("s_add_u32 m0, s%d, %d" % (sWdL, wdl(s)))] + \
           [dma(uWD + j, sWd, "s%d" % (sTabW + s), j * 1024, "w%d" % s, opts.get("fd", "")) for j in range(4)]
def h_loads(hs):
    ps, s = divmod(hs, 14)
    L = []
    for e in range(2):
        r = aH + 8 * (hs % 16) + 4 * e
        L.append(mk("buffer_load_dwordx4 a[%d:%d], v%d, %s, s%d offen offset:%d sc1" % (r, r + 3, uH + ps, S4(sWS), sTab + s, e * 1024), vm="h%d" % hs))
    return L
HI = {1: 216, 2: 220}
uTR2 = 2
def wd_reads(s, inB=False):
    L = []
    w, off = win(wdl(s))
    for f in range(4):
        e, mt = f >> 1, f & 1
        k, b = wfrag(s, f)
        reg = uTR + mt if w == 0 else (uTR2 + mt if inB else HI[w] + mt)
        L.append(mk("ds_read_b64_tr_b16 %s[%d:%d], v%d offset:%d" % (k, b, b + 1, reg, off + e * 2048), lg="t%d" % s))
        L.append(mk("ds_read_b64_tr_b16 %s[%d:%d], v%d offset:%d" % (k, b + 2, b + 3, reg, off + e * 2048 + 512), lg="t%d" % s))
    return L
def hk_loads(opts):
    L = ml("s_lshl_b32 s6, s%d, 11\ns_add_u32 m0, s6, s%d\ns_add_u32 m0, m0, 32" % (sHalf, sCV))
    L += [dma(vL16, sHk, "s6", j * 1024, "hk", opts.get("fk", "")) for j in range(2)]
    L.append(mk("buffer_load_ushort v%d, v%d, %s, 0 offen" % (uHead, uHead, S4(sHk)), vm="hk"))
    L.append(mk("buffer_load_ushort v%d, off, %s, s%d" % (uD, S4(sDp), sDoff), vm="hk"))
    return L
def delay(n):
    d = I("; delay", cost=0); d.kind = "delay"; d.vm = n; return d
def hk_build(alt=0):
    D = [212, 213, 214, 215, 216, 217]; E1 = 220; E3 = 224; C2 = 52
    if alt: D = [10, 11, 12, 13, 26, 27]; E1 = 32; E3 = 32; C2 = 32
    L = ml("s_lshl_b32 s5, s%d, 11\ns_add_u32 s5, s5, s%d\nv_add_u32 v39, s5, v%d\nds_write_b16 v%d, v%d" % (sHalf, sCV, vL16, uHeadA, uHead))
    for j in range(2):
        o = 32 + j * 1024
        L.append(mk("ds_read_b128 %s, v39 offset:%d" % (vr(D[0]), o), lg="hb"))
        L.append(mk("ds_read_b32 v%d, v39 offset:%d" % (D[4], o + 16), lg="hb"))
        L += [delay(5), W(lg="hb")]
        L += [mk("v_alignbit_b32 v%d, v%d, v%d, 16" % (E1 + i, D[i + 1], D[i])) for i in range(4)]
        L += [delay(1), mk("ds_write_b128 v39, %s offset:%d" % (vr(E1), o + 4160), cost=12), delay(2)]
    return L
def conv_xr():
    L = ml("s_lshl_b32 s7, s%d, 10\ns_add_u32 m0, s7, %d" % (sWave, CONV + XR_OFF))
    L += [dma(vL16, sWS, "s%d" % sXRso, 0, "cv", " sc1")]
    L += ml("s_add_u32 s%d, s%d, 4096\ns_add_u32 m0, s7, %d" % (sXRso, sXRso, CONV + CH_STRIDE + XR_OFF))
    L += [dma(vL16, sWS, "s%d" % sXRso, 0, "cv", " sc1")]
    return L
CAR = [uCA, 10, 11, 12]
def conv_reads(rr):
    L = []; b = vCF + 64 * (rr & 1)
    for i in range(8):
        a = b + 4 * i; t = "c%d_%d" % (rr, i)
        ar = CAR[i >> 1]; o = 16 * rr + 128 * (i & 1)
        L.append(mk("ds_read2_b32 v[%d:%d], v%d offset0:%d offset1:%d" % (a, a + 1, ar, o, o + 1), lg=t))
        L.append(mk("ds_read2_b32 v[%d:%d], v%d offset0:%d offset1:%d" % (a + 2, a + 3, ar, o + 2, o + 3), lg=t))
        L.append(mk("ds_read_b128 v[%d:%d], v%d offset:%d" % (a + 32, a + 35, uCB, 3584 - 512 * i + 64 * rr), lg=t))
    return L

def kv_setup(p):
    p("s_lshr_b32 s3, s2, 3\ns_lshl_b32 s3, s3, 16\ns_and_b32 s4, s2, 7\ns_lshl_b32 s5, s4, 7\ns_add_u32 s5, s5, s3")
    p("v_lshrrev_b32 v9, 3, v1\nv_and_b32 v%d, 7, v1\nv_lshlrev_b32 v%d, 4, v%d\nv_lshl_add_u32 v%d, v9, 10, v%d" % (vSH, vKD, vSH, vKD, vKD))
    p("s_add_u32 s6, s5, %d\nv_add_u32 v%d, s6, v%d" % (56 * 1024, vKD + 2, vKD))
    p("s_lshl_b32 s6, s%d, 14\ns_add_u32 s5, s5, s6\nv_add_u32 v%d, s5, v%d" % (sWave, vKD + 1, vKD))
    p("v_add_u32 v%d, 0xffffe000, v%d\nv_add_u32 v%d, %d, v%d" % (vKD, vKD + 1, vKD + 3, 8192 - 1056, vKD + 1))
    p("s_lshl_b32 s6, s%d, 5\ns_add_u32 s6, s6, %d\nv_mul_u32_u24 v%d, 1056, v9\nv_lshl_add_u32 v%d, v%d, 2, v%d\nv_add_u32 v%d, s6, v%d" % (sWave, KVL, vKA, vKA, vSH, vKA, vKA, vKA))
    p("s_lshl_b32 s6, s4, 18\ns_lshl_b32 s7, s%d, 16\ns_add_u32 s6, s6, s7\ns_lshr_b32 s7, s3, 9\ns_sub_u32 s6, s6, s7\ns_add_u32 s6, s6, %d" % (sWave, WS_XR + 4080))
    p("v_lshlrev_b32 v%d, 13, v%d\nv_lshlrev_b32 v9, 4, v9\nv_sub_u32 v%d, v%d, v9\nv_add_u32 v%d, s6, v%d" % (vKO, vSH, vKO, vKO, vKO, vKO))
    p("s_lshl_b32 s6, s4, 9\ns_lshl_b32 s7, s%d, 7\ns_add_u32 s6, s6, s7\nv_lshl_add_u32 v%d, v%d, 4, s6" % (sWave, vSH, vSH))
    p("s_lshl_b32 s6, s2, 7\ns_lshl_b32 s7, s%d, 3\ns_add_u32 s6, s6, s7\ns_add_u32 s%d, s6, %d" % (sWave, sFlK, WS_FK))
    srd(p, sK, kK, 2048 * 1024); srd(p, sV, kV, 2048 * 1024); srd(p, sSh, kSH, 4096)
def kv_loads(opts):
    f = opts.get("fkv", "")
    L = ml("s_mul_i32 s52, s%d, 2112\ns_add_u32 s52, s52, %d\ns_mov_b32 m0, s52" % (sWave, KVL))
    L += [dma(vKD, sK, "0", 0, "kv", f), mk("s_add_u32 m0, s52, 1056"), dma(vKD + 1, sK, "0", 0, "kv", f),
          mk("s_mov_b32 m0, %d" % (KVL + 8 * 1056)), dma(vKD + 2, sK, "0", 0, "kv", f),
          mk("s_add_u32 m0, s52, %d" % (9 * 1056)), dma(vKD + 1, sV, "0", 0, "kv", f), dma(vKD + 3, sV, "0", 1056, "kv", f),
          mk("buffer_load_dwordx4 v[72:75], v%d, %s, 0 offen" % (vSH, S4(sSh)), vm="kv")]
    return L
def kv_compute():
    RK = 52; RV = 63; Wt = 76; K = 212; A = 223; V = 225
    L = []
    for j in range(11): L.append(mk("ds_read_b32 v%d, v%d offset:%d" % (RK + j, vKA, (5 + j) * 128 if j < 3 else 1056 + (j - 3) * 128), lg="kvr"))
    for t in range(8): L.append(mk("ds_read_b32 v%d, v%d offset:%d" % (RV + t, vKA, 9 * 1056 + t * 128), lg="kvr"))
    un = lambda d, s_, hi: mk(("v_and_b32 v%d, 0xffff0000, v%d" if hi else "v_lshlrev_b32 v%d, 16, v%d") % (d, s_))
    for e in range(2):
        for i in range(4): L.append(un(Wt + 4 * e + i, 72 + 2 * e + (i >> 1), i & 1))
    L.append(W(lg="kvr"))
    for e in range(2):
        o = (vNon, uPoll)[e]
        for j in range(11): L.append(un(K + j, RK + j, e))
        for t in range(8):
            a = A + (t & 1)
            L.append(mk("v_mul_f32 v%d, v%d, v%d" % (a, K + t, Wt + 4 * e + 3)))
            L.append(un(V, RV + t, e))
            for i in (2, 1, 0): L.append(mk("v_fmac_f32 v%d, v%d, v%d" % (a, K + t + 3 - i, Wt + 4 * e + i)))
            L.append(mk("v_mul_f32 v%d, v%d, v%d" % (a, a, V)))
            if t & 1: L.append(mk("v_cvt_pk_bf16_f32 v%d, v%d, v%d" % (o + 3 - (t >> 1), A + 1, A)))
    return L
def kv_stores():
    return [mk("s_mov_b32 s%d, 4096" % sT2),
            mk("buffer_store_dwordx4 %s, v%d, %s, 0 offen sc1" % (vr(vNon), vKO, S4(sWS)), vm="kvst"),
            mk("buffer_store_dwordx4 %s, v%d, %s, s%d offen sc1" % (vr(uPoll), vKO, S4(sWS), sT2), vm="kvst")]

SLOW = []
SPINS = []
SLEEP = {'*': 8, 'kva': 16, 'ng': 4, 'na': 4}
PROF = [0]
def spin(name, reload_, test, okbr):
    t = ["L_slow_%s:" % name, "s_mov_b32 s%d, 1" % sSpin, "L_spin_%s:" % name, "s_sleep %d" % SLEEP.get(name, SLEEP['*'])]
    if PROF[0]:
        SPINS.append(name); t.append("v_writelane_b32 v255, s%d, %d" % (sSpin, 47 + len(SPINS)))
    t += [x.t for x in reload_] + ["s_waitcnt vmcnt(0)"] + [x.t for x in test]
    t += ["%s L_ok_%s" % (okbr, name), "s_add_u32 s%d, s%d, 1" % (sSpin, sSpin), "s_cmp_lt_u32 s%d, %d" % (sSpin, SPIN_MAX),
          "s_cbranch_scc1 L_spin_%s" % name, "s_branch L_ok_%s" % name]
    SLOW.append("\n".join(t))
def poll_check(name, regs, reload_, bits=64):
    L = []
    for i, r in enumerate(regs):
        op = "v_cmp_ne_u64 %%s, s[%d:%d], v[%d:%d]" % (sTag, sTag + 1, r, r + 1) if bits == 64 else "v_cmp_ne_u32 %%s, s%d, v%d" % (sTag, r)
        if i == 0: L.append(mk(op % "vcc"))
        else: L += ml(op % "s[4:5]" + "\ns_or_b64 vcc, vcc, s[4:5]")
    spin(name, reload_, L, "s_cbranch_vccz")
    return L + [mk("s_cbranch_vccnz L_slow_%s" % name), I("L_ok_%s:" % name, kind="label", cost=0)]
def nonce_get(name):
    ld = mk("global_load_dwordx2 v[%d:%d], v%d, s[%d:%d] sc1" % (vNon, vNon + 1, vNon + 2, sDbg, sDbg + 1), vm="non")
    t = ml("v_readfirstlane_b32 s%d, v%d\nv_readfirstlane_b32 s%d, v%d\ns_cmp_lg_u32 s%d, 0" % (sTag, vNon, sTag + 1, vNon + 1, sTag))
    spin(name, [ld], t, "s_cbranch_scc1")
    chk = t[:2] + [bundle(t[2].t + "\ns_cbranch_scc0 L_slow_%s" % name), I("L_ok_%s:" % name, kind="label", cost=0)]
    chk += ml("v_mov_b32 v%d, v%d\nv_mov_b32 v%d, v%d" % (vTag, vNon, vTag + 1, vNon + 1))
    return ld, chk

def g1_epilogue(tile, opts):
    A0 = acc_of(tile)
    c4 = vST + 4 * tile + 1; c1 = vST + 4 * tile + 2
    g = [A0 + (p >> 2) * 8 + (p & 3) for p in range(8)]
    u = [x + 4 for x in g]
    o = vOUT + 4 * (tile & 1)
    st = []
    for p in range(8):
        t = vTMP + p
        st.append([mk("v_mul_f32 v%d, v%d, v%d" % (g[p], g[p], c1)), mk("v_exp_f32 v%d, v%d" % (t, g[p])),
                   mk("v_mul_f32 v%d, v%d, v%d" % (u[p], g[p], u[p])), mk("v_fma_f32 v%d, v%d, v%d, v%d" % (t, t, c4, c4)),
                   mk("v_rcp_f32 v%d, v%d" % (t, t)), mk("v_mul_f32 v%d, v%d, v%d" % (u[p], u[p], t))])
    R = []; pend = []
    for step in range(18):
        for k in (5, 4, 3, 2, 1, 0):
            p = step - 2 * k
            if 0 <= p < 8:
                R.append(st[p][k])
                for q in pend: R.append(mk("v_cvt_pk_bf16_f32 v%d, v%d, v%d" % (o + (q >> 1), u[q - 1], u[q])))
                pend = [p] if (k == 5 and p & 1) else []
    for q in pend: R.append(mk("v_cvt_pk_bf16_f32 v%d, v%d, v%d" % (o + (q >> 1), u[q - 1], u[q])))
    R.append(mk("s_add_u32 s%d, s%d, %d" % (sT3, sHa, tile * 112 * 1024)))
    if not opts.get("x_nohst"): R.append(mk("buffer_store_dwordx4 %s, v%d, %s, s%d offen%s" % (vr(o), vL16, S4(sWS), sT3, "" if opts.get("x_hplain") else " sc1"), vm="hst%d" % tile))
    return R

def common_setup(p, opts):
    p("v_and_b32 v1, 63, v0\nv_lshrrev_b32 v2, 6, v0\nv_lshlrev_b32 v%d, 4, v1\nv_readfirstlane_b32 s%d, v2" % (vL16, sWave))
    p("v_lshrrev_b32 v2, 3, v1\nv_and_b32 v3, 7, v1\nv_lshrrev_b32 v9, 4, v1\nv_mov_b32 v%d, 0" % (vNon + 2))

def phase2_setup(p, opts):
    q, n, a, b, c, d = 40, 41, 42, 43, 44, 45
    p("s_and_b32 s3, s2, 7\ns_lshr_b32 s4, s2, 3\ns_lshl_b32 s3, s3, 2\ns_and_b32 s5, s4, 3\ns_add_u32 s%d, s3, s5\ns_lshr_b32 s%d, s4, 2" % (sTB2, sDB))
    if opts.get("dbx", 3): p("s_xor_b32 s%d, s%d, %d" % (sDB, sDB, opts.get("dbx", 3)))
    p("v_lshrrev_b32 v%d, 4, v1\nv_and_b32 v%d, 15, v1" % (q, n))
    p("v_lshrrev_b32 v%d, 3, v1\nv_and_b32 v%d, 7, v1\nv_and_b32 v%d, 1, v%d\nv_lshlrev_b32 v%d, 2, v%d\nv_xor_b32 v%d, v%d, v%d" % (a, b, c, q, c, c, c, c, b))
    p("s_lshl_b32 s7, s%d, 7\ns_mul_i32 s5, s%d, %d\ns_add_u32 s7, s7, s5" % (sDB, sWave, 448 * 1024))
    p("v_lshlrev_b32 v%d, 4, v%d\nv_lshl_add_u32 v%d, v%d, 10, v%d\nv_add_u32 v%d, s7, v%d" % (c, c, c, a, c, uWD, c))
    for j in range(1, 4): p("v_add_u32 v%d, %d, v%d" % (uWD + j, 7168 * j, uWD))
    p("s_lshr_b32 s5, s%d, 2\ns_lshl_b32 s5, s5, 4\ns_and_b32 s6, s%d, 3\ns_lshl_b32 s6, s6, 1\ns_add_u32 s6, s5, s6" % (sTB2, sTB2))
    p("s_mul_i32 s5, s6, 57344\ns_mul_i32 s7, s%d, 28672\ns_add_u32 s5, s5, s7\nv_add_u32 v%d, s5, v%d\nv_add_u32 v%d, %d, v%d" % (sWave, uH, vL16, uH + 1, 8 * 57344, uH))
    p("s_lshl_b32 s5, s6, 4\ns_lshl_b32 s7, s%d, 3\ns_add_u32 s5, s5, s7\nv_lshrrev_b32 v%d, 5, v1\nv_and_b32 v%d, 3, v1\nv_lshl_add_u32 v%d, v%d, 2, v%d\nv_add_u32 v%d, s5, v%d" % (sWave, c, d, c, c, d, c, c))
    p("v_bfe_u32 v%d, v1, 2, 3\nv_lshlrev_b32 v%d, 4, v%d\nv_lshl_add_u32 v%d, v%d, 10, v%d\ns_lshl_b32 s7, s%d, 7\nv_add_u32 v%d, s7, v%d" % (d, d, d, d, c, d, sDB, uX, d))
    p("v_lshlrev_b32 v%d, 3, v%d\nv_add_u32 v%d, %d, v%d" % (c, c, uSto, WS_ST, c))
    p("v_bfe_u32 v%d, v1, 2, 2\nv_lshrrev_b32 v%d, 5, v1\nv_lshl_add_u32 v%d, v%d, 3, v%d\nv_lshlrev_b32 v%d, 7, v%d\nv_lshrrev_b32 v%d, 1, v%d\nv_lshl_add_u32 v%d, v%d, 6, v%d" % (a, b, b, b, a, b, b, a, a, b, a, b))
    p("v_and_b32 v%d, 1, v%d\nv_lshl_add_u32 v%d, v%d, 5, v%d\nv_and_b32 v%d, 3, v1\nv_lshl_add_u32 v%d, v%d, 3, v%d\nv_add_u32 v%d, s%d, v%d\nv_xor_b32 v%d, 64, v%d" % (a, q, b, a, b, a, b, a, b, uTR, sWdL, b, uTR + 1, uTR))
    p("v_add_u32 v%d, 1, v%d\nv_and_b32 v%d, 1, v%d\nv_sub_u32 v%d, v%d, v%d\nv_lshl_add_u32 v%d, v%d, 3, v%d\nv_lshlrev_b32 v%d, 1, v%d" % (a, n, b, a, a, a, b, a, q, a, a, a))
    p("v_mul_u32_u24 v%d, 4160, v%d\ns_lshl_b32 s7, s%d, 8\ns_add_u32 s7, s7, s%d\nv_add3_u32 v%d, v%d, v%d, s7" % (b, b, sHalf, sCV, uCA, a, b))
    p("v_lshlrev_b32 v%d, 5, v%d\nv_lshlrev_b32 v%d, 4, v%d\nv_sub_u32 v%d, v%d, v%d\ns_add_u32 s7, s7, %d\nv_add_u32 v%d, s7, v%d" % (a, n, b, q, a, b, a, XR_OFF + 480, uCB, a))
    p("v_and_b32 v%d, 1, v%d\nv_mul_u32_u24 v%d, 4160, v%d\nv_lshl_add_u32 v%d, v%d, 1, v%d\nv_add_u32 v%d, s%d, v%d" % (a, q, a, a, a, n, a, uHeadA, sCV, a))
    p("v_mov_b32 v46, 0\nv_mov_b32 v47, 0\nv_lshlrev_b32 v%d, 3, v1\ns_add_u32 s7, s%d, %d\nv_add_u32 v%d, s7, v%d" % (a, sCV, XR_OFF + 4096, a, a))
    p("ds_write_b64 v%d, v[46:47]" % a)
    p("v_and_b32 v%d, 2, v%d\nv_lshlrev_b32 v%d, 3, v%d\nv_and_b32 v%d, 1, v%d\nv_lshl_add_u32 v%d, v%d, 5, v%d\nv_bfe_u32 v%d, v%d, 1, 2\nv_lshl_add_u32 v%d, v%d, 7, v%d\nv_lshrrev_b32 v%d, 3, v%d\nv_lshl_add_u32 v%d, v%d, 6, v%d\nv_and_b32 v%d, 1, v%d\nv_lshl_add_u32 v%d, v%d, 9, v%d" % (a, q, a, a, b, n, a, b, a, b, n, a, b, a, b, n, a, b, a, b, q, uYst, b, a))
    p("s_lshl_b32 s7, s%d, 11\ns_add_u32 s7, s7, s%d\ns_add_u32 s%d, s7, %d" % (sHalf, sCh4k, sYoff, WS_YT))
    p("s_lshl_b32 s7, s2, 13\ns_lshl_b32 s3, s%d, 10\ns_add_u32 s7, s7, s3\ns_add_u32 s%d, s7, %d" % (sWave, sXRso, WS_XR))
    p("s_lshl_b32 s7, s2, 7\ns_add_u32 s%d, s7, %d" % (sFlY, WS_FY))
    p("v_and_b32 v%d, 7, v1\nv_lshlrev_b32 v%d, 7, v%d" % (a, a, a))
    p("s_lshl_b32 s7, s%d, 12\ns_lshl_b32 s3, s%d, 10\ns_add_u32 s7, s7, s3\ns_add_u32 s7, s7, %d\nv_add_u32 v%d, s7, v%d" % (sDB, sWave, WS_FY, uFY, a))
    p("v_min_u32 v%d, 6, v1\nv_lshlrev_b32 v%d, 7, v%d" % (a, a, a))
    p("s_lshr_b32 s7, s%d, 2\ns_lshl_b32 s7, s7, 5\ns_mul_i32 s3, s%d, 7\ns_add_u32 s7, s7, s3\ns_lshl_b32 s7, s7, 7\ns_add_u32 s7, s7, %d\nv_add_u32 v%d, s7, v%d" % (sTB2, sWave, WS_FH, uFH, a))
    p("v_and_b32 v%d, 7, v1\nv_lshlrev_b32 v%d, 10, v%d\ns_lshr_b32 s7, s2, 5\ns_lshl_b32 s7, s7, 7\ns_and_b32 s3, s2, 24\ns_add_u32 s7, s7, s3" % (a, a, a))
    p("s_lshl_b32 s3, s%d, 13\ns_sub_u32 s7, s7, s3\ns_add_u32 s7, s7, %d\nv_sub_u32 v%d, s7, v%d" % (sWave, WS_FK + 31 * 1024, uFK, a))
    p("v_cmp_ne_u32 vcc, 0, v1\nv_mov_b32 v%d, 0x80000000\nv_mov_b32 v%d, 0\nv_cndmask_b32 v%d, v%d, v%d, vcc" % (a, b, vFl, b, a))

def hk_srds(p):
    p("s_add_u32 s%d, s60, s%d\ns_addc_u32 s%d, s61, 0\ns_and_b32 s%d, s%d, 0xffff\ns_sub_u32 s%d, 0x200000, s%d\ns_mov_b32 s%d, 0x20000" % (sHk, sCh4k, sHk + 1, sHk + 1, sHk + 1, sHk + 2, sCh4k, sHk + 3))
    srd(p, sDp, kD, 1024)
def ids2(p):
    p("s_lshr_b32 s3, s%d, 1\ns_lshl_b32 s4, s2, 1\ns_add_u32 s4, s4, s3\ns_mul_i32 s%d, s3, %d\ns_add_u32 s%d, s%d, %d" % (sWave, sCV, CH_STRIDE, sCV, sCV, CONV))
    p("s_and_b32 s%d, s%d, 1\ns_lshl_b32 s%d, s4, 12\ns_lshl_b32 s%d, s4, 1\ns_lshl_b32 s%d, s%d, 12" % (sHalf, sWave, sCh4k, sDoff, sWdL, sWave))
    p("v_bfe_u32 v40, v1, 4, 1\nv_and_b32 v41, 15, v1\nv_add_u32 v42, v40, v41\nv_add_u32 v42, -16, v42\nv_lshlrev_b32 v%d, 1, v42" % uHead)
RHO = [2, 4, 1]
def phase2_srds():
    L = []
    for d, lo, size in ((sWd, kWD, 1792 * 1024), (sOut, kOUT, 2048 * 1024)):
        L += ml("s_mov_b32 s%d, s%d\ns_and_b32 s%d, s%d, 0xffff\ns_mov_b32 s%d, 0x%x\ns_mov_b32 s%d, 0x20000" % (d, lo, d + 1, lo + 1, d + 2, size, d + 3))
    L += ml("s_mul_i32 s3, s%d, %d\ns_and_b32 s7, s%d, 3\ns_mul_i32 s7, s7, %d\ns_add_u32 s3, s3, s7\ns_lshr_b32 s7, s%d, 2\ns_mul_i32 s7, s7, %d\ns_add_u32 s3, s3, s7" % (sDB, RHO[0], sTB2, RHO[1], sTB2, RHO[2]))
    L += ml("s_mul_i32 s7, s3, 4682\ns_lshr_b32 s7, s7, 16\ns_mul_i32 s7, s7, 14\ns_sub_u32 s3, s3, s7\ns_lshl_b32 s3, s3, 15")
    for s in range(14):
        L += ml("s_mov_b32 s%d, s3" % (sTabW + s))
        if s < 13: L += ml("s_add_u32 s3, s3, 0x8000") + [bundle("s_cmp_eq_u32 s3, 0x70000\ns_cselect_b32 s3, 0, s3")]
    return L

class Filler:
    def __init__(self, space=2):
        self.vq = []; self.xq = []; self.last = -9; self.space = space
    def v(self, at, L): self.vq += [(at, x) for x in L]
    def x(self, at, L): self.xq += [(at, y) for y in L]
    def fill(self, gi, gap, budget, xbudget=None, novm=False):
        used = lambda: sum(y.cost for y in gap)
        nv = 0
        for q in (self.vq, self.xq):
            if q and q[0][1].kind == "delay" and q[0][0] <= gi:
                n = q.pop(0)[1].vm
                if q: q[0] = (max(q[0][0], gi + n), q[0][1])
        while not novm and self.vq and self.vq[0][0] <= gi and used() + self.vq[0][1].cost <= budget:
            at, y = self.vq[0]
            if y.kind == "delay": break
            if is_vm(y) and y.t.endswith(" lds"):
                lag = gi - at
                if nv >= 1 or (gi - self.last < self.space and lag < 14): break
                nv += 1; self.last = gi
            gap.append(y); self.vq.pop(0)
            if is_m0(y): break
        while self.xq and self.xq[0][0] <= gi and used() + self.xq[0][1].cost <= (xbudget or budget):
            if self.xq[0][1].kind == "delay": break
            gap.append(self.xq.pop(0)[1])

def gemm1(p, opts):
    p("s_sub_u32 s3, s2, 32\ns_and_b32 s4, s3, 7\ns_lshr_b32 s5, s3, 3")
    p("s_and_b32 s6, s4, 1\ns_and_b32 s7, s5, 3\ns_lshl_b32 s34, s7, 1\ns_add_u32 s34, s34, s6\ns_lshl_b32 s6, s6, 2\ns_add_u32 s%d, s6, s7" % sTB)
    p("s_lshr_b32 s6, s4, 1\ns_mul_i32 s6, s6, 7\ns_lshr_b32 s7, s5, 2\ns_add_u32 s7, s7, %d\ns_cmp_ge_u32 s7, 7\ns_cselect_b32 s5, 7, 0\ns_sub_u32 s7, s7, s5\ns_add_u32 s%d, s6, s7" % (opts.get("cbr", 0), sCB)) if opts.get("cbr") else p("s_lshr_b32 s6, s4, 1\ns_mul_i32 s6, s6, 7\ns_lshr_b32 s7, s5, 2\ns_add_u32 s%d, s6, s7" % sCB)
    SG = opts.get("sig", 1)
    if SG == 0: p("s_mov_b32 s34, 0")
    elif SG == 1: p("s_and_b32 s34, s4, 1\ns_lshl_b32 s34, s34, 2\ns_and_b32 s6, s4, 6\ns_add_u32 s34, s34, s6\ns_and_b32 s34, s34, 7")
    elif SG == 2: p("s_add_u32 s34, s34, s%d\ns_and_b32 s34, s34, 7" % sCB)
    elif SG == 3: p("s_and_b32 s34, s4, 1\ns_lshl_b32 s34, s34, 2\ns_and_b32 s6, s4, 6\ns_add_u32 s34, s34, s6\ns_and_b32 s6, s%d, 1\ns_add_u32 s34, s34, s6\ns_and_b32 s34, s34, 7" % sTB)
    elif SG == 4: p("s_and_b32 s34, s4, 1\ns_lshl_b32 s34, s34, 2\ns_and_b32 s6, s4, 6\ns_add_u32 s34, s34, s6\ns_and_b32 s6, s%d, 1\ns_lshl_b32 s6, s6, 2\ns_add_u32 s34, s34, s6\ns_and_b32 s34, s34, 7" % sCB)
    p("v_xor_b32 v5, v9, v3\nv_lshlrev_b32 v5, 4, v5\nv_lshl_add_u32 v%d, v2, 10, v5\nv_xor_b32 v5, 64, v%d" % (vXD, vXD))
    p("v_add_u32 v%d, 7168, v5\nv_add_u32 v%d, 14336, v%d\nv_add_u32 v%d, 21504, v5" % (vXD + 1, vXD + 2, vXD, vXD + 3))
    p("s_lshr_b32 s3, s%d, 1\ns_lshl_b32 s3, s3, 2" % sWave)
    p("v_and_b32 v5, 1, v9\nv_lshlrev_b32 v5, 1, v5\nv_xor_b32 v5, s3, v5\nv_xor_b32 v5, v5, v3\nv_lshlrev_b32 v5, 4, v5")
    p("s_and_b32 s4, s%d, 1\ns_mul_i32 s4, s4, %d\ns_lshl_b32 s5, s%d, 7\ns_add_u32 s4, s4, s5" % (sWave, 32 * 3584, sCB))
    p("v_mul_u32_u24 v6, 3584, v2\nv_add3_u32 v%d, v5, v6, s4" % vWD)
    for j in range(1, 4): p("v_add_u32 v%d, %d, v%d" % (vWD + j, j * (8 * 3584 - 1024), vWD))
    p("s_lshl_b32 s35, s%d, 18\ns_lshl_b32 s4, s%d, 15\ns_add_u32 s7, s35, s4" % (sTB, sWave))
    p("s_lshl_b32 s%d, s%d, 12\ns_add_u32 s%d, s%d, 16384" % (sLdsW, sWave, sLdsX, sLdsW))
    p("s_mul_i32 s%d, s34, %d\ns_lshl_b32 s3, s34, 7\ns_add_u32 s%d, s3, s7" % (sTab + 4, 64 * 3584, sTab + 8))
    p("s_waitcnt lgkmcnt(0)")
    srd(p, sQ, kQ, 2048 * 1024)
    p("s_cmp_ge_u32 s%d, 2\ns_cselect_b32 s66, s68, s66\ns_cselect_b32 s67, s69, s67" % sWave)
    srd(p, sW, kWG, 512 * 3584)
    stamp(p, "g.karg", opts, 2)
    st0 = g1_stage(0, opts)
    for x in st0: x.t = x.t.replace("s%d offen" % sTab, "s%d offen" % (sTab + 4))
    seq(p, st0)
    stamp(p, "g.st0", opts, 2)
    p("s_mov_b32 s27, s7")
    srd(p, sWS, kWS, WS_SZ)
    p("s_mov_b32 s%d, s74\ns_mov_b32 s%d, s75" % (sDbg, sDbg + 1))
    kv_setup(p)
    ids2(p); hk_srds(p)
    for s in range(1, 8):
        p("s_add_u32 s3, s34, %d\ns_and_b32 s3, s3, 7\ns_mul_i32 s%d, s3, %d\ns_lshl_b32 s3, s3, 7\ns_add_u32 s%d, s3, s27" % (s, sTab + s, 64 * 3584, sTab + 8 + s))
    p("s_lshl_b32 s%d, s%d, 13\ns_add_u32 s6, s35, %d" % (sLdsXB, sWave, 0 if opts.get("x_xsame") else 0x20000))
    for h in range(2):
        p("s_lshl_b32 s3, s%d, 1\ns_add_u32 s3, s3, s34\ns_add_u32 s3, s3, %d\ns_and_b32 s3, s3, 7\ns_lshl_b32 s3, s3, 7\ns_add_u32 s%d, s3, s6" % (sWave, h, sXB + h))
    p("s_lshl_b32 s3, s%d, 2\ns_add_u32 s3, s3, s%d\ns_lshl_b32 s3, s3, 10\ns_mul_i32 s4, s%d, %d\ns_add_u32 s%d, s3, s4" % (sCB, sWave, sTB, 16 * 57344, sHa))
    p("s_lshl_b32 s4, s%d, 11\ns_add_u32 s%d, s4, %d" % (sTB, sST, WS_ST))
    a, b, c, d, e, f = 40, 41, 42, 43, 44, 45
    p("v_and_b32 v%d, 31, v1\nv_lshrrev_b32 v%d, 5, v1\nv_lshlrev_b32 v%d, 3, v1" % (a, b, vSToff))
    p("s_lshl_b32 s3, s%d, 5\ns_add_u32 s3, s3, s%d\ns_lshl_b32 s3, s3, 7\ns_add_u32 s%d, s3, %d" % (sTB, sCB, sFlH, WS_FH))
    p("v_bfe_u32 v%d, v1, 1, 3\nv_xor_b32 v%d, v%d, v%d\nv_lshlrev_b32 v%d, 4, v%d\nv_lshl_add_u32 v%d, v%d, 7, v%d" % (c, c, c, b, c, c, vXA, a, c))
    for ks in range(1, 4): p("v_xor_b32 v%d, %d, v%d" % (vXA + ks, 32 * ks, vXA))
    for ks in range(4): p("v_add_u32 v%d, 0x10000, v%d" % (vXA + 4 + ks, vXA + ks))
    p("v_bfe_u32 v%d, v1, 2, 2\nv_bfe_u32 v%d, v1, 1, 1\nv_and_b32 v%d, 1, v1\nv_bfe_u32 v%d, v1, 4, 1" % (a, c, d, e))
    p("v_lshrrev_b32 v%d, 1, v%d\nv_lshl_add_u32 v%d, v%d, 1, v%d\nv_xor_b32 v%d, s%d, v%d\nv_lshlrev_b32 v%d, 5, v%d" % (f, a, f, c, f, f, sWave, f, f, f))
    p("v_lshl_add_u32 v%d, v%d, 4, v%d\nv_lshl_add_u32 v%d, v%d, 3, v%d\nv_lshl_add_u32 v%d, v%d, 13, v%d" % (f, d, f, f, e, f, f, c, f))
    p("v_lshl_add_u32 v%d, v%d, 3, v%d\nv_lshl_add_u32 v%d, v%d, 7, v%d\nv_add_u32 v%d, 0x10000, v%d" % (a, b, a, vWA, a, f, vWA + 1, vWA))
    stamp(p, "g.set1", opts, 2)
    if not opts.get("p2in", 1): phase2_setup(p, opts)
    for r in range(2 if opts.get("cs4", 1) else 4): p("v_mov_b32 v%d, 0x3f803f80" % (vOnes + r))
    stamp(p, "g.set2", opts, 2)
    KVP = opts.get("kvp", 2)
    nld, nchk = nonce_get("ng")
    HKP = opts.get("hkp", 9)
    hkl = hk_loads(opts) if HKP == 0 else []
    if KVP == 0: seq(p, kv_loads(opts) + hkl)
    stamp(p, "g.kvis", opts, 2)
    S1IN = opts.get("s1in", 0)
    NL = opts.get("nlate", 1)
    if not S1IN:
        seq(p, g1_stage(1, opts))
        if not NL: p.add(nld)
    if KVP == 1: seq(p, kv_loads(opts) + hkl)
    if opts.get("tlb"):
        sh = opts["tlb"]
        p("v_lshlrev_b32 v52, %d, v1\nbuffer_load_dword v53, v52, %s, 0 offen" % (sh, S4(sWS)), vm="tlb")
        p("v_min_u32 v52, 0x1bff00, v52\nglobal_load_dword v54, v52, s[70:71]\nglobal_load_dword v55, v52, s[72:73]\nglobal_load_dword v56, v52, s[60:61]", vm="tlb")
    stamp(p, "g.st1", opts)

    def rdW(n):
        s, ks = n >> 2, n & 3
        w, off = win((s % 3) * SLOT + ks * 2048)
        return [mk("ds_read_b64_tr_b16 a[%d:%d], v%d offset:%d" % (4 * n, 4 * n + 1, vWA + w, off), lg="W%d" % n),
                mk("ds_read_b64_tr_b16 a[%d:%d], v%d offset:%d" % (4 * n + 2, 4 * n + 3, vWA + w, off + 512), lg="W%d" % n)]
    def rdXA(n, i):
        s, ks = n >> 2, n & 3
        w, off = win((s % 3) * SLOT + 16384 + i * 4096)
        return mk("ds_read_b128 %s, v%d offset:%d" % (vr(vXF + 16 * (n & 1) + 4 * i), vXA + 4 * w + ks, off), lg="X%d_%d" % (n, i))
    def rdXB(bb, n):
        w, off = win(((8 + bb) % 3) * SLOT + (n >> 2) * 4096)
        return mk("ds_read_b128 %s, v%d offset:%d" % (vr(vXF + 4 * (n & 7)), vXA + 4 * w + (n & 3), off), lg="B%d_%d" % (bb, n))

    fr = opts.get("fr", " sc1")
    st_loads = [mk("buffer_load_dwordx2 %s, v%d, %s, s%d offen offset:%d%s" % (vr(vCSR + 8 + 2 * t, 2), vSToff, S4(sWS), sST, t * 512, fr), vm="rec") for t in range(4)]
    post = poll_check("rec", [vCSR + 8 + 2 * t + 1 for t in range(4)], [mk(y.t.replace(fr, " sc1") if fr else y.t + " sc1") for y in st_loads], 32)
    for t in range(4): post += ml("v_mov_b32 v%d, v%d\nv_mov_b32 v%d, v%d" % (vST + 8 * t + 1, vCSR + 8 + 2 * t, vST + 8 * t + 5, vCSR + 8 + 2 * t))
    post += ml("s_mov_b32 s%d, 0x01000100" % sT2)
    for t in range(4): post += ml("v_permlane32_swap_b32 v%d, v%d" % (vST + 8 * t + 1, vST + 8 * t + 5))
    for t in range(8): post += ml("v_perm_b32 v%d, v%d, v%d, s%d" % (vST + 4 * t, vST + 4 * t + 1, vST + 4 * t + 1, sT2))
    for t in range(8): post += ml("v_and_b32 v%d, 0xffff0000, v%d" % (vST + 4 * t + 1, vST + 4 * t + 1))
    for t in range(8): post += ml("v_mul_f32 v%d, %s, v%d" % (vST + 4 * t + 1, hex(f2u(-LOG2E)), vST + 4 * t + 1))
    post += ml("v_mov_b32 v%d, v%d\nv_mov_b32 v%d, v%d" % (vR1B, vST, vR1B + 4, vST + 4))
    csfin = ml("v_cvt_pk_bf16_f32 v%d, v%d, v%d\nv_and_b32 v%d, 0xffff0000, v%d\nv_sub_f32 v%d, v%d, v%d\nv_cvt_pk_bf16_f32 v%d, v%d, v%d\nv_and_b32 v%d, v186, v%d"
               % (184, vCSA, vCSA, 184, 184, 185, vCSA, 184, 184, 184, 185, vR1A, 184))
    if opts.get("cs4", 1):
        csfin = ml("v_add_f32 v%d, v%d, v%d\nv_mov_b32 v%d, v%d\ns_nop 1\nv_permlane32_swap_b32 v%d, v%d\nv_add_f32 v%d, v%d, v%d" % (vCSA, vCSA, vCSA + 4, vCSA + 1, vCSA, vCSA, vCSA + 1, vCSA, vCSA, vCSA + 1)) + csfin
    cst = lambda t: ml("v_rcp_f32 v%d, v%d" % (vST + 4 * t + 2, vST + 4 * t + 1))
    cmu = lambda t: ml("v_mul_f32 v%d, %s, v%d" % (vST + 4 * t + 2, hex(f2u(LOG2E * LOG2E)), vST + 4 * t + 2))
    for t in range(4): post += cst(t)
    for t in range(4): post += cmu(t)

    if opts.get("x_norec"):
        st_loads = []; post = [y for y in post if "cbranch" not in y.t]
    F = Filler(opts.get("aspace", 2))
    RL = opts.get("recst", 5)
    if S1IN: F.v(-20, g1_stage(1, opts) + [nld])
    for s in range(8):
        F.v(max(0, 16 * s - 3) if not (S1IN and s == 0) else -20, g1_stage(s + 2, opts))
        if NL and s == 0 and not S1IN: F.v(0, [nld])
        if KVP >= 2 and s + 2 == KVP: F.v(0, kv_loads(opts) + hkl)
        if HKP and HKP < 10 and s + 2 == HKP: F.v(0, hk_loads(opts))
        if s == opts.get("kvst", 8) and not opts.get("x_nokvs"): F.v(0, kv_stores())
        if s == RL - 1: F.v(16 * RL - 4, st_loads)
        if s == 7 and opts.get("kvst", 8) < 8: F.v(16 * 7 + 8, [W(vm="kvst"), flag_store(sFlK)])
    if opts.get("p2in", 1):
        q_ = Prog(); phase2_setup(q_, opts)
        L_ = q_.ins; F.x(0, L_[:-4] + [bundle("\n".join(y.t for y in L_[-4:]))])
    F.x(0, ml("v_lshrrev_b32 v186, 5, v1\nv_add_u32 v186, -1, v186"))
    F.x(0, [mk("v_mov_b32 v%d, 0" % r) for r in (vR1A + 1, vR1A + 2, vR1A + 3)])
    F.x(0, [mk("v_mov_b32 v%d, 0" % r) for r in (vR1B + 1, vR1B + 2, vR1B + 3, vR1B + 5, vR1B + 6, vR1B + 7)])
    F.x(29 if NL else 13, [W(vm="non")] + nchk)
    kc = kv_compute()
    if opts.get("x_nokvr"): kc = [y for y in kc if not y.t.startswith("ds_")]
    if opts.get("x_nokvv"): kc = [y for y in kc if not y.t.startswith("v_")]
    F.x(13 if KVP == 0 else 16 * (KVP + 1) - 3, kc)
    KVS = I("; kv done", cost=0); KVS.kind = "label"
    sr = phase2_srds()
    F.x(0, [KVS] + (hk_build() if HKP == 0 else []) + sr[:8])
    F.x(0, sr[8:])
    F.x(16 * (RL + 2) - 3 + opts.get("postat", 0), [W(vm="rec")] + post)
    p.wait(vm="st0")
    p("s_barrier")
    stamp(p, "g.st0in", opts)
    for x in rdW(0): p.add(x)
    for i in range(4): p.add(rdXA(0, i))
    PD = opts.get("pd", 7); WE = opts.get("we", 4)
    BA = opts.get("buda", 32)
    for n in range(32):
        s, ks = n >> 2, n & 3
        gaps = [[], [], [], []]
        if ks == 3: gaps[0] += [W(vm="st%d" % (s + 1), lg="*"), mk("s_barrier")]
        if n < 31:
            gaps[0] += rdW(n + 1); gaps[1] += [rdXA(n + 1, 0), rdXA(n + 1, 1)]; gaps[2] += [rdXA(n + 1, 2), rdXA(n + 1, 3)]
        else:
            gaps[0] += [rdXB(0, 0), rdXB(0, 1)]; gaps[1] += [rdXB(0, 2), rdXB(0, 3)]
        for i in range(4):
            if i in (0, 2): p.wait(lg=["W%d" % n, "X%d_%d" % (n, i + 1)])
            if opts.get("cs4", 1):
                if i in (0, 1): p("v_mfma_f32_4x4x4_16b_bf16 %s, %s, a[%d:%d], %s" % (vr(vCSA + 4 * i), vr(vOnes, 2), 4 * n + 2 * i, 4 * n + 2 * i + 1, vr(vCSA + 4 * i) if n else "0"))
            elif i == 0:
                p("v_mfma_f32_32x32x16_bf16 %s, %s, a[%d:%d], %s" % (vr(vCSA, 16), vr(vOnes), 4 * n, 4 * n + 3, vr(vCSA, 16) if n else "0"))
                g5 = []; F.fill(4 * n, g5, BA, novm=True)
                for x in g5: p.add(x)
            if n == 31 and i == 2 and opts.get("cs4", 1): gaps[i] += csfin[:5]; csfin = csfin[5:]
            if n == 31 and i == 3: gaps[i] += csfin
            a = acc_of(i)
            p("v_mfma_f32_32x32x16_bf16 %s, a[%d:%d], %s, %s" % (vr(a, 16), 4 * n, 4 * n + 3, vr(vXF + 16 * (n & 1) + 4 * i), vr(a, 16) if n else "0"))
            if ks == 3 and i == 0 and any(y.vm == "st%d" % (s + 1) for _, y in F.vq): raise SystemExit("stage %d not issued" % (s + 1))
            F.fill(4 * n + i, gaps[i], BA - (4 if i in (1, 3) else 0))
            if any(y.vm == "kvst" for y in gaps[i]): assert KVS not in gaps[i] + [z for _, z in F.xq], "kv store too early"
            for x in gaps[i]: p.add(x)
        if ks == 3 and s < 7: stamp(p, "g.s%d" % s, opts, 2)
    left = len(F.xq)
    stamp(p, "g.A31", opts, 2)
    for _, x in F.xq: p.add(x)
    F.xq = []
    print("phase A: left-over x items %d, v items %d" % (left, len(F.vq)), file=sys.stderr)
    stamp(p, "g.Aend", opts)
    for m_ in range(4, PD): p.add(rdXB(0, m_))
    p("s_nop 0")
    late = [cst(4) + cst(5), cst(6) + cst(7), cmu(4) + cmu(5), cmu(6) + cmu(7)]
    for t in range(4):
        a = acc_of(t)
        p("v_mfma_f32_32x32x16_bf16 %s, %s, %s, %s" % (vr(a, 16), vr(vR1A), vr(vR1B + 4 * (t & 1)), vr(a, 16)))
        p("v_mov_b32 v%d, v%d" % (vR1B + 4 * (t & 1), vST + 4 * (t + 2)))
        for x in late[t]: p.add(x)
    ep = [g1_epilogue(t, opts) for t in range(7)]
    total = sum(x.cost for e in ep for x in e)
    kvpoll = [mk("buffer_load_dwordx2 v[%d:%d], v%d, %s, 0 offen sc1" % (uPoll, uPoll + 1, uFK, S4(sWS)), vm="kvp")]
    F.vq = [(0, y) for _, y in F.vq]; F.last = -9; F.space = opts.get("bspace", 2)
    X = lambda k, L: [] if opts.get(k) else L
    XB = opts.get("xb", 1)
    ORD = [0, 1, 2, 3, 4] + ([5] if opts.get("w5", 1) else []) + [7, 8, 9][:XB]
    EB = opts.get("ebar", 1)
    ORD += [6, 12][:EB * opts.get("en", 2)]
    INB_READ = [0, 1, 2][:XB]
    chain = lambda t: ([W(vm="w%d" % t)] + wd_reads(t, True) + [delay(4), W(lg="t%d" % t)] + wd_loads(t + 7, opts)) if t in INB_READ else []
    F.x(0, [mk("v_add_u32 v%d, 0x20000, v%d" % (uTR2 + mt, uTR + mt)) for mt in range(2)])
    F.x(0, [bundle("\n".join(y.t for y in fl0_setup()[:3]))] + fl0_setup()[3:])
    F.v(0, kv_stores())
    F.v(opts.get("st10", 6), g1_stage(10, opts))
    W0 = opts.get("w0at", 22)
    if W0 < 27: F.v(W0, wd_loads(0, opts))
    B1 = 34 - PD
    F.v(B1, g1_stage(11, opts)[:6] + [W(vm="kvst"), flag_store(sFlK)] + g1_stage(11, opts)[6:])
    if W0 >= 27: F.v(W0, wd_loads(0, opts))
    if 5 in ORD: F.v(opts.get("w5at", 46), wd_loads(5, opts))
    if HKP == 10: F.v(opts.get("hkat", 46), hk_loads(opts))
    F.v(33 + B1, wd_loads(1, opts) + wd_loads(2, opts))
    F.v(opts.get("c0", 80), chain(0))
    F.v(opts.get("kvpoll", 88), kvpoll)
    F.v(66 + B1, wd_loads(3, opts) + wd_loads(4, opts))
    F.v(opts.get("kvchk", 114), [W(vm="kvp")] + poll_check("kv", [uPoll], kvpoll) + conv_xr())
    F.v(0, chain(1) + chain(2))
    opts["_ord"] = ORD; opts["_rd"] = INB_READ
    if HKP: F.x(opts.get("hkb", 62 if HKP < 10 else 95), hk_build(1))
    EF = opts.get("eflag", 99 + 16)
    ngaps = 4 * 33; done = 0; cur = 0; gi = 0
    BUD = opts.get("bud", 24)
    for bb in range(4):
        tile = 4 + bb; a = acc_of(tile)
        for n in range(-1, 32):
            gap = []
            if n == -1:
                p("v_mfma_f32_32x32x16_bf16 %s, %s, %s, 0" % (vr(a, 16), vr(vR1A), vr(vR1B + 4 * (bb & 1))))
                if bb < 2: gap.append(mk("v_mov_b32 v%d, v%d" % (vR1B + 4 * (bb & 1), vST + 4 * (tile + 2))))
            else:
                if n % WE == 0: p.wait(lg="B%d_%d" % (bb, n + WE - 1))
                p("v_mfma_f32_32x32x16_bf16 %s, a[%d:%d], %s, %s" % (vr(a, 16), 4 * n, 4 * n + 3, vr(vXF + 4 * (n & 7)), vr(a, 16)))
                m = n + PD
                if m == 32 and bb < 3:
                    if any(y.vm == "st%d" % (9 + bb) for _, y in F.vq): raise SystemExit("stage not issued before its wait")
                    gap += [W(vm=["st%d" % (9 + bb)] + (["hk"] if bb == 2 else []), lg="*"), mk("s_barrier")]
                if m < 32: gap.append(rdXB(bb, m))
                elif bb < 3: gap.append(rdXB(bb + 1, m - 32))
            budget = BUD - (4 if (n % WE == WE - 1) else 0)
            if EB and bb == 3 and n == 33 - PD + 1:
                gap += [W(lg="*"), mk("s_barrier")]
                F.v(gi, [x for t in ORD if t in (6, 12) for x in wd_loads(t, opts)])
            if gi == EF:
                assert cur >= 4
                gap += [W(vm="hst3"), mk("s_barrier"), flag_store(sFlH, True), mk("s_add_u32 s%d, s%d, %d" % (sFlH, sFlH, WS_FL))]
            F.fill(gi, gap, min(budget, sum(y.cost for y in gap) + 8), min(budget, sum(y.cost for y in gap) + 12 if F.xq and F.xq[0][1].cost > 4 else sum(y.cost for y in gap) + 8))
            gi += 1
            target = total * gi / float(ngaps - opts.get("eplead", 4))
            while cur < 7 and done < target:
                if cur >= 4 and (cur - 4 >= bb or (cur - 4 == bb - 1 and n < 4)): break
                if cur < 4 and bb == 0 and n < 2: break
                x = ep[cur][0]
                if sum(y.cost for y in gap) + x.cost > budget: break
                gap.append(ep[cur].pop(0)); done += x.cost
                if not ep[cur]: cur += 1
            for x in gap: p.add(x)
            if gi % 6 == 0: stamp(p, "B%d" % gi, opts, 5)
            if opts.get("prof") and "ls0" in opts:
                k_, r_ = divmod(gi - opts["ls0"], opts.get("lsd", 4))
                if r_ == 0 and 0 <= k_ < 8: p("s_memtime s[%d:%d]" % (84 + 2 * k_, 85 + 2 * k_))
        if bb < 3: stamp(p, "g.b%d" % bb, opts, 2)
    if opts.get("prof") and "ls0" in opts:
        p("s_waitcnt lgkmcnt(0)")
        for k_ in range(8):
            nm_ = "L%d" % (opts["ls0"] + k_ * opts.get("lsd", 4))
            if opts["ls0"] + k_ * opts.get("lsd", 4) > 132: break
            STAMPS.append(nm_); p("v_writelane_b32 v255, s%d, %d" % (84 + 2 * k_, len(STAMPS) - 1))
    stamp(p, "g.Bend", opts)
    print("phase B: left-over v items %d, epilogue cost left %d" % (len(F.vq), total - done), file=sys.stderr)
    vl = [y for _, y in F.vq if y.kind != "delay"]
    rest_ = [y for _, y in F.xq if y.kind != "delay"] + [x for e_ in ep[cur:] for x in e_]
    rest_ += [mk("s_lshr_b32 s%d, s%d, 4" % (sTab + s, sTabW + s)) for s in range(14)] + g1_epilogue(7, opts)
    k_ = max(2, (len(rest_) - 4) // (len(vl) + 1))
    for i, x in enumerate(rest_):
        if i == len(rest_) - 1: seq(p, vl); vl = []
        p.add(x)
        if vl and i % k_ == k_ - 1: p.add(vl.pop(0))

def out_half(ps, opts, pk):
    eW = 24; eR = 25; eY = 26
    if ps == 0: X = list(range(12, 20)); XN = list(range(32, 40)); YR = 20; Y = [28, 29, 30, 31, 224, 225, 226, 227]
    else: X = list(range(56, 64)); XN = list(range(64, 72)); YR = 80; Y = list(range(72, 80))
    P = [list(range(uAcc + 32 * ps + 8 * w, uAcc + 32 * ps + 8 * w + 8)) for w in range(4)]
    wr = [mk("ds_write_b128 v%d, %s offset:%d" % (eW, vr(uAcc + 32 * ps + 16 * mt + 4 * j), 128 * mt + 32 * j), cost=16) for mt in range(2) for j in range(4)]
    rdy = [mk("ds_read_b64_tr_b16 v[%d:%d], v%d offset:%d" % (YR + 2 * j, YR + 2 * j + 1, eY + ps, j * 512), lg="y%d" % ps) for j in range(2)]
    rd = [mk("ds_read_b128 %s, v%d offset:%d" % (vr(P[w][4 * h]), eR, w * REDW + 16 * h), lg="r%d" % ps) for h in range(2) for w in range(4)]
    xin = uXin + 4 * ps; st = uSt + 2 * ps; F = P[0]
    un = lambda d, s_, hi: ("v_and_b32 v%d, 0xffff0000, v%d" if hi else "v_lshlrev_b32 v%d, 16, v%d") % (d, s_)
    def op2(name, d, a_, b_, c_=None, sel=""):
        R = lambda z, i, n: z if isinstance(z, str) else vr(z[i], n)
        if pk: return [mk("v_pk_%s_f32 %s, %s, %s%s%s" % (name, vr(d[2 * i], 2), R(a_, 2 * i, 2), R(b_, 2 * i, 2), (", " + R(c_, 2 * i, 2)) if c_ else "", sel)) for i in range(4)]
        return [mk("v_%s_f32 v%d, %s, %s%s" % (name, d[i], R(a_, i, 1), R(b_, i, 1), (", " + R(c_, i, 1)) if c_ else "")) for i in range(8)]
    pre = ml(un(st + 1, 40 + 2 * ps, 1) + "\n" + un(st, 40 + 2 * ps, 0) + "\nv_rcp_f32 v%d, v%d" % (st + 1, st + 1))
    pre += [mk(un(X[i], xin + (i >> 1), i & 1)) for i in range(8)]
    if opts.get("x_eps"): pre += ml("v_mul_f32 v%d, %s, v%d" % (st + 1, hex(f2u(1.0 + opts["x_eps"] / 1000.0)), st + 1))
    pre += ml("v_mul_f32 v%d, v%d, v%d" % (st, st, st + 1))
    if pk: pre += op2("fma", XN, X, vr(st, 2), vr(st, 2), " op_sel:[0,1,0] op_sel_hi:[1,1,0]")
    else: pre += op2("fma", XN, X, "v%d" % (st + 1), "v%d" % st)
    m = [W(lg="r%d" % ps)] + op2("add", F, P[0], P[1]) + op2("add", P[2], P[2], P[3]) + op2("add", F, F, P[2])
    m += op2("mul", Y, "s[4:5]" if pk else "s4", F)
    t1 = [mk("v_exp_f32 v%d, v%d" % (Y[i], Y[i])) for i in range(8)]
    t2 = op2("mul", XN, XN, F)
    m += [z for pr in zip(t1, t2) for z in pr] if not pk else t1 + t2
    m += op2("add", Y, "1.0", Y, None, " op_sel_hi:[0,1]" if pk else "")
    m += [mk("v_rcp_f32 v%d, v%d" % (Y[i], Y[i])) for i in range(8)] + [mk("s_nop 0")]
    m += op2("mul", XN, XN, Y)
    my = [W(lg="y%d" % ps)] + [mk(un(Y[i], YR + (i >> 1), i & 1)) for i in range(8)]
    my += op2("fma", X, XN, Y, X)
    my += [mk("v_cvt_pk_bf16_f32 v%d, v%d, v%d" % (xin + i, X[2 * i], X[2 * i + 1])) for i in range(4)]
    my += [mk("buffer_store_dwordx4 %s, v%d, %s, %s offen%s" % (vr(xin), uX, S4(sOut), "s%d" % sT0 if ps else "0", opts.get("fo", " sc1")), vm="out")]
    return wr, pre, rd, m, rdy, my

def phase2(p, opts):
    ORD = opts["_ord"]; RD = opts["_rd"]
    stamp(p, "p2", opts)
    for mt in range(2): p("v_add_u32 v%d, 0x10000, v%d\nv_add_u32 v%d, 0x20000, v%d" % (HI[1] + mt, uTR + mt, HI[2] + mt, uTR + mt))
    for i in range(1, 4): p("v_add_u32 v%d, %d, v%d" % (CAR[i], 1024 * i, uCA))
    p.wait(vm="cv", lg="*")
    p("s_barrier")
    stamp(p, "p2bar", opts, 4)
    for x in conv_reads(0): p.add(x)
    hpollA = [mk("buffer_load_dwordx2 v[%d:%d], v%d, %s, 0 offen sc1" % (uPoll, uPoll + 1, uFH, S4(sWS)), vm="hpA")]
    hpollB = [mk("s_mov_b32 s%d, %d" % (sT1, WS_FL)), mk("buffer_load_dwordx2 v[%d:%d], v%d, %s, s%d offen sc1" % (uPoll + 2, uPoll + 3, uFH, S4(sWS), sT1), vm="hpB")]
    tq = []
    for t in range(7):
        if t not in RD: tq += [("w%d" % t if (t not in ORD or t == 6) else None, y) for y in wd_reads(t)]
    wl = lambda t: ([W(lg="t%d" % PREV[t])] if t in PREV else []) + wd_loads(t, opts)
    rest = [t for t in range(7, 14) if t not in ORD]
    nfirst = opts.get("wfirst", 4)
    VQ = (wl(5) if 5 not in ORD else []) + (wl(6) if 6 not in ORD else []) + [x for t in rest[:nfirst] for x in wl(t)]
    rest = rest[nfirst:]
    LEAD = opts.get("wlead", 3)
    CHKA = I("; chkA", cost=0); CHKB = I("; chkB", cost=0)
    VQ.append(CHKA)
    for hs in range(28):
        while rest and rest[0] - 1 - LEAD <= hs: VQ += wl(rest.pop(0))
        if hs == 14: VQ.append(CHKB)
        VQ += h_loads(hs)
    state = {"A": False, "B": False, "issued": {"w%d" % t for t in ORD}}
    def pace(p, done_hs):
        n = 0
        while VQ:
            y = VQ[0]
            if y is CHKA:
                if not state["A"]: return n
                VQ.pop(0); continue
            if y is CHKB:
                if not state["B"]: return n
                VQ.pop(0); continue
            if y.kind == "wait" and any(z.lg == y.lg for _, z in tq): return n
            if y.vm and y.vm[0] == "h" and int(y.vm[1:]) - 16 > done_hs: return n
            VQ.pop(0); p.add(y); n += 1
            if is_m0(y): p("s_nop 0") if False else None
            if is_vm(y): state["issued"].add(y.vm); return n
            if is_m0(y): return n
        return n
    strec = [mk("buffer_load_dwordx2 %s, v%d, %s, 0 offen offset:%d sc1" % (vr(40 + 2 * e, 2), uSto, S4(sWS), 1024 * e), vm="xin") for e in range(2)]
    extra = ml("s_mov_b32 s%d, 131072" % sT0) + [mk("buffer_load_dwordx4 %s, v%d, %s, %s offen" % (vr(uXin + 4 * e), uX, S4(sQ), "s%d" % sT0 if e else "0"), vm="xin") for e in range(2)] + strec
    dq = ml("v_lshrrev_b32 v24, 4, v1\nv_and_b32 v25, 15, v1\nv_lshl_add_u32 v24, v24, 3, v25\nv_sub_u32 v24, 15, v24\nv_lshlrev_b32 v25, 4, v24\nv_and_b32 v25, 16, v25\n"
            "s_sub_u32 s3, s%d, 1\nv_lshlrev_b32 v25, v25, v%d\nv_and_b32 v25, s3, v25\nv_lshrrev_b32 v24, 1, v24" % (sHalf, uD))
    dq += ml("v_cmp_eq_u32 s[4:5], 0, v24\nv_cmp_eq_u32 s[6:7], 1, v24\nv_cmp_eq_u32 s[34:35], 2, v24\nv_cmp_eq_u32 vcc, 3, v24")
    dq += ml("v_cndmask_b32 v%d, 0, v25, s[4:5]\nv_cndmask_b32 v%d, 0, v25, s[6:7]\nv_cndmask_b32 v%d, 0, v25, s[34:35]\nv_cndmask_b32 v%d, 0, v25, vcc" % (uAD, uAD + 1, uAD + 2, uAD + 3))
    pollat = opts.get("hpoll", 24); flagat = opts.get("hflag", 60); chkA = opts.get("hchk", 62); pollB = opts.get("hpollb", 132); SP = opts.get("csp", 4)
    ypoll = [mk("buffer_load_dwordx2 %s, v%d, %s, 0 offen sc1" % (vr(uPoll, 2), uFY, S4(sWS)), vm="yp")]
    ydma = ml("s_lshl_b32 s7, s%d, 1\nv_xor_b32 v3, s7, v1\nv_lshrrev_b32 v2, 3, v1\nv_lshlrev_b32 v2, 12, v2\nv_and_b32 v3, 7, v3\nv_lshl_add_u32 v2, v3, 4, v2\nv_xor_b32 v3, 16, v2\nv_add_u32 v3, %d, v3" % (sWave, 32768 - 1024))
    ydma += ml("s_lshl_b32 s3, s%d, 18\ns_lshl_b32 s7, s%d, 16\ns_add_u32 s3, s3, s7\ns_lshl_b32 s7, s%d, 7\ns_add_u32 s3, s3, s7\ns_add_u32 s3, s3, %d" % (sDB, sWave, sTB2, WS_YT))
    ydma += ml("s_lshl_b32 s7, s%d, 11\ns_add_u32 m0, s7, %d" % (sWave, YT_L))
    adr = ml("v_and_b32 v24, 31, v1\nv_mul_u32_u24 v24, %d, v24\nv_lshrrev_b32 v25, 5, v1\nv_lshl_add_u32 v24, v25, 4, v24\ns_mul_i32 s6, s%d, %d\ns_add_u32 s6, s6, %d\nv_add_u32 v24, s6, v24" % (RS, sWave, REDW, RED[0]))
    adr += ml("v_lshrrev_b32 v25, 5, v1\nv_and_b32 v26, 3, v1\nv_lshl_add_u32 v25, v25, 2, v26\nv_mul_u32_u24 v25, %d, v25\nv_bfe_u32 v26, v1, 2, 3\nv_lshl_add_u32 v25, v26, 5, v25\ns_mul_i32 s6, s%d, %d\ns_add_u32 s6, s6, %d\nv_add_u32 v25, s6, v25" % (RS, sWave, 8 * RS, RED[0]))
    adr += ml("v_bfe_u32 v26, v1, 4, 1\nv_and_b32 v27, 3, v1\nv_lshl_add_u32 v26, v26, 2, v27\nv_xor_b32 v23, s%d, v26\nv_bfe_u32 v27, v1, 2, 2\nv_lshl_add_u32 v26, v26, 3, v27\nv_lshlrev_b32 v26, 7, v26\nv_lshl_add_u32 v26, v23, 4, v26\nv_lshrrev_b32 v27, 5, v1\nv_lshl_add_u32 v26, v27, 3, v26\nv_xor_b32 v27, 64, v26\nv_add_u32 v26, %d, v26\nv_add_u32 v27, %d, v27" % (sWave, YT_L, YT_L))
    chk = [W(vm="xin")] + poll_check("st", [41, 43], strec, 32)
    aq = ydma[:-2] + adr + chk
    first = set(); nm = 0
    for rr in range(4):
        rq = conv_reads(rr + 1) if rr < 3 else []
        b = vCF + 64 * (rr & 1)
        pairs = sorted([(s1, p1) for s1 in range(8) for p1 in range(8) if s1 + p1 <= 7], key=lambda x: (max(x), x[0] + x[1], x[0]))
        seen = -1; k = 0
        for (s1, p1) in pairs:
            mx = max(s1, p1)
            if mx > seen:
                p.wait(lg="c%d_%d" % (rr, mx)); seen = mx
            acc = vr(uCacc + 4 * (s1 + p1))
            p("v_mfma_f32_16x16x32_bf16 %s, %s, %s, %s" % (acc, vr(b + 4 * s1), vr(b + 32 + 4 * p1), acc if (s1 + p1) in first else "0"))
            first.add(s1 + p1); k += 1; nm += 1
            n = 0
            if rq and k > 2 and (k % 4 != 0): p.add(rq.pop(0)); n += 1
            if dq and nm > 6 and (n == 0 or nm % 2): p.add(dq.pop(0)); n += 1
            if nm % SP == 0 or (VQ and is_m0(VQ[0]) and nm % SP == SP - 1): n += pace(p, -1)
            while tq and n < 2:
                tg = tq[0][0]
                if tg and (tg not in state["issued"] or nm < opts.get("t56", 84)): break
                if tg: p.wait(vm=tg)
                p.add(tq.pop(0)[1]); n += 1
            if aq and nm > opts.get("aqat", 96) and n < 2 and not (n and aq[0].t.startswith("v_") and p.ins[-1].t.startswith("v_") and "mfma" not in p.ins[-1].t):
                p.add(aq.pop(0))
                while aq and aq[0].cost == 0: p.add(aq.pop(0))
            if nm == pollat:
                for x in hpollA: p.add(x)
            if nm == flagat:
                p.wait(vm="hst7"); p("s_barrier"); p.add(flag_store(sFlH, True))
                stamp(p, "hflag", opts)
            if nm == chkA:
                p.wait(vm="hpA")
                for x in poll_check("hA", [uPoll], hpollA): p.add(x)
                stamp(p, "hokA", opts); state["A"] = True
        stamp(p, "cv%d" % rr, opts, 4)
        if rr == 0:
            for x in dq: p.add(x)
            if dq: p("s_nop 1")
            dq = []
            for p1 in range(8):
                acc = vr(uCacc + 4 * p1)
                p("v_mfma_f32_16x16x32_bf16 %s, %s, %s, %s" % (acc, vr(uAD), vr(b + 32 + 4 * p1), acc))
                if rq: p.add(rq.pop(0))
                if p1 % 4 == 1: pace(p, -1)
            for x in extra: p.add(x)
        for x in rq: p.add(x)
    print("conv: left-over reads %d, queued loads %d" % (len(tq), len(VQ)), file=sys.stderr)
    assert not tq
    cur_hs = [-1]
    def pace2():
        if pace(p, cur_hs[0]) and is_m0(p.ins[-1]): p("s_nop 0"); pace(p, cur_hs[0])
    for x in aq: p.add(x)
    stamp(p, "convend", opts)
    p("s_lshl_b32 s7, s%d, 13\ns_add_u32 s7, s7, %d\nv_add_u32 v4, s7, v%d\ns_and_b32 s7, s%d, 2\ns_lshl_b32 s7, s7, 13\ns_lshl_b32 s6, s%d, 12\ns_add_u32 s7, s7, s6\ns_add_u32 s7, s7, %d\nv_add_u32 v5, s7, v%d" % (sWave, XCH, vL16, sWave, sHalf, XCH, vL16))
    for x in hpollB: p.add(x)
    p("s_barrier")
    for i in range(8):
        p("ds_write_b128 v4, %s offset:%d" % (vr(uCacc + 4 * i), i * 1024))
        if i % 3 == 1: pace2()
    stamp(p, "xw", opts, 4)
    p("s_waitcnt lgkmcnt(0)\ns_barrier")
    for i in range(4):
        p("ds_read_b128 %s, v5 offset:%d" % (vr(uCacc + 4 * i), i * 1024), lg="xr%d" % i)
        p("ds_read_b128 %s, v5 offset:%d" % (vr(uCacc + 16 + 4 * i), 8192 + i * 1024), lg="xr%d" % i)
    pace2()
    for i in range(4):
        p.wait(lg="xr%d" % i)
        for e in range(2): p("v_pk_add_f32 %s, %s, %s" % (vr(uCacc + 4 * i + 2 * e, 2), vr(uCacc + 4 * i + 2 * e, 2), vr(uCacc + 16 + 4 * i + 2 * e, 2)))
    for i in range(4):
        o = uTmp + 4 * (i >> 1) + 2 * (i & 1)
        p("v_cvt_pk_bf16_f32 v%d, v%d, v%d\nv_cvt_pk_bf16_f32 v%d, v%d, v%d" % (o, uCacc + 4 * i, uCacc + 4 * i + 1, o + 1, uCacc + 4 * i + 2, uCacc + 4 * i + 3))
    pace2(); p("s_nop 0")
    for h in range(2):
        o = uTmp + 4 * h
        p("v_permlane16_swap_b32 v%d, v%d\nv_permlane16_swap_b32 v%d, v%d" % (o, o + 2, o + 1, o + 3))
    for h in range(2):
        p("buffer_store_dwordx4 %s, v%d, %s, s%d offen offset:%d sc1" % (vr(uTmp + 4 * h), uYst, S4(sWS), sYoff, h * 1024), vm="yst")
    stamp(p, "g2go", opts)
    wrA, preA, rdA, mA, rdyA, myA = out_half(0, opts, False)
    wrB, preB, rdB, mB, rdyB, myB = out_half(1, opts, True)
    YF = opts.get("yflag", 5); YP = opts.get("ypoll", 19); YC = YP + opts.get("ychk", 4); RB = opts.get("rbar", 18); RY = opts.get("ybar", YC + 5)
    HB = opts.get("hb", 5); HL = opts.get("hl", 5)
    xq = []
    def X_(at, L): xq.extend((at, y) for y in L)
    X_(0, preA + [mk("s_mov_b32 s4, %s" % hex(f2u(-LOG2E))), mk("s_mov_b32 s5, s4")])
    for i, y in enumerate(wrA): X_(4 * 14 + 5 + i, [y])
    X_(4 * RB, [W(lg="*"), mk("s_barrier")] + rdA)
    X_(4 * RB + 6, mA)
    GB = opts.get("gbud", 24)
    for hs in range(28):
        ps, s = divmod(hs, 14)
        cur_hs[0] = hs - 1
        while "h%d" % hs not in state["issued"] or any(y.vm == "h%d" % hs for y in VQ) or (ps == 0 and s < 13 and any(y.vm == "w%d" % (s + 1) for y in VQ)): pace2()
        rq = wd_reads(s + 1) if (ps == 0 and 7 <= s + 1 < 14) else []
        if hs == HB:
            p.wait(vm="hpB")
            for x in poll_check("hB", [uPoll + 2], hpollB): p.add(x)
            stamp(p, "hokB", opts); state["B"] = True
        if hs == YF: p.wait(vm="yst"); p("s_barrier"); p.add(flag_store(sFlY, True))
        if hs == YP: p.add(ypoll[0])
        if hs == YC:
            p.wait(vm="yp")
            for x in poll_check("y", [uPoll], ypoll): p.add(x)
            assert not any(is_m0(y) or y.t.endswith(" lds") for y in VQ)
            for x in ydma[-2:]: p.add(x)
            p("s_nop 0")
            p.add(dma(2, sWS, "s3", 0, "yt", " sc1")); p.add(dma(3, sWS, "s3", 1024, "yt", " sc1"))
            stamp(p, "yok", opts, 4)
        RT = opts.get("rtail", 0)
        if hs < 28 - RT: work = [(hs, e, mt) for e in range(2) for mt in range(2)]
        else:
            j = hs - (28 - RT); allw = [(h_, e, mt) for mt in range(2) for h_ in range(28 - RT, 28) for e in range(2)]
            work = allw[4 * j:4 * j + 4]
            if j == RT // 2:
                X_(4 * hs, [mk("v_add_u32 v24, %d, v24" % ((RED[1] - RED[0]) & 0xffffffff))])
                nw_ = min(4, 2 * RT - 3)
                for i, y in enumerate(wrB[:nw_]): X_(4 * hs + 3 + i, [y])
                wrB = wrB[nw_:]
        p.wait(vm="h%d" % max(h_ for h_, _, _ in work), lg="t%d" % s)
        for m, (h_, e, mt) in enumerate(work):
            acc = vr(uAcc + 32 * ps + 16 * mt, 16)
            hr = aH + 8 * (h_ % 16) + 4 * e
            k, b = wfrag(h_ % 14, 2 * e + mt)
            p("v_mfma_f32_32x32x16_bf16 %s, %s[%d:%d], a[%d:%d], %s" % (acc, k, b, b + 3, hr, hr + 3, acc if (s or e) else "0"))
            i0_ = len(p.ins)
            used = lambda: sum(y.cost for y in p.ins[i0_:]) + (4 if m == 3 else 0)
            tgt = "h%d" % min(27, hs + HL)
            left = max([i + 1 for i, y in enumerate(VQ) if y.vm == tgt] + [0])
            for _ in range(-(-left // (4 - m))):
                k_ = pace(p, hs - 1)
                if k_ == 0: break
                if is_m0(p.ins[-1]):
                    if rq: p.add(rq.pop(0)) if (m or True) and not (m == 0) else p("s_nop 0")
                    else: p("s_nop 0")
            if m == 0 and rq: p.wait(vm="w%d" % (s + 1))
            for _ in range(-(-len(rq) // (4 - m))): p.add(rq.pop(0))
            g = 4 * hs + m
            while xq and xq[0][0] <= g and used() + xq[0][1].cost <= GB: p.add(xq.pop(0)[1])
        assert not rq
        if hs == 13: stamp(p, "g2A", opts)
        elif hs % 3 == 0: stamp(p, "h%d" % hs, opts, 4)
    print("gemm2: left-over epilogue items %d" % len(xq), file=sys.stderr)
    stamp(p, "g2end", opts)
    if len(wrB) == 8: p("v_add_u32 v24, %d, v24" % ((RED[1] - RED[0]) & 0xffffffff))
    p("v_add_u32 v25, %d, v25" % ((RED[1] - RED[0]) & 0xffffffff))
    tail = [y for _, y in xq] + preB
    nop = max(0, 6 - len(tail))
    for x in tail[:12]: p.add(x)
    tail = tail[12:]
    for x in wrB:
        p.add(x)
        for _ in range(3):
            if tail: p.add(tail.pop(0))
    for x in tail: p.add(x)
    p.wait(vm="yt", lg="*"); p("s_barrier")
    stamp(p, "red", opts)
    if opts.get("ytail", 1):
        myA = out_half(0, opts, True)[5]
        for x in rdyA + rdB + rdyB + myA[:-1]: p.add(x)
        if opts.get("oearly", 1): p.add(myA[-1])
        for x in mB + myB[:-1]: p.add(x)
        stamp(p, "prest", opts)
        if not opts.get("oearly", 1): p.add(myA[-1])
        p.add(myB[-1])
    else:
        for x in rdB + rdyB + mB + myB: p.add(x)
    stamp(p, "fin", opts)

def aux(p, opts):
    p("s_lshl_b32 s3, s2, 6\ns_lshl_b32 s4, s%d, 4\ns_add_u32 s3, s3, s4" % sWave)
    p("v_add_u32 v12, s3, v2\nv_lshlrev_b32 v10, 10, v12\nv_lshl_add_u32 v10, v3, 4, v10\nv_add_u32 v11, 8192, v10\nv_mov_b32 v13, v3")
    p("s_memrealtime s[%d:%d]" % (sTag, sTag + 1))
    p("s_waitcnt lgkmcnt(0)")
    p("s_mov_b32 s%d, s74\ns_mov_b32 s%d, s75" % (sDbg, sDbg + 1))
    p("s_lshr_b32 s3, s2, %d\ns_or_b32 s3, s3, s%d\ns_cmp_lg_u32 s3, 0\ns_cselect_b64 exec, 0, 1" % (3 if opts.get("cas", 1) else 0, sWave))
    p("s_or_b32 s%d, s%d, 1\nv_mov_b32 v16, s%d\nv_mov_b32 v17, s%d\nv_mov_b32 v18, 0\nv_mov_b32 v19, 0\ns_cbranch_execz L_aux_nt" % (sTag, sTag, sTag, sTag + 1))
    p("global_atomic_cmpswap_x2 v%d, v[16:19], s[%d:%d] sc1" % (vNon + 2, sDbg, sDbg + 1))
    p.label("L_aux_nt")
    p("s_mov_b64 exec, -1")
    srd(p, sQ, kQ, 2048 * 1024)
    for g in range(2):
        for i in range(8):
            p("buffer_load_dwordx4 %s, v%d, %s, 0 offen offset:%d" % (vr(116 + 32 * g + 4 * i), 10 + g, S4(sQ), i * 128), vm="sx%d" % g)
        if g == 0:
            srd(p, sWS, kWS, WS_SZ)
            kv_setup(p); ids2(p); hk_srds(p)
            phase2_setup(p, opts)
    nld, nchk = nonce_get("na")
    p.add(nld)
    p("s_mov_b32 s5, 0x3f803f80")
    for g in range(2):
        p.wait(vm="sx%d" % g if g == 0 else "non")
        stamp(p, "a.sx%d" % g, opts, 3)
        if g == 1:
            p("v_lshlrev_b32 v10, 7, v1\ns_mov_b32 s12, s60\ns_and_b32 s13, s61, 0xffff\ns_mov_b32 s14, 0x200000\ns_mov_b32 s15, 0x20000")
            p("s_mov_b32 s24, s70\ns_and_b32 s25, s71, 0xffff\ns_mov_b32 s26, %d\ns_mov_b32 s27, 0x20000" % (1792 * 1024))
            p("s_lshl_b32 s3, s2, 16\ns_lshl_b32 s4, s%d, 14\ns_add_u32 s21, s3, s4\ns_mul_i32 s3, s2, 57344\ns_mul_i32 s4, s%d, 14336\ns_add_u32 s22, s3, s4" % (sWave, sWave))

        s1 = 16 + 4 * g; s2 = s1 + 1
        for r in range(32):
            x = 116 + 32 * g + r; c = r & 1
            p("v_dot2_f32_bf16 v%d, v%d, s5, %s" % (s1 + 2 * c, x, "v%d" % (s1 + 2 * c) if r > 1 else "0"))
            p("v_dot2_f32_bf16 v%d, v%d, v%d, %s" % (s2 + 2 * c, x, x, "v%d" % (s2 + 2 * c) if r > 1 else "0"))
    for x in nchk: p.add(x)
    p("v_add_f32 v16, v16, v18\nv_add_f32 v17, v17, v19\nv_add_f32 v18, v20, v22\nv_add_f32 v19, v21, v23")
    for mod in ("quad_perm:[1,0,3,2]", "quad_perm:[2,3,0,1]", "row_half_mirror"):
        for r in range(16, 20): p("v_add_f32_dpp v%d, v%d, v%d %s row_mask:0xf bank_mask:0xf" % (r, r, r, mod))
    ops = [[], []]
    for g in range(2):
        S1 = 16 + 2 * g; S2 = S1 + 1; o = 20 + 4 * g
        ops[g] = ["v_mul_f32 v%d, %s, v%d" % (S1, hex(f2u(1.0 / 512)), S1), "v_mul_f32 v%d, %s, v%d" % (S2, hex(f2u(1.0 / 512)), S2),
                  "v_fma_f32 v%d, -v%d, v%d, v%d" % (S2, S1, S1, S2), "v_max_f32 v%d, 0, v%d" % (S2, S2),
                  "v_cvt_pk_bf16_f32 v%d, v%d, v%d" % (S2, S2, S2), "v_and_b32 v%d, 0xffff0000, v%d" % (S2, S2),
                  "v_add_f32 v%d, %s, v%d" % (S2, hex(f2u(1e-5)), S2),
                  "v_cvt_pk_bf16_f32 v%d, v%d, v%d" % (S2, S2, S2), "v_and_b32 v%d, 0xffff0000, v%d" % (S2, S2),
                  "v_sqrt_f32 v%d, v%d" % (S2, S2), "v_mov_b32 v%d, s%d" % (o + 1, sTag),
                  "v_cvt_pk_bf16_f32 v%d, -v%d, v%d" % (o, S1, S2)]
    p("v_cmp_eq_u32 vcc, 0, v13\nv_lshlrev_b32 v12, 3, v12\nv_add_u32 v12, %d, v12\nv_mov_b32 v14, 0x80000000\nv_cndmask_b32 v12, v14, v12, vcc" % WS_ST)
    for x0, x1 in zip(*ops): p(x0); p(x1)
    p("buffer_store_dwordx2 v[20:21], v12, %s, 0 offen sc1" % S4(sWS), vm="pub")
    p("buffer_store_dwordx2 v[24:25], v12, %s, 0 offen offset:64 sc1" % S4(sWS), vm="pub")
    stamp(p, "a.stats", opts)
    tW = ["buffer_load_dword v28, v10, s[24:27], s22 offen\ns_add_u32 s22, s22, 6144", "buffer_load_dword v28, v10, s[24:27], s22 offen"]
    tK = ["buffer_load_dword v28, v10, s[12:15], s21 offen\ns_add_u32 s21, s21, 8192", "buffer_load_dword v28, v10, s[12:15], s21 offen"]
    WM = opts.get("warm", 1)
    tq_ = {0: [], 1: tW + tK, 2: tW, 3: tK + tW, 4: tW + tK}[WM]
    p("s_barrier")
    seq(p, kv_loads(opts) + hk_loads(opts))
    if WM == 4: p(tq_.pop(0), vm="warm")
    for x in phase2_srds(): p.add(x)
    p.wait(vm="hk")
    p("s_barrier")
    for _ in range(opts.get("warm1", 1)):
        if tq_: p(tq_.pop(0), vm="warm")
    for x in kv_compute() + kv_stores(): p.add(x)
    stamp(p, "a.kv", opts)
    seq(p, hk_build())
    if tq_ and opts.get("warm2", 1): p(tq_.pop(0), vm="warm")
    p.wait(vm="kvst", lg="*")
    p.add(flag_store(sFlK))
    stamp(p, "a.kvfl", opts)
    for x in tq_: p(x, vm="warm")
    stamp(p, "a.warm", opts)
    p("s_lshl_b32 s3, s2, 7\ns_add_u32 s%d, s3, %d" % (sFlH, WS_FD))
    for x in fl0_setup(): p.add(x)
    p("s_barrier")
    for mt in range(2): p("v_add_u32 v%d, 0x20000, v%d" % (uTR2 + mt, uTR + mt))
    prev = PREV
    for t in sorted(opts["_ord"]):
        if t in prev:
            p.wait(vm="w%d" % prev[t])
            for x in wd_reads(prev[t], True): p.add(x)
            p.wait(lg="*")
        seq(p, wd_loads(t, opts))
    for s in range(14): p("s_lshr_b32 s%d, s%d, 4" % (sTab + s, sTabW + s))
    kvpoll = [mk("buffer_load_dwordx2 v[%d:%d], v%d, %s, 0 offen sc1" % (uPoll, uPoll + 1, uFK, S4(sWS)), vm="kvp")]
    p.add(kvpoll[0])
    p.wait(vm="kvp")
    for x in poll_check("kva", [uPoll], kvpoll): p.add(x)
    seq(p, conv_xr())
    p("s_waitcnt vmcnt(0)")
    stamp(p, "a.pre", opts)

def pollf(t, opts):
    if opts["pollf"] == "atom":
        m = re.match(r"buffer_load_dwordx2 v\[(\d+):(\d+)\], (.*) sc1", t)
        if not m: return t
        return "v_mov_b32 v%s, 0\nv_mov_b32 v%s, 0\nbuffer_atomic_add_x2 v[%s:%s], %s sc0 sc1" % (m.group(1), m.group(2), m.group(1), m.group(2), m.group(3))
    return t.replace(" sc1", " " + opts["pollf"].replace("+", " "))
def emit(a, lines):
    for l in lines: a(l if l.endswith(":") else "  " + l)

def build(opts):
    del SLOW[:]
    if "rho" in opts: RHO[:] = [int(c) for c in str(opts["rho"]).rjust(3, "0")]
    PROF[0] = opts.get("prof", 0); SLEEP['*'] = opts.get("sleep", 4)
    name = KN + "_kernel"
    a = A()
    a(header(["; @launch grid=(256,1,1) block=(256,1,1) lds=163840"]))
    a(kernel_begin(name))
    a("s_load_dwordx8 s[80:87], s[0:1], 0\ns_load_dwordx16 s[60:75], s[0:1], 32\ns_load_dwordx2 s[76:77], s[0:1], 96")
    a("s_cmp_ge_u32 s2, 256\ns_cbranch_scc1 L_end")
    if opts.get("prof"):
        a("s_memrealtime s[78:79]\ns_memtime s[100:101]\nv_mov_b32 v255, 0\ns_waitcnt lgkmcnt(0)\nv_writelane_b32 v255, s100, 0\nv_writelane_b32 v255, s78, 62")
    p0 = Prog(); common_setup(p0, opts); c0 = p0.resolve()
    a("s_cmp_ge_u32 s2, 32\ns_cbranch_scc1 L_gemm")
    if opts.get("ipf", 1):
        a("s_getpc_b64 s[4:5]\nv_lshlrev_b32 v1, 7, v0\ns_and_b32 s4, s4, 0xffffff00\nv_min_u32 v1, L_code_end-%s-128, v1\nglobal_load_dword v200, v1, s[4:5]" % name)
    a("s_branch L_aux")
    a.label("L_gemm")
    emit(a, c0)
    p = Prog(); gemm1(p, opts); p.label("L_phase2"); phase2(p, opts)
    pa = Prog(); aux(pa, opts)
    for q in (p, pa):
        if opts.get("x_nochk"): q.ins = [y for y in q.ins if not ("s_cbranch_vccnz L_slow" in y.t)]
        if opts.get("x_nost"): q.ins = [y for y in q.ins if not (y.t.startswith("buffer_store") and "sc1" in y.t)]
        if opts.get("x_nofl"): q.ins = [y for y in q.ins if not (y.t.startswith("buffer_store_dwordx2") and "v[6:7]" in y.t)]
        if opts.get("x_nokv"): q.ins = [y for y in q.ins if not (y.vm in ("kv", "hk") and y.kind != "wait")]
        if opts.get("pollf"):
            for y in q.ins:
                if y.vm in ("kvp", "hpA", "hpB", "yp", "wfp") and y.t.startswith("buffer_load"): y.t = pollf(y.t, opts)
        if opts.get("x_nohb"): q.ins = [y for y in q.ins if not ("v39" in y.t or y.t.startswith("v_alignbit") or y.lg == "hb")]
        if opts.get("x_nowb"): q.ins = [y for y in q.ins if not (y.vm in ("w0", "w1", "w2", "w3", "w4", "w7") and y.kind != "wait")]
        if opts.get("x_drop"):
            dr = str(opts["x_drop"]).split("+")
            q.ins = [y for y in q.ins if not (y.kind != "wait" and y.vm in dr)]
        if opts.get("x_dropw"):
            dr = str(opts["x_dropw"]).split("+")
            q.ins = [y for y in q.ins if not (y.kind == "wait" and y.vm in dr)]
        if opts.get("x_nopoll"): q.ins = [y for y in q.ins if not (y.vm in ("rec", "kvp", "hpA", "hpB", "yp", "wfp") and y.kind != "wait")]
    if opts.get("prof") and "q0" in opts:
        regs = [12, 14, 22, 24, 50, 80, 82, 98]
        i0 = [i for i, y in enumerate(p.ins) if y.t == "L_phase2:"][0]
        out = p.ins[:i0 + 1]; cnt = 0; mf = 0; k = 0
        for y in p.ins[i0 + 1:]:
            out.append(y)
            ism = "v_mfma" in y.t
            mf += ism
            if (mf >= opts.get("qm", 0) and y.kind != "label") if opts.get("qi") else ism:
                cnt += 1
                if k < 8 and cnt == opts["q0"] + k * opts.get("qd", 8):
                    out.append(mk("s_memtime s[%d:%d]" % (regs[k], regs[k] + 1))); k += 1
        out.append(mk("s_waitcnt lgkmcnt(0)"))
        for j in range(k):
            STAMPS.append("Q%d" % (opts["q0"] + j * opts.get("qd", 8))); out.append(mk("v_writelane_b32 v255, s%d, %d" % (regs[j], len(STAMPS) - 1)))
        p.ins = out
    lines = p.resolve()
    la = pa.resolve()
    lines = fix_hazards(lines, "main")
    pr = check_hazards(lines, "main") + check_hazards(la, "aux")
    for x in pr[:40]: print("HAZARD", x, file=sys.stderr)
    if pr: raise SystemExit("hazards")
    emit(a, lines)
    if opts.get("prof"):
        a("s_waitcnt vmcnt(0) lgkmcnt(0)\ns_memtime s[100:101]\ns_memrealtime s[78:79]\ns_load_dwordx2 s[4:5], s[0:1], 96\ns_waitcnt lgkmcnt(0)")
        a("v_writelane_b32 v255, s100, 60\nv_writelane_b32 v255, s78, 63\ns_getreg_b32 s100, hwreg(HW_REG_XCC_ID)\nv_writelane_b32 v255, s100, 61")
        a("s_lshl_b32 s6, s2, 10\ns_lshl_b32 s7, s%d, 8\ns_add_u32 s6, s6, s7\ns_add_u32 s6, s6, 0x1000000\ns_add_u32 s4, s4, s6\ns_addc_u32 s5, s5, 0" % sWave)
        a("v_lshlrev_b32 v2, 2, v1\nglobal_store_dword v2, v255, s[4:5]\ns_waitcnt vmcnt(0)")
        a("; STAMPS " + " ".join(STAMPS))
        a("; SPINS " + " ".join(SPINS))
    a.label("L_end")
    a("s_endpgm")
    a.label("L_aux")
    emit(a, c0)
    emit(a, la)
    a("s_branch L_phase2")
    for t in SLOW:
        if opts.get("pollf"): t = "\n".join(pollf(l, opts) if (l.startswith("buffer_load_dwordx2 v[25") or l.startswith("buffer_load_dwordx2 v[2:3]") or l.startswith("buffer_load_dwordx4 v[250")) else l for l in t.split("\n"))
        a(t)
    a.label("L_code_end")
    a(RODATA)
    a(kernel_desc(name, 512, 102, 256))
    return a.text()

if __name__ == "__main__":
    opts = {}
    for kv in sys.argv[2:]:
        k, _, v = kv.partition("=")
        opts[k] = int(v) if v.lstrip("-").isdigit() else (v if v else 1)
    for k in ("fw", "fx", "fd", "fk", "fkv", "fo", "fr"):
        if k in opts: opts[k] = "" if opts[k] == "none" else " " + opts[k].replace("+", " ")
    open(sys.argv[1], "w").write(build(opts))
```

```python
import sys, struct, re
from asmlib import *
from sched import *

WS_H  = 0x000000
WS_XR = 0x700000
WS_YT = 0x900000
WS_ST = 0xB00000
WS_FK = 0xB08000
WS_FH = 0xB10000
WS_FY = 0xB18000
WS_FD = 0xB20000
WS_FL = 0x20000
WS_CS = 0xB48000
WS_SZ = 0xC00000
LOG2E = 1.4426950408889634
SPIN_MAX = 1 << 16

def f2u(x): return struct.unpack("<I", struct.pack("<f", x))[0]
def vr(b, n=4, p="v"): return "%s[%d:%d]" % (p, b, b + n - 1) if n > 1 else "%s%d" % (p, b)
def S4(b): return "s[%d:%d]" % (b, b + 3)
def srd(p, d, lo, size):
    p("s_mov_b32 s%d, s%d\ns_and_b32 s%d, s%d, 0xffff\ns_mov_b32 s%d, 0x%x\ns_mov_b32 s%d, 0x20000" % (d, lo, d + 1, lo + 1, d + 2, size, d + 3))
def ml(t, **kw): return [mk(x, **kw) for x in t.split("\n")]
def bundle(t):
    b = I(t, cost=4 * len(t.split("\n"))); b.kind = "bundle"; return b

SLOT = 32768
CONV = 98304; CH_STRIDE = 12928; XR_OFF = 8320
UNIT = [141312, 0, 16384, 32768, 49152, 65536, 81920, 124416]
WUN = {t: t % 7 for t in range(14)}
WUN[5] = 7; PREV = {7: 0, 8: 1, 9: 2, 10: 3, 11: 4, 13: 6}
def wdl(s): return UNIT[WUN[s]]
KVL = 141312
RS = 272; REDW = 32 * RS
RED = [CONV, 0]
YT_L = CONV + 4 * REDW; XCH = CONV
sQ = 8; sW = 12; sWS = 16; sWave = 20; sTB = 21; sCB = 22; sLdsX = 23; sLdsW = 24; sLdsXB = 25; sT0 = 26; sT1 = 27
sHa = 28; sST = 29; sFlK = 30; sDoff = 31; sDbg = 32; sT2 = 34; sT3 = 35; sWd = 36; sHk = 40; sOut = 44; sTag = 48
sXB = 50
sCSw = 52; sTB2 = 53; sDB = 54; sCV = 55; sXRso = 56; sYoff = 57; sFlH = 58; sFlY = 59
sTabW = 60
sHalf = 74; sCh4k = 75; sSpin = 76; sWdL = 77
sDp = 80
sTab = 84
sK = 36; sV = 44; sSh = 64
kSK = 60; kD = 62;
kBX = 64; kWG = 66; kWU = 68; kWD = 70; kOUT = 72; kDBG = 74; kWS = 76; kQ = 80; kK = 82; kV = 84; kSH = 86
vKD = 2
vTag = 6; vFl = 8
vWD = 10; vXD = 14; vXA = 18; vWA = 26; vHoff = 28; vSToff = 29; vCSoff = 30; vL16 = 31; vNon = 32
vKA = 36; vKO = 37; vSH = 38
vR1A = 40; vR1B = 44; vOnes = 180; vST = 52; vXF = 84; vACC = 116; vTMP = 212; vOUT = 220
vCSR = 180; vCSA = 196
uWD = 228; uH = 232; uTR = 236; uCA = 240; uCB = 241; uYst = 242; uFY = 243; uX = 244; uSto = 245; uFH = 246; uFK = 247
uHead = 248; uHeadA = 249; uPoll = 250; uD = 254
uAD = 40; uTmp = 32; uXin = 44; uSt = 52; uCacc = 184; uAcc = 120
vCF = 56; aH = 0
def wfrag(s, mt):
    if s < 8: return "a", 128 + 16 * s + 4 * mt
    if s < 10: return "v", 184 + 16 * (s - 8) + 4 * mt
    return "v", 56 + 16 * (s - 10) + 4 * mt

STAMPS = ["start"]
def stamp_l(name, opts, lvl=1):
    if not opts.get("prof") or opts.get("plvl", 1) == 0 or (lvl > 1 and lvl != opts.get("plvl", 1)): return []
    if name not in STAMPS: STAMPS.append(name)
    idx = STAMPS.index(name)
    assert idx < 48
    return ml("s_memtime s[100:101]\ns_waitcnt lgkmcnt(0)\nv_writelane_b32 v255, s100, %d" % idx, cost=0)
def stamp(p, name, opts, lvl=1):
    for x in stamp_l(name, opts, lvl): p.add(x)

def acc_of(t): return vACC + 16 * {0: 0, 1: 1, 2: 2, 3: 3, 4: 4, 5: 5, 6: 0, 7: 1}[t]
def win(addr): return addr >> 16, addr & 0xffff
def dma(v, srd_, so, off, tag, fl=""):
    return mk("buffer_load_dwordx4 v%d, %s, %s offen offset:%d%s lds" % (v, S4(srd_), so, off, fl), vm=tag)
def is_m0(x): return " m0," in x.t
def is_vm(x): return x.t.startswith("buffer_") or x.t.startswith("global_")
def seq(p, L):
    L = [x for x in L if x.kind != "delay"]
    for i, x in enumerate(L):
        p.add(x)
        if is_m0(x) and i + 1 < len(L) and is_vm(L[i + 1]): p("s_nop 0")
vFl0 = 9
def flag_store(so, wg=False, tag="fl"):
    return mk("buffer_store_dwordx2 v[%d:%d], v%d, %s, s%d offen sc1" % (vTag, vTag + 1, vFl0 if wg else vFl, S4(sWS), so), vm=tag)
def fl0_setup():
    return ml("s_lshl_b32 s6, s%d, 31\ns_lshl_b32 s7, s%d, 30\ns_or_b32 s6, s6, s7\ns_and_b32 s6, s6, 0x80000000\nv_or_b32 v%d, s6, v%d" % (sWave, sWave, vFl0, vFl))

def g1_stage(s, opts):
    L = []; base = (s % 3) * SLOT; tag = "st%d" % s
    fw = opts.get("fw", ""); fx = opts.get("fx", "")
    if s < 8:
        L.append(mk("s_add_u32 m0, s%d, %d" % (sLdsW, base)))
        L += [dma(vWD + j, sW, "s%d" % (sTab + s), j * 1024, tag, fw) for j in range(4)]
        L.append(mk("s_add_u32 m0, s%d, %d" % (sLdsX, base)))
        L += [dma(vXD + j, sQ, "s%d" % (sTab + 8 + s), j * 1024, tag, fx) for j in range(4)]
    else:
        for h in range(2):
            L.append(mk("s_add_u32 m0, s%d, %d" % (sLdsXB, base + h * 4096)))
            L.append(mk("s_add_u32 s%d, s%d, %d" % (sT0 + h, sXB + h, (s - 8) * 32768)))
            L += [dma(vXD + j, sQ, "s%d" % (sT0 + h), j * 1024, tag, fx) for j in range(4)]
    return L
def wd_loads(s, opts):
    return [mk("s_add_u32 m0, s%d, %d" % (sWdL, wdl(s)))] + \
           [dma(uWD + j, sWd, "s%d" % (sTabW + s), j * 1024, "w%d" % s, opts.get("fd", "")) for j in range(4)]
def h_loads(hs):
    ps, s = divmod(hs, 14)
    L = []
    for e in range(2):
        r = aH + 8 * (hs % 16) + 4 * e
        L.append(mk("buffer_load_dwordx4 a[%d:%d], v%d, %s, s%d offen offset:%d sc1" % (r, r + 3, uH + ps, S4(sWS), sTab + s, e * 1024), vm="h%d" % hs))
    return L
HI = {1: 216, 2: 220}
uTR2 = 2
def wd_reads(s, inB=False):
    L = []
    w, off = win(wdl(s))
    for f in range(4):
        e, mt = f >> 1, f & 1
        k, b = wfrag(s, f)
        reg = uTR + mt if w == 0 else (uTR2 + mt if inB else HI[w] + mt)
        L.append(mk("ds_read_b64_tr_b16 %s[%d:%d], v%d offset:%d" % (k, b, b + 1, reg, off + e * 2048), lg="t%d" % s))
        L.append(mk("ds_read_b64_tr_b16 %s[%d:%d], v%d offset:%d" % (k, b + 2, b + 3, reg, off + e * 2048 + 512), lg="t%d" % s))
    return L
def hk_loads(opts):
    L = ml("s_lshl_b32 s6, s%d, 11\ns_add_u32 m0, s6, s%d\ns_add_u32 m0, m0, 32" % (sHalf, sCV))
    L += [dma(vL16, sHk, "s6", j * 1024, "hk", opts.get("fk", "")) for j in range(2)]
    L.append(mk("buffer_load_ushort v%d, v%d, %s, 0 offen" % (uHead, uHead, S4(sHk)), vm="hk"))
    L.append(mk("buffer_load_ushort v%d, off, %s, s%d" % (uD, S4(sDp), sDoff), vm="hk"))
    return L
def delay(n):
    d = I("; delay", cost=0); d.kind = "delay"; d.vm = n; return d
def hk_build(alt=0):
    D = [212, 213, 214, 215, 216, 217]; E1 = 220; E3 = 224; C2 = 52
    if alt: D = [10, 11, 12, 13, 26, 27]; E1 = 32; E3 = 32; C2 = 32
    L = ml("s_lshl_b32 s5, s%d, 11\ns_add_u32 s5, s5, s%d\nv_add_u32 v39, s5, v%d\nds_write_b16 v%d, v%d" % (sHalf, sCV, vL16, uHeadA, uHead))
    for j in range(2):
        o = 32 + j * 1024
        L.append(mk("ds_read_b128 %s, v39 offset:%d" % (vr(D[0]), o), lg="hb"))
        L.append(mk("ds_read_b32 v%d, v39 offset:%d" % (D[4], o + 16), lg="hb"))
        L += [delay(5), W(lg="hb")]
        L += [mk("v_alignbit_b32 v%d, v%d, v%d, 16" % (E1 + i, D[i + 1], D[i])) for i in range(4)]
        L += [delay(1), mk("ds_write_b128 v39, %s offset:%d" % (vr(E1), o + 4160), cost=12), delay(2)]
    return L
def conv_xr():
    L = ml("s_lshl_b32 s7, s%d, 10\ns_add_u32 m0, s7, %d" % (sWave, CONV + XR_OFF))
    L += [dma(vL16, sWS, "s%d" % sXRso, 0, "cv", " sc1")]
    L += ml("s_add_u32 s%d, s%d, 4096\ns_add_u32 m0, s7, %d" % (sXRso, sXRso, CONV + CH_STRIDE + XR_OFF))
    L += [dma(vL16, sWS, "s%d" % sXRso, 0, "cv", " sc1")]
    return L
CAR = [uCA, 10, 11, 12]
def conv_reads(rr):
    L = []; b = vCF + 64 * (rr & 1)
    for i in range(8):
        a = b + 4 * i; t = "c%d_%d" % (rr, i)
        ar = CAR[i >> 1]; o = 16 * rr + 128 * (i & 1)
        L.append(mk("ds_read2_b32 v[%d:%d], v%d offset0:%d offset1:%d" % (a, a + 1, ar, o, o + 1), lg=t))
        L.append(mk("ds_read2_b32 v[%d:%d], v%d offset0:%d offset1:%d" % (a + 2, a + 3, ar, o + 2, o + 3), lg=t))
        L.append(mk("ds_read_b128 v[%d:%d], v%d offset:%d" % (a + 32, a + 35, uCB, 3584 - 512 * i + 64 * rr), lg=t))
    return L

def kv_setup(p):
    p("s_lshr_b32 s3, s2, 3\ns_lshl_b32 s3, s3, 16\ns_and_b32 s4, s2, 7\ns_lshl_b32 s5, s4, 7\ns_add_u32 s5, s5, s3")
    p("v_lshrrev_b32 v9, 3, v1\nv_and_b32 v%d, 7, v1\nv_lshlrev_b32 v%d, 4, v%d\nv_lshl_add_u32 v%d, v9, 10, v%d" % (vSH, vKD, vSH, vKD, vKD))
    p("s_add_u32 s6, s5, %d\nv_add_u32 v%d, s6, v%d" % (56 * 1024, vKD + 2, vKD))
    p("s_lshl_b32 s6, s%d, 14\ns_add_u32 s5, s5, s6\nv_add_u32 v%d, s5, v%d" % (sWave, vKD + 1, vKD))
    p("v_add_u32 v%d, 0xffffe000, v%d\nv_add_u32 v%d, %d, v%d" % (vKD, vKD + 1, vKD + 3, 8192 - 1056, vKD + 1))
    p("s_lshl_b32 s6, s%d, 5\ns_add_u32 s6, s6, %d\nv_mul_u32_u24 v%d, 1056, v9\nv_lshl_add_u32 v%d, v%d, 2, v%d\nv_add_u32 v%d, s6, v%d" % (sWave, KVL, vKA, vKA, vSH, vKA, vKA, vKA))
    p("s_lshl_b32 s6, s4, 18\ns_lshl_b32 s7, s%d, 16\ns_add_u32 s6, s6, s7\ns_lshr_b32 s7, s3, 9\ns_sub_u32 s6, s6, s7\ns_add_u32 s6, s6, %d" % (sWave, WS_XR + 4080))
    p("v_lshlrev_b32 v%d, 13, v%d\nv_lshlrev_b32 v9, 4, v9\nv_sub_u32 v%d, v%d, v9\nv_add_u32 v%d, s6, v%d" % (vKO, vSH, vKO, vKO, vKO, vKO))
    p("s_lshl_b32 s6, s4, 9\ns_lshl_b32 s7, s%d, 7\ns_add_u32 s6, s6, s7\nv_lshl_add_u32 v%d, v%d, 4, s6" % (sWave, vSH, vSH))
    p("s_lshl_b32 s6, s2, 7\ns_lshl_b32 s7, s%d, 3\ns_add_u32 s6, s6, s7\ns_add_u32 s%d, s6, %d" % (sWave, sFlK, WS_FK))
    srd(p, sK, kK, 2048 * 1024); srd(p, sV, kV, 2048 * 1024); srd(p, sSh, kSH, 4096)
def kv_loads(opts):
    f = opts.get("fkv", "")
    L = ml("s_mul_i32 s52, s%d, 2112\ns_add_u32 s52, s52, %d\ns_mov_b32 m0, s52" % (sWave, KVL))
    L += [dma(vKD, sK, "0", 0, "kv", f), mk("s_add_u32 m0, s52, 1056"), dma(vKD + 1, sK, "0", 0, "kv", f),
          mk("s_mov_b32 m0, %d" % (KVL + 8 * 1056)), dma(vKD + 2, sK, "0", 0, "kv", f),
          mk("s_add_u32 m0, s52, %d" % (9 * 1056)), dma(vKD + 1, sV, "0", 0, "kv", f), dma(vKD + 3, sV, "0", 1056, "kv", f),
          mk("buffer_load_dwordx4 v[72:75], v%d, %s, 0 offen" % (vSH, S4(sSh)), vm="kv")]
    return L
def kv_compute():
    RK = 52; RV = 63; Wt = 76; K = 212; A = 223; V = 225
    L = []
    for j in range(11): L.append(mk("ds_read_b32 v%d, v%d offset:%d" % (RK + j, vKA, (5 + j) * 128 if j < 3 else 1056 + (j - 3) * 128), lg="kvr"))
    for t in range(8): L.append(mk("ds_read_b32 v%d, v%d offset:%d" % (RV + t, vKA, 9 * 1056 + t * 128), lg="kvr"))
    un = lambda d, s_, hi: mk(("v_and_b32 v%d, 0xffff0000, v%d" if hi else "v_lshlrev_b32 v%d, 16, v%d") % (d, s_))
    for e in range(2):
        for i in range(4): L.append(un(Wt + 4 * e + i, 72 + 2 * e + (i >> 1), i & 1))
    L.append(W(lg="kvr"))
    for e in range(2):
        o = (vNon, uPoll)[e]
        for j in range(11): L.append(un(K + j, RK + j, e))
        for t in range(8):
            a = A + (t & 1)
            L.append(mk("v_mul_f32 v%d, v%d, v%d" % (a, K + t, Wt + 4 * e + 3)))
            L.append(un(V, RV + t, e))
            for i in (2, 1, 0): L.append(mk("v_fmac_f32 v%d, v%d, v%d" % (a, K + t + 3 - i, Wt + 4 * e + i)))
            L.append(mk("v_mul_f32 v%d, v%d, v%d" % (a, a, V)))
            if t & 1: L.append(mk("v_cvt_pk_bf16_f32 v%d, v%d, v%d" % (o + 3 - (t >> 1), A + 1, A)))
    return L
def kv_stores():
    return [mk("s_mov_b32 s%d, 4096" % sT2),
            mk("buffer_store_dwordx4 %s, v%d, %s, 0 offen sc1" % (vr(vNon), vKO, S4(sWS)), vm="kvst"),
            mk("buffer_store_dwordx4 %s, v%d, %s, s%d offen sc1" % (vr(uPoll), vKO, S4(sWS), sT2), vm="kvst")]

SLOW = []
SPINS = []
SLEEP = {'*': 8, 'kva': 16, 'ng': 4, 'na': 4}
PROF = [0]
def spin(name, reload_, test, okbr):
    t = ["L_slow_%s:" % name, "s_mov_b32 s%d, 1" % sSpin, "L_spin_%s:" % name, "s_sleep %d" % SLEEP.get(name, SLEEP['*'])]
    if PROF[0]:
        SPINS.append(name); t.append("v_writelane_b32 v255, s%d, %d" % (sSpin, 47 + len(SPINS)))
    t += [x.t for x in reload_] + ["s_waitcnt vmcnt(0)"] + [x.t for x in test]
    t += ["%s L_ok_%s" % (okbr, name), "s_add_u32 s%d, s%d, 1" % (sSpin, sSpin), "s_cmp_lt_u32 s%d, %d" % (sSpin, SPIN_MAX),
          "s_cbranch_scc1 L_spin_%s" % name, "s_branch L_ok_%s" % name]
    SLOW.append("\n".join(t))
def poll_check(name, regs, reload_, bits=64):
    L = []
    for i, r in enumerate(regs):
        op = "v_cmp_ne_u64 %%s, s[%d:%d], v[%d:%d]" % (sTag, sTag + 1, r, r + 1) if bits == 64 else "v_cmp_ne_u32 %%s, s%d, v%d" % (sTag, r)
        if i == 0: L.append(mk(op % "vcc"))
        else: L += ml(op % "s[4:5]" + "\ns_or_b64 vcc, vcc, s[4:5]")
    spin(name, reload_, L, "s_cbranch_vccz")
    return L + [mk("s_cbranch_vccnz L_slow_%s" % name), I("L_ok_%s:" % name, kind="label", cost=0)]
def nonce_get(name):
    ld = mk("global_load_dwordx2 v[%d:%d], v%d, s[%d:%d] sc1" % (vNon, vNon + 1, vNon + 2, sDbg, sDbg + 1), vm="non")
    t = ml("v_readfirstlane_b32 s%d, v%d\nv_readfirstlane_b32 s%d, v%d\ns_cmp_lg_u32 s%d, 0" % (sTag, vNon, sTag + 1, vNon + 1, sTag))
    spin(name, [ld], t, "s_cbranch_scc1")
    chk = t[:2] + [bundle(t[2].t + "\ns_cbranch_scc0 L_slow_%s" % name), I("L_ok_%s:" % name, kind="label", cost=0)]
    chk += ml("v_mov_b32 v%d, v%d\nv_mov_b32 v%d, v%d" % (vTag, vNon, vTag + 1, vNon + 1))
    return ld, chk

def g1_epilogue(tile, opts):
    A0 = acc_of(tile)
    c4 = vST + 4 * tile + 1; c1 = vST + 4 * tile + 2
    g = [A0 + (p >> 2) * 8 + (p & 3) for p in range(8)]
    u = [x + 4 for x in g]
    o = vOUT + 4 * (tile & 1)
    st = []
    for p in range(8):
        t = vTMP + p
        st.append([mk("v_mul_f32 v%d, v%d, v%d" % (g[p], g[p], c1)), mk("v_exp_f32 v%d, v%d" % (t, g[p])),
                   mk("v_mul_f32 v%d, v%d, v%d" % (u[p], g[p], u[p])), mk("v_fma_f32 v%d, v%d, v%d, v%d" % (t, t, c4, c4)),
                   mk("v_rcp_f32 v%d, v%d" % (t, t)), mk("v_mul_f32 v%d, v%d, v%d" % (u[p], u[p], t))])
    R = []; pend = []
    for step in range(18):
        for k in (5, 4, 3, 2, 1, 0):
            p = step - 2 * k
            if 0 <= p < 8:
                R.append(st[p][k])
                for q in pend: R.append(mk("v_cvt_pk_bf16_f32 v%d, v%d, v%d" % (o + (q >> 1), u[q - 1], u[q])))
                pend = [p] if (k == 5 and p & 1) else []
    for q in pend: R.append(mk("v_cvt_pk_bf16_f32 v%d, v%d, v%d" % (o + (q >> 1), u[q - 1], u[q])))
    R.append(mk("s_add_u32 s%d, s%d, %d" % (sT3, sHa, tile * 112 * 1024)))
    if not opts.get("x_nohst"): R.append(mk("buffer_store_dwordx4 %s, v%d, %s, s%d offen%s" % (vr(o), vL16, S4(sWS), sT3, "" if opts.get("x_hplain") else opts.get("fh", " sc1")), vm="hst%d" % tile))
    return R

def common_setup(p, opts):
    p("v_and_b32 v1, 63, v0\nv_lshrrev_b32 v2, 6, v0\nv_lshlrev_b32 v%d, 4, v1\nv_readfirstlane_b32 s%d, v2" % (vL16, sWave))
    p("v_lshrrev_b32 v2, 3, v1\nv_and_b32 v3, 7, v1\nv_lshrrev_b32 v9, 4, v1\nv_mov_b32 v%d, 0" % (vNon + 2))

def phase2_setup(p, opts):
    q, n, a, b, c, d = 40, 41, 42, 43, 44, 45
    p("s_and_b32 s3, s2, 7\ns_lshr_b32 s4, s2, 3\ns_lshl_b32 s3, s3, 2\ns_and_b32 s5, s4, 3\ns_add_u32 s%d, s3, s5\ns_lshr_b32 s%d, s4, 2" % (sTB2, sDB))
    if opts.get("dbx", 3): p("s_xor_b32 s%d, s%d, %d" % (sDB, sDB, opts.get("dbx", 3)))
    p("v_lshrrev_b32 v%d, 4, v1\nv_and_b32 v%d, 15, v1" % (q, n))
    p("v_lshrrev_b32 v%d, 3, v1\nv_and_b32 v%d, 7, v1\nv_and_b32 v%d, 1, v%d\nv_lshlrev_b32 v%d, 2, v%d\nv_xor_b32 v%d, v%d, v%d" % (a, b, c, q, c, c, c, c, b))
    p("s_lshl_b32 s7, s%d, 7\ns_mul_i32 s5, s%d, %d\ns_add_u32 s7, s7, s5" % (sDB, sWave, 448 * 1024))
    p("v_lshlrev_b32 v%d, 4, v%d\nv_lshl_add_u32 v%d, v%d, 10, v%d\nv_add_u32 v%d, s7, v%d" % (c, c, c, a, c, uWD, c))
    for j in range(1, 4): p("v_add_u32 v%d, %d, v%d" % (uWD + j, 7168 * j, uWD))
    p("s_lshr_b32 s5, s%d, 2\ns_lshl_b32 s5, s5, 4\ns_and_b32 s6, s%d, 3\ns_lshl_b32 s6, s6, 1\ns_add_u32 s6, s5, s6" % (sTB2, sTB2))
    p("s_mul_i32 s5, s6, 57344\ns_mul_i32 s7, s%d, 28672\ns_add_u32 s5, s5, s7\nv_add_u32 v%d, s5, v%d\nv_add_u32 v%d, %d, v%d" % (sWave, uH, vL16, uH + 1, 8 * 57344, uH))
    p("s_lshl_b32 s5, s6, 4\ns_lshl_b32 s7, s%d, 3\ns_add_u32 s5, s5, s7\nv_lshrrev_b32 v%d, 5, v1\nv_and_b32 v%d, 3, v1\nv_lshl_add_u32 v%d, v%d, 2, v%d\nv_add_u32 v%d, s5, v%d" % (sWave, c, d, c, c, d, c, c))
    p("v_bfe_u32 v%d, v1, 2, 3\nv_lshlrev_b32 v%d, 4, v%d\nv_lshl_add_u32 v%d, v%d, 10, v%d\ns_lshl_b32 s7, s%d, 7\nv_add_u32 v%d, s7, v%d" % (d, d, d, d, c, d, sDB, uX, d))
    p("v_lshlrev_b32 v%d, 3, v%d\nv_add_u32 v%d, %d, v%d" % (c, c, uSto, WS_ST, c))
    p("v_bfe_u32 v%d, v1, 2, 2\nv_lshrrev_b32 v%d, 5, v1\nv_lshl_add_u32 v%d, v%d, 3, v%d\nv_lshlrev_b32 v%d, 7, v%d\nv_lshrrev_b32 v%d, 1, v%d\nv_lshl_add_u32 v%d, v%d, 6, v%d" % (a, b, b, b, a, b, b, a, a, b, a, b))
    p("v_and_b32 v%d, 1, v%d\nv_lshl_add_u32 v%d, v%d, 5, v%d\nv_and_b32 v%d, 3, v1\nv_lshl_add_u32 v%d, v%d, 3, v%d\nv_add_u32 v%d, s%d, v%d\nv_xor_b32 v%d, 64, v%d" % (a, q, b, a, b, a, b, a, b, uTR, sWdL, b, uTR + 1, uTR))
    p("v_add_u32 v%d, 1, v%d\nv_and_b32 v%d, 1, v%d\nv_sub_u32 v%d, v%d, v%d\nv_lshl_add_u32 v%d, v%d, 3, v%d\nv_lshlrev_b32 v%d, 1, v%d" % (a, n, b, a, a, a, b, a, q, a, a, a))
    p("v_mul_u32_u24 v%d, 4160, v%d\ns_lshl_b32 s7, s%d, 8\ns_add_u32 s7, s7, s%d\nv_add3_u32 v%d, v%d, v%d, s7" % (b, b, sHalf, sCV, uCA, a, b))
    p("v_lshlrev_b32 v%d, 5, v%d\nv_lshlrev_b32 v%d, 4, v%d\nv_sub_u32 v%d, v%d, v%d\ns_add_u32 s7, s7, %d\nv_add_u32 v%d, s7, v%d" % (a, n, b, q, a, b, a, XR_OFF + 480, uCB, a))
    p("v_and_b32 v%d, 1, v%d\nv_mul_u32_u24 v%d, 4160, v%d\nv_lshl_add_u32 v%d, v%d, 1, v%d\nv_add_u32 v%d, s%d, v%d" % (a, q, a, a, a, n, a, uHeadA, sCV, a))
    p("v_mov_b32 v46, 0\nv_mov_b32 v47, 0\nv_lshlrev_b32 v%d, 3, v1\ns_add_u32 s7, s%d, %d\nv_add_u32 v%d, s7, v%d" % (a, sCV, XR_OFF + 4096, a, a))
    p("ds_write_b64 v%d, v[46:47]" % a)
    p("v_and_b32 v%d, 2, v%d\nv_lshlrev_b32 v%d, 3, v%d\nv_and_b32 v%d, 1, v%d\nv_lshl_add_u32 v%d, v%d, 5, v%d\nv_bfe_u32 v%d, v%d, 1, 2\nv_lshl_add_u32 v%d, v%d, 7, v%d\nv_lshrrev_b32 v%d, 3, v%d\nv_lshl_add_u32 v%d, v%d, 6, v%d\nv_and_b32 v%d, 1, v%d\nv_lshl_add_u32 v%d, v%d, 9, v%d" % (a, q, a, a, b, n, a, b, a, b, n, a, b, a, b, n, a, b, a, b, q, uYst, b, a))
    p("s_lshl_b32 s7, s%d, 11\ns_add_u32 s7, s7, s%d\ns_add_u32 s%d, s7, %d" % (sHalf, sCh4k, sYoff, WS_YT))
    p("s_lshl_b32 s7, s2, 13\ns_lshl_b32 s3, s%d, 10\ns_add_u32 s7, s7, s3\ns_add_u32 s%d, s7, %d" % (sWave, sXRso, WS_XR))
    p("s_lshl_b32 s7, s2, 7\ns_add_u32 s%d, s7, %d" % (sFlY, WS_FY))
    p("v_and_b32 v%d, 7, v1\nv_lshlrev_b32 v%d, 7, v%d" % (a, a, a))
    p("s_lshl_b32 s7, s%d, 12\ns_lshl_b32 s3, s%d, 10\ns_add_u32 s7, s7, s3\ns_add_u32 s7, s7, %d\nv_add_u32 v%d, s7, v%d" % (sDB, sWave, WS_FY, uFY, a))
    p("v_min_u32 v%d, 6, v1\nv_lshlrev_b32 v%d, 7, v%d" % (a, a, a))
    p("s_lshr_b32 s7, s%d, 2\ns_lshl_b32 s7, s7, 5\ns_mul_i32 s3, s%d, 7\ns_add_u32 s7, s7, s3\ns_lshl_b32 s7, s7, 7\ns_add_u32 s7, s7, %d\nv_add_u32 v%d, s7, v%d" % (sTB2, sWave, WS_FH, uFH, a))
    p("v_and_b32 v%d, 7, v1\nv_lshlrev_b32 v%d, 10, v%d\ns_lshr_b32 s7, s2, 5\ns_lshl_b32 s7, s7, 7\ns_and_b32 s3, s2, 24\ns_add_u32 s7, s7, s3" % (a, a, a))
    p("s_lshl_b32 s3, s%d, 13\ns_sub_u32 s7, s7, s3\ns_add_u32 s7, s7, %d\nv_sub_u32 v%d, s7, v%d" % (sWave, WS_FK + 31 * 1024, uFK, a))
    p("v_cmp_ne_u32 vcc, 0, v1\nv_mov_b32 v%d, 0x80000000\nv_mov_b32 v%d, 0\nv_cndmask_b32 v%d, v%d, v%d, vcc" % (a, b, vFl, b, a))

def hk_srds(p):
    p("s_add_u32 s%d, s60, s%d\ns_addc_u32 s%d, s61, 0\ns_and_b32 s%d, s%d, 0xffff\ns_sub_u32 s%d, 0x200000, s%d\ns_mov_b32 s%d, 0x20000" % (sHk, sCh4k, sHk + 1, sHk + 1, sHk + 1, sHk + 2, sCh4k, sHk + 3))
    srd(p, sDp, kD, 1024)
def ids2(p):
    p("s_lshr_b32 s3, s%d, 1\ns_lshl_b32 s4, s2, 1\ns_add_u32 s4, s4, s3\ns_mul_i32 s%d, s3, %d\ns_add_u32 s%d, s%d, %d" % (sWave, sCV, CH_STRIDE, sCV, sCV, CONV))
    p("s_and_b32 s%d, s%d, 1\ns_lshl_b32 s%d, s4, 12\ns_lshl_b32 s%d, s4, 1\ns_lshl_b32 s%d, s%d, 12" % (sHalf, sWave, sCh4k, sDoff, sWdL, sWave))
    p("v_bfe_u32 v40, v1, 4, 1\nv_and_b32 v41, 15, v1\nv_add_u32 v42, v40, v41\nv_add_u32 v42, -16, v42\nv_lshlrev_b32 v%d, 1, v42" % uHead)
RHO = [2, 4, 1]
def phase2_srds():
    L = []
    for d, lo, size in ((sWd, kWD, 1792 * 1024), (sOut, kOUT, 2048 * 1024)):
        L += ml("s_mov_b32 s%d, s%d\ns_and_b32 s%d, s%d, 0xffff\ns_mov_b32 s%d, 0x%x\ns_mov_b32 s%d, 0x20000" % (d, lo, d + 1, lo + 1, d + 2, size, d + 3))
    L += ml("s_mul_i32 s3, s%d, %d\ns_and_b32 s7, s%d, 3\ns_mul_i32 s7, s7, %d\ns_add_u32 s3, s3, s7\ns_lshr_b32 s7, s%d, 2\ns_mul_i32 s7, s7, %d\ns_add_u32 s3, s3, s7" % (sDB, RHO[0], sTB2, RHO[1], sTB2, RHO[2]))
    L += ml("s_mul_i32 s7, s3, 4682\ns_lshr_b32 s7, s7, 16\ns_mul_i32 s7, s7, 14\ns_sub_u32 s3, s3, s7\ns_lshl_b32 s3, s3, 15")
    for s in range(14):
        L += ml("s_mov_b32 s%d, s3" % (sTabW + s))
        if s < 13: L += ml("s_add_u32 s3, s3, 0x8000") + [bundle("s_cmp_eq_u32 s3, 0x70000\ns_cselect_b32 s3, 0, s3")]
    return L

class Filler:
    def __init__(self, space=2):
        self.vq = []; self.xq = []; self.last = -9; self.space = space
    def v(self, at, L): self.vq += [(at, x) for x in L]
    def x(self, at, L): self.xq += [(at, y) for y in L]
    def fill(self, gi, gap, budget, xbudget=None, novm=False):
        used = lambda: sum(y.cost for y in gap)
        nv = 0
        for q in (self.vq, self.xq):
            if q and q[0][1].kind == "delay" and q[0][0] <= gi:
                n = q.pop(0)[1].vm
                if q: q[0] = (max(q[0][0], gi + n), q[0][1])
        while not novm and self.vq and self.vq[0][0] <= gi and used() + self.vq[0][1].cost <= budget:
            at, y = self.vq[0]
            if y.kind == "delay": break
            if is_vm(y) and y.t.endswith(" lds"):
                lag = gi - at
                if nv >= 1 or (gi - self.last < self.space and lag < 14): break
                nv += 1; self.last = gi
            gap.append(y); self.vq.pop(0)
            if is_m0(y): break
        while self.xq and self.xq[0][0] <= gi and used() + self.xq[0][1].cost <= (xbudget or budget):
            if self.xq[0][1].kind == "delay": break
            gap.append(self.xq.pop(0)[1])

def gemm1(p, opts):
    p("s_sub_u32 s3, s2, 32\ns_and_b32 s4, s3, 7\ns_lshr_b32 s5, s3, 3")
    p("s_and_b32 s6, s4, 1\ns_and_b32 s7, s5, 3\ns_lshl_b32 s34, s7, 1\ns_add_u32 s34, s34, s6\ns_lshl_b32 s6, s6, 2\ns_add_u32 s%d, s6, s7" % sTB)
    p("s_lshr_b32 s6, s4, 1\ns_mul_i32 s6, s6, 7\ns_lshr_b32 s7, s5, 2\ns_add_u32 s7, s7, %d\ns_cmp_ge_u32 s7, 7\ns_cselect_b32 s5, 7, 0\ns_sub_u32 s7, s7, s5\ns_add_u32 s%d, s6, s7" % (opts.get("cbr", 0), sCB)) if opts.get("cbr") else p("s_lshr_b32 s6, s4, 1\ns_mul_i32 s6, s6, 7\ns_lshr_b32 s7, s5, 2\ns_add_u32 s%d, s6, s7" % sCB)
    SG = opts.get("sig", 1)
    if SG == 0: p("s_mov_b32 s34, 0")
    elif SG == 1: p("s_and_b32 s34, s4, 1\ns_lshl_b32 s34, s34, 2\ns_and_b32 s6, s4, 6\ns_add_u32 s34, s34, s6\ns_and_b32 s34, s34, 7")
    elif SG == 5: p("s_lshr_b32 s6, s4, 1\ns_xor_b32 s34, s6, s%d" % sTB)
    elif SG == 6: p("s_lshr_b32 s6, s4, 1\ns_and_b32 s34, s%d, 6\ns_xor_b32 s34, s6, s34" % sTB)
    elif SG == 2: p("s_add_u32 s34, s34, s%d\ns_and_b32 s34, s34, 7" % sCB)
    elif SG == 3: p("s_and_b32 s34, s4, 1\ns_lshl_b32 s34, s34, 2\ns_and_b32 s6, s4, 6\ns_add_u32 s34, s34, s6\ns_and_b32 s6, s%d, 1\ns_add_u32 s34, s34, s6\ns_and_b32 s34, s34, 7" % sTB)
    elif SG == 4: p("s_and_b32 s34, s4, 1\ns_lshl_b32 s34, s34, 2\ns_and_b32 s6, s4, 6\ns_add_u32 s34, s34, s6\ns_and_b32 s6, s%d, 1\ns_lshl_b32 s6, s6, 2\ns_add_u32 s34, s34, s6\ns_and_b32 s34, s34, 7" % sCB)
    p("v_xor_b32 v5, v9, v3\nv_lshlrev_b32 v5, 4, v5\nv_lshl_add_u32 v%d, v2, 10, v5\nv_xor_b32 v5, 64, v%d" % (vXD, vXD))
    p("v_add_u32 v%d, 7168, v5\nv_add_u32 v%d, 14336, v%d\nv_add_u32 v%d, 21504, v5" % (vXD + 1, vXD + 2, vXD, vXD + 3))
    p("s_lshr_b32 s3, s%d, 1\ns_lshl_b32 s3, s3, 2" % sWave)
    p("v_and_b32 v5, 1, v9\nv_lshlrev_b32 v5, 1, v5\nv_xor_b32 v5, s3, v5\nv_xor_b32 v5, v5, v3\nv_lshlrev_b32 v5, 4, v5")
    p("s_and_b32 s4, s%d, 1\ns_mul_i32 s4, s4, %d\ns_lshl_b32 s5, s%d, 7\ns_add_u32 s4, s4, s5" % (sWave, 32 * 3584, sCB))
    p("v_mul_u32_u24 v6, 3584, v2\nv_add3_u32 v%d, v5, v6, s4" % vWD)
    for j in range(1, 4): p("v_add_u32 v%d, %d, v%d" % (vWD + j, j * (8 * 3584 - 1024), vWD))
    p("s_lshl_b32 s35, s%d, 18\ns_lshl_b32 s5, s%d, 15\ns_add_u32 s7, s35, s5" % (sTB, sWave))
    p("s_lshl_b32 s%d, s%d, 12\ns_add_u32 s%d, s%d, 16384" % (sLdsW, sWave, sLdsX, sLdsW))
    p("s_mul_i32 s%d, s34, %d\ns_lshl_b32 s3, s34, 7\ns_add_u32 s%d, s3, s7" % (sTab + 4, 64 * 3584, sTab + 8))
    p("s_waitcnt lgkmcnt(0)")
    srd(p, sQ, kQ, 2048 * 1024)
    p("s_cmp_ge_u32 s%d, 2\ns_cselect_b32 s66, s68, s66\ns_cselect_b32 s67, s69, s67" % sWave)
    srd(p, sW, kWG, 512 * 3584)
    stamp(p, "g.karg", opts, 2)
    W2 = opts.get("wt2", 0); X2 = opts.get("xt2", W2)
    if W2:
        p("v_add_u32 v5, s34, v2\nv_and_b32 v5, 7, v5\nv_lshlrev_b32 v7, 7, v5\nv_lshl_add_u32 v5, v5, 6, v3\ns_and_b32 s3, s%d, 3\ns_mul_i32 s3, s3, %d\ns_add_u32 s3, s3, s4" % (sTB, 8 * 3584))
        p("v_mul_u32_u24 v5, 3584, v5\nv_cmp_gt_u32 vcc, %d, v2\nv_add_u32 v5, s3, v5\nv_mov_b32 v6, -1\nv_cndmask_b32 v5, v6, v5, vcc" % W2)
        p("buffer_load_dword v8, v5, %s, 0 offen" % S4(sW), vm="wt")
        p("s_lshr_b32 s3, s2, 5\ns_sub_u32 s3, s3, 1\ns_mul_i32 s3, s3, 5\nv_add_u32 v5, s3, v3\nv_cmp_gt_u32 vcc, 5, v3\nv_cmp_gt_u32 s[26:27], 32, v5\nv_cmp_gt_u32 s[28:29], %d, v2" % X2)
        p("v_lshl_add_u32 v5, v5, 10, v7\ns_and_b64 vcc, vcc, s[26:27]\ns_and_b64 vcc, vcc, s[28:29]\nv_add_u32 v5, s7, v5\nv_cndmask_b32 v5, v6, v5, vcc")
        p("buffer_load_dword v8, v5, %s, 0 offen" % S4(sQ), vm="wt")
    st0 = g1_stage(0, opts)
    for x in st0: x.t = x.t.replace("s%d offen" % sTab, "s%d offen" % (sTab + 4))
    seq(p, st0)
    stamp(p, "g.st0", opts, 2)
    WT = opts.get("wt", 0)
    if WT:
        p("v_add_u32 v5, s34, v2\nv_add_u32 v5, 1, v5\nv_and_b32 v5, 7, v5\nv_lshl_add_u32 v5, v5, 6, v3\ns_and_b32 s3, s%d, 3\ns_mul_i32 s3, s3, %d\ns_add_u32 s3, s3, s4" % (sTB, 8 * 3584))
        p("v_mul_u32_u24 v5, 3584, v5\nv_cmp_gt_u32 vcc, %d, v2\nv_add_u32 v5, s3, v5\nv_mov_b32 v6, -1\nv_cndmask_b32 v5, v6, v5, vcc" % WT)
        p("buffer_load_dword v6, v5, %s, 0 offen" % S4(sW), vm="wt")
    p("s_mov_b32 s27, s7")
    srd(p, sWS, kWS, WS_SZ)
    p("s_mov_b32 s%d, s74\ns_mov_b32 s%d, s75" % (sDbg, sDbg + 1))
    kv_setup(p)
    ids2(p); hk_srds(p)
    for s in range(1, 8):
        p(("s_xor_b32 s3, s34, %d" if SG >= 5 else "s_add_u32 s3, s34, %d\ns_and_b32 s3, s3, 7") % s)
        p("s_mul_i32 s%d, s3, %d\ns_lshl_b32 s3, s3, 7\ns_add_u32 s%d, s3, s27" % (sTab + s, 64 * 3584, sTab + 8 + s))
    p("s_lshl_b32 s%d, s%d, 13\ns_add_u32 s6, s35, %d" % (sLdsXB, sWave, 0 if opts.get("x_xsame") else 0x20000))
    for h in range(2):
        if SG >= 5: p("s_lshl_b32 s3, s%d, 1\ns_add_u32 s3, s3, %d\ns_xor_b32 s3, s3, s34\ns_lshl_b32 s3, s3, 7\ns_add_u32 s%d, s3, s6" % (sWave, h, sXB + h))
        else: p("s_lshl_b32 s3, s%d, 1\ns_add_u32 s3, s3, s34\ns_add_u32 s3, s3, %d\ns_and_b32 s3, s3, 7\ns_lshl_b32 s3, s3, 7\ns_add_u32 s%d, s3, s6" % (sWave, h, sXB + h))
    p("s_lshl_b32 s3, s%d, 2\ns_add_u32 s3, s3, s%d\ns_lshl_b32 s3, s3, 10\ns_mul_i32 s4, s%d, %d\ns_add_u32 s%d, s3, s4" % (sCB, sWave, sTB, 16 * 57344, sHa))
    p("s_lshl_b32 s4, s%d, 11\ns_add_u32 s%d, s4, %d" % (sTB, sST, WS_ST))
    a, b, c, d, e, f = 40, 41, 42, 43, 44, 45
    p("v_and_b32 v%d, 31, v1\nv_lshrrev_b32 v%d, 5, v1\nv_lshlrev_b32 v%d, 3, v1" % (a, b, vSToff))
    p("s_lshl_b32 s3, s%d, 5\ns_add_u32 s3, s3, s%d\ns_lshl_b32 s3, s3, 7\ns_add_u32 s%d, s3, %d" % (sTB, sCB, sFlH, WS_FH))
    p("v_bfe_u32 v%d, v1, 1, 3\nv_xor_b32 v%d, v%d, v%d\nv_lshlrev_b32 v%d, 4, v%d\nv_lshl_add_u32 v%d, v%d, 7, v%d" % (c, c, c, b, c, c, vXA, a, c))
    for ks in range(1, 4): p("v_xor_b32 v%d, %d, v%d" % (vXA + ks, 32 * ks, vXA))
    for ks in range(4): p("v_add_u32 v%d, 0x10000, v%d" % (vXA + 4 + ks, vXA + ks))
    p("v_bfe_u32 v%d, v1, 2, 2\nv_bfe_u32 v%d, v1, 1, 1\nv_and_b32 v%d, 1, v1\nv_bfe_u32 v%d, v1, 4, 1" % (a, c, d, e))
    p("v_lshrrev_b32 v%d, 1, v%d\nv_lshl_add_u32 v%d, v%d, 1, v%d\nv_xor_b32 v%d, s%d, v%d\nv_lshlrev_b32 v%d, 5, v%d" % (f, a, f, c, f, f, sWave, f, f, f))
    p("v_lshl_add_u32 v%d, v%d, 4, v%d\nv_lshl_add_u32 v%d, v%d, 3, v%d\nv_lshl_add_u32 v%d, v%d, 13, v%d" % (f, d, f, f, e, f, f, c, f))
    p("v_lshl_add_u32 v%d, v%d, 3, v%d\nv_lshl_add_u32 v%d, v%d, 7, v%d\nv_add_u32 v%d, 0x10000, v%d" % (a, b, a, vWA, a, f, vWA + 1, vWA))
    stamp(p, "g.set1", opts, 2)
    if not opts.get("p2in", 1): phase2_setup(p, opts)
    for r in range(2 if opts.get("cs4", 1) else 4): p("v_mov_b32 v%d, 0x3f803f80" % (vOnes + r))
    stamp(p, "g.set2", opts, 2)
    KVP = opts.get("kvp", 2)
    nld, nchk = nonce_get("ng")
    HKP = opts.get("hkp", 9)
    hkl = hk_loads(opts) if HKP == 0 else []
    if KVP == 0: seq(p, kv_loads(opts) + hkl)
    stamp(p, "g.kvis", opts, 2)
    S1IN = opts.get("s1in", 0)
    NL = opts.get("nlate", 1)
    if not S1IN:
        seq(p, g1_stage(1, opts))
        if not NL: p.add(nld)
    if KVP == 1: seq(p, kv_loads(opts) + hkl)
    if opts.get("tlb"):
        sh = opts["tlb"]
        p("v_lshlrev_b32 v52, %d, v1\nbuffer_load_dword v53, v52, %s, 0 offen" % (sh, S4(sWS)), vm="tlb")
        p("v_min_u32 v52, 0x1bff00, v52\nglobal_load_dword v54, v52, s[70:71]\nglobal_load_dword v55, v52, s[72:73]\nglobal_load_dword v56, v52, s[60:61]", vm="tlb")
    stamp(p, "g.st1", opts)

    def rdW(n):
        s, ks = n >> 2, n & 3
        w, off = win((s % 3) * SLOT + ks * 2048)
        return [mk("ds_read_b64_tr_b16 a[%d:%d], v%d offset:%d" % (4 * n, 4 * n + 1, vWA + w, off), lg="W%d" % n),
                mk("ds_read_b64_tr_b16 a[%d:%d], v%d offset:%d" % (4 * n + 2, 4 * n + 3, vWA + w, off + 512), lg="W%d" % n)]
    def rdXA(n, i):
        s, ks = n >> 2, n & 3
        w, off = win((s % 3) * SLOT + 16384 + i * 4096)
        return mk("ds_read_b128 %s, v%d offset:%d" % (vr(vXF + 16 * (n & 1) + 4 * i), vXA + 4 * w + ks, off), lg="X%d_%d" % (n, i))
    def rdXB(bb, n):
        w, off = win(((8 + bb) % 3) * SLOT + (n >> 2) * 4096)
        return mk("ds_read_b128 %s, v%d offset:%d" % (vr(vXF + 4 * (n & 7)), vXA + 4 * w + (n & 3), off), lg="B%d_%d" % (bb, n))

    fr = opts.get("fr", " sc1")
    st_loads = [mk("buffer_load_dwordx2 %s, v%d, %s, s%d offen offset:%d%s" % (vr(vCSR + 8 + 2 * t, 2), vSToff, S4(sWS), sST, t * 512, fr), vm="rec") for t in range(4)]
    post = poll_check("rec", [vCSR + 8 + 2 * t + 1 for t in range(4)], [mk(y.t.replace(fr, " sc1") if fr else y.t + " sc1") for y in st_loads], 32)
    for t in range(4): post += ml("v_mov_b32 v%d, v%d\nv_mov_b32 v%d, v%d" % (vST + 8 * t + 1, vCSR + 8 + 2 * t, vST + 8 * t + 5, vCSR + 8 + 2 * t))
    post += ml("s_mov_b32 s%d, 0x01000100" % sT2)
    for t in range(4): post += ml("v_permlane32_swap_b32 v%d, v%d" % (vST + 8 * t + 1, vST + 8 * t + 5))
    for t in range(8): post += ml("v_perm_b32 v%d, v%d, v%d, s%d" % (vST + 4 * t, vST + 4 * t + 1, vST + 4 * t + 1, sT2))
    for t in range(8): post += ml("v_and_b32 v%d, 0xffff0000, v%d" % (vST + 4 * t + 1, vST + 4 * t + 1))
    for t in range(8): post += ml("v_mul_f32 v%d, %s, v%d" % (vST + 4 * t + 1, hex(f2u(-LOG2E)), vST + 4 * t + 1))
    post += ml("v_mov_b32 v%d, v%d\nv_mov_b32 v%d, v%d" % (vR1B, vST, vR1B + 4, vST + 4))
    csfin = ml("v_cvt_pk_bf16_f32 v%d, v%d, v%d\nv_and_b32 v%d, 0xffff0000, v%d\nv_sub_f32 v%d, v%d, v%d\nv_cvt_pk_bf16_f32 v%d, v%d, v%d\nv_and_b32 v%d, v186, v%d"
               % (184, vCSA, vCSA, 184, 184, 185, vCSA, 184, 184, 184, 185, vR1A, 184))
    if opts.get("cs4", 1):
        csfin = ml("v_add_f32 v%d, v%d, v%d\nv_mov_b32 v%d, v%d\ns_nop 1\nv_permlane32_swap_b32 v%d, v%d\nv_add_f32 v%d, v%d, v%d" % (vCSA, vCSA, vCSA + 4, vCSA + 1, vCSA, vCSA, vCSA + 1, vCSA, vCSA, vCSA + 1)) + csfin
    cst = lambda t: ml("v_rcp_f32 v%d, v%d" % (vST + 4 * t + 2, vST + 4 * t + 1))
    cmu = lambda t: ml("v_mul_f32 v%d, %s, v%d" % (vST + 4 * t + 2, hex(f2u(LOG2E * LOG2E)), vST + 4 * t + 2))
    for t in range(4): post += cst(t)
    for t in range(4): post += cmu(t)

    if opts.get("x_norec"):
        st_loads = []; post = [y for y in post if "cbranch" not in y.t]
    F = Filler(opts.get("aspace", 2))
    RL = opts.get("recst", 5)
    if S1IN: F.v(-20, g1_stage(1, opts) + [nld])
    for s in range(8):
        F.v(max(0, 16 * s - 3) if not (S1IN and s == 0) else -20, g1_stage(s + 2, opts))
        if NL and s == 0 and not S1IN: F.v(0, [nld])
        if KVP >= 2 and s + 2 == KVP: F.v(0, kv_loads(opts) + hkl)
        if HKP and HKP < 10 and s + 2 == HKP: F.v(0, hk_loads(opts))
        if s == opts.get("kvst", 8) and not opts.get("x_nokvs"): F.v(0, kv_stores())
        if s == RL - 1: F.v(16 * RL - 4, st_loads)
        if s == 7 and opts.get("kvst", 8) < 8: F.v(16 * 7 + 8, [W(vm="kvst"), flag_store(sFlK)])
    if opts.get("p2in", 1):
        q_ = Prog(); phase2_setup(q_, opts)
        L_ = q_.ins; F.x(0, L_[:-4] + [bundle("\n".join(y.t for y in L_[-4:]))])
    F.x(0, ml("v_lshrrev_b32 v186, 5, v1\nv_add_u32 v186, -1, v186"))
    F.x(0, [mk("v_mov_b32 v%d, 0" % r) for r in (vR1A + 1, vR1A + 2, vR1A + 3)])
    F.x(0, [mk("v_mov_b32 v%d, 0" % r) for r in (vR1B + 1, vR1B + 2, vR1B + 3, vR1B + 5, vR1B + 6, vR1B + 7)])
    F.x(29 if NL else 13, [W(vm="non")] + nchk)
    sr = phase2_srds()
    if opts.get("sre", 0): F.x(16 * KVP - 1 if KVP >= 2 else 0, sr); sr = []
    kc = kv_compute()
    if opts.get("x_nokvr"): kc = [y for y in kc if not y.t.startswith("ds_")]
    if opts.get("x_nokvv"): kc = [y for y in kc if not y.t.startswith("v_")]
    F.x(13 if KVP == 0 else 16 * (KVP + 1) - 3, kc)
    KVS = I("; kv done", cost=0); KVS.kind = "label"
    F.x(0, [KVS] + (hk_build() if HKP == 0 else []) + sr[:8])
    F.x(0, sr[8:])
    F.x(16 * (RL + 2) - 3 + opts.get("postat", 0), [W(vm="rec")] + post)
    p.wait(vm="st0")
    p("s_barrier")
    stamp(p, "g.st0in", opts)
    for x in rdW(0): p.add(x)
    for i in range(4): p.add(rdXA(0, i))
    PD = opts.get("pd", 7); WE = opts.get("we", 4)
    BA = opts.get("buda", 28)
    for n in range(32):
        s, ks = n >> 2, n & 3
        gaps = [[], [], [], []]
        if ks == 3: gaps[0] += [W(vm="st%d" % (s + 1), lg="*"), mk("s_barrier")]
        if n < 31:
            gaps[0] += rdW(n + 1); gaps[1] += [rdXA(n + 1, 0), rdXA(n + 1, 1)]; gaps[2] += [rdXA(n + 1, 2), rdXA(n + 1, 3)]
        else:
            gaps[0] += [rdXB(0, 0), rdXB(0, 1)]; gaps[1] += [rdXB(0, 2), rdXB(0, 3)]
        for i in range(4):
            if i in (0, 2): p.wait(lg=["W%d" % n, "X%d_%d" % (n, i + 1)])
            if opts.get("cs4", 1):
                if i in (0, 1): p("v_mfma_f32_4x4x4_16b_bf16 %s, %s, a[%d:%d], %s" % (vr(vCSA + 4 * i), vr(vOnes, 2), 4 * n + 2 * i, 4 * n + 2 * i + 1, vr(vCSA + 4 * i) if n else "0"))
            elif i == 0:
                p("v_mfma_f32_32x32x16_bf16 %s, %s, a[%d:%d], %s" % (vr(vCSA, 16), vr(vOnes), 4 * n, 4 * n + 3, vr(vCSA, 16) if n else "0"))
                g5 = []; F.fill(4 * n, g5, BA, novm=True)
                for x in g5: p.add(x)
            if n == 31 and i == 2 and opts.get("cs4", 1): gaps[i] += csfin[:5]; csfin = csfin[5:]
            if n == 31 and i == 3: gaps[i] += csfin
            a = acc_of(i)
            p("v_mfma_f32_32x32x16_bf16 %s, a[%d:%d], %s, %s" % (vr(a, 16), 4 * n, 4 * n + 3, vr(vXF + 16 * (n & 1) + 4 * i), vr(a, 16) if n else "0"))
            if ks == 3 and i == 0 and any(y.vm == "st%d" % (s + 1) for _, y in F.vq): raise SystemExit("stage %d not issued" % (s + 1))
            BS = opts.get("bud0", 28) if s == 0 else (opts.get("bud1", 28) if s < opts.get("nb1", 3) else BA)
            if any(y.t.startswith("s_mov_b32 s%d," % sWd) for _, y in F.xq[:12]): assert not any(y.vm == "kv" for _, y in F.vq) or F.xq[0][0] > 4 * n + i or not F.xq[0][1].t.startswith("s_mov_b32 s%d," % sWd)
            F.fill(4 * n + i, gaps[i], BS - (4 if i in (1, 3) else 0))
            if any(y.vm == "kvst" for y in gaps[i]): assert KVS not in gaps[i] + [z for _, z in F.xq], "kv store too early"
            for x in gaps[i]: p.add(x)
        if ks == 3 and s < 7: stamp(p, "g.s%d" % s, opts, 2)
    left = len(F.xq)
    stamp(p, "g.A31", opts, 2)
    for _, x in F.xq: p.add(x)
    F.xq = []
    print("phase A: left-over x items %d, v items %d" % (left, len(F.vq)), file=sys.stderr)
    stamp(p, "g.Aend", opts)
    for m_ in range(4, PD): p.add(rdXB(0, m_))
    p("s_nop 0")
    late = [cst(4) + cst(5), cst(6) + cst(7), cmu(4) + cmu(5), cmu(6) + cmu(7)]
    for t in range(4):
        a = acc_of(t)
        p("v_mfma_f32_32x32x16_bf16 %s, %s, %s, %s" % (vr(a, 16), vr(vR1A), vr(vR1B + 4 * (t & 1)), vr(a, 16)))
        p("v_mov_b32 v%d, v%d" % (vR1B + 4 * (t & 1), vST + 4 * (t + 2)))
        for x in late[t]: p.add(x)
    ep = [g1_epilogue(t, opts) for t in range(7)]
    total = sum(x.cost for e in ep for x in e)
    kvpoll = [mk("buffer_load_dwordx2 v[%d:%d], v%d, %s, 0 offen sc1" % (uPoll, uPoll + 1, uFK, S4(sWS)), vm="kvp")]
    F.vq = [(0, y) for _, y in F.vq]; F.last = -9; F.space = opts.get("bspace", 2)
    X = lambda k, L: [] if opts.get(k) else L
    XB = opts.get("xb", 1)
    ORD = [0, 1, 2, 3, 4] + ([5] if opts.get("w5", 1) else []) + [7, 8, 9][:XB]
    EB = opts.get("ebar", 1)
    ORD += [6, 12][:EB * opts.get("en", 2)]
    INB_READ = [0, 1, 2][:XB]
    chain = lambda t: ([W(vm="w%d" % t)] + wd_reads(t, True) + [delay(4), W(lg="t%d" % t)] + wd_loads(t + 7, opts)) if t in INB_READ else []
    F.x(0, [mk("v_add_u32 v%d, 0x20000, v%d" % (uTR2 + mt, uTR + mt)) for mt in range(2)])
    F.x(0, [bundle("\n".join(y.t for y in fl0_setup()[:3]))] + fl0_setup()[3:])
    F.v(0, kv_stores())
    F.v(opts.get("st10", 6), g1_stage(10, opts))
    W0 = opts.get("w0at", 22)
    if W0 < 27: F.v(W0, wd_loads(0, opts))
    B1 = 34 - PD
    F.v(B1, g1_stage(11, opts)[:6] + [W(vm="kvst"), flag_store(sFlK)] + g1_stage(11, opts)[6:])
    if W0 >= 27: F.v(W0, wd_loads(0, opts))
    if 5 in ORD: F.v(opts.get("w5at", 46), wd_loads(5, opts))
    if HKP == 10: F.v(opts.get("hkat", 46), hk_loads(opts))
    F.v(33 + B1, wd_loads(1, opts) + wd_loads(2, opts))
    F.v(opts.get("c0", 80), chain(0))
    F.v(opts.get("kvpoll", 88), kvpoll)
    F.v(66 + B1, wd_loads(3, opts) + wd_loads(4, opts))
    F.v(opts.get("kvchk", 114), [W(vm="kvp")] + poll_check("kv", [uPoll], kvpoll) + conv_xr())
    F.v(0, chain(1) + chain(2))
    opts["_ord"] = ORD; opts["_rd"] = INB_READ
    if HKP: F.x(opts.get("hkb", 62 if HKP < 10 else 95), hk_build(1))
    EF = opts.get("eflag", 99 + 16)
    ngaps = 4 * 33; done = 0; cur = 0; gi = 0
    BUD = opts.get("bud", 24)
    for bb in range(4):
        tile = 4 + bb; a = acc_of(tile)
        for n in range(-1, 32):
            gap = []
            if n == -1:
                p("v_mfma_f32_32x32x16_bf16 %s, %s, %s, 0" % (vr(a, 16), vr(vR1A), vr(vR1B + 4 * (bb & 1))))
                if bb < 2: gap.append(mk("v_mov_b32 v%d, v%d" % (vR1B + 4 * (bb & 1), vST + 4 * (tile + 2))))
            else:
                if n % WE == 0: p.wait(lg="B%d_%d" % (bb, n + WE - 1))
                p("v_mfma_f32_32x32x16_bf16 %s, a[%d:%d], %s, %s" % (vr(a, 16), 4 * n, 4 * n + 3, vr(vXF + 4 * (n & 7)), vr(a, 16)))
                m = n + PD
                if m == 32 and bb < 3:
                    if any(y.vm == "st%d" % (9 + bb) for _, y in F.vq): raise SystemExit("stage not issued before its wait")
                    gap += [W(vm=["st%d" % (9 + bb)] + (["hk"] if bb == 2 else []), lg="*"), mk("s_barrier")]
                if m < 32: gap.append(rdXB(bb, m))
                elif bb < 3: gap.append(rdXB(bb + 1, m - 32))
            budget = BUD - (4 if (n % WE == WE - 1) else 0)
            if EB and bb == 3 and n == 33 - PD + 1:
                gap += [W(lg="*"), mk("s_barrier")]
                F.v(gi, [x for t in ORD if t in (6, 12) for x in wd_loads(t, opts)])
            if gi == EF:
                assert cur >= 4
                gap += [W(vm="hst3"), mk("s_barrier"), flag_store(sFlH, True), mk("s_add_u32 s%d, s%d, %d" % (sFlH, sFlH, WS_FL))]
            F.fill(gi, gap, min(budget, sum(y.cost for y in gap) + 8), min(budget, sum(y.cost for y in gap) + 12 if F.xq and F.xq[0][1].cost > 4 else sum(y.cost for y in gap) + 8))
            gi += 1
            target = total * gi / float(ngaps - opts.get("eplead", 4))
            while cur < 7 and done < target:
                if cur >= 4 and (cur - 4 >= bb or (cur - 4 == bb - 1 and n < 4)): break
                if cur < 4 and bb == 0 and n < 2: break
                x = ep[cur][0]
                if sum(y.cost for y in gap) + x.cost > budget: break
                gap.append(ep[cur].pop(0)); done += x.cost
                if not ep[cur]: cur += 1
            for x in gap: p.add(x)
            if gi % 6 == 0: stamp(p, "B%d" % gi, opts, 5)
            if opts.get("prof") and "ls0" in opts:
                k_, r_ = divmod(gi - opts["ls0"], opts.get("lsd", 4))
                if r_ == 0 and 0 <= k_ < 8: p("s_memtime s[%d:%d]" % (84 + 2 * k_, 85 + 2 * k_))
        if bb < 3: stamp(p, "g.b%d" % bb, opts, 2)
    if opts.get("prof") and "ls0" in opts:
        p("s_waitcnt lgkmcnt(0)")
        for k_ in range(8):
            nm_ = "L%d" % (opts["ls0"] + k_ * opts.get("lsd", 4))
            if opts["ls0"] + k_ * opts.get("lsd", 4) > 132: break
            STAMPS.append(nm_); p("v_writelane_b32 v255, s%d, %d" % (84 + 2 * k_, len(STAMPS) - 1))
    stamp(p, "g.Bend", opts)
    print("phase B: left-over v items %d, epilogue cost left %d" % (len(F.vq), total - done), file=sys.stderr)
    vl = [y for _, y in F.vq if y.kind != "delay"]
    rest_ = [y for _, y in F.xq if y.kind != "delay"] + [x for e_ in ep[cur:] for x in e_]
    rest_ += [mk("s_lshr_b32 s%d, s%d, 4" % (sTab + s, sTabW + s)) for s in range(14)] + g1_epilogue(7, opts)
    k_ = max(2, (len(rest_) - 4) // (len(vl) + 1))
    for i, x in enumerate(rest_):
        if i == len(rest_) - 1: seq(p, vl); vl = []
        p.add(x)
        if vl and i % k_ == k_ - 1: p.add(vl.pop(0))

def out_half(ps, opts, pk):
    eW = 24; eR = 25; eY = 26
    if ps == 0: X = list(range(12, 20)); XN = list(range(32, 40)); YR = 20; Y = [28, 29, 30, 31, 224, 225, 226, 227]
    else: X = list(range(56, 64)); XN = list(range(64, 72)); YR = 80; Y = list(range(72, 80))
    P = [list(range(uAcc + 32 * ps + 8 * w, uAcc + 32 * ps + 8 * w + 8)) for w in range(4)]
    wr = [mk("ds_write_b128 v%d, %s offset:%d" % (eW, vr(uAcc + 32 * ps + 16 * mt + 4 * j), 128 * mt + 32 * j), cost=16) for mt in range(2) for j in range(4)]
    rdy = [mk("ds_read_b64_tr_b16 v[%d:%d], v%d offset:%d" % (YR + 2 * j, YR + 2 * j + 1, eY + ps, j * 512), lg="y%d" % ps) for j in range(2)]
    rd = [mk("ds_read_b128 %s, v%d offset:%d" % (vr(P[w][4 * h]), eR, w * REDW + 16 * h), lg="r%d" % ps) for h in range(2) for w in range(4)]
    xin = uXin + 4 * ps; st = uSt + 2 * ps; F = P[0]
    un = lambda d, s_, hi: ("v_and_b32 v%d, 0xffff0000, v%d" if hi else "v_lshlrev_b32 v%d, 16, v%d") % (d, s_)
    def op2(name, d, a_, b_, c_=None, sel=""):
        R = lambda z, i, n: z if isinstance(z, str) else vr(z[i], n)
        if pk: return [mk("v_pk_%s_f32 %s, %s, %s%s%s" % (name, vr(d[2 * i], 2), R(a_, 2 * i, 2), R(b_, 2 * i, 2), (", " + R(c_, 2 * i, 2)) if c_ else "", sel)) for i in range(4)]
        return [mk("v_%s_f32 v%d, %s, %s%s" % (name, d[i], R(a_, i, 1), R(b_, i, 1), (", " + R(c_, i, 1)) if c_ else "")) for i in range(8)]
    pre = ml(un(st + 1, 40 + 2 * ps, 1) + "\n" + un(st, 40 + 2 * ps, 0) + "\nv_rcp_f32 v%d, v%d" % (st + 1, st + 1))
    pre += [mk(un(X[i], xin + (i >> 1), i & 1)) for i in range(8)]
    if opts.get("x_eps"): pre += ml("v_mul_f32 v%d, %s, v%d" % (st + 1, hex(f2u(1.0 + opts["x_eps"] / 1000.0)), st + 1))
    pre += ml("v_mul_f32 v%d, v%d, v%d" % (st, st, st + 1))
    if pk: pre += op2("fma", XN, X, vr(st, 2), vr(st, 2), " op_sel:[0,1,0] op_sel_hi:[1,1,0]")
    else: pre += op2("fma", XN, X, "v%d" % (st + 1), "v%d" % st)
    m = [W(lg="r%d" % ps)] + op2("add", F, P[0], P[1]) + op2("add", P[2], P[2], P[3]) + op2("add", F, F, P[2])
    m += op2("mul", Y, "s[4:5]" if pk else "s4", F)
    t1 = [mk("v_exp_f32 v%d, v%d" % (Y[i], Y[i])) for i in range(8)]
    t2 = op2("mul", XN, XN, F)
    m += [z for pr in zip(t1, t2) for z in pr] if not pk else t1 + t2
    m += op2("add", Y, "1.0", Y, None, " op_sel_hi:[0,1]" if pk else "")
    m += [mk("v_rcp_f32 v%d, v%d" % (Y[i], Y[i])) for i in range(8)] + [mk("s_nop 0")]
    m += op2("mul", XN, XN, Y)
    my = [W(lg="y%d" % ps)] + [mk(un(Y[i], YR + (i >> 1), i & 1)) for i in range(8)]
    my += op2("fma", X, XN, Y, X)
    my += [mk("v_cvt_pk_bf16_f32 v%d, v%d, v%d" % (xin + i, X[2 * i], X[2 * i + 1])) for i in range(4)]
    my += [mk("buffer_store_dwordx4 %s, v%d, %s, %s offen%s" % (vr(xin), uX, S4(sOut), "s%d" % sT0 if ps else "0", opts.get("fo", " sc1")), vm="out")]
    return wr, pre, rd, m, rdy, my

def phase2(p, opts):
    ORD = opts["_ord"]; RD = opts["_rd"]
    stamp(p, "p2", opts)
    for mt in range(2): p("v_add_u32 v%d, 0x10000, v%d\nv_add_u32 v%d, 0x20000, v%d" % (HI[1] + mt, uTR + mt, HI[2] + mt, uTR + mt))
    for i in range(1, 4): p("v_add_u32 v%d, %d, v%d" % (CAR[i], 1024 * i, uCA))
    p.wait(vm="cv", lg="*")
    p("s_barrier")
    stamp(p, "p2bar", opts, 4)
    for x in conv_reads(0): p.add(x)
    hpollA = [mk("buffer_load_dwordx2 v[%d:%d], v%d, %s, 0 offen sc1" % (uPoll, uPoll + 1, uFH, S4(sWS)), vm="hpA")]
    hpollB = [mk("s_mov_b32 s%d, %d" % (sT1, WS_FL)), mk("buffer_load_dwordx2 v[%d:%d], v%d, %s, s%d offen sc1" % (uPoll + 2, uPoll + 3, uFH, S4(sWS), sT1), vm="hpB")]
    tq = []
    for t in range(7):
        if t not in RD: tq += [("w%d" % t if (t not in ORD or t == 6) else None, y) for y in wd_reads(t)]
    wl = lambda t: ([W(lg="t%d" % PREV[t])] if t in PREV else []) + wd_loads(t, opts)
    rest = [t for t in range(7, 14) if t not in ORD]
    nfirst = opts.get("wfirst", 4)
    VQ = (wl(5) if 5 not in ORD else []) + (wl(6) if 6 not in ORD else []) + [x for t in rest[:nfirst] for x in wl(t)]
    rest = rest[nfirst:]
    LEAD = opts.get("wlead", 3)
    CHKA = I("; chkA", cost=0); CHKB = I("; chkB", cost=0)
    VQ.append(CHKA)
    for hs in range(28):
        while rest and rest[0] - 1 - LEAD <= hs: VQ += wl(rest.pop(0))
        if hs == 14: VQ.append(CHKB)
        VQ += h_loads(hs)
    state = {"A": False, "B": False, "issued": {"w%d" % t for t in ORD}}
    def pace(p, done_hs):
        n = 0
        while VQ:
            y = VQ[0]
            if y is CHKA:
                if not state["A"]: return n
                VQ.pop(0); continue
            if y is CHKB:
                if not state["B"]: return n
                VQ.pop(0); continue
            if y.kind == "wait" and any(z.lg == y.lg for _, z in tq): return n
            if y.vm and y.vm[0] == "h" and int(y.vm[1:]) - 16 > done_hs: return n
            VQ.pop(0); p.add(y); n += 1
            if is_m0(y): p("s_nop 0") if False else None
            if is_vm(y): state["issued"].add(y.vm); return n
            if is_m0(y): return n
        return n
    strec = [mk("buffer_load_dwordx2 %s, v%d, %s, 0 offen offset:%d sc1" % (vr(40 + 2 * e, 2), uSto, S4(sWS), 1024 * e), vm="xin") for e in range(2)]
    extra = ml("s_mov_b32 s%d, 131072" % sT0) + [mk("buffer_load_dwordx4 %s, v%d, %s, %s offen" % (vr(uXin + 4 * e), uX, S4(sQ), "s%d" % sT0 if e else "0"), vm="xin") for e in range(2)] + strec
    dq = ml("v_lshrrev_b32 v24, 4, v1\nv_and_b32 v25, 15, v1\nv_lshl_add_u32 v24, v24, 3, v25\nv_sub_u32 v24, 15, v24\nv_lshlrev_b32 v25, 4, v24\nv_and_b32 v25, 16, v25\n"
            "s_sub_u32 s3, s%d, 1\nv_lshlrev_b32 v25, v25, v%d\nv_and_b32 v25, s3, v25\nv_lshrrev_b32 v24, 1, v24" % (sHalf, uD))
    dq += ml("v_cmp_eq_u32 s[4:5], 0, v24\nv_cmp_eq_u32 s[6:7], 1, v24\nv_cmp_eq_u32 s[34:35], 2, v24\nv_cmp_eq_u32 vcc, 3, v24")
    dq += ml("v_cndmask_b32 v%d, 0, v25, s[4:5]\nv_cndmask_b32 v%d, 0, v25, s[6:7]\nv_cndmask_b32 v%d, 0, v25, s[34:35]\nv_cndmask_b32 v%d, 0, v25, vcc" % (uAD, uAD + 1, uAD + 2, uAD + 3))
    pollat = opts.get("hpoll", 24); flagat = opts.get("hflag", 60); chkA = opts.get("hchk", 62); pollB = opts.get("hpollb", 132); SP = opts.get("csp", 4)
    ypoll = [mk("buffer_load_dwordx2 %s, v%d, %s, 0 offen sc1" % (vr(uPoll, 2), uFY, S4(sWS)), vm="yp")]
    ydma = ml("s_lshl_b32 s7, s%d, 1\nv_xor_b32 v3, s7, v1\nv_lshrrev_b32 v2, 3, v1\nv_lshlrev_b32 v2, 12, v2\nv_and_b32 v3, 7, v3\nv_lshl_add_u32 v2, v3, 4, v2\nv_xor_b32 v3, 16, v2\nv_add_u32 v3, %d, v3" % (sWave, 32768 - 1024))
    ydma += ml("s_lshl_b32 s3, s%d, 18\ns_lshl_b32 s7, s%d, 16\ns_add_u32 s3, s3, s7\ns_lshl_b32 s7, s%d, 7\ns_add_u32 s3, s3, s7\ns_add_u32 s3, s3, %d" % (sDB, sWave, sTB2, WS_YT))
    ydma += ml("s_lshl_b32 s7, s%d, 11\ns_add_u32 m0, s7, %d" % (sWave, YT_L))
    adr = ml("v_and_b32 v24, 31, v1\nv_mul_u32_u24 v24, %d, v24\nv_lshrrev_b32 v25, 5, v1\nv_lshl_add_u32 v24, v25, 4, v24\ns_mul_i32 s6, s%d, %d\ns_add_u32 s6, s6, %d\nv_add_u32 v24, s6, v24" % (RS, sWave, REDW, RED[0]))
    adr += ml("v_lshrrev_b32 v25, 5, v1\nv_and_b32 v26, 3, v1\nv_lshl_add_u32 v25, v25, 2, v26\nv_mul_u32_u24 v25, %d, v25\nv_bfe_u32 v26, v1, 2, 3\nv_lshl_add_u32 v25, v26, 5, v25\ns_mul_i32 s6, s%d, %d\ns_add_u32 s6, s6, %d\nv_add_u32 v25, s6, v25" % (RS, sWave, 8 * RS, RED[0]))
    adr += ml("v_bfe_u32 v26, v1, 4, 1\nv_and_b32 v27, 3, v1\nv_lshl_add_u32 v26, v26, 2, v27\nv_xor_b32 v23, s%d, v26\nv_bfe_u32 v27, v1, 2, 2\nv_lshl_add_u32 v26, v26, 3, v27\nv_lshlrev_b32 v26, 7, v26\nv_lshl_add_u32 v26, v23, 4, v26\nv_lshrrev_b32 v27, 5, v1\nv_lshl_add_u32 v26, v27, 3, v26\nv_xor_b32 v27, 64, v26\nv_add_u32 v26, %d, v26\nv_add_u32 v27, %d, v27" % (sWave, YT_L, YT_L))
    chk = [W(vm="xin")] + poll_check("st", [41, 43], strec, 32)
    aq = ydma[:-2] + adr + chk
    first = set(); nm = 0
    for rr in range(4):
        rq = conv_reads(rr + 1) if rr < 3 else []
        b = vCF + 64 * (rr & 1)
        pairs = sorted([(s1, p1) for s1 in range(8) for p1 in range(8) if s1 + p1 <= 7], key=lambda x: (max(x), x[0] + x[1], x[0]))
        seen = -1; k = 0
        for (s1, p1) in pairs:
            mx = max(s1, p1)
            if mx > seen:
                p.wait(lg="c%d_%d" % (rr, mx)); seen = mx
            acc = vr(uCacc + 4 * (s1 + p1))
            p("v_mfma_f32_16x16x32_bf16 %s, %s, %s, %s" % (acc, vr(b + 4 * s1), vr(b + 32 + 4 * p1), acc if (s1 + p1) in first else "0"))
            first.add(s1 + p1); k += 1; nm += 1
            n = 0
            if rq and k > 2 and (k % 4 != 0): p.add(rq.pop(0)); n += 1
            if dq and nm > 6 and (n == 0 or nm % 2): p.add(dq.pop(0)); n += 1
            if nm % SP == 0 or (VQ and is_m0(VQ[0]) and nm % SP == SP - 1): n += pace(p, -1)
            while tq and n < 2:
                tg = tq[0][0]
                if tg and (tg not in state["issued"] or nm < opts.get("t56", 84)): break
                if tg: p.wait(vm=tg)
                p.add(tq.pop(0)[1]); n += 1
            if aq and nm > opts.get("aqat", 96) and n < 2 and not (n and aq[0].t.startswith("v_") and p.ins[-1].t.startswith("v_") and "mfma" not in p.ins[-1].t):
                p.add(aq.pop(0))
                while aq and aq[0].cost == 0: p.add(aq.pop(0))
            if nm == pollat:
                for x in hpollA: p.add(x)
            if nm == flagat:
                p.wait(vm="hst7"); p("s_barrier"); p.add(flag_store(sFlH, True))
                stamp(p, "hflag", opts)
            if nm == chkA:
                p.wait(vm="hpA")
                for x in poll_check("hA", [uPoll], hpollA): p.add(x)
                stamp(p, "hokA", opts); state["A"] = True
        stamp(p, "cv%d" % rr, opts, 4)
        if rr == 0:
            for x in dq: p.add(x)
            if dq: p("s_nop 1")
            dq = []
            for p1 in range(8):
                acc = vr(uCacc + 4 * p1)
                p("v_mfma_f32_16x16x32_bf16 %s, %s, %s, %s" % (acc, vr(uAD), vr(b + 32 + 4 * p1), acc))
                if rq: p.add(rq.pop(0))
                if p1 % 4 == 1: pace(p, -1)
            for x in extra: p.add(x)
        for x in rq: p.add(x)
    print("conv: left-over reads %d, queued loads %d" % (len(tq), len(VQ)), file=sys.stderr)
    assert not tq
    cur_hs = [-1]
    def pace2():
        if pace(p, cur_hs[0]) and is_m0(p.ins[-1]): p("s_nop 0"); pace(p, cur_hs[0])
    for x in aq: p.add(x)
    stamp(p, "convend", opts)
    p("s_lshl_b32 s7, s%d, 13\ns_add_u32 s7, s7, %d\nv_add_u32 v4, s7, v%d\ns_and_b32 s7, s%d, 2\ns_lshl_b32 s7, s7, 13\ns_lshl_b32 s6, s%d, 12\ns_add_u32 s7, s7, s6\ns_add_u32 s7, s7, %d\nv_add_u32 v5, s7, v%d" % (sWave, XCH, vL16, sWave, sHalf, XCH, vL16))
    for x in hpollB: p.add(x)
    p("s_barrier")
    for i in range(8):
        p("ds_write_b128 v4, %s offset:%d" % (vr(uCacc + 4 * i), i * 1024))
        if i % 3 == 1: pace2()
    stamp(p, "xw", opts, 4)
    p("s_waitcnt lgkmcnt(0)\ns_barrier")
    for i in range(4):
        p("ds_read_b128 %s, v5 offset:%d" % (vr(uCacc + 4 * i), i * 1024), lg="xr%d" % i)
        p("ds_read_b128 %s, v5 offset:%d" % (vr(uCacc + 16 + 4 * i), 8192 + i * 1024), lg="xr%d" % i)
    pace2()
    for i in range(4):
        p.wait(lg="xr%d" % i)
        for e in range(2): p("v_pk_add_f32 %s, %s, %s" % (vr(uCacc + 4 * i + 2 * e, 2), vr(uCacc + 4 * i + 2 * e, 2), vr(uCacc + 16 + 4 * i + 2 * e, 2)))
    for i in range(4):
        o = uTmp + 4 * (i >> 1) + 2 * (i & 1)
        p("v_cvt_pk_bf16_f32 v%d, v%d, v%d\nv_cvt_pk_bf16_f32 v%d, v%d, v%d" % (o, uCacc + 4 * i, uCacc + 4 * i + 1, o + 1, uCacc + 4 * i + 2, uCacc + 4 * i + 3))
    pace2(); p("s_nop 0")
    for h in range(2):
        o = uTmp + 4 * h
        p("v_permlane16_swap_b32 v%d, v%d\nv_permlane16_swap_b32 v%d, v%d" % (o, o + 2, o + 1, o + 3))
    for h in range(2):
        p("buffer_store_dwordx4 %s, v%d, %s, s%d offen offset:%d sc1" % (vr(uTmp + 4 * h), uYst, S4(sWS), sYoff, h * 1024), vm="yst")
    stamp(p, "g2go", opts)
    wrA, preA, rdA, mA, rdyA, myA = out_half(0, opts, False)
    wrB, preB, rdB, mB, rdyB, myB = out_half(1, opts, True)
    YF = opts.get("yflag", 5); YP = opts.get("ypoll", 19); YC = YP + opts.get("ychk", 4); RB = opts.get("rbar", 18); RY = opts.get("ybar", YC + 5)
    HB = opts.get("hb", 5); HL = opts.get("hl", 5)
    xq = []
    def X_(at, L): xq.extend((at, y) for y in L)
    X_(0, preA + [mk("s_mov_b32 s4, %s" % hex(f2u(-LOG2E))), mk("s_mov_b32 s5, s4")])
    for i, y in enumerate(wrA): X_(4 * 14 + 5 + i, [y])
    X_(4 * RB, [W(lg="*"), mk("s_barrier")] + rdA)
    X_(4 * RB + 6, mA)
    GB = opts.get("gbud", 24)
    for hs in range(28):
        ps, s = divmod(hs, 14)
        cur_hs[0] = hs - 1
        while "h%d" % hs not in state["issued"] or any(y.vm == "h%d" % hs for y in VQ) or (ps == 0 and s < 13 and any(y.vm == "w%d" % (s + 1) for y in VQ)): pace2()
        rq = wd_reads(s + 1) if (ps == 0 and 7 <= s + 1 < 14) else []
        if hs == HB:
            p.wait(vm="hpB")
            for x in poll_check("hB", [uPoll + 2], hpollB): p.add(x)
            stamp(p, "hokB", opts); state["B"] = True
        if hs == YF: p.wait(vm="yst"); p("s_barrier"); p.add(flag_store(sFlY, True))
        if hs == YP: p.add(ypoll[0])
        if hs == YC:
            p.wait(vm="yp")
            for x in poll_check("y", [uPoll], ypoll): p.add(x)
            assert not any(is_m0(y) or y.t.endswith(" lds") for y in VQ)
            for x in ydma[-2:]: p.add(x)
            p("s_nop 0")
            p.add(dma(2, sWS, "s3", 0, "yt", " sc1")); p.add(dma(3, sWS, "s3", 1024, "yt", " sc1"))
            stamp(p, "yok", opts, 4)
        RT = opts.get("rtail", 0)
        if hs < 28 - RT: work = [(hs, e, mt) for e in range(2) for mt in range(2)]
        else:
            j = hs - (28 - RT); allw = [(h_, e, mt) for mt in range(2) for h_ in range(28 - RT, 28) for e in range(2)]
            work = allw[4 * j:4 * j + 4]
            if j == RT // 2:
                X_(4 * hs, [mk("v_add_u32 v24, %d, v24" % ((RED[1] - RED[0]) & 0xffffffff))])
                nw_ = min(4, 2 * RT - 3)
                for i, y in enumerate(wrB[:nw_]): X_(4 * hs + 3 + i, [y])
                wrB = wrB[nw_:]
        p.wait(vm="h%d" % max(h_ for h_, _, _ in work), lg="t%d" % s)
        for m, (h_, e, mt) in enumerate(work):
            acc = vr(uAcc + 32 * ps + 16 * mt, 16)
            hr = aH + 8 * (h_ % 16) + 4 * e
            k, b = wfrag(h_ % 14, 2 * e + mt)
            p("v_mfma_f32_32x32x16_bf16 %s, %s[%d:%d], a[%d:%d], %s" % (acc, k, b, b + 3, hr, hr + 3, acc if (s or e) else "0"))
            i0_ = len(p.ins)
            used = lambda: sum(y.cost for y in p.ins[i0_:]) + (4 if m == 3 else 0)
            tgt = "h%d" % min(27, hs + HL)
            left = max([i + 1 for i, y in enumerate(VQ) if y.vm == tgt] + [0])
            for _ in range(-(-left // (4 - m))):
                k_ = pace(p, hs - 1)
                if k_ == 0: break
                if is_m0(p.ins[-1]):
                    if rq: p.add(rq.pop(0)) if (m or True) and not (m == 0) else p("s_nop 0")
                    else: p("s_nop 0")
            if m == 0 and rq: p.wait(vm="w%d" % (s + 1))
            for _ in range(-(-len(rq) // (4 - m))): p.add(rq.pop(0))
            g = 4 * hs + m
            while xq and xq[0][0] <= g and used() + xq[0][1].cost <= GB: p.add(xq.pop(0)[1])
        assert not rq
        if hs == 13: stamp(p, "g2A", opts)
        elif hs % 3 == 0: stamp(p, "h%d" % hs, opts, 4)
    print("gemm2: left-over epilogue items %d" % len(xq), file=sys.stderr)
    stamp(p, "g2end", opts)
    if len(wrB) == 8: p("v_add_u32 v24, %d, v24" % ((RED[1] - RED[0]) & 0xffffffff))
    p("v_add_u32 v25, %d, v25" % ((RED[1] - RED[0]) & 0xffffffff))
    tail = [y for _, y in xq] + preB
    nop = max(0, 6 - len(tail))
    for x in tail[:12]: p.add(x)
    tail = tail[12:]
    for x in wrB:
        p.add(x)
        for _ in range(3):
            if tail: p.add(tail.pop(0))
    for x in tail: p.add(x)
    p.wait(vm="yt", lg="*"); p("s_barrier")
    stamp(p, "red", opts)
    if opts.get("ytail", 1):
        myA = out_half(0, opts, True)[5]
        for x in rdyA + rdB + rdyB + myA[:-1]: p.add(x)
        if opts.get("oearly", 1): p.add(myA[-1])
        for x in mB + myB[:-1]: p.add(x)
        stamp(p, "prest", opts)
        if not opts.get("oearly", 1): p.add(myA[-1])
        p.add(myB[-1])
    else:
        for x in rdB + rdyB + mB + myB: p.add(x)
    stamp(p, "fin", opts)

def aux(p, opts):
    p("s_lshl_b32 s3, s2, 6\ns_lshl_b32 s4, s%d, 4\ns_add_u32 s3, s3, s4" % sWave)
    p("v_add_u32 v12, s3, v2\nv_lshlrev_b32 v10, 10, v12\nv_lshl_add_u32 v10, v3, 4, v10\nv_add_u32 v11, 8192, v10\nv_mov_b32 v13, v3")
    p("s_memrealtime s[%d:%d]" % (sTag, sTag + 1))
    p("s_waitcnt lgkmcnt(0)")
    p("s_mov_b32 s%d, s74\ns_mov_b32 s%d, s75" % (sDbg, sDbg + 1))
    p("s_lshr_b32 s3, s2, %d\ns_or_b32 s3, s3, s%d\ns_cmp_lg_u32 s3, 0\ns_cselect_b64 exec, 0, 1" % (3 if opts.get("cas", 1) else 0, sWave))
    p("s_or_b32 s%d, s%d, 1\nv_mov_b32 v16, s%d\nv_mov_b32 v17, s%d\nv_mov_b32 v18, 0\nv_mov_b32 v19, 0\ns_cbranch_execz L_aux_nt" % (sTag, sTag, sTag, sTag + 1))
    p("global_atomic_cmpswap_x2 v%d, v[16:19], s[%d:%d] sc1" % (vNon + 2, sDbg, sDbg + 1))
    p.label("L_aux_nt")
    p("s_mov_b64 exec, -1")
    srd(p, sQ, kQ, 2048 * 1024)
    for g in range(2):
        for i in range(8):
            p("buffer_load_dwordx4 %s, v%d, %s, 0 offen offset:%d" % (vr(116 + 32 * g + 4 * i), 10 + g, S4(sQ), i * 128), vm="sx%d" % g)
        if g == 0:
            srd(p, sWS, kWS, WS_SZ)
            kv_setup(p); ids2(p); hk_srds(p)
            phase2_setup(p, opts)
    nld, nchk = nonce_get("na")
    p.add(nld)
    p("s_mov_b32 s5, 0x3f803f80")
    for g in range(2):
        p.wait(vm="sx%d" % g if g == 0 else "non")
        stamp(p, "a.sx%d" % g, opts, 3)
        if g == 1:
            p("v_lshlrev_b32 v10, 7, v1\ns_mov_b32 s12, s60\ns_and_b32 s13, s61, 0xffff\ns_mov_b32 s14, 0x200000\ns_mov_b32 s15, 0x20000")
            p("s_mov_b32 s24, s70\ns_and_b32 s25, s71, 0xffff\ns_mov_b32 s26, %d\ns_mov_b32 s27, 0x20000" % (1792 * 1024))
            p("s_lshl_b32 s3, s2, 16\ns_lshl_b32 s4, s%d, 14\ns_add_u32 s21, s3, s4\ns_mul_i32 s3, s2, 57344\ns_mul_i32 s4, s%d, 14336\ns_add_u32 s22, s3, s4" % (sWave, sWave))

        s1 = 16 + 4 * g; s2 = s1 + 1
        for r in range(32):
            x = 116 + 32 * g + r; c = r & 1
            p("v_dot2_f32_bf16 v%d, v%d, s5, %s" % (s1 + 2 * c, x, "v%d" % (s1 + 2 * c) if r > 1 else "0"))
            p("v_dot2_f32_bf16 v%d, v%d, v%d, %s" % (s2 + 2 * c, x, x, "v%d" % (s2 + 2 * c) if r > 1 else "0"))
    for x in nchk: p.add(x)
    p("v_add_f32 v16, v16, v18\nv_add_f32 v17, v17, v19\nv_add_f32 v18, v20, v22\nv_add_f32 v19, v21, v23")
    for mod in ("quad_perm:[1,0,3,2]", "quad_perm:[2,3,0,1]", "row_half_mirror"):
        for r in range(16, 20): p("v_add_f32_dpp v%d, v%d, v%d %s row_mask:0xf bank_mask:0xf" % (r, r, r, mod))
    ops = [[], []]
    for g in range(2):
        S1 = 16 + 2 * g; S2 = S1 + 1; o = 20 + 4 * g
        ops[g] = ["v_mul_f32 v%d, %s, v%d" % (S1, hex(f2u(1.0 / 512)), S1), "v_mul_f32 v%d, %s, v%d" % (S2, hex(f2u(1.0 / 512)), S2),
                  "v_fma_f32 v%d, -v%d, v%d, v%d" % (S2, S1, S1, S2), "v_max_f32 v%d, 0, v%d" % (S2, S2),
                  "v_cvt_pk_bf16_f32 v%d, v%d, v%d" % (S2, S2, S2), "v_and_b32 v%d, 0xffff0000, v%d" % (S2, S2),
                  "v_add_f32 v%d, %s, v%d" % (S2, hex(f2u(1e-5)), S2),
                  "v_cvt_pk_bf16_f32 v%d, v%d, v%d" % (S2, S2, S2), "v_and_b32 v%d, 0xffff0000, v%d" % (S2, S2),
                  "v_sqrt_f32 v%d, v%d" % (S2, S2), "v_mov_b32 v%d, s%d" % (o + 1, sTag),
                  "v_cvt_pk_bf16_f32 v%d, -v%d, v%d" % (o, S1, S2)]
    p("v_cmp_eq_u32 vcc, 0, v13\nv_lshlrev_b32 v12, 3, v12\nv_add_u32 v12, %d, v12\nv_mov_b32 v14, 0x80000000\nv_cndmask_b32 v12, v14, v12, vcc" % WS_ST)
    for x0, x1 in zip(*ops): p(x0); p(x1)
    p("buffer_store_dwordx2 v[20:21], v12, %s, 0 offen sc1" % S4(sWS), vm="pub")
    p("buffer_store_dwordx2 v[24:25], v12, %s, 0 offen offset:64 sc1" % S4(sWS), vm="pub")
    stamp(p, "a.stats", opts)
    tW = ["buffer_load_dword v28, v10, s[24:27], s22 offen\ns_add_u32 s22, s22, 6144", "buffer_load_dword v28, v10, s[24:27], s22 offen"]
    tK = ["buffer_load_dword v28, v10, s[12:15], s21 offen\ns_add_u32 s21, s21, 8192", "buffer_load_dword v28, v10, s[12:15], s21 offen"]
    WM = opts.get("warm", 1)
    tq_ = {0: [], 1: tW + tK, 2: tW, 3: tK + tW, 4: tW + tK}[WM]
    p("s_barrier")
    seq(p, kv_loads(opts) + hk_loads(opts))
    if WM == 4: p(tq_.pop(0), vm="warm")
    for x in phase2_srds(): p.add(x)
    p.wait(vm="hk")
    p("s_barrier")
    for _ in range(opts.get("warm1", 1)):
        if tq_: p(tq_.pop(0), vm="warm")
    for x in kv_compute() + kv_stores(): p.add(x)
    stamp(p, "a.kv", opts)
    seq(p, hk_build())
    if tq_ and opts.get("warm2", 1): p(tq_.pop(0), vm="warm")
    p.wait(vm="kvst", lg="*")
    p.add(flag_store(sFlK))
    stamp(p, "a.kvfl", opts)
    for x in tq_: p(x, vm="warm")
    stamp(p, "a.warm", opts)
    p("s_lshl_b32 s3, s2, 7\ns_add_u32 s%d, s3, %d" % (sFlH, WS_FD))
    for x in fl0_setup(): p.add(x)
    p("s_barrier")
    for mt in range(2): p("v_add_u32 v%d, 0x20000, v%d" % (uTR2 + mt, uTR + mt))
    prev = PREV
    for t in sorted(opts["_ord"]):
        if t in prev:
            p.wait(vm="w%d" % prev[t])
            for x in wd_reads(prev[t], True): p.add(x)
            p.wait(lg="*")
        seq(p, wd_loads(t, opts))
    for s in range(14): p("s_lshr_b32 s%d, s%d, 4" % (sTab + s, sTabW + s))
    kvpoll = [mk("buffer_load_dwordx2 v[%d:%d], v%d, %s, 0 offen sc1" % (uPoll, uPoll + 1, uFK, S4(sWS)), vm="kvp")]
    p.add(kvpoll[0])
    p.wait(vm="kvp")
    for x in poll_check("kva", [uPoll], kvpoll): p.add(x)
    seq(p, conv_xr())
    p("s_waitcnt vmcnt(0)")
    stamp(p, "a.pre", opts)

def pollf(t, opts):
    if opts["pollf"] == "atom":
        m = re.match(r"buffer_load_dwordx2 v\[(\d+):(\d+)\], (.*) sc1", t)
        if not m: return t
        return "v_mov_b32 v%s, 0\nv_mov_b32 v%s, 0\nbuffer_atomic_add_x2 v[%s:%s], %s sc0 sc1" % (m.group(1), m.group(2), m.group(1), m.group(2), m.group(3))
    return t.replace(" sc1", " " + opts["pollf"].replace("+", " "))
def emit(a, lines):
    for l in lines: a(l if l.endswith(":") else "  " + l)

def build(opts):
    del SLOW[:]
    if "rho" in opts: RHO[:] = [int(c) for c in str(opts["rho"]).rjust(3, "0")]
    PROF[0] = opts.get("prof", 0); SLEEP['*'] = opts.get("sleep", 4)
    name = KN + "_kernel"
    a = A()
    a(header(["; @launch grid=(256,1,1) block=(256,1,1) lds=163840"]))
    a(kernel_begin(name))
    a("s_load_dwordx8 s[80:87], s[0:1], 0\ns_load_dwordx16 s[60:75], s[0:1], 32\ns_load_dwordx2 s[76:77], s[0:1], 96")
    a("s_cmp_ge_u32 s2, 256\ns_cbranch_scc1 L_end")
    if opts.get("prof"):
        a("s_memrealtime s[78:79]\ns_memtime s[100:101]\nv_mov_b32 v255, 0\ns_waitcnt lgkmcnt(0)\nv_writelane_b32 v255, s100, 0\nv_writelane_b32 v255, s78, 62")
    p0 = Prog(); common_setup(p0, opts); c0 = p0.resolve()
    a("s_cmp_ge_u32 s2, 32\ns_cbranch_scc1 L_gemm")
    if opts.get("ipf", 1):
        a("s_getpc_b64 s[4:5]\nv_lshlrev_b32 v1, 7, v0\ns_and_b32 s4, s4, 0xffffff00\nv_min_u32 v1, L_code_end-%s-128, v1\nglobal_load_dword v200, v1, s[4:5]" % name)
    a("s_branch L_aux")
    a.label("L_gemm")
    emit(a, c0)
    p = Prog(); gemm1(p, opts); p.label("L_phase2"); phase2(p, opts)
    pa = Prog(); aux(pa, opts)
    for q in (p, pa):
        if opts.get("x_nochk"): q.ins = [y for y in q.ins if not ("s_cbranch_vccnz L_slow" in y.t)]
        if opts.get("x_nost"): q.ins = [y for y in q.ins if not (y.t.startswith("buffer_store") and "sc1" in y.t)]
        if opts.get("x_nofl"): q.ins = [y for y in q.ins if not (y.t.startswith("buffer_store_dwordx2") and "v[6:7]" in y.t)]
        if opts.get("x_nokv"): q.ins = [y for y in q.ins if not (y.vm in ("kv", "hk") and y.kind != "wait")]
        if opts.get("pollf"):
            for y in q.ins:
                if y.vm in ("kvp", "hpA", "hpB", "yp", "wfp") and y.t.startswith("buffer_load"): y.t = pollf(y.t, opts)
        if opts.get("x_nohb"): q.ins = [y for y in q.ins if not ("v39" in y.t or y.t.startswith("v_alignbit") or y.lg == "hb")]
        if opts.get("x_nowb"): q.ins = [y for y in q.ins if not (y.vm in ("w0", "w1", "w2", "w3", "w4", "w7") and y.kind != "wait")]
        if opts.get("x_drop"):
            dr = str(opts["x_drop"]).split("+")
            q.ins = [y for y in q.ins if not (y.kind != "wait" and y.vm in dr)]
        if opts.get("x_dropw"):
            dr = str(opts["x_dropw"]).split("+")
            q.ins = [y for y in q.ins if not (y.kind == "wait" and y.vm in dr)]
        if opts.get("x_nopoll"): q.ins = [y for y in q.ins if not (y.vm in ("rec", "kvp", "hpA", "hpB", "yp", "wfp") and y.kind != "wait")]
    if opts.get("prof") and "q0" in opts:
        regs = [12, 14, 22, 24, 50, 80, 82, 98]
        i0 = [i for i, y in enumerate(p.ins) if y.t == "L_phase2:"][0]
        out = p.ins[:i0 + 1]; cnt = 0; mf = 0; k = 0
        for y in p.ins[i0 + 1:]:
            out.append(y)
            ism = "v_mfma" in y.t
            mf += ism
            if (mf >= opts.get("qm", 0) and y.kind != "label") if opts.get("qi") else ism:
                cnt += 1
                if k < 8 and cnt == opts["q0"] + k * opts.get("qd", 8):
                    out.append(mk("s_memtime s[%d:%d]" % (regs[k], regs[k] + 1))); k += 1
        out.append(mk("s_waitcnt lgkmcnt(0)"))
        for j in range(k):
            STAMPS.append("Q%d" % (opts["q0"] + j * opts.get("qd", 8))); out.append(mk("v_writelane_b32 v255, s%d, %d" % (regs[j], len(STAMPS) - 1)))
        p.ins = out
    lines = p.resolve()
    la = pa.resolve()
    lines = fix_hazards(lines, "main")
    pr = check_hazards(lines, "main") + check_hazards(la, "aux")
    for x in pr[:40]: print("HAZARD", x, file=sys.stderr)
    if pr: raise SystemExit("hazards")
    emit(a, lines)
    if opts.get("prof"):
        a("s_waitcnt vmcnt(0) lgkmcnt(0)\ns_memtime s[100:101]\ns_memrealtime s[78:79]\ns_load_dwordx2 s[4:5], s[0:1], 96\ns_waitcnt lgkmcnt(0)")
        a("v_writelane_b32 v255, s100, 60\nv_writelane_b32 v255, s78, 63\ns_getreg_b32 s100, hwreg(HW_REG_XCC_ID)\nv_writelane_b32 v255, s100, 61")
        a("s_lshl_b32 s6, s2, 10\ns_lshl_b32 s7, s%d, 8\ns_add_u32 s6, s6, s7\ns_add_u32 s6, s6, 0x1000000\ns_add_u32 s4, s4, s6\ns_addc_u32 s5, s5, 0" % sWave)
        a("v_lshlrev_b32 v2, 2, v1\nglobal_store_dword v2, v255, s[4:5]\ns_waitcnt vmcnt(0)")
        a("; STAMPS " + " ".join(STAMPS))
        a("; SPINS " + " ".join(SPINS))
    a.label("L_end")
    a("s_endpgm")
    a.label("L_aux")
    emit(a, c0)
    emit(a, la)
    a("s_branch L_phase2")
    for t in SLOW:
        if opts.get("pollf"): t = "\n".join(pollf(l, opts) if (l.startswith("buffer_load_dwordx2 v[25") or l.startswith("buffer_load_dwordx2 v[2:3]") or l.startswith("buffer_load_dwordx4 v[250")) else l for l in t.split("\n"))
        a(t)
    a.label("L_code_end")
    a(RODATA)
    a(kernel_desc(name, 512, 102, 256))
    return a.text()

if __name__ == "__main__":
    opts = {}
    for kv in sys.argv[2:]:
        k, _, v = kv.partition("=")
        opts[k] = int(v) if v.lstrip("-").isdigit() else (v if v else 1)
    for k in ("fw", "fx", "fd", "fk", "fkv", "fo", "fr", "fh"):
        if k in opts: opts[k] = "" if opts[k] == "none" else " " + opts[k].replace("+", " ")
    open(sys.argv[1], "w").write(build(opts))
```

```python
import sys, struct, re
from asmlib import *
from sched import *

WS_H  = 0x000000
WS_XR = 0x700000
WS_YT = 0x900000
WS_ST = 0xB00000
WS_FK = 0xB08000
WS_FH = 0xB10000
WS_FY = 0xB18000
WS_FD = 0xB20000
WS_FL = 0x20000
WS_CS = 0xB48000
WS_SZ = 0xC00000
LOG2E = 1.4426950408889634
SPIN_MAX = 1 << 16

def f2u(x): return struct.unpack("<I", struct.pack("<f", x))[0]
def vr(b, n=4, p="v"): return "%s[%d:%d]" % (p, b, b + n - 1) if n > 1 else "%s%d" % (p, b)
def S4(b): return "s[%d:%d]" % (b, b + 3)
def srd(p, d, lo, size):
    p("s_mov_b32 s%d, s%d\ns_and_b32 s%d, s%d, 0xffff\ns_mov_b32 s%d, 0x%x\ns_mov_b32 s%d, 0x20000" % (d, lo, d + 1, lo + 1, d + 2, size, d + 3))
def ml(t, **kw): return [mk(x, **kw) for x in t.split("\n")]
def bundle(t):
    b = I(t, cost=4 * len(t.split("\n"))); b.kind = "bundle"; return b

SLOT = 32768
CONV = 98304; CH_STRIDE = 12928; XR_OFF = 8320
UNIT = [141312, 0, 16384, 32768, 49152, 65536, 81920, 124416]
WUN = {t: t % 7 for t in range(14)}
WUN[5] = 7; PREV = {7: 0, 8: 1, 9: 2, 10: 3, 11: 4, 13: 6}
def wdl(s): return UNIT[WUN[s]]
KVL = 141312
RS = 272; REDW = 32 * RS
RED = [CONV, 0]
YT_L = CONV + 4 * REDW; XCH = CONV
sQ = 8; sW = 12; sWS = 16; sWave = 20; sTB = 21; sCB = 22; sLdsX = 23; sLdsW = 24; sLdsXB = 25; sT0 = 26; sT1 = 27
sHa = 28; sST = 29; sFlK = 30; sDoff = 31; sDbg = 32; sT2 = 34; sT3 = 35; sWd = 36; sHk = 40; sOut = 44; sTag = 48
sXB = 50
sCSw = 52; sTB2 = 53; sDB = 54; sCV = 55; sXRso = 56; sYoff = 57; sFlH = 58; sFlY = 59
sTabW = 60
sHalf = 74; sCh4k = 75; sSpin = 76; sWdL = 77
sDp = 80
sTab = 84
sK = 36; sV = 44; sSh = 64
kSK = 60; kD = 62;
kBX = 64; kWG = 66; kWU = 68; kWD = 70; kOUT = 72; kDBG = 74; kWS = 76; kQ = 80; kK = 82; kV = 84; kSH = 86
vKD = 2
vTag = 6; vFl = 8
vWD = 10; vXD = 14; vXA = 18; vWA = 26; vHoff = 28; vSToff = 29; vCSoff = 30; vL16 = 31; vNon = 32
vKA = 36; vKO = 37; vSH = 38
vR1A = 40; vR1B = 44; vOnes = 180; vST = 52; vXF = 84; vACC = 116; vTMP = 212; vOUT = 220
vCSR = 180; vCSA = 196
uWD = 228; uH = 232; uTR = 236; uCA = 240; uCB = 241; uYst = 242; uFY = 243; uX = 244; uSto = 245; uFH = 246; uFK = 247
uHead = 248; uHeadA = 249; uPoll = 250; uD = 254
uAD = 40; uTmp = 32; uXin = 44; uSt = 52; uCacc = 184; uAcc = 120
vCF = 56; aH = 0
def wfrag(s, mt):
    if s < 8: return "a", 128 + 16 * s + 4 * mt
    if s < 10: return "v", 184 + 16 * (s - 8) + 4 * mt
    return "v", 56 + 16 * (s - 10) + 4 * mt

STAMPS = ["start"]
def stamp_l(name, opts, lvl=1):
    if not opts.get("prof") or opts.get("plvl", 1) == 0 or (lvl > 1 and lvl != opts.get("plvl", 1)): return []
    if name not in STAMPS: STAMPS.append(name)
    idx = STAMPS.index(name)
    assert idx < 48
    return ml("s_memtime s[100:101]\ns_waitcnt lgkmcnt(0)\nv_writelane_b32 v255, s100, %d" % idx, cost=0)
def stamp(p, name, opts, lvl=1):
    for x in stamp_l(name, opts, lvl): p.add(x)

def acc_of(t): return vACC + 16 * {0: 0, 1: 1, 2: 2, 3: 3, 4: 4, 5: 5, 6: 0, 7: 1}[t]
def win(addr): return addr >> 16, addr & 0xffff
def dma(v, srd_, so, off, tag, fl=""):
    return mk("buffer_load_dwordx4 v%d, %s, %s offen offset:%d%s lds" % (v, S4(srd_), so, off, fl), vm=tag)
def is_m0(x): return " m0," in x.t
def is_vm(x): return x.t.startswith("buffer_") or x.t.startswith("global_")
def seq(p, L):
    L = [x for x in L if x.kind != "delay"]
    for i, x in enumerate(L):
        p.add(x)
        if is_m0(x) and i + 1 < len(L) and is_vm(L[i + 1]): p("s_nop 0")
vFl0 = 9
def flag_store(so, wg=False, tag="fl"):
    return mk("buffer_store_dwordx2 v[%d:%d], v%d, %s, s%d offen sc1" % (vTag, vTag + 1, vFl0 if wg else vFl, S4(sWS), so), vm=tag)
def fl0_setup():
    return ml("s_lshl_b32 s6, s%d, 31\ns_lshl_b32 s7, s%d, 30\ns_or_b32 s6, s6, s7\ns_and_b32 s6, s6, 0x80000000\nv_or_b32 v%d, s6, v%d" % (sWave, sWave, vFl0, vFl))

def g1_stage(s, opts):
    L = []; base = (s % 3) * SLOT; tag = "st%d" % s
    fw = opts.get("fw", ""); fx = opts.get("fx", "")
    if s < 8:
        L.append(mk("s_add_u32 m0, s%d, %d" % (sLdsW, base)))
        L += [dma(vWD + j, sW, "s%d" % (sTab + s), j * 1024, tag, fw) for j in range(4)]
        L.append(mk("s_add_u32 m0, s%d, %d" % (sLdsX, base)))
        L += [dma(vXD + j, sQ, "s%d" % (sTab + 8 + s), j * 1024, tag, fx) for j in range(4)]
    else:
        for h in range(2):
            L.append(mk("s_add_u32 m0, s%d, %d" % (sLdsXB, base + h * 4096)))
            L.append(mk("s_add_u32 s%d, s%d, %d" % (sT0 + h, sXB + h, (s - 8) * 32768)))
            L += [dma(vXD + j, sQ, "s%d" % (sT0 + h), j * 1024, tag, fx) for j in range(4)]
    return L
def wd_loads(s, opts):
    return [mk("s_add_u32 m0, s%d, %d" % (sWdL, wdl(s)))] + \
           [dma(uWD + j, sWd, "s%d" % (sTabW + s), j * 1024, "w%d" % s, opts.get("fd", "")) for j in range(4)]
def h_loads(hs):
    ps, s = divmod(hs, 14)
    L = []
    for e in range(2):
        r = aH + 8 * (hs % 16) + 4 * e
        L.append(mk("buffer_load_dwordx4 a[%d:%d], v%d, %s, s%d offen offset:%d sc1" % (r, r + 3, uH + ps, S4(sWS), sTab + (s >> 1), e * 1024 + (s & 1) * 2048), vm="h%d" % hs))
    return L
HI = {1: 216, 2: 220}
uTR2 = 2
def wd_reads(s, inB=False):
    L = []
    w, off = win(wdl(s))
    for f in range(4):
        e, mt = f >> 1, f & 1
        k, b = wfrag(s, f)
        reg = uTR + mt if w == 0 else (uTR2 + mt if inB else HI[w] + mt)
        L.append(mk("ds_read_b64_tr_b16 %s[%d:%d], v%d offset:%d" % (k, b, b + 1, reg, off + e * 2048), lg="t%d" % s))
        L.append(mk("ds_read_b64_tr_b16 %s[%d:%d], v%d offset:%d" % (k, b + 2, b + 3, reg, off + e * 2048 + 512), lg="t%d" % s))
    return L
def hk_loads(opts):
    L = ml("s_lshl_b32 s6, s%d, 11\ns_add_u32 m0, s6, s%d\ns_add_u32 m0, m0, 32" % (sHalf, sCV))
    L += [dma(vL16, sHk, "s6", j * 1024, "hk", opts.get("fk", "")) for j in range(2)]
    L.append(mk("buffer_load_ushort v%d, v%d, %s, 0 offen" % (uHead, uHead, S4(sHk)), vm="hk"))
    L.append(mk("buffer_load_ushort v%d, off, %s, s%d" % (uD, S4(sDp), sDoff), vm="hk"))
    return L
def delay(n):
    d = I("; delay", cost=0); d.kind = "delay"; d.vm = n; return d
def hk_build(alt=0):
    D = [212, 213, 214, 215, 216, 217]; E1 = 220; E3 = 224; C2 = 52
    if alt: D = [10, 11, 12, 13, 26, 27]; E1 = 32; E3 = 32; C2 = 32
    L = ml("s_lshl_b32 s5, s%d, 11\ns_add_u32 s5, s5, s%d\nv_add_u32 v39, s5, v%d\nds_write_b16 v%d, v%d" % (sHalf, sCV, vL16, uHeadA, uHead))
    for j in range(2):
        o = 32 + j * 1024
        L.append(mk("ds_read_b128 %s, v39 offset:%d" % (vr(D[0]), o), lg="hb"))
        L.append(mk("ds_read_b32 v%d, v39 offset:%d" % (D[4], o + 16), lg="hb"))
        L += [delay(5), W(lg="hb")]
        L += [mk("v_alignbit_b32 v%d, v%d, v%d, 16" % (E1 + i, D[i + 1], D[i])) for i in range(4)]
        L += [delay(1), mk("ds_write_b128 v39, %s offset:%d" % (vr(E1), o + 4160), cost=12), delay(2)]
    return L
def conv_xr():
    L = ml("s_lshl_b32 s7, s%d, 10\ns_add_u32 m0, s7, %d" % (sWave, CONV + XR_OFF))
    L += [dma(vL16, sWS, "s%d" % sXRso, 0, "cv", " sc1")]
    L += ml("s_add_u32 s%d, s%d, 4096\ns_add_u32 m0, s7, %d" % (sXRso, sXRso, CONV + CH_STRIDE + XR_OFF))
    L += [dma(vL16, sWS, "s%d" % sXRso, 0, "cv", " sc1")]
    return L
CAR = [uCA, 10, 11, 12]
def conv_reads(rr):
    L = []; b = vCF + 64 * (rr & 1)
    for i in range(8):
        a = b + 4 * i; t = "c%d_%d" % (rr, i)
        ar = CAR[i >> 1]; o = 16 * rr + 128 * (i & 1)
        L.append(mk("ds_read2_b32 v[%d:%d], v%d offset0:%d offset1:%d" % (a, a + 1, ar, o, o + 1), lg=t))
        L.append(mk("ds_read2_b32 v[%d:%d], v%d offset0:%d offset1:%d" % (a + 2, a + 3, ar, o + 2, o + 3), lg=t))
        L.append(mk("ds_read_b128 v[%d:%d], v%d offset:%d" % (a + 32, a + 35, uCB, 3584 - 512 * i + 64 * rr), lg=t))
    return L

def kv_setup(p):
    p("s_lshr_b32 s3, s2, 3\ns_lshl_b32 s3, s3, 16\ns_and_b32 s4, s2, 7\ns_lshl_b32 s5, s4, 7\ns_add_u32 s5, s5, s3")
    p("v_lshrrev_b32 v9, 3, v1\nv_and_b32 v%d, 7, v1\nv_lshlrev_b32 v%d, 4, v%d\nv_lshl_add_u32 v%d, v9, 10, v%d" % (vSH, vKD, vSH, vKD, vKD))
    p("s_add_u32 s6, s5, %d\nv_add_u32 v%d, s6, v%d" % (56 * 1024, vKD + 2, vKD))
    p("s_lshl_b32 s6, s%d, 14\ns_add_u32 s5, s5, s6\nv_add_u32 v%d, s5, v%d" % (sWave, vKD + 1, vKD))
    p("v_add_u32 v%d, 0xffffe000, v%d\nv_add_u32 v%d, %d, v%d" % (vKD, vKD + 1, vKD + 3, 8192 - 1056, vKD + 1))
    p("s_lshl_b32 s6, s%d, 5\ns_add_u32 s6, s6, %d\nv_mul_u32_u24 v%d, 1056, v9\nv_lshl_add_u32 v%d, v%d, 2, v%d\nv_add_u32 v%d, s6, v%d" % (sWave, KVL, vKA, vKA, vSH, vKA, vKA, vKA))
    p("s_lshl_b32 s6, s4, 18\ns_lshl_b32 s7, s%d, 16\ns_add_u32 s6, s6, s7\ns_lshr_b32 s7, s3, 9\ns_sub_u32 s6, s6, s7\ns_add_u32 s6, s6, %d" % (sWave, WS_XR + 4080))
    p("v_lshlrev_b32 v%d, 13, v%d\nv_lshlrev_b32 v9, 4, v9\nv_sub_u32 v%d, v%d, v9\nv_add_u32 v%d, s6, v%d" % (vKO, vSH, vKO, vKO, vKO, vKO))
    p("s_lshl_b32 s6, s4, 9\ns_lshl_b32 s7, s%d, 7\ns_add_u32 s6, s6, s7\nv_lshl_add_u32 v%d, v%d, 4, s6" % (sWave, vSH, vSH))
    p("s_lshl_b32 s6, s2, 7\ns_lshl_b32 s7, s%d, 3\ns_add_u32 s6, s6, s7\ns_add_u32 s%d, s6, %d" % (sWave, sFlK, WS_FK))
    srd(p, sK, kK, 2048 * 1024); srd(p, sV, kV, 2048 * 1024); srd(p, sSh, kSH, 4096)
def kv_loads(opts):
    f = opts.get("fkv", "")
    L = ml("s_mul_i32 s52, s%d, 2112\ns_add_u32 s52, s52, %d\ns_mov_b32 m0, s52" % (sWave, KVL))
    L += [dma(vKD, sK, "0", 0, "kv", f), mk("s_add_u32 m0, s52, 1056"), dma(vKD + 1, sK, "0", 0, "kv", f),
          mk("s_mov_b32 m0, %d" % (KVL + 8 * 1056)), dma(vKD + 2, sK, "0", 0, "kv", f),
          mk("s_add_u32 m0, s52, %d" % (9 * 1056)), dma(vKD + 1, sV, "0", 0, "kv", f), dma(vKD + 3, sV, "0", 1056, "kv", f),
          mk("buffer_load_dwordx4 v[72:75], v%d, %s, 0 offen" % (vSH, S4(sSh)), vm="kv")]
    return L
def kv_compute():
    RK = 52; RV = 63; Wt = 76; K = 212; A = 223; V = 225
    L = []
    for j in range(11): L.append(mk("ds_read_b32 v%d, v%d offset:%d" % (RK + j, vKA, (5 + j) * 128 if j < 3 else 1056 + (j - 3) * 128), lg="kvr"))
    for t in range(8): L.append(mk("ds_read_b32 v%d, v%d offset:%d" % (RV + t, vKA, 9 * 1056 + t * 128), lg="kvr"))
    un = lambda d, s_, hi: mk(("v_and_b32 v%d, 0xffff0000, v%d" if hi else "v_lshlrev_b32 v%d, 16, v%d") % (d, s_))
    for e in range(2):
        for i in range(4): L.append(un(Wt + 4 * e + i, 72 + 2 * e + (i >> 1), i & 1))
    L.append(W(lg="kvr"))
    for e in range(2):
        o = (vNon, uPoll)[e]
        for j in range(11): L.append(un(K + j, RK + j, e))
        for t in range(8):
            a = A + (t & 1)
            L.append(mk("v_mul_f32 v%d, v%d, v%d" % (a, K + t, Wt + 4 * e + 3)))
            L.append(un(V, RV + t, e))
            for i in (2, 1, 0): L.append(mk("v_fmac_f32 v%d, v%d, v%d" % (a, K + t + 3 - i, Wt + 4 * e + i)))
            L.append(mk("v_mul_f32 v%d, v%d, v%d" % (a, a, V)))
            if t & 1: L.append(mk("v_cvt_pk_bf16_f32 v%d, v%d, v%d" % (o + 3 - (t >> 1), A + 1, A)))
    return L
def kv_stores():
    return [mk("s_mov_b32 s%d, 4096" % sT2),
            mk("buffer_store_dwordx4 %s, v%d, %s, 0 offen sc1" % (vr(vNon), vKO, S4(sWS)), vm="kvst"),
            mk("buffer_store_dwordx4 %s, v%d, %s, s%d offen sc1" % (vr(uPoll), vKO, S4(sWS), sT2), vm="kvst")]

SLOW = []
SPINS = []
SLEEP = {'*': 8, 'kva': 16, 'ng': 4, 'na': 4}
PROF = [0]
def spin(name, reload_, test, okbr):
    t = ["L_slow_%s:" % name, "s_mov_b32 s%d, 1" % sSpin, "L_spin_%s:" % name, "s_sleep %d" % SLEEP.get(name, SLEEP['*'])]
    if PROF[0]:
        SPINS.append(name); t.append("v_writelane_b32 v255, s%d, %d" % (sSpin, 47 + len(SPINS)))
    t += [x.t for x in reload_] + ["s_waitcnt vmcnt(0)"] + [x.t for x in test]
    t += ["%s L_ok_%s" % (okbr, name), "s_add_u32 s%d, s%d, 1" % (sSpin, sSpin), "s_cmp_lt_u32 s%d, %d" % (sSpin, SPIN_MAX),
          "s_cbranch_scc1 L_spin_%s" % name, "s_branch L_ok_%s" % name]
    SLOW.append("\n".join(t))
def poll_check(name, regs, reload_, bits=64):
    L = []
    for i, r in enumerate(regs):
        op = "v_cmp_ne_u64 %%s, s[%d:%d], v[%d:%d]" % (sTag, sTag + 1, r, r + 1) if bits == 64 else "v_cmp_ne_u32 %%s, s%d, v%d" % (sTag, r)
        if i == 0: L.append(mk(op % "vcc"))
        else: L += ml(op % "s[4:5]" + "\ns_or_b64 vcc, vcc, s[4:5]")
    spin(name, reload_, L, "s_cbranch_vccz")
    return L + [mk("s_cbranch_vccnz L_slow_%s" % name), I("L_ok_%s:" % name, kind="label", cost=0)]
def nonce_get(name):
    ld = mk("global_load_dwordx2 v[%d:%d], v%d, s[%d:%d] sc1" % (vNon, vNon + 1, vNon + 2, sDbg, sDbg + 1), vm="non")
    t = ml("v_readfirstlane_b32 s%d, v%d\nv_readfirstlane_b32 s%d, v%d\ns_cmp_lg_u32 s%d, 0" % (sTag, vNon, sTag + 1, vNon + 1, sTag))
    spin(name, [ld], t, "s_cbranch_scc1")
    chk = t[:2] + [bundle(t[2].t + "\ns_cbranch_scc0 L_slow_%s" % name), I("L_ok_%s:" % name, kind="label", cost=0)]
    chk += ml("v_mov_b32 v%d, v%d\nv_mov_b32 v%d, v%d" % (vTag, vNon, vTag + 1, vNon + 1))
    return ld, chk

def g1_epilogue(tile, opts):
    A0 = acc_of(tile)
    c4 = vST + 4 * tile + 1; c1 = vST + 4 * tile + 2
    g = [A0 + (p >> 2) * 8 + (p & 3) for p in range(8)]
    u = [x + 4 for x in g]
    o = vOUT + 4 * (tile & 1)
    st = []
    for p in range(8):
        t = vTMP + p
        st.append([mk("v_mul_f32 v%d, v%d, v%d" % (g[p], g[p], c1)), mk("v_exp_f32 v%d, v%d" % (t, g[p])),
                   mk("v_mul_f32 v%d, v%d, v%d" % (u[p], g[p], u[p])), mk("v_fma_f32 v%d, v%d, v%d, v%d" % (t, t, c4, c4)),
                   mk("v_rcp_f32 v%d, v%d" % (t, t)), mk("v_mul_f32 v%d, v%d, v%d" % (u[p], u[p], t))])
    R = []; pend = []
    for step in range(18):
        for k in (5, 4, 3, 2, 1, 0):
            p = step - 2 * k
            if 0 <= p < 8:
                R.append(st[p][k])
                for q in pend: R.append(mk("v_cvt_pk_bf16_f32 v%d, v%d, v%d" % (o + (q >> 1), u[q - 1], u[q])))
                pend = [p] if (k == 5 and p & 1) else []
    for q in pend: R.append(mk("v_cvt_pk_bf16_f32 v%d, v%d, v%d" % (o + (q >> 1), u[q - 1], u[q])))
    R.append(mk("s_add_u32 s%d, s%d, %d" % (sT3, sHa, tile * 112 * 1024)))
    if not opts.get("x_nohst"): R.append(mk("buffer_store_dwordx4 %s, v%d, %s, s%d offen%s" % (vr(o), vL16, S4(sWS), sT3, "" if opts.get("x_hplain") else opts.get("fh", " sc1")), vm="hst%d" % tile))
    return R

def common_setup(p, opts):
    p("v_and_b32 v1, 63, v0\nv_lshrrev_b32 v2, 6, v0\nv_lshlrev_b32 v%d, 4, v1\nv_readfirstlane_b32 s%d, v2" % (vL16, sWave))
    p("v_lshrrev_b32 v2, 3, v1\nv_and_b32 v3, 7, v1\nv_lshrrev_b32 v9, 4, v1\nv_mov_b32 v%d, 0" % (vNon + 2))

def phase2_setup(p, opts):
    q, n, a, b, c, d = 40, 41, 42, 43, 44, 45
    p("s_and_b32 s3, s2, 7\ns_lshr_b32 s4, s2, 3\ns_lshl_b32 s3, s3, 2\ns_and_b32 s5, s4, 3\ns_add_u32 s%d, s3, s5\ns_lshr_b32 s%d, s4, 2" % (sTB2, sDB))
    if opts.get("dbx", 3): p("s_xor_b32 s%d, s%d, %d" % (sDB, sDB, opts.get("dbx", 3)))
    p("v_lshrrev_b32 v%d, 4, v1\nv_and_b32 v%d, 15, v1" % (q, n))
    p("v_lshrrev_b32 v%d, 3, v1\nv_and_b32 v%d, 7, v1\nv_and_b32 v%d, 1, v%d\nv_lshlrev_b32 v%d, 2, v%d\nv_xor_b32 v%d, v%d, v%d" % (a, b, c, q, c, c, c, c, b))
    p("s_lshl_b32 s7, s%d, 7\ns_mul_i32 s5, s%d, %d\ns_add_u32 s7, s7, s5" % (sDB, sWave, 448 * 1024))
    p("v_lshlrev_b32 v%d, 4, v%d\nv_lshl_add_u32 v%d, v%d, 10, v%d\nv_add_u32 v%d, s7, v%d" % (c, c, c, a, c, uWD, c))
    for j in range(1, 4): p("v_add_u32 v%d, %d, v%d" % (uWD + j, 7168 * j, uWD))
    p("s_lshr_b32 s5, s%d, 2\ns_lshl_b32 s5, s5, 4\ns_and_b32 s6, s%d, 3\ns_lshl_b32 s6, s6, 1\ns_add_u32 s6, s5, s6" % (sTB2, sTB2))
    p("s_mul_i32 s5, s6, 57344\ns_mul_i32 s7, s%d, 28672\ns_add_u32 s5, s5, s7\nv_add_u32 v%d, s5, v%d\nv_add_u32 v%d, %d, v%d" % (sWave, uH, vL16, uH + 1, 8 * 57344, uH))
    p("s_lshl_b32 s5, s6, 4\ns_lshl_b32 s7, s%d, 3\ns_add_u32 s5, s5, s7\nv_lshrrev_b32 v%d, 5, v1\nv_and_b32 v%d, 3, v1\nv_lshl_add_u32 v%d, v%d, 2, v%d\nv_add_u32 v%d, s5, v%d" % (sWave, c, d, c, c, d, c, c))
    p("v_bfe_u32 v%d, v1, 2, 3\nv_lshlrev_b32 v%d, 4, v%d\nv_lshl_add_u32 v%d, v%d, 10, v%d\ns_lshl_b32 s7, s%d, 7\nv_add_u32 v%d, s7, v%d" % (d, d, d, d, c, d, sDB, uX, d))
    p("v_lshlrev_b32 v%d, 4, v%d\nv_add_u32 v%d, %d, v%d" % (c, c, uSto, WS_ST, c))
    p("v_bfe_u32 v%d, v1, 2, 2\nv_lshrrev_b32 v%d, 5, v1\nv_lshl_add_u32 v%d, v%d, 3, v%d\nv_lshlrev_b32 v%d, 7, v%d\nv_lshrrev_b32 v%d, 1, v%d\nv_lshl_add_u32 v%d, v%d, 6, v%d" % (a, b, b, b, a, b, b, a, a, b, a, b))
    p("v_and_b32 v%d, 1, v%d\nv_lshl_add_u32 v%d, v%d, 5, v%d\nv_and_b32 v%d, 3, v1\nv_lshl_add_u32 v%d, v%d, 3, v%d\nv_add_u32 v%d, s%d, v%d\nv_xor_b32 v%d, 64, v%d" % (a, q, b, a, b, a, b, a, b, uTR, sWdL, b, uTR + 1, uTR))
    p("v_add_u32 v%d, 1, v%d\nv_and_b32 v%d, 1, v%d\nv_sub_u32 v%d, v%d, v%d\nv_lshl_add_u32 v%d, v%d, 3, v%d\nv_lshlrev_b32 v%d, 1, v%d" % (a, n, b, a, a, a, b, a, q, a, a, a))
    p("v_mul_u32_u24 v%d, 4160, v%d\ns_lshl_b32 s7, s%d, 8\ns_add_u32 s7, s7, s%d\nv_add3_u32 v%d, v%d, v%d, s7" % (b, b, sHalf, sCV, uCA, a, b))
    p("v_lshlrev_b32 v%d, 5, v%d\nv_lshlrev_b32 v%d, 4, v%d\nv_sub_u32 v%d, v%d, v%d\ns_add_u32 s7, s7, %d\nv_add_u32 v%d, s7, v%d" % (a, n, b, q, a, b, a, XR_OFF + 480, uCB, a))
    p("v_and_b32 v%d, 1, v%d\nv_mul_u32_u24 v%d, 4160, v%d\nv_lshl_add_u32 v%d, v%d, 1, v%d\nv_add_u32 v%d, s%d, v%d" % (a, q, a, a, a, n, a, uHeadA, sCV, a))
    p("v_mov_b32 v46, 0\nv_mov_b32 v47, 0\nv_lshlrev_b32 v%d, 3, v1\ns_add_u32 s7, s%d, %d\nv_add_u32 v%d, s7, v%d" % (a, sCV, XR_OFF + 4096, a, a))
    p("ds_write_b64 v%d, v[46:47]" % a)
    p("v_and_b32 v%d, 2, v%d\nv_lshlrev_b32 v%d, 3, v%d\nv_and_b32 v%d, 1, v%d\nv_lshl_add_u32 v%d, v%d, 5, v%d\nv_bfe_u32 v%d, v%d, 1, 2\nv_lshl_add_u32 v%d, v%d, 7, v%d\nv_lshrrev_b32 v%d, 3, v%d\nv_lshl_add_u32 v%d, v%d, 6, v%d\nv_and_b32 v%d, 1, v%d\nv_lshl_add_u32 v%d, v%d, 9, v%d" % (a, q, a, a, b, n, a, b, a, b, n, a, b, a, b, n, a, b, a, b, q, uYst, b, a))
    p("s_lshl_b32 s7, s%d, 11\ns_add_u32 s7, s7, s%d\ns_add_u32 s%d, s7, %d" % (sHalf, sCh4k, sYoff, WS_YT))
    p("s_lshl_b32 s7, s2, 13\ns_lshl_b32 s3, s%d, 10\ns_add_u32 s7, s7, s3\ns_add_u32 s%d, s7, %d" % (sWave, sXRso, WS_XR))
    p("s_lshl_b32 s7, s2, 7\ns_add_u32 s%d, s7, %d" % (sFlY, WS_FY))
    p("v_and_b32 v%d, 7, v1\nv_lshlrev_b32 v%d, 7, v%d" % (a, a, a))
    p("s_lshl_b32 s7, s%d, 12\ns_lshl_b32 s3, s%d, 10\ns_add_u32 s7, s7, s3\ns_add_u32 s7, s7, %d\nv_add_u32 v%d, s7, v%d" % (sDB, sWave, WS_FY, uFY, a))
    p("v_min_u32 v%d, 6, v1\nv_lshlrev_b32 v%d, 7, v%d" % (a, a, a))
    p("s_lshr_b32 s7, s%d, 2\ns_lshl_b32 s7, s7, 5\ns_mul_i32 s3, s%d, 7\ns_add_u32 s7, s7, s3\ns_lshl_b32 s7, s7, 7\ns_add_u32 s7, s7, %d\nv_add_u32 v%d, s7, v%d" % (sTB2, sWave, WS_FH, uFH, a))
    p("v_and_b32 v%d, 7, v1\nv_lshlrev_b32 v%d, 10, v%d\ns_lshr_b32 s7, s2, 5\ns_lshl_b32 s7, s7, 7\ns_and_b32 s3, s2, 24\ns_add_u32 s7, s7, s3" % (a, a, a))
    p("s_lshl_b32 s3, s%d, 13\ns_sub_u32 s7, s7, s3\ns_add_u32 s7, s7, %d\nv_sub_u32 v%d, s7, v%d" % (sWave, WS_FK + 31 * 1024, uFK, a))
    p("v_cmp_ne_u32 vcc, 0, v1\nv_mov_b32 v%d, 0x80000000\nv_mov_b32 v%d, 0\nv_cndmask_b32 v%d, v%d, v%d, vcc" % (a, b, vFl, b, a))

def hk_srds(p):
    p("s_add_u32 s%d, s60, s%d\ns_addc_u32 s%d, s61, 0\ns_and_b32 s%d, s%d, 0xffff\ns_sub_u32 s%d, 0x200000, s%d\ns_mov_b32 s%d, 0x20000" % (sHk, sCh4k, sHk + 1, sHk + 1, sHk + 1, sHk + 2, sCh4k, sHk + 3))
    srd(p, sDp, kD, 1024)
def ids2(p):
    p("s_lshr_b32 s3, s%d, 1\ns_lshl_b32 s4, s2, 1\ns_add_u32 s4, s4, s3\ns_mul_i32 s%d, s3, %d\ns_add_u32 s%d, s%d, %d" % (sWave, sCV, CH_STRIDE, sCV, sCV, CONV))
    p("s_and_b32 s%d, s%d, 1\ns_lshl_b32 s%d, s4, 12\ns_lshl_b32 s%d, s4, 1\ns_lshl_b32 s%d, s%d, 12" % (sHalf, sWave, sCh4k, sDoff, sWdL, sWave))
    p("v_bfe_u32 v40, v1, 4, 1\nv_and_b32 v41, 15, v1\nv_add_u32 v42, v40, v41\nv_add_u32 v42, -16, v42\nv_lshlrev_b32 v%d, 1, v42" % uHead)
RHO = [2, 4, 1]
def phase2_srds():
    L = []
    for d, lo, size in ((sWd, kWD, 1792 * 1024), (sOut, kOUT, 2048 * 1024)):
        L += ml("s_mov_b32 s%d, s%d\ns_and_b32 s%d, s%d, 0xffff\ns_mov_b32 s%d, 0x%x\ns_mov_b32 s%d, 0x20000" % (d, lo, d + 1, lo + 1, d + 2, size, d + 3))
    for s in range(14): L += ml("s_mov_b32 s%d, %d" % (sTabW + s, s * 32768))
    return L

class Filler:
    def __init__(self, space=2):
        self.vq = []; self.xq = []; self.last = -9; self.space = space
    def v(self, at, L): self.vq += [(at, x) for x in L]
    def x(self, at, L): self.xq += [(at, y) for y in L]
    def fill(self, gi, gap, budget, xbudget=None, novm=False):
        used = lambda: sum(y.cost for y in gap)
        nv = 0
        for q in (self.vq, self.xq):
            if q and q[0][1].kind == "delay" and q[0][0] <= gi:
                n = q.pop(0)[1].vm
                if q: q[0] = (max(q[0][0], gi + n), q[0][1])
        while not novm and self.vq and self.vq[0][0] <= gi and used() + self.vq[0][1].cost <= budget:
            at, y = self.vq[0]
            if y.kind == "delay": break
            if is_vm(y) and y.t.endswith(" lds"):
                lag = gi - at
                if nv >= 1 or (gi - self.last < self.space and lag < 14): break
                nv += 1; self.last = gi
            gap.append(y); self.vq.pop(0)
            if is_m0(y): break
        while self.xq and self.xq[0][0] <= gi and used() + self.xq[0][1].cost <= (xbudget or budget):
            if self.xq[0][1].kind == "delay": break
            gap.append(self.xq.pop(0)[1])

def gemm1(p, opts):
    p("s_sub_u32 s3, s2, 32\ns_and_b32 s4, s3, 7\ns_lshr_b32 s5, s3, 3")
    p("s_and_b32 s6, s4, 1\ns_and_b32 s7, s5, 3\ns_lshl_b32 s34, s7, 1\ns_add_u32 s34, s34, s6\ns_lshl_b32 s6, s6, 2\ns_add_u32 s%d, s6, s7" % sTB)
    p("s_lshr_b32 s6, s4, 1\ns_mul_i32 s6, s6, 7\ns_lshr_b32 s7, s5, 2\ns_add_u32 s7, s7, %d\ns_cmp_ge_u32 s7, 7\ns_cselect_b32 s5, 7, 0\ns_sub_u32 s7, s7, s5\ns_add_u32 s%d, s6, s7" % (opts.get("cbr", 0), sCB)) if opts.get("cbr") else p("s_lshr_b32 s6, s4, 1\ns_mul_i32 s6, s6, 7\ns_lshr_b32 s7, s5, 2\ns_add_u32 s%d, s6, s7" % sCB)
    SG = opts.get("sig", 5)
    if SG == 0: p("s_mov_b32 s34, 0")
    elif SG == 1: p("s_and_b32 s34, s4, 1\ns_lshl_b32 s34, s34, 2\ns_and_b32 s6, s4, 6\ns_add_u32 s34, s34, s6\ns_and_b32 s34, s34, 7")
    elif SG == 5: p("s_lshr_b32 s6, s4, 1\ns_xor_b32 s34, s6, s%d" % sTB)
    elif SG == 6: p("s_lshr_b32 s6, s4, 1\ns_and_b32 s34, s%d, 6\ns_xor_b32 s34, s6, s34" % sTB)
    elif SG == 2: p("s_add_u32 s34, s34, s%d\ns_and_b32 s34, s34, 7" % sCB)
    elif SG == 3: p("s_and_b32 s34, s4, 1\ns_lshl_b32 s34, s34, 2\ns_and_b32 s6, s4, 6\ns_add_u32 s34, s34, s6\ns_and_b32 s6, s%d, 1\ns_add_u32 s34, s34, s6\ns_and_b32 s34, s34, 7" % sTB)
    elif SG == 4: p("s_and_b32 s34, s4, 1\ns_lshl_b32 s34, s34, 2\ns_and_b32 s6, s4, 6\ns_add_u32 s34, s34, s6\ns_and_b32 s6, s%d, 1\ns_lshl_b32 s6, s6, 2\ns_add_u32 s34, s34, s6\ns_and_b32 s34, s34, 7" % sCB)
    p("v_xor_b32 v5, v9, v3\nv_lshlrev_b32 v5, 4, v5\nv_lshl_add_u32 v%d, v2, 10, v5\nv_xor_b32 v5, 64, v%d" % (vXD, vXD))
    p("v_add_u32 v%d, 7168, v5\nv_add_u32 v%d, 14336, v%d\nv_add_u32 v%d, 21504, v5" % (vXD + 1, vXD + 2, vXD, vXD + 3))
    p("s_lshr_b32 s3, s%d, 1\ns_lshl_b32 s3, s3, 2" % sWave)
    p("v_and_b32 v5, 1, v9\nv_lshlrev_b32 v5, 1, v5\nv_xor_b32 v5, s3, v5\nv_xor_b32 v5, v5, v3\nv_lshlrev_b32 v5, 4, v5")
    p("s_and_b32 s4, s%d, 1\ns_mul_i32 s4, s4, %d\ns_lshl_b32 s5, s%d, 7\ns_add_u32 s4, s4, s5" % (sWave, 32 * 3584, sCB))
    p("v_mul_u32_u24 v6, 3584, v2\nv_add3_u32 v%d, v5, v6, s4" % vWD)
    for j in range(1, 4): p("v_add_u32 v%d, %d, v%d" % (vWD + j, j * (8 * 3584 - 1024), vWD))
    p("s_lshl_b32 s35, s%d, 18\ns_lshl_b32 s5, s%d, 15\ns_add_u32 s7, s35, s5" % (sTB, sWave))
    p("s_lshl_b32 s%d, s%d, 12\ns_add_u32 s%d, s%d, 16384" % (sLdsW, sWave, sLdsX, sLdsW))
    p("s_mul_i32 s%d, s34, %d\ns_lshl_b32 s3, s34, 7\ns_add_u32 s%d, s3, s7" % (sTab + 4, 64 * 3584, sTab + 8))
    p("s_waitcnt lgkmcnt(0)")
    srd(p, sQ, kQ, 2048 * 1024)
    p("s_cmp_ge_u32 s%d, 2\ns_cselect_b32 s66, s68, s66\ns_cselect_b32 s67, s69, s67" % sWave)
    srd(p, sW, kWG, 512 * 3584)
    stamp(p, "g.karg", opts, 2)
    W2 = opts.get("wt2", 0); X2 = opts.get("xt2", W2)
    if W2:
        p("v_add_u32 v5, s34, v2\nv_and_b32 v5, 7, v5\nv_lshlrev_b32 v7, 7, v5\nv_lshl_add_u32 v5, v5, 6, v3\ns_and_b32 s3, s%d, 3\ns_mul_i32 s3, s3, %d\ns_add_u32 s3, s3, s4" % (sTB, 8 * 3584))
        p("v_mul_u32_u24 v5, 3584, v5\nv_cmp_gt_u32 vcc, %d, v2\nv_add_u32 v5, s3, v5\nv_mov_b32 v6, -1\nv_cndmask_b32 v5, v6, v5, vcc" % W2)
        p("buffer_load_dword v8, v5, %s, 0 offen" % S4(sW), vm="wt")
        p("s_lshr_b32 s3, s2, 5\ns_sub_u32 s3, s3, 1\ns_mul_i32 s3, s3, 5\nv_add_u32 v5, s3, v3\nv_cmp_gt_u32 vcc, 5, v3\nv_cmp_gt_u32 s[26:27], 32, v5\nv_cmp_gt_u32 s[28:29], %d, v2" % X2)
        p("v_lshl_add_u32 v5, v5, 10, v7\ns_and_b64 vcc, vcc, s[26:27]\ns_and_b64 vcc, vcc, s[28:29]\nv_add_u32 v5, s7, v5\nv_cndmask_b32 v5, v6, v5, vcc")
        p("buffer_load_dword v8, v5, %s, 0 offen" % S4(sQ), vm="wt")
    st0 = g1_stage(0, opts)
    for x in st0: x.t = x.t.replace("s%d offen" % sTab, "s%d offen" % (sTab + 4))
    seq(p, st0)
    stamp(p, "g.st0", opts, 2)
    WT = opts.get("wt", 0)
    if WT:
        p("v_add_u32 v5, s34, v2\nv_add_u32 v5, 1, v5\nv_and_b32 v5, 7, v5\nv_lshl_add_u32 v5, v5, 6, v3\ns_and_b32 s3, s%d, 3\ns_mul_i32 s3, s3, %d\ns_add_u32 s3, s3, s4" % (sTB, 8 * 3584))
        p("v_mul_u32_u24 v5, 3584, v5\nv_cmp_gt_u32 vcc, %d, v2\nv_add_u32 v5, s3, v5\nv_mov_b32 v6, -1\nv_cndmask_b32 v5, v6, v5, vcc" % WT)
        p("buffer_load_dword v6, v5, %s, 0 offen" % S4(sW), vm="wt")
    p("s_mov_b32 s27, s7")
    srd(p, sWS, kWS, WS_SZ)
    p("s_mov_b32 s%d, s74\ns_mov_b32 s%d, s75" % (sDbg, sDbg + 1))
    kv_setup(p)
    ids2(p); hk_srds(p)
    for s in range(1, 8):
        p(("s_xor_b32 s3, s34, %d" if SG >= 5 else "s_add_u32 s3, s34, %d\ns_and_b32 s3, s3, 7") % s)
        p("s_mul_i32 s%d, s3, %d\ns_lshl_b32 s3, s3, 7\ns_add_u32 s%d, s3, s27" % (sTab + s, 64 * 3584, sTab + 8 + s))
    p("s_lshl_b32 s%d, s%d, 13\ns_add_u32 s6, s35, %d" % (sLdsXB, sWave, 0 if opts.get("x_xsame") else 0x20000))
    for h in range(2):
        if SG >= 5: p("s_lshl_b32 s3, s%d, 1\ns_add_u32 s3, s3, %d\ns_xor_b32 s3, s3, s34\ns_lshl_b32 s3, s3, 7\ns_add_u32 s%d, s3, s6" % (sWave, h, sXB + h))
        else: p("s_lshl_b32 s3, s%d, 1\ns_add_u32 s3, s3, s34\ns_add_u32 s3, s3, %d\ns_and_b32 s3, s3, 7\ns_lshl_b32 s3, s3, 7\ns_add_u32 s%d, s3, s6" % (sWave, h, sXB + h))
    p("s_lshl_b32 s3, s%d, 2\ns_add_u32 s3, s3, s%d\ns_lshl_b32 s3, s3, 10\ns_mul_i32 s4, s%d, %d\ns_add_u32 s%d, s3, s4" % (sCB, sWave, sTB, 16 * 57344, sHa))
    p("s_lshl_b32 s4, s%d, 12\ns_add_u32 s%d, s4, %d" % (sTB, sST, WS_ST))
    a, b, c, d, e, f = 40, 41, 42, 43, 44, 45
    p("v_and_b32 v%d, 31, v1\nv_lshrrev_b32 v%d, 5, v1\nv_lshlrev_b32 v%d, 4, v%d" % (a, b, vSToff, a))
    p("s_lshl_b32 s3, s%d, 5\ns_add_u32 s3, s3, s%d\ns_lshl_b32 s3, s3, 7\ns_add_u32 s%d, s3, %d" % (sTB, sCB, sFlH, WS_FH))
    p("v_bfe_u32 v%d, v1, 1, 3\nv_xor_b32 v%d, v%d, v%d\nv_lshlrev_b32 v%d, 4, v%d\nv_lshl_add_u32 v%d, v%d, 7, v%d" % (c, c, c, b, c, c, vXA, a, c))
    for ks in range(1, 4): p("v_xor_b32 v%d, %d, v%d" % (vXA + ks, 32 * ks, vXA))
    for ks in range(4): p("v_add_u32 v%d, 0x10000, v%d" % (vXA + 4 + ks, vXA + ks))
    p("v_bfe_u32 v%d, v1, 2, 2\nv_bfe_u32 v%d, v1, 1, 1\nv_and_b32 v%d, 1, v1\nv_bfe_u32 v%d, v1, 4, 1" % (a, c, d, e))
    p("v_lshrrev_b32 v%d, 1, v%d\nv_lshl_add_u32 v%d, v%d, 1, v%d\nv_xor_b32 v%d, s%d, v%d\nv_lshlrev_b32 v%d, 5, v%d" % (f, a, f, c, f, f, sWave, f, f, f))
    p("v_lshl_add_u32 v%d, v%d, 4, v%d\nv_lshl_add_u32 v%d, v%d, 3, v%d\nv_lshl_add_u32 v%d, v%d, 13, v%d" % (f, d, f, f, e, f, f, c, f))
    p("v_lshl_add_u32 v%d, v%d, 3, v%d\nv_lshl_add_u32 v%d, v%d, 7, v%d\nv_add_u32 v%d, 0x10000, v%d" % (a, b, a, vWA, a, f, vWA + 1, vWA))
    stamp(p, "g.set1", opts, 2)
    if not opts.get("p2in", 1): phase2_setup(p, opts)
    for r in range(2 if opts.get("cs4", 1) else 4): p("v_mov_b32 v%d, 0x3f803f80" % (vOnes + r))
    stamp(p, "g.set2", opts, 2)
    KVP = opts.get("kvp", 1)
    nld, nchk = nonce_get("ng")
    HKP = opts.get("hkp", 9)
    hkl = hk_loads(opts) if HKP == 0 else []
    if KVP == 0: seq(p, kv_loads(opts) + hkl)
    stamp(p, "g.kvis", opts, 2)
    S1IN = opts.get("s1in", 0)
    NL = opts.get("nlate", 1)
    if not S1IN:
        seq(p, g1_stage(1, opts))
        if not NL: p.add(nld)
    if KVP == 1: seq(p, kv_loads(opts) + hkl)
    if opts.get("tlb"):
        sh = opts["tlb"]
        p("v_lshlrev_b32 v52, %d, v1\nbuffer_load_dword v53, v52, %s, 0 offen" % (sh, S4(sWS)), vm="tlb")
        p("v_min_u32 v52, 0x1bff00, v52\nglobal_load_dword v54, v52, s[70:71]\nglobal_load_dword v55, v52, s[72:73]\nglobal_load_dword v56, v52, s[60:61]", vm="tlb")
    stamp(p, "g.st1", opts)

    def rdW(n):
        s, ks = n >> 2, n & 3
        w, off = win((s % 3) * SLOT + ks * 2048)
        return [mk("ds_read_b64_tr_b16 a[%d:%d], v%d offset:%d" % (4 * n, 4 * n + 1, vWA + w, off), lg="W%d" % n),
                mk("ds_read_b64_tr_b16 a[%d:%d], v%d offset:%d" % (4 * n + 2, 4 * n + 3, vWA + w, off + 512), lg="W%d" % n)]
    def rdXA(n, i):
        s, ks = n >> 2, n & 3
        w, off = win((s % 3) * SLOT + 16384 + i * 4096)
        return mk("ds_read_b128 %s, v%d offset:%d" % (vr(vXF + 16 * (n & 1) + 4 * i), vXA + 4 * w + ks, off), lg="X%d_%d" % (n, i))
    def rdXB(bb, n):
        w, off = win(((8 + bb) % 3) * SLOT + (n >> 2) * 4096)
        return mk("ds_read_b128 %s, v%d offset:%d" % (vr(vXF + 4 * (n & 7)), vXA + 4 * w + (n & 3), off), lg="B%d_%d" % (bb, n))

    fr = opts.get("fr", " sc1")
    st_loads = [mk("buffer_load_dwordx4 %s, v%d, %s, s%d offen offset:%d sc1" % (vr(vST + 4 * t), vSToff, S4(sWS), sST, t * 512), vm="rec") for t in range(8)]
    post = poll_check("rec", [vST + 4 * t + 3 for t in range(8)], st_loads, 32)
    post += ml("v_mov_b32 v%d, v%d\nv_mov_b32 v%d, v%d" % (vR1B, vST, vR1B + 4, vST + 4))
    csfin = ml("v_cvt_pk_bf16_f32 v%d, v%d, v%d\nv_and_b32 v%d, 0xffff0000, v%d\nv_sub_f32 v%d, v%d, v%d\nv_cvt_pk_bf16_f32 v%d, v%d, v%d\nv_and_b32 v%d, v186, v%d"
               % (184, vCSA, vCSA, 184, 184, 185, vCSA, 184, 184, 184, 185, vR1A, 184))
    if opts.get("cs4", 1):
        csfin = ml("v_add_f32 v%d, v%d, v%d\nv_mov_b32 v%d, v%d\ns_nop 1\nv_permlane32_swap_b32 v%d, v%d\nv_add_f32 v%d, v%d, v%d" % (vCSA, vCSA, vCSA + 4, vCSA + 1, vCSA, vCSA, vCSA + 1, vCSA, vCSA, vCSA + 1)) + csfin
    if opts.get("x_norec"):
        st_loads = []; post = [y for y in post if "cbranch" not in y.t]
    F = Filler(opts.get("aspace", 2))
    RL = opts.get("recst", 5)
    if S1IN: F.v(-20, g1_stage(1, opts) + [nld])
    for s in range(8):
        F.v(max(0, 16 * s - 3) if not (S1IN and s == 0) else -20, g1_stage(s + 2, opts))
        if NL and s == 0 and not S1IN: F.v(0, [nld])
        if KVP >= 2 and s + 2 == KVP: F.v(0, kv_loads(opts) + hkl)
        if HKP and HKP < 10 and s + 2 == HKP: F.v(0, hk_loads(opts))
        if s == opts.get("kvst", 8) and not opts.get("x_nokvs"): F.v(0, kv_stores())
        if s == 7 and opts.get("kvst", 8) < 8: F.v(16 * 7 + 8, [W(vm="kvst"), flag_store(sFlK)])
    if opts.get("p2in", 1):
        q_ = Prog(); phase2_setup(q_, opts)
        L_ = q_.ins; F.x(0, L_[:-4] + [bundle("\n".join(y.t for y in L_[-4:]))])
    F.x(0, ml("v_lshrrev_b32 v186, 5, v1\nv_add_u32 v186, -1, v186"))
    F.x(0, [mk("v_mov_b32 v%d, 0" % r) for r in (vR1A + 1, vR1A + 2, vR1A + 3)])
    F.x(0, [mk("v_mov_b32 v%d, 0" % r) for r in (vR1B + 1, vR1B + 2, vR1B + 3, vR1B + 5, vR1B + 6, vR1B + 7)])
    sr = phase2_srds()
    if opts.get("sre", 1): F.x(16 * KVP - 1 if KVP >= 2 else 0, sr); sr = []
    F.x(29 if NL else 13, [W(vm="non")] + nchk)
    kc = kv_compute()
    if opts.get("x_nokvr"): kc = [y for y in kc if not y.t.startswith("ds_")]
    if opts.get("x_nokvv"): kc = [y for y in kc if not y.t.startswith("v_")]
    F.x(13 if KVP == 0 else 16 * (KVP + 1) - 3, kc)
    KVS = I("; kv done", cost=0); KVS.kind = "label"
    F.x(0, [KVS] + (hk_build() if HKP == 0 else []) + sr[:8])
    F.x(16 * RL - 4, st_loads)
    F.x(0, sr[8:])
    F.x(16 * (RL + 2) - 3 + opts.get("postat", 0), [W(vm="rec")] + post)
    p.wait(vm="st0")
    p("s_barrier")
    stamp(p, "g.st0in", opts)
    for x in rdW(0): p.add(x)
    for i in range(4): p.add(rdXA(0, i))
    PD = opts.get("pd", 7); WE = opts.get("we", 4)
    BA = opts.get("buda", 24)
    for n in range(32):
        s, ks = n >> 2, n & 3
        gaps = [[], [], [], []]
        if ks == 3:
            DU = [int(c) * 10 for c in str(opts.get("dump", "666")).ljust(8, "0")][s]
            F.fill(4 * n, gaps[0], 4 * DU, novm=True)
            F.pre = sum(y.cost for y in gaps[0])
            gaps[0] += [W(vm="st%d" % (s + 1), lg="*"), mk("s_barrier")]
        if n < 31:
            gaps[0] += rdW(n + 1); gaps[1] += [rdXA(n + 1, 0), rdXA(n + 1, 1)]; gaps[2] += [rdXA(n + 1, 2), rdXA(n + 1, 3)]
        else:
            gaps[0] += [rdXB(0, 0), rdXB(0, 1)]; gaps[1] += [rdXB(0, 2), rdXB(0, 3)]
        for i in range(4):
            if i in (0, 2): p.wait(lg=["W%d" % n, "X%d_%d" % (n, i + 1)])
            if opts.get("cs4", 1):
                if i in (0, 1): p("v_mfma_f32_4x4x4_16b_bf16 %s, %s, a[%d:%d], %s" % (vr(vCSA + 4 * i), vr(vOnes, 2), 4 * n + 2 * i, 4 * n + 2 * i + 1, vr(vCSA + 4 * i) if n else "0"))
            elif i == 0:
                p("v_mfma_f32_32x32x16_bf16 %s, %s, a[%d:%d], %s" % (vr(vCSA, 16), vr(vOnes), 4 * n, 4 * n + 3, vr(vCSA, 16) if n else "0"))
                g5 = []; F.fill(4 * n, g5, BA, novm=True)
                for x in g5: p.add(x)
            if n == 31 and i == 2 and opts.get("cs4", 1): gaps[i] += csfin[:5]; csfin = csfin[5:]
            if n == 31 and i == 3: gaps[i] += csfin
            a = acc_of(i)
            p("v_mfma_f32_32x32x16_bf16 %s, a[%d:%d], %s, %s" % (vr(a, 16), 4 * n, 4 * n + 3, vr(vXF + 16 * (n & 1) + 4 * i), vr(a, 16) if n else "0"))
            if ks == 3 and i == 0 and any(y.vm == "st%d" % (s + 1) for _, y in F.vq): raise SystemExit("stage %d not issued" % (s + 1))
            BS = opts.get("bud0", 24) if s == 0 else (opts.get("bud1", 24) if s < opts.get("nb1", 3) else BA)
            if any(y.t.startswith("s_mov_b32 s%d," % sWd) for _, y in F.xq[:12]): assert not any(y.vm == "kv" for _, y in F.vq) or F.xq[0][0] > 4 * n + i or not F.xq[0][1].t.startswith("s_mov_b32 s%d," % sWd)
            F.fill(4 * n + i, gaps[i], BS - (4 if i in (1, 3) else 0) + (F.pre if (ks == 3 and i == 0) else 0))
            if any(y.vm == "kvst" for y in gaps[i]): assert KVS not in gaps[i] + [z for _, z in F.xq], "kv store too early"
            for x in gaps[i]: p.add(x)
        if ks == 3 and s < 7: stamp(p, "g.s%d" % s, opts, 2)
    left = len(F.xq)
    stamp(p, "g.A31", opts, 2)
    for _, x in F.xq: p.add(x)
    F.xq = []
    print("phase A: left-over x items %d, v items %d" % (left, len(F.vq)), file=sys.stderr)
    stamp(p, "g.Aend", opts)
    for m_ in range(4, PD): p.add(rdXB(0, m_))
    p("s_nop 0")
    for t in range(4):
        a = acc_of(t)
        p("v_mfma_f32_32x32x16_bf16 %s, %s, %s, %s" % (vr(a, 16), vr(vR1A), vr(vR1B + 4 * (t & 1)), vr(a, 16)))
        p("v_mov_b32 v%d, v%d" % (vR1B + 4 * (t & 1), vST + 4 * (t + 2)))
        p("s_nop 0")
    ep = [g1_epilogue(t, opts) for t in range(7)]
    total = sum(x.cost for e in ep for x in e)
    kvpoll = [mk("buffer_load_dwordx2 v[%d:%d], v%d, %s, 0 offen sc1" % (uPoll, uPoll + 1, uFK, S4(sWS)), vm="kvp")]
    F.vq = [(0, y) for _, y in F.vq]; F.last = -9; F.space = opts.get("bspace", 2)
    X = lambda k, L: [] if opts.get(k) else L
    XB = opts.get("xb", 1)
    ORD = [0, 1, 2, 3, 4] + ([5] if opts.get("w5", 1) else []) + [7, 8, 9][:XB]
    EB = opts.get("ebar", 1)
    ORD += [6, 12][:EB * opts.get("en", 2)]
    INB_READ = [0, 1, 2][:XB]
    chain = lambda t: ([W(vm="w%d" % t)] + wd_reads(t, True) + [delay(4), W(lg="t%d" % t)] + wd_loads(t + 7, opts)) if t in INB_READ else []
    F.x(0, [mk("v_add_u32 v%d, 0x20000, v%d" % (uTR2 + mt, uTR + mt)) for mt in range(2)])
    F.x(0, [bundle("\n".join(y.t for y in fl0_setup()[:3]))] + fl0_setup()[3:])
    F.v(0, kv_stores())
    F.v(opts.get("st10", 6), g1_stage(10, opts))
    W0 = opts.get("w0at", 22)
    if W0 < 27: F.v(W0, wd_loads(0, opts))
    B1 = 34 - PD
    F.v(B1, g1_stage(11, opts)[:6] + [W(vm="kvst"), flag_store(sFlK)] + g1_stage(11, opts)[6:])
    if W0 >= 27: F.v(W0, wd_loads(0, opts))
    if 5 in ORD: F.v(opts.get("w5at", 46), wd_loads(5, opts))
    if HKP == 10: F.v(opts.get("hkat", 46), hk_loads(opts))
    F.v(33 + B1, wd_loads(1, opts) + wd_loads(2, opts))
    F.v(opts.get("c0", 80), chain(0))
    F.v(opts.get("kvpoll", 88), kvpoll)
    F.v(66 + B1, wd_loads(3, opts) + wd_loads(4, opts))
    F.v(opts.get("kvchk", 114), [W(vm="kvp")] + poll_check("kv", [uPoll], kvpoll) + conv_xr())
    F.v(0, chain(1) + chain(2))
    opts["_ord"] = ORD; opts["_rd"] = INB_READ
    if HKP: F.x(opts.get("hkb", 62 if HKP < 10 else 95), hk_build(1))
    EF = opts.get("eflag", 99 + 16)
    ngaps = 4 * 33; done = 0; cur = 0; gi = 0
    BUD = opts.get("bud", 24)
    for bb in range(4):
        tile = 4 + bb; a = acc_of(tile)
        for n in range(-1, 32):
            gap = []
            if n == -1:
                p("v_mfma_f32_32x32x16_bf16 %s, %s, %s, 0" % (vr(a, 16), vr(vR1A), vr(vR1B + 4 * (bb & 1))))
                if bb < 2: gap.append(mk("v_mov_b32 v%d, v%d" % (vR1B + 4 * (bb & 1), vST + 4 * (tile + 2))))
            else:
                if n % WE == 0: p.wait(lg="B%d_%d" % (bb, n + WE - 1))
                p("v_mfma_f32_32x32x16_bf16 %s, a[%d:%d], %s, %s" % (vr(a, 16), 4 * n, 4 * n + 3, vr(vXF + 4 * (n & 7)), vr(a, 16)))
                m = n + PD
                if m == 32 and bb < 3:
                    if any(y.vm == "st%d" % (9 + bb) for _, y in F.vq): raise SystemExit("stage not issued before its wait")
                    gap += [W(vm=["st%d" % (9 + bb)] + (["hk"] if bb == 2 else []), lg="*"), mk("s_barrier")]
                if m < 32: gap.append(rdXB(bb, m))
                elif bb < 3: gap.append(rdXB(bb + 1, m - 32))
            budget = BUD - (4 if (n % WE == WE - 1) else 0)
            if EB and bb == 3 and n == 33 - PD + 1:
                gap += [W(lg="*"), mk("s_barrier")]
                F.v(gi, [x for t in ORD if t in (6, 12) for x in wd_loads(t, opts)])
            if gi == EF:
                assert cur >= 4
                gap += [W(vm="hst3"), mk("s_barrier"), flag_store(sFlH, True), mk("s_add_u32 s%d, s%d, %d" % (sFlH, sFlH, WS_FL))]
            F.fill(gi, gap, min(budget, sum(y.cost for y in gap) + 8), min(budget, sum(y.cost for y in gap) + 12 if F.xq and F.xq[0][1].cost > 4 else sum(y.cost for y in gap) + 8))
            gi += 1
            target = total * gi / float(ngaps - opts.get("eplead", 4))
            while cur < 7 and done < target:
                if cur >= 4 and (cur - 4 >= bb or (cur - 4 == bb - 1 and n < 4)): break
                if cur < 4 and bb == 0 and n < 2: break
                x = ep[cur][0]
                if sum(y.cost for y in gap) + x.cost > budget: break
                gap.append(ep[cur].pop(0)); done += x.cost
                if not ep[cur]: cur += 1
            for x in gap: p.add(x)
            if gi % 6 == 0: stamp(p, "B%d" % gi, opts, 5)
            if opts.get("prof") and "ls0" in opts:
                k_, r_ = divmod(gi - opts["ls0"], opts.get("lsd", 4))
                if r_ == 0 and 0 <= k_ < 8: p("s_memtime s[%d:%d]" % (84 + 2 * k_, 85 + 2 * k_))
        if bb < 3: stamp(p, "g.b%d" % bb, opts, 2)
    if opts.get("prof") and "ls0" in opts:
        p("s_waitcnt lgkmcnt(0)")
        for k_ in range(8):
            nm_ = "L%d" % (opts["ls0"] + k_ * opts.get("lsd", 4))
            if opts["ls0"] + k_ * opts.get("lsd", 4) > 132: break
            STAMPS.append(nm_); p("v_writelane_b32 v255, s%d, %d" % (84 + 2 * k_, len(STAMPS) - 1))
    stamp(p, "g.Bend", opts)
    print("phase B: left-over v items %d, epilogue cost left %d" % (len(F.vq), total - done), file=sys.stderr)
    vl = [y for _, y in F.vq if y.kind != "delay"]
    rest_ = [y for _, y in F.xq if y.kind != "delay"] + [x for e_ in ep[cur:] for x in e_]
    rest_ += [mk("s_mov_b32 s%d, %d" % (sTab + s, s * 4096)) for s in range(7)] + [mk("s_nop 4")] + g1_epilogue(7, opts)
    k_ = max(2, (len(rest_) - 4) // (len(vl) + 1))
    for i, x in enumerate(rest_):
        if i == len(rest_) - 1: seq(p, vl); vl = []
        p.add(x)
        if vl and i % k_ == k_ - 1: p.add(vl.pop(0))

def out_half(ps, opts, pk):
    eW = 24; eR = 25; eY = 26
    if ps == 0: X = list(range(12, 20)); XN = list(range(32, 40)); YR = 20; Y = [28, 29, 30, 31, 224, 225, 226, 227]
    else: X = list(range(56, 64)); XN = list(range(64, 72)); YR = 80; Y = list(range(72, 80))
    P = [list(range(uAcc + 32 * ps + 8 * w, uAcc + 32 * ps + 8 * w + 8)) for w in range(4)]
    wr = [mk("ds_write_b128 v%d, %s offset:%d" % (eW, vr(uAcc + 32 * ps + 16 * mt + 4 * j), 128 * mt + 32 * j), cost=16) for mt in range(2) for j in range(4)]
    rdy = [mk("ds_read_b64_tr_b16 v[%d:%d], v%d offset:%d" % (YR + 2 * j, YR + 2 * j + 1, eY + ps, j * 512), lg="y%d" % ps) for j in range(2)]
    rd = [mk("ds_read_b128 %s, v%d offset:%d" % (vr(P[w][4 * h]), eR, w * REDW + 16 * h), lg="r%d" % ps) for h in range(2) for w in range(4)]
    xin = uXin + 4 * ps; st = (40, 52)[ps]; F = P[0]
    un = lambda d, s_, hi: ("v_and_b32 v%d, 0xffff0000, v%d" if hi else "v_lshlrev_b32 v%d, 16, v%d") % (d, s_)
    def op2(name, d, a_, b_, c_=None, sel=""):
        R = lambda z, i, n: z if isinstance(z, str) else vr(z[i], n)
        if pk: return [mk("v_pk_%s_f32 %s, %s, %s%s%s" % (name, vr(d[2 * i], 2), R(a_, 2 * i, 2), R(b_, 2 * i, 2), (", " + R(c_, 2 * i, 2)) if c_ else "", sel)) for i in range(4)]
        return [mk("v_%s_f32 v%d, %s, %s%s" % (name, d[i], R(a_, i, 1), R(b_, i, 1), (", " + R(c_, i, 1)) if c_ else "")) for i in range(8)]
    pre = ml(un(st, st, 1) + "\nv_mul_f32 v%d, %s, v%d" % (st + 1, hex(f2u(-1.0 / LOG2E)), st + 2))
    pre += [mk(un(X[i], xin + (i >> 1), i & 1)) for i in range(8)]
    if opts.get("x_eps"): pre += ml("v_mul_f32 v%d, %s, v%d" % (st + 1, hex(f2u(1.0 + opts["x_eps"] / 1000.0)), st + 1))
    pre += ml("v_mul_f32 v%d, v%d, v%d" % (st, st, st + 1))
    if pk: pre += op2("fma", XN, X, vr(st, 2), vr(st, 2), " op_sel:[0,1,0] op_sel_hi:[1,1,0]")
    else: pre += op2("fma", XN, X, "v%d" % (st + 1), "v%d" % st)
    m = [W(lg="r%d" % ps)] + op2("add", F, P[0], P[1]) + op2("add", P[2], P[2], P[3]) + op2("add", F, F, P[2])
    m += op2("mul", Y, "s[4:5]" if pk else "s4", F)
    t1 = [mk("v_exp_f32 v%d, v%d" % (Y[i], Y[i])) for i in range(8)]
    t2 = op2("mul", XN, XN, F)
    m += [z for pr in zip(t1, t2) for z in pr] if not pk else t1 + t2
    m += op2("add", Y, "1.0", Y, None, " op_sel_hi:[0,1]" if pk else "")
    m += [mk("v_rcp_f32 v%d, v%d" % (Y[i], Y[i])) for i in range(8)] + [mk("s_nop 0")]
    m += op2("mul", XN, XN, Y)
    my = [W(lg="y%d" % ps)] + [mk(un(Y[i], YR + (i >> 1), i & 1)) for i in range(8)]
    my += op2("fma", X, XN, Y, X)
    my += [mk("v_cvt_pk_bf16_f32 v%d, v%d, v%d" % (xin + i, X[2 * i], X[2 * i + 1])) for i in range(4)]
    my += [mk("buffer_store_dwordx4 %s, v%d, %s, %s offen%s" % (vr(xin), uX, S4(sOut), "s%d" % sT0 if ps else "0", opts.get("fo", " sc1")), vm="out")]
    return wr, pre, rd, m, rdy, my

def phase2(p, opts):
    ORD = opts["_ord"]; RD = opts["_rd"]
    stamp(p, "p2", opts)
    for mt in range(2): p("v_add_u32 v%d, 0x10000, v%d\nv_add_u32 v%d, 0x20000, v%d" % (HI[1] + mt, uTR + mt, HI[2] + mt, uTR + mt))
    for i in range(1, 4): p("v_add_u32 v%d, %d, v%d" % (CAR[i], 1024 * i, uCA))
    p.wait(vm="cv", lg="*")
    p("s_barrier")
    stamp(p, "p2bar", opts, 4)
    for x in conv_reads(0): p.add(x)
    hpollA = [mk("buffer_load_dwordx2 v[%d:%d], v%d, %s, 0 offen sc1" % (uPoll, uPoll + 1, uFH, S4(sWS)), vm="hpA")]
    hpollB = [mk("s_mov_b32 s%d, %d" % (sT1, WS_FL)), mk("buffer_load_dwordx2 v[%d:%d], v%d, %s, s%d offen sc1" % (uPoll + 2, uPoll + 3, uFH, S4(sWS), sT1), vm="hpB")]
    tq = []
    for t in range(7):
        if t not in RD: tq += [("w%d" % t if (t not in ORD or t == 6) else None, y) for y in wd_reads(t)]
    wl = lambda t: ([W(lg="t%d" % PREV[t])] if t in PREV else []) + wd_loads(t, opts)
    rest = [t for t in range(7, 14) if t not in ORD]
    nfirst = opts.get("wfirst", 4)
    VQ = (wl(5) if 5 not in ORD else []) + (wl(6) if 6 not in ORD else []) + [x for t in rest[:nfirst] for x in wl(t)]
    rest = rest[nfirst:]
    LEAD = opts.get("wlead", 3)
    CHKA = I("; chkA", cost=0); CHKB = I("; chkB", cost=0)
    VQ.append(CHKA)
    for hs in range(28):
        while rest and rest[0] - 1 - LEAD <= hs: VQ += wl(rest.pop(0))
        if hs == 14: VQ.append(CHKB)
        VQ += h_loads(hs)
    state = {"A": False, "B": False, "issued": {"w%d" % t for t in ORD}}
    def pace(p, done_hs):
        n = 0
        while VQ:
            y = VQ[0]
            if y is CHKA:
                if not state["A"]: return n
                VQ.pop(0); continue
            if y is CHKB:
                if not state["B"]: return n
                VQ.pop(0); continue
            if y.kind == "wait" and any(z.lg == y.lg for _, z in tq): return n
            if y.vm and y.vm[0] == "h" and int(y.vm[1:]) - 16 > done_hs: return n
            VQ.pop(0); p.add(y); n += 1
            if is_m0(y): p("s_nop 0") if False else None
            if is_vm(y): state["issued"].add(y.vm); return n
            if is_m0(y): return n
        return n
    strec = [mk("buffer_load_dwordx4 %s, v%d, %s, 0 offen offset:%d sc1" % (vr((40, 52)[e]), uSto, S4(sWS), 2048 * e), vm="xin") for e in range(2)]
    extra = ml("s_mov_b32 s%d, 131072" % sT0) + [mk("buffer_load_dwordx4 %s, v%d, %s, %s offen" % (vr(uXin + 4 * e), uX, S4(sQ), "s%d" % sT0 if e else "0"), vm="xin") for e in range(2)] + strec
    dq = ml("v_lshrrev_b32 v24, 4, v1\nv_and_b32 v25, 15, v1\nv_lshl_add_u32 v24, v24, 3, v25\nv_sub_u32 v24, 15, v24\nv_lshlrev_b32 v25, 4, v24\nv_and_b32 v25, 16, v25\n"
            "s_sub_u32 s3, s%d, 1\nv_lshlrev_b32 v25, v25, v%d\nv_and_b32 v25, s3, v25\nv_lshrrev_b32 v24, 1, v24" % (sHalf, uD))
    dq += ml("v_cmp_eq_u32 s[4:5], 0, v24\nv_cmp_eq_u32 s[6:7], 1, v24\nv_cmp_eq_u32 s[34:35], 2, v24\nv_cmp_eq_u32 vcc, 3, v24")
    dq += ml("v_cndmask_b32 v%d, 0, v25, s[4:5]\nv_cndmask_b32 v%d, 0, v25, s[6:7]\nv_cndmask_b32 v%d, 0, v25, s[34:35]\nv_cndmask_b32 v%d, 0, v25, vcc" % (uAD, uAD + 1, uAD + 2, uAD + 3))
    pollat = opts.get("hpoll", 24); flagat = opts.get("hflag", 60); chkA = opts.get("hchk", 62); pollB = opts.get("hpollb", 132); SP = opts.get("csp", 4)
    ypoll = [mk("buffer_load_dwordx2 %s, v%d, %s, 0 offen sc1" % (vr(uPoll, 2), uFY, S4(sWS)), vm="yp")]
    ydma = ml("s_lshl_b32 s7, s%d, 1\nv_xor_b32 v3, s7, v1\nv_lshrrev_b32 v2, 3, v1\nv_lshlrev_b32 v2, 12, v2\nv_and_b32 v3, 7, v3\nv_lshl_add_u32 v2, v3, 4, v2\nv_xor_b32 v3, 16, v2\nv_add_u32 v3, %d, v3" % (sWave, 32768 - 1024))
    ydma += ml("s_lshl_b32 s3, s%d, 18\ns_lshl_b32 s7, s%d, 16\ns_add_u32 s3, s3, s7\ns_lshl_b32 s7, s%d, 7\ns_add_u32 s3, s3, s7\ns_add_u32 s3, s3, %d" % (sDB, sWave, sTB2, WS_YT))
    ydma += ml("s_lshl_b32 s7, s%d, 11\ns_add_u32 m0, s7, %d" % (sWave, YT_L))
    adr = ml("v_and_b32 v24, 31, v1\nv_mul_u32_u24 v24, %d, v24\nv_lshrrev_b32 v25, 5, v1\nv_lshl_add_u32 v24, v25, 4, v24\ns_mul_i32 s6, s%d, %d\ns_add_u32 s6, s6, %d\nv_add_u32 v24, s6, v24" % (RS, sWave, REDW, RED[0]))
    adr += ml("v_lshrrev_b32 v25, 5, v1\nv_and_b32 v26, 3, v1\nv_lshl_add_u32 v25, v25, 2, v26\nv_mul_u32_u24 v25, %d, v25\nv_bfe_u32 v26, v1, 2, 3\nv_lshl_add_u32 v25, v26, 5, v25\ns_mul_i32 s6, s%d, %d\ns_add_u32 s6, s6, %d\nv_add_u32 v25, s6, v25" % (RS, sWave, 8 * RS, RED[0]))
    adr += ml("v_bfe_u32 v26, v1, 4, 1\nv_and_b32 v27, 3, v1\nv_lshl_add_u32 v26, v26, 2, v27\nv_xor_b32 v23, s%d, v26\nv_bfe_u32 v27, v1, 2, 2\nv_lshl_add_u32 v26, v26, 3, v27\nv_lshlrev_b32 v26, 7, v26\nv_lshl_add_u32 v26, v23, 4, v26\nv_lshrrev_b32 v27, 5, v1\nv_lshl_add_u32 v26, v27, 3, v26\nv_xor_b32 v27, 64, v26\nv_add_u32 v26, %d, v26\nv_add_u32 v27, %d, v27" % (sWave, YT_L, YT_L))
    chk = [W(vm="xin")] + poll_check("st", [43, 55], strec, 32)
    aq = ydma[:-2] + adr + chk
    first = set(); nm = 0
    for rr in range(4):
        rq = conv_reads(rr + 1) if rr < 3 else []
        b = vCF + 64 * (rr & 1)
        pairs = sorted([(s1, p1) for s1 in range(8) for p1 in range(8) if s1 + p1 <= 7], key=lambda x: (max(x), x[0] + x[1], x[0]))
        seen = -1; k = 0
        for (s1, p1) in pairs:
            mx = max(s1, p1)
            if mx > seen:
                p.wait(lg="c%d_%d" % (rr, mx)); seen = mx
            acc = vr(uCacc + 4 * (s1 + p1))
            p("v_mfma_f32_16x16x32_bf16 %s, %s, %s, %s" % (acc, vr(b + 4 * s1), vr(b + 32 + 4 * p1), acc if (s1 + p1) in first else "0"))
            first.add(s1 + p1); k += 1; nm += 1
            n = 0
            if rq and k > 2 and (k % 4 != 0): p.add(rq.pop(0)); n += 1
            if dq and nm > 6 and (n == 0 or nm % 2): p.add(dq.pop(0)); n += 1
            if nm % SP == 0 or (VQ and is_m0(VQ[0]) and nm % SP == SP - 1): n += pace(p, -1)
            while tq and n < 2:
                tg = tq[0][0]
                if tg and (tg not in state["issued"] or nm < opts.get("t56", 84)): break
                if tg: p.wait(vm=tg)
                p.add(tq.pop(0)[1]); n += 1
            if aq and nm > opts.get("aqat", 96) and n < 2 and not (n and aq[0].t.startswith("v_") and p.ins[-1].t.startswith("v_") and "mfma" not in p.ins[-1].t):
                p.add(aq.pop(0))
                while aq and aq[0].cost == 0: p.add(aq.pop(0))
            if nm == pollat:
                for x in hpollA: p.add(x)
            if nm == flagat:
                p.wait(vm="hst7"); p("s_barrier"); p.add(flag_store(sFlH, True))
                stamp(p, "hflag", opts)
            if nm == chkA:
                p.wait(vm="hpA")
                for x in poll_check("hA", [uPoll], hpollA): p.add(x)
                stamp(p, "hokA", opts); state["A"] = True
        stamp(p, "cv%d" % rr, opts, 4)
        if rr == 0:
            for x in dq: p.add(x)
            if dq: p("s_nop 1")
            dq = []
            for p1 in range(8):
                acc = vr(uCacc + 4 * p1)
                p("v_mfma_f32_16x16x32_bf16 %s, %s, %s, %s" % (acc, vr(uAD), vr(b + 32 + 4 * p1), acc))
                if rq: p.add(rq.pop(0))
                if p1 % 4 == 1: pace(p, -1)
            for x in extra: p.add(x)
        for x in rq: p.add(x)
    print("conv: left-over reads %d, queued loads %d" % (len(tq), len(VQ)), file=sys.stderr)
    assert not tq
    cur_hs = [-1]
    def pace2():
        if pace(p, cur_hs[0]) and is_m0(p.ins[-1]): p("s_nop 0"); pace(p, cur_hs[0])
    for x in aq: p.add(x)
    stamp(p, "convend", opts)
    p("s_lshl_b32 s7, s%d, 13\ns_add_u32 s7, s7, %d\nv_add_u32 v4, s7, v%d\ns_and_b32 s7, s%d, 2\ns_lshl_b32 s7, s7, 13\ns_lshl_b32 s6, s%d, 12\ns_add_u32 s7, s7, s6\ns_add_u32 s7, s7, %d\nv_add_u32 v5, s7, v%d" % (sWave, XCH, vL16, sWave, sHalf, XCH, vL16))
    for x in hpollB: p.add(x)
    p("s_barrier")
    for i in range(8):
        p("ds_write_b128 v4, %s offset:%d" % (vr(uCacc + 4 * i), i * 1024))
        if i % 3 == 1: pace2()
    stamp(p, "xw", opts, 4)
    p("s_waitcnt lgkmcnt(0)\ns_barrier")
    for i in range(4):
        p("ds_read_b128 %s, v5 offset:%d" % (vr(uCacc + 4 * i), i * 1024), lg="xr%d" % i)
        p("ds_read_b128 %s, v5 offset:%d" % (vr(uCacc + 16 + 4 * i), 8192 + i * 1024), lg="xr%d" % i)
    pace2()
    for i in range(4):
        p.wait(lg="xr%d" % i)
        for e in range(2): p("v_pk_add_f32 %s, %s, %s" % (vr(uCacc + 4 * i + 2 * e, 2), vr(uCacc + 4 * i + 2 * e, 2), vr(uCacc + 16 + 4 * i + 2 * e, 2)))
    for i in range(4):
        o = uTmp + 4 * (i >> 1) + 2 * (i & 1)
        p("v_cvt_pk_bf16_f32 v%d, v%d, v%d\nv_cvt_pk_bf16_f32 v%d, v%d, v%d" % (o, uCacc + 4 * i, uCacc + 4 * i + 1, o + 1, uCacc + 4 * i + 2, uCacc + 4 * i + 3))
    pace2(); p("s_nop 0")
    for h in range(2):
        o = uTmp + 4 * h
        p("v_permlane16_swap_b32 v%d, v%d\nv_permlane16_swap_b32 v%d, v%d" % (o, o + 2, o + 1, o + 3))
    for h in range(2):
        p("buffer_store_dwordx4 %s, v%d, %s, s%d offen offset:%d sc1" % (vr(uTmp + 4 * h), uYst, S4(sWS), sYoff, h * 1024), vm="yst")
    stamp(p, "g2go", opts)
    wrA, preA, rdA, mA, rdyA, myA = out_half(0, opts, False)
    wrB, preB, rdB, mB, rdyB, myB = out_half(1, opts, True)
    YF = opts.get("yflag", 5); YP = opts.get("ypoll", 19); YC = YP + opts.get("ychk", 4); RB = opts.get("rbar", 18); RY = opts.get("ybar", YC + 5)
    HB = opts.get("hb", 5); HL = opts.get("hl", 5)
    xq = []
    def X_(at, L): xq.extend((at, y) for y in L)
    X_(0, preA + [mk("s_mov_b32 s4, %s" % hex(f2u(-LOG2E))), mk("s_mov_b32 s5, s4")])
    for i, y in enumerate(wrA): X_(4 * 14 + 5 + i, [y])
    X_(4 * RB, [W(lg="*"), mk("s_barrier")] + rdA)
    X_(4 * RB + 6, mA)
    GB = opts.get("gbud", 24)
    for hs in range(28):
        ps, s = divmod(hs, 14)
        cur_hs[0] = hs - 1
        while "h%d" % hs not in state["issued"] or any(y.vm == "h%d" % hs for y in VQ) or (ps == 0 and s < 13 and any(y.vm == "w%d" % (s + 1) for y in VQ)): pace2()
        rq = wd_reads(s + 1) if (ps == 0 and 7 <= s + 1 < 14) else []
        if hs == HB:
            p.wait(vm="hpB")
            for x in poll_check("hB", [uPoll + 2], hpollB): p.add(x)
            stamp(p, "hokB", opts); state["B"] = True
        if hs == YF: p.wait(vm="yst"); p("s_barrier"); p.add(flag_store(sFlY, True))
        if hs == YP: p.add(ypoll[0])
        if hs == YC:
            p.wait(vm="yp")
            for x in poll_check("y", [uPoll], ypoll): p.add(x)
            assert not any(is_m0(y) or y.t.endswith(" lds") for y in VQ)
            for x in ydma[-2:]: p.add(x)
            p("s_nop 0")
            p.add(dma(2, sWS, "s3", 0, "yt", " sc1")); p.add(dma(3, sWS, "s3", 1024, "yt", " sc1"))
            stamp(p, "yok", opts, 4)
        RT = opts.get("rtail", 0)
        if hs < 28 - RT: work = [(hs, e, mt) for e in range(2) for mt in range(2)]
        else:
            j = hs - (28 - RT); allw = [(h_, e, mt) for mt in range(2) for h_ in range(28 - RT, 28) for e in range(2)]
            work = allw[4 * j:4 * j + 4]
            if j == RT // 2:
                X_(4 * hs, [mk("v_add_u32 v24, %d, v24" % ((RED[1] - RED[0]) & 0xffffffff))])
                nw_ = min(4, 2 * RT - 3)
                for i, y in enumerate(wrB[:nw_]): X_(4 * hs + 3 + i, [y])
                wrB = wrB[nw_:]
        p.wait(vm="h%d" % max(h_ for h_, _, _ in work), lg="t%d" % s)
        for m, (h_, e, mt) in enumerate(work):
            acc = vr(uAcc + 32 * ps + 16 * mt, 16)
            hr = aH + 8 * (h_ % 16) + 4 * e
            k, b = wfrag(h_ % 14, 2 * e + mt)
            p("v_mfma_f32_32x32x16_bf16 %s, %s[%d:%d], a[%d:%d], %s" % (acc, k, b, b + 3, hr, hr + 3, acc if (s or e) else "0"))
            i0_ = len(p.ins)
            used = lambda: sum(y.cost for y in p.ins[i0_:]) + (4 if m == 3 else 0)
            tgt = "h%d" % min(27, hs + HL)
            left = max([i + 1 for i, y in enumerate(VQ) if y.vm == tgt] + [0])
            for _ in range(-(-left // (4 - m))):
                k_ = pace(p, hs - 1)
                if k_ == 0: break
                if is_m0(p.ins[-1]):
                    if rq: p.add(rq.pop(0)) if (m or True) and not (m == 0) else p("s_nop 0")
                    else: p("s_nop 0")
            if m == 0 and rq: p.wait(vm="w%d" % (s + 1))
            for _ in range(-(-len(rq) // (4 - m))): p.add(rq.pop(0))
            g = 4 * hs + m
            while xq and xq[0][0] <= g and used() + xq[0][1].cost <= GB: p.add(xq.pop(0)[1])
        assert not rq
        if hs == 13: stamp(p, "g2A", opts)
        elif hs % 3 == 0: stamp(p, "h%d" % hs, opts, 4)
    print("gemm2: left-over epilogue items %d" % len(xq), file=sys.stderr)
    stamp(p, "g2end", opts)
    if len(wrB) == 8: p("v_add_u32 v24, %d, v24" % ((RED[1] - RED[0]) & 0xffffffff))
    p("v_add_u32 v25, %d, v25" % ((RED[1] - RED[0]) & 0xffffffff))
    tail = [y for _, y in xq] + preB
    nop = max(0, 6 - len(tail))
    for x in tail[:12]: p.add(x)
    tail = tail[12:]
    for x in wrB:
        p.add(x)
        for _ in range(3):
            if tail: p.add(tail.pop(0))
    for x in tail: p.add(x)
    p.wait(vm="yt", lg="*"); p("s_barrier")
    stamp(p, "red", opts)
    if opts.get("ytail", 1):
        myA = out_half(0, opts, True)[5]
        for x in rdyA + rdB + rdyB + myA[:-1]: p.add(x)
        if opts.get("oearly", 1): p.add(myA[-1])
        for x in mB + myB[:-1]: p.add(x)
        stamp(p, "prest", opts)
        if not opts.get("oearly", 1): p.add(myA[-1])
        p.add(myB[-1])
    else:
        for x in rdB + rdyB + mB + myB: p.add(x)
    stamp(p, "fin", opts)

def aux(p, opts):
    p("s_lshl_b32 s3, s2, 6\ns_lshl_b32 s4, s%d, 4\ns_add_u32 s3, s3, s4" % sWave)
    p("v_add_u32 v12, s3, v2\nv_lshlrev_b32 v10, 10, v12\nv_lshl_add_u32 v10, v3, 4, v10\nv_add_u32 v11, 8192, v10\nv_mov_b32 v13, v3")
    p("s_memrealtime s[%d:%d]" % (sTag, sTag + 1))
    p("s_waitcnt lgkmcnt(0)")
    p("s_mov_b32 s%d, s74\ns_mov_b32 s%d, s75" % (sDbg, sDbg + 1))
    p("s_lshr_b32 s3, s2, %d\ns_or_b32 s3, s3, s%d\ns_cmp_lg_u32 s3, 0\ns_cselect_b64 exec, 0, 1" % (3 if opts.get("cas", 1) else 0, sWave))
    p("s_or_b32 s%d, s%d, 1\nv_mov_b32 v16, s%d\nv_mov_b32 v17, s%d\nv_mov_b32 v18, 0\nv_mov_b32 v19, 0\ns_cbranch_execz L_aux_nt" % (sTag, sTag, sTag, sTag + 1))
    p("global_atomic_cmpswap_x2 v%d, v[16:19], s[%d:%d] sc1" % (vNon + 2, sDbg, sDbg + 1))
    p.label("L_aux_nt")
    p("s_mov_b64 exec, -1")
    srd(p, sQ, kQ, 2048 * 1024)
    for g in range(2):
        for i in range(8):
            p("buffer_load_dwordx4 %s, v%d, %s, 0 offen offset:%d" % (vr(116 + 32 * g + 4 * i), 10 + g, S4(sQ), i * 128), vm="sx%d" % g)
        if g == 0:
            srd(p, sWS, kWS, WS_SZ)
            kv_setup(p); ids2(p); hk_srds(p)
            phase2_setup(p, opts)
    nld, nchk = nonce_get("na")
    p.add(nld)
    p("s_mov_b32 s5, 0x3f803f80")
    for g in range(2):
        p.wait(vm="sx%d" % g if g == 0 else "non")
        stamp(p, "a.sx%d" % g, opts, 3)
        if g == 1:
            p("v_lshlrev_b32 v10, 7, v1\ns_mov_b32 s12, s60\ns_and_b32 s13, s61, 0xffff\ns_mov_b32 s14, 0x200000\ns_mov_b32 s15, 0x20000")
            p("s_mov_b32 s24, s70\ns_and_b32 s25, s71, 0xffff\ns_mov_b32 s26, %d\ns_mov_b32 s27, 0x20000" % (1792 * 1024))
            p("s_lshl_b32 s3, s2, 16\ns_lshl_b32 s4, s%d, 14\ns_add_u32 s21, s3, s4\ns_mul_i32 s3, s2, 57344\ns_mul_i32 s4, s%d, 14336\ns_add_u32 s22, s3, s4" % (sWave, sWave))

        s1 = 16 + 4 * g; s2 = s1 + 1
        for r in range(32):
            x = 116 + 32 * g + r; c = r & 1
            p("v_dot2_f32_bf16 v%d, v%d, s5, %s" % (s1 + 2 * c, x, "v%d" % (s1 + 2 * c) if r > 1 else "0"))
            p("v_dot2_f32_bf16 v%d, v%d, v%d, %s" % (s2 + 2 * c, x, x, "v%d" % (s2 + 2 * c) if r > 1 else "0"))
    for x in nchk: p.add(x)
    p("v_add_f32 v16, v16, v18\nv_add_f32 v17, v17, v19\nv_add_f32 v18, v20, v22\nv_add_f32 v19, v21, v23")
    for mod in ("quad_perm:[1,0,3,2]", "quad_perm:[2,3,0,1]", "row_half_mirror"):
        for r in range(16, 20): p("v_add_f32_dpp v%d, v%d, v%d %s row_mask:0xf bank_mask:0xf" % (r, r, r, mod))
    ops = [[], []]
    for g in range(2):
        S1 = 16 + 2 * g; S2 = S1 + 1; o = 20 + 4 * g
        ops[g] = ["v_mul_f32 v%d, %s, v%d" % (S1, hex(f2u(1.0 / 512)), S1), "v_mul_f32 v%d, %s, v%d" % (S2, hex(f2u(1.0 / 512)), S2),
                  "v_fma_f32 v%d, -v%d, v%d, v%d" % (S2, S1, S1, S2), "v_max_f32 v%d, 0, v%d" % (S2, S2),
                  "v_cvt_pk_bf16_f32 v%d, v%d, v%d" % (S2, S2, S2), "v_and_b32 v%d, 0xffff0000, v%d" % (S2, S2),
                  "v_add_f32 v%d, %s, v%d" % (S2, hex(f2u(1e-5)), S2),
                  "v_cvt_pk_bf16_f32 v%d, v%d, v%d" % (S2, S2, S2), "v_and_b32 v%d, 0xffff0000, v%d" % (S2, S2),
                  "v_sqrt_f32 v%d, v%d" % (S2, S2), "v_cvt_pk_bf16_f32 v%d, -v%d, -v%d" % (o, S1, S1),
                  "v_cvt_pk_bf16_f32 v%d, v%d, v%d" % (S2, S2, S2), "v_and_b32 v%d, 0xffff0000, v%d" % (S2, S2),
                  "v_rcp_f32 v%d, v%d" % (o + 2, S2), "v_mul_f32 v%d, %s, v%d" % (o + 1, hex(f2u(-LOG2E)), S2),
                  "v_mul_f32 v%d, %s, v%d" % (o + 2, hex(f2u(-LOG2E)), o + 2), "v_mov_b32 v%d, s%d" % (o + 3, sTag)]
    p("v_cmp_eq_u32 vcc, 0, v13\nv_lshlrev_b32 v12, 4, v12\nv_add_u32 v12, %d, v12\nv_mov_b32 v14, 0x80000000\nv_cndmask_b32 v12, v14, v12, vcc" % WS_ST)
    for x0, x1 in zip(*ops): p(x0); p(x1)
    p("buffer_store_dwordx4 v[20:23], v12, %s, 0 offen sc1" % S4(sWS), vm="pub")
    p("buffer_store_dwordx4 v[24:27], v12, %s, 0 offen offset:128 sc1" % S4(sWS), vm="pub")
    stamp(p, "a.stats", opts)
    tW = ["buffer_load_dword v28, v10, s[24:27], s22 offen\ns_add_u32 s22, s22, 6144", "buffer_load_dword v28, v10, s[24:27], s22 offen"]
    tK = ["buffer_load_dword v28, v10, s[12:15], s21 offen\ns_add_u32 s21, s21, 8192", "buffer_load_dword v28, v10, s[12:15], s21 offen"]
    WM = opts.get("warm", 1)
    tq_ = {0: [], 1: tW + tK, 2: tW, 3: tK + tW, 4: tW + tK}[WM]
    p("s_barrier")
    seq(p, kv_loads(opts) + hk_loads(opts))
    if WM == 4: p(tq_.pop(0), vm="warm")
    for x in phase2_srds(): p.add(x)
    p.wait(vm="hk")
    p("s_barrier")
    for _ in range(opts.get("warm1", 1)):
        if tq_: p(tq_.pop(0), vm="warm")
    for x in kv_compute() + kv_stores(): p.add(x)
    stamp(p, "a.kv", opts)
    seq(p, hk_build())
    if tq_ and opts.get("warm2", 1): p(tq_.pop(0), vm="warm")
    p.wait(vm="kvst", lg="*")
    p.add(flag_store(sFlK))
    stamp(p, "a.kvfl", opts)
    for x in tq_: p(x, vm="warm")
    stamp(p, "a.warm", opts)
    p("s_lshl_b32 s3, s2, 7\ns_add_u32 s%d, s3, %d" % (sFlH, WS_FD))
    for x in fl0_setup(): p.add(x)
    p("s_barrier")
    for mt in range(2): p("v_add_u32 v%d, 0x20000, v%d" % (uTR2 + mt, uTR + mt))
    prev = PREV
    for t in sorted(opts["_ord"]):
        if t in prev:
            p.wait(vm="w%d" % prev[t])
            for x in wd_reads(prev[t], True): p.add(x)
            p.wait(lg="*")
        seq(p, wd_loads(t, opts))
    for s in range(7): p("s_mov_b32 s%d, %d" % (sTab + s, s * 4096))
    kvpoll = [mk("buffer_load_dwordx2 v[%d:%d], v%d, %s, 0 offen sc1" % (uPoll, uPoll + 1, uFK, S4(sWS)), vm="kvp")]
    p.add(kvpoll[0])
    p.wait(vm="kvp")
    for x in poll_check("kva", [uPoll], kvpoll): p.add(x)
    seq(p, conv_xr())
    p("s_waitcnt vmcnt(0)")
    stamp(p, "a.pre", opts)

def pollf(t, opts):
    if opts["pollf"] == "atom":
        m = re.match(r"buffer_load_dwordx2 v\[(\d+):(\d+)\], (.*) sc1", t)
        if not m: return t
        return "v_mov_b32 v%s, 0\nv_mov_b32 v%s, 0\nbuffer_atomic_add_x2 v[%s:%s], %s sc0 sc1" % (m.group(1), m.group(2), m.group(1), m.group(2), m.group(3))
    return t.replace(" sc1", " " + opts["pollf"].replace("+", " "))
def emit(a, lines):
    for l in lines: a(l if l.endswith(":") else "  " + l)

def build(opts):
    del SLOW[:]
    if "rho" in opts: RHO[:] = [int(c) for c in str(opts["rho"]).rjust(3, "0")]
    PROF[0] = opts.get("prof", 0); SLEEP['*'] = opts.get("sleep", 4)
    name = KN + "_kernel"
    a = A()
    a(header(["; @launch grid=(256,1,1) block=(256,1,1) lds=163840"]))
    a(kernel_begin(name))
    a("s_load_dwordx8 s[80:87], s[0:1], 0\ns_load_dwordx16 s[60:75], s[0:1], 32\ns_load_dwordx2 s[76:77], s[0:1], 96")
    a("s_cmp_ge_u32 s2, 256\ns_cbranch_scc1 L_end")
    if opts.get("prof"):
        a("s_memrealtime s[78:79]\ns_memtime s[100:101]\nv_mov_b32 v255, 0\ns_waitcnt lgkmcnt(0)\nv_writelane_b32 v255, s100, 0\nv_writelane_b32 v255, s78, 62")
    p0 = Prog(); common_setup(p0, opts); c0 = p0.resolve()
    a("s_cmp_ge_u32 s2, 32\ns_cbranch_scc1 L_gemm")
    if opts.get("ipf", 1):
        a("s_getpc_b64 s[4:5]\nv_lshlrev_b32 v1, 7, v0\ns_and_b32 s4, s4, 0xffffff00\nv_min_u32 v1, L_code_end-%s-128, v1\nglobal_load_dword v200, v1, s[4:5]" % name)
    a("s_branch L_aux")
    a.label("L_gemm")
    emit(a, c0)
    p = Prog(); gemm1(p, opts); p.label("L_phase2"); phase2(p, opts)
    pa = Prog(); aux(pa, opts)
    for q in (p, pa):
        if opts.get("x_nochk"): q.ins = [y for y in q.ins if not ("s_cbranch_vccnz L_slow" in y.t)]
        if opts.get("x_nost"): q.ins = [y for y in q.ins if not (y.t.startswith("buffer_store") and "sc1" in y.t)]
        if opts.get("x_nofl"): q.ins = [y for y in q.ins if not (y.t.startswith("buffer_store_dwordx2") and "v[6:7]" in y.t)]
        if opts.get("x_nokv"): q.ins = [y for y in q.ins if not (y.vm in ("kv", "hk") and y.kind != "wait")]
        if opts.get("pollf"):
            for y in q.ins:
                if y.vm in ("kvp", "hpA", "hpB", "yp", "wfp") and y.t.startswith("buffer_load"): y.t = pollf(y.t, opts)
        if opts.get("x_nohb"): q.ins = [y for y in q.ins if not ("v39" in y.t or y.t.startswith("v_alignbit") or y.lg == "hb")]
        if opts.get("x_nowb"): q.ins = [y for y in q.ins if not (y.vm in ("w0", "w1", "w2", "w3", "w4", "w7") and y.kind != "wait")]
        if opts.get("x_drop"):
            dr = str(opts["x_drop"]).split("+")
            q.ins = [y for y in q.ins if not (y.kind != "wait" and y.vm in dr)]
        if opts.get("x_dropw"):
            dr = str(opts["x_dropw"]).split("+")
            q.ins = [y for y in q.ins if not (y.kind == "wait" and y.vm in dr)]
        if opts.get("x_nopoll"): q.ins = [y for y in q.ins if not (y.vm in ("rec", "kvp", "hpA", "hpB", "yp", "wfp") and y.kind != "wait")]
    if opts.get("prof") and "q0" in opts:
        regs = [12, 14, 22, 24, 50, 80, 82, 98]
        i0 = [i for i, y in enumerate(p.ins) if y.t == "L_phase2:"][0]
        out = p.ins[:i0 + 1]; cnt = 0; mf = 0; k = 0
        for y in p.ins[i0 + 1:]:
            out.append(y)
            ism = "v_mfma" in y.t
            mf += ism
            if (mf >= opts.get("qm", 0) and y.kind != "label") if opts.get("qi") else ism:
                cnt += 1
                if k < 8 and cnt == opts["q0"] + k * opts.get("qd", 8):
                    out.append(mk("s_memtime s[%d:%d]" % (regs[k], regs[k] + 1))); k += 1
        out.append(mk("s_waitcnt lgkmcnt(0)"))
        for j in range(k):
            STAMPS.append("Q%d" % (opts["q0"] + j * opts.get("qd", 8))); out.append(mk("v_writelane_b32 v255, s%d, %d" % (regs[j], len(STAMPS) - 1)))
        p.ins = out
    lines = p.resolve()
    la = pa.resolve()
    lines = fix_hazards(lines, "main")
    pr = check_hazards(lines, "main") + check_hazards(la, "aux")
    for x in pr[:40]: print("HAZARD", x, file=sys.stderr)
    if pr: raise SystemExit("hazards")
    emit(a, lines)
    if opts.get("prof"):
        a("s_waitcnt vmcnt(0) lgkmcnt(0)\ns_memtime s[100:101]\ns_memrealtime s[78:79]\ns_load_dwordx2 s[4:5], s[0:1], 96\ns_waitcnt lgkmcnt(0)")
        a("v_writelane_b32 v255, s100, 60\nv_writelane_b32 v255, s78, 63\ns_getreg_b32 s100, hwreg(HW_REG_XCC_ID)\nv_writelane_b32 v255, s100, 61")
        a("s_lshl_b32 s6, s2, 10\ns_lshl_b32 s7, s%d, 8\ns_add_u32 s6, s6, s7\ns_add_u32 s6, s6, 0x1000000\ns_add_u32 s4, s4, s6\ns_addc_u32 s5, s5, 0" % sWave)
        a("v_lshlrev_b32 v2, 2, v1\nglobal_store_dword v2, v255, s[4:5]\ns_waitcnt vmcnt(0)")
        a("; STAMPS " + " ".join(STAMPS))
        a("; SPINS " + " ".join(SPINS))
    a.label("L_end")
    a("s_endpgm")
    a.label("L_aux")
    emit(a, c0)
    emit(a, la)
    a("s_branch L_phase2")
    for t in SLOW:
        if opts.get("pollf"): t = "\n".join(pollf(l, opts) if (l.startswith("buffer_load_dwordx2 v[25") or l.startswith("buffer_load_dwordx2 v[2:3]") or l.startswith("buffer_load_dwordx4 v[250")) else l for l in t.split("\n"))
        a(t)
    a.label("L_code_end")
    a(RODATA)
    a(kernel_desc(name, 512, 102, 256))
    return a.text()

if __name__ == "__main__":
    opts = {}
    for kv in sys.argv[2:]:
        k, _, v = kv.partition("=")
        opts[k] = int(v) if v.lstrip("-").isdigit() else (v if v else 1)
    for k in ("fw", "fx", "fd", "fk", "fkv", "fo", "fr", "fh"):
        if k in opts: opts[k] = "" if opts[k] == "none" else " " + opts[k].replace("+", " ")
    open(sys.argv[1], "w").write(build(opts))
```

```python
import sys, struct, re
from asmlib import *
from sched import *

WS_H  = 0x000000
WS_XR = 0x700000
WS_YT = 0x900000
WS_ST = 0xB00000
WS_FK = 0xB08000
WS_FH = 0xB10000
WS_FY = 0xB18000
WS_FD = 0xB20000
WS_FL = 0x20000
WS_CS = 0xB48000
WS_SZ = 0xC00000
LOG2E = 1.4426950408889634
SPIN_MAX = 1 << 16

def f2u(x): return struct.unpack("<I", struct.pack("<f", x))[0]
def vr(b, n=4, p="v"): return "%s[%d:%d]" % (p, b, b + n - 1) if n > 1 else "%s%d" % (p, b)
def S4(b): return "s[%d:%d]" % (b, b + 3)
def srd(p, d, lo, size):
    p("s_mov_b32 s%d, s%d\ns_and_b32 s%d, s%d, 0xffff\ns_mov_b32 s%d, 0x%x\ns_mov_b32 s%d, 0x20000" % (d, lo, d + 1, lo + 1, d + 2, size, d + 3))
def ml(t, **kw): return [mk(x, **kw) for x in t.split("\n")]
def bundle(t):
    b = I(t, cost=4 * len(t.split("\n"))); b.kind = "bundle"; return b

SLOT = 32768
CONV = 98304; CH_STRIDE = 12928; XR_OFF = 8320
UNIT = [141312, 0, 16384, 32768, 49152, 65536, 81920, 124416]
WUN = {t: t % 7 for t in range(14)}
WUN[5] = 7; PREV = {7: 0, 8: 1, 9: 2, 10: 3, 11: 4, 13: 6}
def wdl(s): return UNIT[WUN[s]]
KVL = 141312
RS = 272; REDW = 32 * RS
RED = [CONV, 0]
YT_L = CONV + 4 * REDW; XCH = CONV
sQ = 8; sW = 12; sWS = 16; sWave = 20; sTB = 21; sCB = 22; sLdsX = 23; sLdsW = 24; sLdsXB = 25; sT0 = 26; sT1 = 27
sHa = 28; sST = 29; sFlK = 30; sDoff = 31; sDbg = 32; sT2 = 34; sT3 = 35; sWd = 36; sHk = 40; sOut = 44; sTag = 48
sXB = 50
sCSw = 52; sTB2 = 53; sDB = 54; sCV = 55; sXRso = 56; sYoff = 57; sFlH = 58; sFlY = 59
sTabW = 60
sHalf = 74; sCh4k = 75; sSpin = 76; sWdL = 77
sDp = 80
sTab = 84
sK = 36; sV = 44; sSh = 64
kSK = 60; kD = 62;
kBX = 64; kWG = 66; kWU = 68; kWD = 70; kOUT = 72; kDBG = 74; kWS = 76; kQ = 80; kK = 82; kV = 84; kSH = 86
vKD = 2
vTag = 6; vFl = 8
vWD = 10; vXD = 14; vXA = 18; vWA = 26; vHoff = 28; vSToff = 29; vCSoff = 30; vL16 = 31; vNon = 32
vKA = 36; vKO = 37; vSH = 38
vR1A = 40; vR1B = 44; vOnes = 180; vST = 52; vXF = 84; vACC = 116; vTMP = 212; vOUT = 220
vCSR = 180; vCSA = 196
uWD = 228; uH = 232; uTR = 236; uCA = 240; uCB = 241; uYst = 242; uFY = 243; uX = 244; uSto = 245; uFH = 246; uFK = 247
uHead = 248; uHeadA = 249; uPoll = 250; uD = 254
uAD = 40; uTmp = 32; uXin = 44; uSt = 52; uCacc = 116; uAcc = 120
CFB = (148, 52); aH = 0
def wfrag(s, mt):
    if s < 8: return "a", 128 + 16 * s + 4 * mt
    if s < 10: return "v", 184 + 16 * (s - 8) + 4 * mt
    return "v", 56 + 16 * (s - 10) + 4 * mt

STAMPS = ["start"]
def stamp_l(name, opts, lvl=1):
    if not opts.get("prof") or opts.get("plvl", 1) == 0 or (lvl > 1 and lvl != opts.get("plvl", 1)): return []
    if name not in STAMPS: STAMPS.append(name)
    idx = STAMPS.index(name)
    assert idx < 48
    return ml("s_memtime s[100:101]\ns_waitcnt lgkmcnt(0)\nv_writelane_b32 v255, s100, %d" % idx, cost=0)
def stamp(p, name, opts, lvl=1):
    for x in stamp_l(name, opts, lvl): p.add(x)

def acc_of(t): return vACC + 16 * {0: 0, 1: 1, 2: 2, 3: 3, 4: 4, 5: 5, 6: 0, 7: 1}[t]
def win(addr): return addr >> 16, addr & 0xffff
def dma(v, srd_, so, off, tag, fl=""):
    return mk("buffer_load_dwordx4 v%d, %s, %s offen offset:%d%s lds" % (v, S4(srd_), so, off, fl), vm=tag)
def is_m0(x): return " m0," in x.t
def is_vm(x): return x.t.startswith("buffer_") or x.t.startswith("global_")
def seq(p, L):
    L = [x for x in L if x.kind != "delay"]
    for i, x in enumerate(L):
        p.add(x)
        if is_m0(x) and i + 1 < len(L) and is_vm(L[i + 1]): p("s_nop 0")
vFl0 = 9
def flag_store(so, wg=False, tag="fl"):
    return mk("buffer_store_dwordx2 v[%d:%d], v%d, %s, s%d offen sc1" % (vTag, vTag + 1, vFl0 if wg else vFl, S4(sWS), so), vm=tag)
def fl0_setup():
    return ml("s_lshl_b32 s6, s%d, 31\ns_lshl_b32 s7, s%d, 30\ns_or_b32 s6, s6, s7\ns_and_b32 s6, s6, 0x80000000\nv_or_b32 v%d, s6, v%d" % (sWave, sWave, vFl0, vFl))

def g1_stage(s, opts):
    L = []; base = (s % 3) * SLOT; tag = "st%d" % s
    fw = opts.get("fw", ""); fx = opts.get("fx", "")
    if s < 8:
        L.append(mk("s_add_u32 m0, s%d, %d" % (sLdsW, base)))
        L += [dma(vWD + j, sW, "s%d" % (sTab + s), j * 1024, tag, fw) for j in range(4)]
        L.append(mk("s_add_u32 m0, s%d, %d" % (sLdsX, base)))
        L += [dma(vXD + j, sQ, "s%d" % (sTab + 8 + s), j * 1024, tag, fx) for j in range(4)]
    else:
        for h in range(2):
            L.append(mk("s_add_u32 m0, s%d, %d" % (sLdsXB, base + h * 4096)))
            L.append(mk("s_add_u32 s%d, s%d, %d" % (sT0 + h, sXB + h, (s - 8) * 32768)))
            L += [dma(vXD + j, sQ, "s%d" % (sT0 + h), j * 1024, tag, fx) for j in range(4)]
    return L
def wd_loads(s, opts):
    return [mk("s_add_u32 m0, s%d, %d" % (sWdL, wdl(s)))] + \
           [dma(uWD + j, sWd, "s%d" % (sTabW + s), j * 1024, "w%d" % s, opts.get("fd", "")) for j in range(4)]
def h_loads(hs):
    ps, s = divmod(hs, 14)
    L = []
    for e in range(2):
        r = aH + 8 * (hs % 16) + 4 * e
        L.append(mk("buffer_load_dwordx4 a[%d:%d], v%d, %s, s%d offen offset:%d sc1" % (r, r + 3, uH + ps, S4(sWS), sTab + (s >> 1), e * 1024 + (s & 1) * 2048), vm="h%d" % hs))
    return L
HI = {1: 216, 2: 220}
uTR2 = 2
def wd_reads(s, inB=False):
    L = []
    w, off = win(wdl(s))
    for f in range(4):
        e, mt = f >> 1, f & 1
        k, b = wfrag(s, f)
        reg = uTR + mt if w == 0 else (uTR2 + mt if inB else HI[w] + mt)
        L.append(mk("ds_read_b64_tr_b16 %s[%d:%d], v%d offset:%d" % (k, b, b + 1, reg, off + e * 2048), lg="t%d" % s))
        L.append(mk("ds_read_b64_tr_b16 %s[%d:%d], v%d offset:%d" % (k, b + 2, b + 3, reg, off + e * 2048 + 512), lg="t%d" % s))
    return L
def hk_loads(opts):
    L = ml("s_lshl_b32 s6, s%d, 11\ns_add_u32 m0, s6, s%d\ns_add_u32 m0, m0, 32" % (sHalf, sCV))
    L += [dma(vL16, sHk, "s6", j * 1024, "hk", opts.get("fk", "")) for j in range(2)]
    L.append(mk("buffer_load_ushort v%d, v%d, %s, 0 offen" % (uHead, uHead, S4(sHk)), vm="hk"))
    L.append(mk("buffer_load_ushort v%d, off, %s, s%d" % (uD, S4(sDp), sDoff), vm="hk"))
    return L
def delay(n):
    d = I("; delay", cost=0); d.kind = "delay"; d.vm = n; return d
def hk_build(alt=0):
    D = [212, 213, 214, 215, 216, 217]; E1 = 220; E3 = 224; C2 = 52
    if alt: D = [10, 11, 12, 13, 26, 27]; E1 = 32; E3 = 32; C2 = 32
    L = ml("s_lshl_b32 s5, s%d, 11\ns_add_u32 s5, s5, s%d\nv_add_u32 v39, s5, v%d\nds_write_b16 v%d, v%d" % (sHalf, sCV, vL16, uHeadA, uHead))
    for j in range(2):
        o = 32 + j * 1024
        L.append(mk("ds_read_b128 %s, v39 offset:%d" % (vr(D[0]), o), lg="hb"))
        L.append(mk("ds_read_b32 v%d, v39 offset:%d" % (D[4], o + 16), lg="hb"))
        L += [delay(5), W(lg="hb")]
        L += [mk("v_alignbit_b32 v%d, v%d, v%d, 16" % (E1 + i, D[i + 1], D[i])) for i in range(4)]
        L += [delay(1), mk("ds_write_b128 v39, %s offset:%d" % (vr(E1), o + 4160), cost=12), delay(2)]
    return L
def conv_xr():
    L = ml("s_lshl_b32 s7, s%d, 10\ns_add_u32 m0, s7, %d" % (sWave, CONV + XR_OFF))
    L += [dma(vL16, sWS, "s%d" % sXRso, 0, "cv", " sc1")]
    L += ml("s_add_u32 s%d, s%d, 4096\ns_add_u32 m0, s7, %d" % (sXRso, sXRso, CONV + CH_STRIDE + XR_OFF))
    L += [dma(vL16, sWS, "s%d" % sXRso, 0, "cv", " sc1")]
    return L
CAR = [uCA, 10, 11, 12]
def conv_reads(rr):
    L = []; b = CFB[rr & 1]
    for i in range(8):
        a = b + 4 * i; t = "c%d_%d" % (rr, i)
        ar = CAR[i >> 1]; o = 16 * rr + 128 * (i & 1)
        L.append(mk("ds_read2_b32 v[%d:%d], v%d offset0:%d offset1:%d" % (a, a + 1, ar, o, o + 1), lg=t))
        L.append(mk("ds_read2_b32 v[%d:%d], v%d offset0:%d offset1:%d" % (a + 2, a + 3, ar, o + 2, o + 3), lg=t))
        L.append(mk("ds_read_b128 v[%d:%d], v%d offset:%d" % (a + 32, a + 35, uCB, 3584 - 512 * i + 64 * rr), lg=t))
    return L

def kv_setup(p):
    p("s_lshr_b32 s3, s2, 3\ns_lshl_b32 s3, s3, 16\ns_and_b32 s4, s2, 7\ns_lshl_b32 s5, s4, 7\ns_add_u32 s5, s5, s3")
    p("v_lshrrev_b32 v9, 3, v1\nv_and_b32 v%d, 7, v1\nv_lshlrev_b32 v%d, 4, v%d\nv_lshl_add_u32 v%d, v9, 10, v%d" % (vSH, vKD, vSH, vKD, vKD))
    p("s_add_u32 s6, s5, %d\nv_add_u32 v%d, s6, v%d" % (56 * 1024, vKD + 2, vKD))
    p("s_lshl_b32 s6, s%d, 14\ns_add_u32 s5, s5, s6\nv_add_u32 v%d, s5, v%d" % (sWave, vKD + 1, vKD))
    p("v_add_u32 v%d, 0xffffe000, v%d\nv_add_u32 v%d, %d, v%d" % (vKD, vKD + 1, vKD + 3, 8192 - 1056, vKD + 1))
    p("s_lshl_b32 s6, s%d, 5\ns_add_u32 s6, s6, %d\nv_mul_u32_u24 v%d, 1056, v9\nv_lshl_add_u32 v%d, v%d, 2, v%d\nv_add_u32 v%d, s6, v%d" % (sWave, KVL, vKA, vKA, vSH, vKA, vKA, vKA))
    p("s_lshl_b32 s6, s4, 18\ns_lshl_b32 s7, s%d, 16\ns_add_u32 s6, s6, s7\ns_lshr_b32 s7, s3, 9\ns_sub_u32 s6, s6, s7\ns_add_u32 s6, s6, %d" % (sWave, WS_XR + 4080))
    p("v_lshlrev_b32 v%d, 13, v%d\nv_lshlrev_b32 v9, 4, v9\nv_sub_u32 v%d, v%d, v9\nv_add_u32 v%d, s6, v%d" % (vKO, vSH, vKO, vKO, vKO, vKO))
    p("s_lshl_b32 s6, s4, 9\ns_lshl_b32 s7, s%d, 7\ns_add_u32 s6, s6, s7\nv_lshl_add_u32 v%d, v%d, 4, s6" % (sWave, vSH, vSH))
    p("s_lshl_b32 s6, s2, 7\ns_lshl_b32 s7, s%d, 3\ns_add_u32 s6, s6, s7\ns_add_u32 s%d, s6, %d" % (sWave, sFlK, WS_FK))
    srd(p, sK, kK, 2048 * 1024); srd(p, sV, kV, 2048 * 1024); srd(p, sSh, kSH, 4096)
def kv_loads(opts):
    f = opts.get("fkv", "")
    L = ml("s_mul_i32 s52, s%d, 2112\ns_add_u32 s52, s52, %d\ns_mov_b32 m0, s52" % (sWave, KVL))
    L += [dma(vKD, sK, "0", 0, "kv", f), mk("s_add_u32 m0, s52, 1056"), dma(vKD + 1, sK, "0", 0, "kv", f),
          mk("s_mov_b32 m0, %d" % (KVL + 8 * 1056)), dma(vKD + 2, sK, "0", 0, "kv", f),
          mk("s_add_u32 m0, s52, %d" % (9 * 1056)), dma(vKD + 1, sV, "0", 0, "kv", f), dma(vKD + 3, sV, "0", 1056, "kv", f),
          mk("buffer_load_dwordx4 v[72:75], v%d, %s, 0 offen" % (vSH, S4(sSh)), vm="kv")]
    return L
def kv_compute():
    RK = 52; RV = 63; Wt = 76; K = 212; A = 223; V = 225
    L = []
    for j in range(11): L.append(mk("ds_read_b32 v%d, v%d offset:%d" % (RK + j, vKA, (5 + j) * 128 if j < 3 else 1056 + (j - 3) * 128), lg="kvr"))
    for t in range(8): L.append(mk("ds_read_b32 v%d, v%d offset:%d" % (RV + t, vKA, 9 * 1056 + t * 128), lg="kvr"))
    un = lambda d, s_, hi: mk(("v_and_b32 v%d, 0xffff0000, v%d" if hi else "v_lshlrev_b32 v%d, 16, v%d") % (d, s_))
    for e in range(2):
        for i in range(4): L.append(un(Wt + 4 * e + i, 72 + 2 * e + (i >> 1), i & 1))
    L.append(W(lg="kvr"))
    for e in range(2):
        o = (vNon, uPoll)[e]
        for j in range(11): L.append(un(K + j, RK + j, e))
        for t in range(8):
            a = A + (t & 1)
            L.append(mk("v_mul_f32 v%d, v%d, v%d" % (a, K + t, Wt + 4 * e + 3)))
            L.append(un(V, RV + t, e))
            for i in (2, 1, 0): L.append(mk("v_fmac_f32 v%d, v%d, v%d" % (a, K + t + 3 - i, Wt + 4 * e + i)))
            L.append(mk("v_mul_f32 v%d, v%d, v%d" % (a, a, V)))
            if t & 1: L.append(mk("v_cvt_pk_bf16_f32 v%d, v%d, v%d" % (o + 3 - (t >> 1), A + 1, A)))
    return L
def kv_stores():
    return [mk("s_mov_b32 s%d, 4096" % sT2),
            mk("buffer_store_dwordx4 %s, v%d, %s, 0 offen sc1" % (vr(vNon), vKO, S4(sWS)), vm="kvst"),
            mk("buffer_store_dwordx4 %s, v%d, %s, s%d offen sc1" % (vr(uPoll), vKO, S4(sWS), sT2), vm="kvst")]

SLOW = []
SPINS = []
SLEEP = {'*': 8, 'kva': 16, 'ng': 4, 'na': 4}
PROF = [0]
def spin(name, reload_, test, okbr):
    t = ["L_slow_%s:" % name, "s_mov_b32 s%d, 1" % sSpin, "L_spin_%s:" % name, "s_sleep %d" % SLEEP.get(name, SLEEP['*'])]
    if PROF[0]:
        SPINS.append(name); t.append("v_writelane_b32 v255, s%d, %d" % (sSpin, 47 + len(SPINS)))
    t += [x.t for x in reload_] + ["s_waitcnt vmcnt(0)"] + [x.t for x in test]
    t += ["%s L_ok_%s" % (okbr, name), "s_add_u32 s%d, s%d, 1" % (sSpin, sSpin), "s_cmp_lt_u32 s%d, %d" % (sSpin, SPIN_MAX),
          "s_cbranch_scc1 L_spin_%s" % name, "s_branch L_ok_%s" % name]
    SLOW.append("\n".join(t))
def poll_check(name, regs, reload_, bits=64):
    L = []
    for i, r in enumerate(regs):
        op = "v_cmp_ne_u64 %%s, s[%d:%d], v[%d:%d]" % (sTag, sTag + 1, r, r + 1) if bits == 64 else "v_cmp_ne_u32 %%s, s%d, v%d" % (sTag, r)
        if i == 0: L.append(mk(op % "vcc"))
        else: L += ml(op % "s[4:5]" + "\ns_or_b64 vcc, vcc, s[4:5]")
    spin(name, reload_, L, "s_cbranch_vccz")
    return L + [mk("s_cbranch_vccnz L_slow_%s" % name), I("L_ok_%s:" % name, kind="label", cost=0)]
def nonce_get(name):
    ld = mk("global_load_dwordx2 v[%d:%d], v%d, s[%d:%d] sc1" % (vNon, vNon + 1, vNon + 2, sDbg, sDbg + 1), vm="non")
    t = ml("v_readfirstlane_b32 s%d, v%d\nv_readfirstlane_b32 s%d, v%d\ns_cmp_lg_u32 s%d, 0" % (sTag, vNon, sTag + 1, vNon + 1, sTag))
    spin(name, [ld], t, "s_cbranch_scc1")
    chk = t[:2] + [bundle(t[2].t + "\ns_cbranch_scc0 L_slow_%s" % name), I("L_ok_%s:" % name, kind="label", cost=0)]
    chk += ml("v_mov_b32 v%d, v%d\nv_mov_b32 v%d, v%d" % (vTag, vNon, vTag + 1, vNon + 1))
    return ld, chk

def g1_epilogue(tile, opts):
    A0 = acc_of(tile)
    c4 = vST + 4 * tile + 1; c1 = vST + 4 * tile + 2
    g = [A0 + (p >> 2) * 8 + (p & 3) for p in range(8)]
    u = [x + 4 for x in g]
    o = vOUT + 4 * (tile & 1)
    st = []
    for p in range(8):
        t = vTMP + p
        st.append([mk("v_mul_f32 v%d, v%d, v%d" % (g[p], g[p], c1)), mk("v_exp_f32 v%d, v%d" % (t, g[p])),
                   mk("v_mul_f32 v%d, v%d, v%d" % (u[p], g[p], u[p])), mk("v_fma_f32 v%d, v%d, v%d, v%d" % (t, t, c4, c4)),
                   mk("v_rcp_f32 v%d, v%d" % (t, t)), mk("v_mul_f32 v%d, v%d, v%d" % (u[p], u[p], t))])
    R = []; pend = []
    for step in range(18):
        for k in (5, 4, 3, 2, 1, 0):
            p = step - 2 * k
            if 0 <= p < 8:
                R.append(st[p][k])
                for q in pend: R.append(mk("v_cvt_pk_bf16_f32 v%d, v%d, v%d" % (o + (q >> 1), u[q - 1], u[q])))
                pend = [p] if (k == 5 and p & 1) else []
    for q in pend: R.append(mk("v_cvt_pk_bf16_f32 v%d, v%d, v%d" % (o + (q >> 1), u[q - 1], u[q])))
    R.append(mk("s_add_u32 s%d, s%d, %d" % (sT3, sHa, tile * 112 * 1024)))
    if not opts.get("x_nohst"): R.append(mk("buffer_store_dwordx4 %s, v%d, %s, s%d offen%s" % (vr(o), vL16, S4(sWS), sT3, "" if opts.get("x_hplain") else opts.get("fh", " sc1")), vm="hst%d" % tile))
    return R

def common_setup(p, opts):
    p("v_and_b32 v1, 63, v0\nv_lshrrev_b32 v2, 6, v0\nv_lshlrev_b32 v%d, 4, v1\nv_readfirstlane_b32 s%d, v2" % (vL16, sWave))
    p("v_lshrrev_b32 v2, 3, v1\nv_and_b32 v3, 7, v1\nv_lshrrev_b32 v9, 4, v1\nv_mov_b32 v%d, 0" % (vNon + 2))

def phase2_setup(p, opts):
    q, n, a, b, c, d = 40, 41, 42, 43, 44, 45
    p("s_and_b32 s3, s2, 7\ns_lshr_b32 s4, s2, 3\ns_lshl_b32 s3, s3, 2\ns_and_b32 s5, s4, 3\ns_add_u32 s%d, s3, s5\ns_lshr_b32 s%d, s4, 2" % (sTB2, sDB))
    if opts.get("dbx", 3): p("s_xor_b32 s%d, s%d, %d" % (sDB, sDB, opts.get("dbx", 3)))
    p("v_lshrrev_b32 v%d, 4, v1\nv_and_b32 v%d, 15, v1" % (q, n))
    p("v_lshrrev_b32 v%d, 3, v1\nv_and_b32 v%d, 7, v1\nv_and_b32 v%d, 1, v%d\nv_lshlrev_b32 v%d, 2, v%d\nv_xor_b32 v%d, v%d, v%d" % (a, b, c, q, c, c, c, c, b))
    p("s_lshl_b32 s7, s%d, 7\ns_mul_i32 s5, s%d, %d\ns_add_u32 s7, s7, s5" % (sDB, sWave, 448 * 1024))
    p("v_lshlrev_b32 v%d, 4, v%d\nv_lshl_add_u32 v%d, v%d, 10, v%d\nv_add_u32 v%d, s7, v%d" % (c, c, c, a, c, uWD, c))
    for j in range(1, 4): p("v_add_u32 v%d, %d, v%d" % (uWD + j, 7168 * j, uWD))
    p("s_lshr_b32 s5, s%d, 2\ns_lshl_b32 s5, s5, 4\ns_and_b32 s6, s%d, 3\ns_lshl_b32 s6, s6, 1\ns_add_u32 s6, s5, s6" % (sTB2, sTB2))
    p("s_mul_i32 s5, s6, 57344\ns_mul_i32 s7, s%d, 28672\ns_add_u32 s5, s5, s7\nv_add_u32 v%d, s5, v%d\nv_add_u32 v%d, %d, v%d" % (sWave, uH, vL16, uH + 1, 8 * 57344, uH))
    p("s_lshl_b32 s5, s6, 4\ns_lshl_b32 s7, s%d, 3\ns_add_u32 s5, s5, s7\nv_lshrrev_b32 v%d, 5, v1\nv_and_b32 v%d, 3, v1\nv_lshl_add_u32 v%d, v%d, 2, v%d\nv_add_u32 v%d, s5, v%d" % (sWave, c, d, c, c, d, c, c))
    p("v_bfe_u32 v%d, v1, 2, 3\nv_lshlrev_b32 v%d, 4, v%d\nv_lshl_add_u32 v%d, v%d, 10, v%d\ns_lshl_b32 s7, s%d, 7\nv_add_u32 v%d, s7, v%d" % (d, d, d, d, c, d, sDB, uX, d))
    p("v_lshlrev_b32 v%d, 4, v%d\nv_add_u32 v%d, %d, v%d" % (c, c, uSto, WS_ST, c))
    p("v_bfe_u32 v%d, v1, 2, 2\nv_lshrrev_b32 v%d, 5, v1\nv_lshl_add_u32 v%d, v%d, 3, v%d\nv_lshlrev_b32 v%d, 7, v%d\nv_lshrrev_b32 v%d, 1, v%d\nv_lshl_add_u32 v%d, v%d, 6, v%d" % (a, b, b, b, a, b, b, a, a, b, a, b))
    p("v_and_b32 v%d, 1, v%d\nv_lshl_add_u32 v%d, v%d, 5, v%d\nv_and_b32 v%d, 3, v1\nv_lshl_add_u32 v%d, v%d, 3, v%d\nv_add_u32 v%d, s%d, v%d\nv_xor_b32 v%d, 64, v%d" % (a, q, b, a, b, a, b, a, b, uTR, sWdL, b, uTR + 1, uTR))
    p("v_add_u32 v%d, 1, v%d\nv_and_b32 v%d, 1, v%d\nv_sub_u32 v%d, v%d, v%d\nv_lshl_add_u32 v%d, v%d, 3, v%d\nv_lshlrev_b32 v%d, 1, v%d" % (a, n, b, a, a, a, b, a, q, a, a, a))
    p("v_mul_u32_u24 v%d, 4160, v%d\ns_lshl_b32 s7, s%d, 8\ns_add_u32 s7, s7, s%d\nv_add3_u32 v%d, v%d, v%d, s7" % (b, b, sHalf, sCV, uCA, a, b))
    p("v_lshlrev_b32 v%d, 5, v%d\nv_lshlrev_b32 v%d, 4, v%d\nv_sub_u32 v%d, v%d, v%d\ns_add_u32 s7, s7, %d\nv_add_u32 v%d, s7, v%d" % (a, n, b, q, a, b, a, XR_OFF + 480, uCB, a))
    p("v_and_b32 v%d, 1, v%d\nv_mul_u32_u24 v%d, 4160, v%d\nv_lshl_add_u32 v%d, v%d, 1, v%d\nv_add_u32 v%d, s%d, v%d" % (a, q, a, a, a, n, a, uHeadA, sCV, a))
    p("v_mov_b32 v46, 0\nv_mov_b32 v47, 0\nv_lshlrev_b32 v%d, 3, v1\ns_add_u32 s7, s%d, %d\nv_add_u32 v%d, s7, v%d" % (a, sCV, XR_OFF + 4096, a, a))
    p("ds_write_b64 v%d, v[46:47]" % a)
    p("v_and_b32 v%d, 2, v%d\nv_lshlrev_b32 v%d, 3, v%d\nv_and_b32 v%d, 1, v%d\nv_lshl_add_u32 v%d, v%d, 5, v%d\nv_bfe_u32 v%d, v%d, 1, 2\nv_lshl_add_u32 v%d, v%d, 7, v%d\nv_lshrrev_b32 v%d, 3, v%d\nv_lshl_add_u32 v%d, v%d, 6, v%d\nv_and_b32 v%d, 1, v%d\nv_lshl_add_u32 v%d, v%d, 9, v%d" % (a, q, a, a, b, n, a, b, a, b, n, a, b, a, b, n, a, b, a, b, q, uYst, b, a))
    p("s_lshl_b32 s7, s%d, 11\ns_add_u32 s7, s7, s%d\ns_add_u32 s%d, s7, %d" % (sHalf, sCh4k, sYoff, WS_YT))
    p("s_lshl_b32 s7, s2, 13\ns_lshl_b32 s3, s%d, 10\ns_add_u32 s7, s7, s3\ns_add_u32 s%d, s7, %d" % (sWave, sXRso, WS_XR))
    p("s_lshl_b32 s7, s2, 7\ns_add_u32 s%d, s7, %d" % (sFlY, WS_FY))
    p("v_and_b32 v%d, 7, v1\nv_lshlrev_b32 v%d, 7, v%d" % (a, a, a))
    p("s_lshl_b32 s7, s%d, 12\ns_lshl_b32 s3, s%d, 10\ns_add_u32 s7, s7, s3\ns_add_u32 s7, s7, %d\nv_add_u32 v%d, s7, v%d" % (sDB, sWave, WS_FY, uFY, a))
    p("v_min_u32 v%d, 6, v1\nv_lshlrev_b32 v%d, 7, v%d" % (a, a, a))
    p("s_lshr_b32 s7, s%d, 2\ns_lshl_b32 s7, s7, 5\ns_mul_i32 s3, s%d, 7\ns_add_u32 s7, s7, s3\ns_lshl_b32 s7, s7, 7\ns_add_u32 s7, s7, %d\nv_add_u32 v%d, s7, v%d" % (sTB2, sWave, WS_FH, uFH, a))
    p("v_and_b32 v%d, 7, v1\nv_lshlrev_b32 v%d, 10, v%d\ns_lshr_b32 s7, s2, 5\ns_lshl_b32 s7, s7, 7\ns_and_b32 s3, s2, 24\ns_add_u32 s7, s7, s3" % (a, a, a))
    p("s_lshl_b32 s3, s%d, 13\ns_sub_u32 s7, s7, s3\ns_add_u32 s7, s7, %d\nv_sub_u32 v%d, s7, v%d" % (sWave, WS_FK + 31 * 1024, uFK, a))
    p("v_cmp_ne_u32 vcc, 0, v1\nv_mov_b32 v%d, 0x80000000\nv_mov_b32 v%d, 0\nv_cndmask_b32 v%d, v%d, v%d, vcc" % (a, b, vFl, b, a))

def hk_srds(p):
    p("s_add_u32 s%d, s60, s%d\ns_addc_u32 s%d, s61, 0\ns_and_b32 s%d, s%d, 0xffff\ns_sub_u32 s%d, 0x200000, s%d\ns_mov_b32 s%d, 0x20000" % (sHk, sCh4k, sHk + 1, sHk + 1, sHk + 1, sHk + 2, sCh4k, sHk + 3))
    srd(p, sDp, kD, 1024)
def ids2(p):
    p("s_lshr_b32 s3, s%d, 1\ns_lshl_b32 s4, s2, 1\ns_add_u32 s4, s4, s3\ns_mul_i32 s%d, s3, %d\ns_add_u32 s%d, s%d, %d" % (sWave, sCV, CH_STRIDE, sCV, sCV, CONV))
    p("s_and_b32 s%d, s%d, 1\ns_lshl_b32 s%d, s4, 12\ns_lshl_b32 s%d, s4, 1\ns_lshl_b32 s%d, s%d, 12" % (sHalf, sWave, sCh4k, sDoff, sWdL, sWave))
    p("v_bfe_u32 v40, v1, 4, 1\nv_and_b32 v41, 15, v1\nv_add_u32 v42, v40, v41\nv_add_u32 v42, -16, v42\nv_lshlrev_b32 v%d, 1, v42" % uHead)
RHO = [2, 4, 1]
def phase2_srds():
    L = []
    for d, lo, size in ((sWd, kWD, 1792 * 1024), (sOut, kOUT, 2048 * 1024)):
        L += ml("s_mov_b32 s%d, s%d\ns_and_b32 s%d, s%d, 0xffff\ns_mov_b32 s%d, 0x%x\ns_mov_b32 s%d, 0x20000" % (d, lo, d + 1, lo + 1, d + 2, size, d + 3))
    for s in range(14): L += ml("s_mov_b32 s%d, %d" % (sTabW + s, s * 32768))
    return L

class Filler:
    def __init__(self, space=2):
        self.vq = []; self.xq = []; self.last = -9; self.space = space
    def v(self, at, L): self.vq += [(at, x) for x in L]
    def x(self, at, L): self.xq += [(at, y) for y in L]
    def fill(self, gi, gap, budget, xbudget=None, novm=False):
        used = lambda: sum(y.cost for y in gap)
        nv = 0
        for q in (self.vq, self.xq):
            if q and q[0][1].kind == "delay" and q[0][0] <= gi:
                n = q.pop(0)[1].vm
                if q: q[0] = (max(q[0][0], gi + n), q[0][1])
        while not novm and self.vq and self.vq[0][0] <= gi and used() + self.vq[0][1].cost <= budget:
            at, y = self.vq[0]
            if y.kind == "delay": break
            if is_vm(y) and y.t.endswith(" lds"):
                lag = gi - at
                if nv >= 1 or (gi - self.last < self.space and lag < 14): break
                nv += 1; self.last = gi
            gap.append(y); self.vq.pop(0)
            if is_m0(y): break
        while self.xq and self.xq[0][0] <= gi and used() + self.xq[0][1].cost <= (xbudget or budget):
            if self.xq[0][1].kind == "delay": break
            gap.append(self.xq.pop(0)[1])

def gemm1(p, opts):
    p("s_sub_u32 s3, s2, 32\ns_and_b32 s4, s3, 7\ns_lshr_b32 s5, s3, 3")
    p("s_and_b32 s6, s4, 1\ns_and_b32 s7, s5, 3\ns_lshl_b32 s34, s7, 1\ns_add_u32 s34, s34, s6\ns_lshl_b32 s6, s6, 2\ns_add_u32 s%d, s6, s7" % sTB)
    p("s_lshr_b32 s6, s4, 1\ns_mul_i32 s6, s6, 7\ns_lshr_b32 s7, s5, 2\ns_add_u32 s7, s7, %d\ns_cmp_ge_u32 s7, 7\ns_cselect_b32 s5, 7, 0\ns_sub_u32 s7, s7, s5\ns_add_u32 s%d, s6, s7" % (opts.get("cbr", 0), sCB)) if opts.get("cbr") else p("s_lshr_b32 s6, s4, 1\ns_mul_i32 s6, s6, 7\ns_lshr_b32 s7, s5, 2\ns_add_u32 s%d, s6, s7" % sCB)
    SG = opts.get("sig", 5)
    if SG == 0: p("s_mov_b32 s34, 0")
    elif SG == 1: p("s_and_b32 s34, s4, 1\ns_lshl_b32 s34, s34, 2\ns_and_b32 s6, s4, 6\ns_add_u32 s34, s34, s6\ns_and_b32 s34, s34, 7")
    elif SG == 5: p("s_lshr_b32 s6, s4, 1\ns_xor_b32 s34, s6, s%d" % sTB)
    elif SG == 6: p("s_lshr_b32 s6, s4, 1\ns_and_b32 s34, s%d, 6\ns_xor_b32 s34, s6, s34" % sTB)
    elif SG == 2: p("s_add_u32 s34, s34, s%d\ns_and_b32 s34, s34, 7" % sCB)
    elif SG == 3: p("s_and_b32 s34, s4, 1\ns_lshl_b32 s34, s34, 2\ns_and_b32 s6, s4, 6\ns_add_u32 s34, s34, s6\ns_and_b32 s6, s%d, 1\ns_add_u32 s34, s34, s6\ns_and_b32 s34, s34, 7" % sTB)
    elif SG == 4: p("s_and_b32 s34, s4, 1\ns_lshl_b32 s34, s34, 2\ns_and_b32 s6, s4, 6\ns_add_u32 s34, s34, s6\ns_and_b32 s6, s%d, 1\ns_lshl_b32 s6, s6, 2\ns_add_u32 s34, s34, s6\ns_and_b32 s34, s34, 7" % sCB)
    p("v_xor_b32 v5, v9, v3\nv_lshlrev_b32 v5, 4, v5\nv_lshl_add_u32 v%d, v2, 10, v5\nv_xor_b32 v5, 64, v%d" % (vXD, vXD))
    p("v_add_u32 v%d, 7168, v5\nv_add_u32 v%d, 14336, v%d\nv_add_u32 v%d, 21504, v5" % (vXD + 1, vXD + 2, vXD, vXD + 3))
    p("s_lshr_b32 s3, s%d, 1\ns_lshl_b32 s3, s3, 2" % sWave)
    p("v_and_b32 v5, 1, v9\nv_lshlrev_b32 v5, 1, v5\nv_xor_b32 v5, s3, v5\nv_xor_b32 v5, v5, v3\nv_lshlrev_b32 v5, 4, v5")
    p("s_and_b32 s4, s%d, 1\ns_mul_i32 s4, s4, %d\ns_lshl_b32 s5, s%d, 7\ns_add_u32 s4, s4, s5" % (sWave, 32 * 3584, sCB))
    p("v_mul_u32_u24 v6, 3584, v2\nv_add3_u32 v%d, v5, v6, s4" % vWD)
    for j in range(1, 4): p("v_add_u32 v%d, %d, v%d" % (vWD + j, j * (8 * 3584 - 1024), vWD))
    p("s_lshl_b32 s35, s%d, 18\ns_lshl_b32 s5, s%d, 15\ns_add_u32 s7, s35, s5" % (sTB, sWave))
    p("s_lshl_b32 s%d, s%d, 12\ns_add_u32 s%d, s%d, 16384" % (sLdsW, sWave, sLdsX, sLdsW))
    p("s_mul_i32 s%d, s34, %d\ns_lshl_b32 s3, s34, 7\ns_add_u32 s%d, s3, s7" % (sTab + 4, 64 * 3584, sTab + 8))
    p("s_waitcnt lgkmcnt(0)")
    srd(p, sQ, kQ, 2048 * 1024)
    p("s_cmp_ge_u32 s%d, 2\ns_cselect_b32 s66, s68, s66\ns_cselect_b32 s67, s69, s67" % sWave)
    srd(p, sW, kWG, 512 * 3584)
    stamp(p, "g.karg", opts, 2)
    W2 = opts.get("wt2", 0); X2 = opts.get("xt2", W2)
    if W2:
        p("v_add_u32 v5, s34, v2\nv_and_b32 v5, 7, v5\nv_lshlrev_b32 v7, 7, v5\nv_lshl_add_u32 v5, v5, 6, v3\ns_and_b32 s3, s%d, 3\ns_mul_i32 s3, s3, %d\ns_add_u32 s3, s3, s4" % (sTB, 8 * 3584))
        p("v_mul_u32_u24 v5, 3584, v5\nv_cmp_gt_u32 vcc, %d, v2\nv_add_u32 v5, s3, v5\nv_mov_b32 v6, -1\nv_cndmask_b32 v5, v6, v5, vcc" % W2)
        p("buffer_load_dword v8, v5, %s, 0 offen" % S4(sW), vm="wt")
        p("s_lshr_b32 s3, s2, 5\ns_sub_u32 s3, s3, 1\ns_mul_i32 s3, s3, 5\nv_add_u32 v5, s3, v3\nv_cmp_gt_u32 vcc, 5, v3\nv_cmp_gt_u32 s[26:27], 32, v5\nv_cmp_gt_u32 s[28:29], %d, v2" % X2)
        p("v_lshl_add_u32 v5, v5, 10, v7\ns_and_b64 vcc, vcc, s[26:27]\ns_and_b64 vcc, vcc, s[28:29]\nv_add_u32 v5, s7, v5\nv_cndmask_b32 v5, v6, v5, vcc")
        p("buffer_load_dword v8, v5, %s, 0 offen" % S4(sQ), vm="wt")
    st0 = g1_stage(0, opts)
    for x in st0: x.t = x.t.replace("s%d offen" % sTab, "s%d offen" % (sTab + 4))
    seq(p, st0)
    stamp(p, "g.st0", opts, 2)
    WT = opts.get("wt", 0)
    if WT:
        p("v_add_u32 v5, s34, v2\nv_add_u32 v5, 1, v5\nv_and_b32 v5, 7, v5\nv_lshl_add_u32 v5, v5, 6, v3\ns_and_b32 s3, s%d, 3\ns_mul_i32 s3, s3, %d\ns_add_u32 s3, s3, s4" % (sTB, 8 * 3584))
        p("v_mul_u32_u24 v5, 3584, v5\nv_cmp_gt_u32 vcc, %d, v2\nv_add_u32 v5, s3, v5\nv_mov_b32 v6, -1\nv_cndmask_b32 v5, v6, v5, vcc" % WT)
        p("buffer_load_dword v6, v5, %s, 0 offen" % S4(sW), vm="wt")
    p("s_mov_b32 s27, s7")
    srd(p, sWS, kWS, WS_SZ)
    p("s_mov_b32 s%d, s74\ns_mov_b32 s%d, s75" % (sDbg, sDbg + 1))
    kv_setup(p)
    ids2(p); hk_srds(p)
    for s in range(1, 8):
        p(("s_xor_b32 s3, s34, %d" if SG >= 5 else "s_add_u32 s3, s34, %d\ns_and_b32 s3, s3, 7") % s)
        p("s_mul_i32 s%d, s3, %d\ns_lshl_b32 s3, s3, 7\ns_add_u32 s%d, s3, s27" % (sTab + s, 64 * 3584, sTab + 8 + s))
    p("s_lshl_b32 s%d, s%d, 13\ns_add_u32 s6, s35, %d" % (sLdsXB, sWave, 0 if opts.get("x_xsame") else 0x20000))
    for h in range(2):
        if SG >= 5: p("s_lshl_b32 s3, s%d, 1\ns_add_u32 s3, s3, %d\ns_xor_b32 s3, s3, s34\ns_lshl_b32 s3, s3, 7\ns_add_u32 s%d, s3, s6" % (sWave, h, sXB + h))
        else: p("s_lshl_b32 s3, s%d, 1\ns_add_u32 s3, s3, s34\ns_add_u32 s3, s3, %d\ns_and_b32 s3, s3, 7\ns_lshl_b32 s3, s3, 7\ns_add_u32 s%d, s3, s6" % (sWave, h, sXB + h))
    p("s_lshl_b32 s3, s%d, 2\ns_add_u32 s3, s3, s%d\ns_lshl_b32 s3, s3, 10\ns_mul_i32 s4, s%d, %d\ns_add_u32 s%d, s3, s4" % (sCB, sWave, sTB, 16 * 57344, sHa))
    p("s_lshl_b32 s4, s%d, 12\ns_add_u32 s%d, s4, %d" % (sTB, sST, WS_ST))
    a, b, c, d, e, f = 40, 41, 42, 43, 44, 45
    p("v_and_b32 v%d, 31, v1\nv_lshrrev_b32 v%d, 5, v1\nv_lshlrev_b32 v%d, 4, v%d" % (a, b, vSToff, a))
    p("s_lshl_b32 s3, s%d, 5\ns_add_u32 s3, s3, s%d\ns_lshl_b32 s3, s3, 7\ns_add_u32 s%d, s3, %d" % (sTB, sCB, sFlH, WS_FH))
    p("v_bfe_u32 v%d, v1, 1, 3\nv_xor_b32 v%d, v%d, v%d\nv_lshlrev_b32 v%d, 4, v%d\nv_lshl_add_u32 v%d, v%d, 7, v%d" % (c, c, c, b, c, c, vXA, a, c))
    for ks in range(1, 4): p("v_xor_b32 v%d, %d, v%d" % (vXA + ks, 32 * ks, vXA))
    for ks in range(4): p("v_add_u32 v%d, 0x10000, v%d" % (vXA + 4 + ks, vXA + ks))
    p("v_bfe_u32 v%d, v1, 2, 2\nv_bfe_u32 v%d, v1, 1, 1\nv_and_b32 v%d, 1, v1\nv_bfe_u32 v%d, v1, 4, 1" % (a, c, d, e))
    p("v_lshrrev_b32 v%d, 1, v%d\nv_lshl_add_u32 v%d, v%d, 1, v%d\nv_xor_b32 v%d, s%d, v%d\nv_lshlrev_b32 v%d, 5, v%d" % (f, a, f, c, f, f, sWave, f, f, f))
    p("v_lshl_add_u32 v%d, v%d, 4, v%d\nv_lshl_add_u32 v%d, v%d, 3, v%d\nv_lshl_add_u32 v%d, v%d, 13, v%d" % (f, d, f, f, e, f, f, c, f))
    p("v_lshl_add_u32 v%d, v%d, 3, v%d\nv_lshl_add_u32 v%d, v%d, 7, v%d\nv_add_u32 v%d, 0x10000, v%d" % (a, b, a, vWA, a, f, vWA + 1, vWA))
    stamp(p, "g.set1", opts, 2)
    if not opts.get("p2in", 1): phase2_setup(p, opts)
    for r in range(2 if opts.get("cs4", 1) else 4): p("v_mov_b32 v%d, 0x3f803f80" % (vOnes + r))
    stamp(p, "g.set2", opts, 2)
    KVP = opts.get("kvp", 1)
    nld, nchk = nonce_get("ng")
    HKP = opts.get("hkp", 9)
    hkl = hk_loads(opts) if HKP == 0 else []
    if KVP == 0: seq(p, kv_loads(opts) + hkl)
    stamp(p, "g.kvis", opts, 2)
    S1IN = opts.get("s1in", 0)
    NL = opts.get("nlate", 1)
    if not S1IN:
        seq(p, g1_stage(1, opts))
        if not NL: p.add(nld)
    if KVP == 1: seq(p, kv_loads(opts) + hkl)
    if opts.get("tlb"):
        sh = opts["tlb"]
        p("v_lshlrev_b32 v52, %d, v1\nbuffer_load_dword v53, v52, %s, 0 offen" % (sh, S4(sWS)), vm="tlb")
        p("v_min_u32 v52, 0x1bff00, v52\nglobal_load_dword v54, v52, s[70:71]\nglobal_load_dword v55, v52, s[72:73]\nglobal_load_dword v56, v52, s[60:61]", vm="tlb")
    stamp(p, "g.st1", opts)

    def rdW(n):
        s, ks = n >> 2, n & 3
        w, off = win((s % 3) * SLOT + ks * 2048)
        return [mk("ds_read_b64_tr_b16 a[%d:%d], v%d offset:%d" % (4 * n, 4 * n + 1, vWA + w, off), lg="W%d" % n),
                mk("ds_read_b64_tr_b16 a[%d:%d], v%d offset:%d" % (4 * n + 2, 4 * n + 3, vWA + w, off + 512), lg="W%d" % n)]
    def rdXA(n, i):
        s, ks = n >> 2, n & 3
        w, off = win((s % 3) * SLOT + 16384 + i * 4096)
        return mk("ds_read_b128 %s, v%d offset:%d" % (vr(vXF + 16 * (n & 1) + 4 * i), vXA + 4 * w + ks, off), lg="X%d_%d" % (n, i))
    def rdXB(bb, n):
        w, off = win(((8 + bb) % 3) * SLOT + (n >> 2) * 4096)
        return mk("ds_read_b128 %s, v%d offset:%d" % (vr(vXF + 4 * (n & 7)), vXA + 4 * w + (n & 3), off), lg="B%d_%d" % (bb, n))

    fr = opts.get("fr", " sc1")
    st_loads = [mk("buffer_load_dwordx4 %s, v%d, %s, s%d offen offset:%d sc1" % (vr(vST + 4 * t), vSToff, S4(sWS), sST, t * 512), vm="rec") for t in range(8)]
    post = poll_check("rec", [vST + 4 * t + 3 for t in range(8)], st_loads, 32)
    post += ml("v_mov_b32 v%d, v%d\nv_mov_b32 v%d, v%d" % (vR1B, vST, vR1B + 4, vST + 4))
    csfin = ml("v_cvt_pk_bf16_f32 v%d, v%d, v%d\nv_and_b32 v%d, 0xffff0000, v%d\nv_sub_f32 v%d, v%d, v%d\nv_cvt_pk_bf16_f32 v%d, v%d, v%d\nv_and_b32 v%d, v186, v%d"
               % (184, vCSA, vCSA, 184, 184, 185, vCSA, 184, 184, 184, 185, vR1A, 184))
    if opts.get("cs4", 1):
        csfin = ml("v_add_f32 v%d, v%d, v%d\nv_mov_b32 v%d, v%d\ns_nop 1\nv_permlane32_swap_b32 v%d, v%d\nv_add_f32 v%d, v%d, v%d" % (vCSA, vCSA, vCSA + 4, vCSA + 1, vCSA, vCSA, vCSA + 1, vCSA, vCSA, vCSA + 1)) + csfin
    if opts.get("x_norec"):
        st_loads = []; post = [y for y in post if "cbranch" not in y.t]
    F = Filler(opts.get("aspace", 2))
    RL = opts.get("recst", 5)
    if S1IN: F.v(-20, g1_stage(1, opts) + [nld])
    for s in range(8):
        F.v(max(0, 16 * s - 3) if not (S1IN and s == 0) else -20, g1_stage(s + 2, opts))
        if NL and s == 0 and not S1IN: F.v(0, [nld])
        if KVP >= 2 and s + 2 == KVP: F.v(0, kv_loads(opts) + hkl)
        if HKP and HKP < 10 and s + 2 == HKP: F.v(0, hk_loads(opts))
        if s == opts.get("kvst", 8) and not opts.get("x_nokvs"): F.v(0, kv_stores())
        if s == 7 and opts.get("kvst", 8) < 8: F.v(16 * 7 + 8, [W(vm="kvst"), flag_store(sFlK)])
    if opts.get("p2in", 1):
        q_ = Prog(); phase2_setup(q_, opts)
        L_ = q_.ins; F.x(0, L_[:-4] + [bundle("\n".join(y.t for y in L_[-4:]))])
    F.x(0, ml("v_lshrrev_b32 v186, 5, v1\nv_add_u32 v186, -1, v186"))
    F.x(0, [mk("v_mov_b32 v%d, 0" % r) for r in (vR1A + 1, vR1A + 2, vR1A + 3)])
    F.x(0, [mk("v_mov_b32 v%d, 0" % r) for r in (vR1B + 1, vR1B + 2, vR1B + 3, vR1B + 5, vR1B + 6, vR1B + 7)])
    sr = phase2_srds()
    if opts.get("sre", 1): F.x(16 * KVP - 1 if KVP >= 2 else 0, sr); sr = []
    F.x(29 if NL else 13, [W(vm="non")] + nchk)
    kc = kv_compute()
    if opts.get("x_nokvr"): kc = [y for y in kc if not y.t.startswith("ds_")]
    if opts.get("x_nokvv"): kc = [y for y in kc if not y.t.startswith("v_")]
    F.x(13 if KVP == 0 else 16 * (KVP + 1) - 3, kc)
    KVS = I("; kv done", cost=0); KVS.kind = "label"
    F.x(0, [KVS] + (hk_build() if HKP == 0 else []) + sr[:8])
    F.x(16 * RL - 4, st_loads)
    F.x(0, sr[8:])
    F.x(16 * (RL + 2) - 3 + opts.get("postat", 0), [W(vm="rec")] + post)
    p.wait(vm="st0")
    p("s_barrier")
    stamp(p, "g.st0in", opts)
    for x in rdW(0): p.add(x)
    for i in range(4): p.add(rdXA(0, i))
    PD = opts.get("pd", 7); WE = opts.get("we", 4)
    BA = opts.get("buda", 24)
    for n in range(32):
        s, ks = n >> 2, n & 3
        gaps = [[], [], [], []]
        if ks == 3:
            DU = [int(c) * 10 for c in str(opts.get("dump", "666")).ljust(8, "0")][s]
            F.fill(4 * n, gaps[0], 4 * DU, novm=True)
            F.pre = sum(y.cost for y in gaps[0])
            gaps[0] += [W(vm="st%d" % (s + 1), lg="*"), mk("s_barrier")]
        if n < 31:
            gaps[0] += rdW(n + 1); gaps[1] += [rdXA(n + 1, 0), rdXA(n + 1, 1)]; gaps[2] += [rdXA(n + 1, 2), rdXA(n + 1, 3)]
        else:
            gaps[0] += [rdXB(0, 0), rdXB(0, 1)]; gaps[1] += [rdXB(0, 2), rdXB(0, 3)]
        for i in range(4):
            if i in (0, 2): p.wait(lg=["W%d" % n, "X%d_%d" % (n, i + 1)])
            if opts.get("cs4", 1):
                if i in (0, 1): p("v_mfma_f32_4x4x4_16b_bf16 %s, %s, a[%d:%d], %s" % (vr(vCSA + 4 * i), vr(vOnes, 2), 4 * n + 2 * i, 4 * n + 2 * i + 1, vr(vCSA + 4 * i) if n else "0"))
            elif i == 0:
                p("v_mfma_f32_32x32x16_bf16 %s, %s, a[%d:%d], %s" % (vr(vCSA, 16), vr(vOnes), 4 * n, 4 * n + 3, vr(vCSA, 16) if n else "0"))
                g5 = []; F.fill(4 * n, g5, BA, novm=True)
                for x in g5: p.add(x)
            if n == 31 and i == 2 and opts.get("cs4", 1): gaps[i] += csfin[:5]; csfin = csfin[5:]
            if n == 31 and i == 3: gaps[i] += csfin
            a = acc_of(i)
            p("v_mfma_f32_32x32x16_bf16 %s, a[%d:%d], %s, %s" % (vr(a, 16), 4 * n, 4 * n + 3, vr(vXF + 16 * (n & 1) + 4 * i), vr(a, 16) if n else "0"))
            if ks == 3 and i == 0 and any(y.vm == "st%d" % (s + 1) for _, y in F.vq): raise SystemExit("stage %d not issued" % (s + 1))
            BS = opts.get("bud0", 24) if s == 0 else (opts.get("bud1", 24) if s < opts.get("nb1", 3) else BA)
            if any(y.t.startswith("s_mov_b32 s%d," % sWd) for _, y in F.xq[:12]): assert not any(y.vm == "kv" for _, y in F.vq) or F.xq[0][0] > 4 * n + i or not F.xq[0][1].t.startswith("s_mov_b32 s%d," % sWd)
            F.fill(4 * n + i, gaps[i], BS - (4 if i in (1, 3) else 0) + (F.pre if (ks == 3 and i == 0) else 0))
            if any(y.vm == "kvst" for y in gaps[i]): assert KVS not in gaps[i] + [z for _, z in F.xq], "kv store too early"
            for x in gaps[i]: p.add(x)
        if ks == 3 and s < 7: stamp(p, "g.s%d" % s, opts, 2)
    left = len(F.xq)
    stamp(p, "g.A31", opts, 2)
    for _, x in F.xq: p.add(x)
    F.xq = []
    print("phase A: left-over x items %d, v items %d" % (left, len(F.vq)), file=sys.stderr)
    stamp(p, "g.Aend", opts)
    for m_ in range(4, PD): p.add(rdXB(0, m_))
    p("s_nop 0")
    for t in range(4):
        a = acc_of(t)
        p("v_mfma_f32_32x32x16_bf16 %s, %s, %s, %s" % (vr(a, 16), vr(vR1A), vr(vR1B + 4 * (t & 1)), vr(a, 16)))
        p("v_mov_b32 v%d, v%d" % (vR1B + 4 * (t & 1), vST + 4 * (t + 2)))
        p("s_nop 0")
    ep = [g1_epilogue(t, opts) for t in range(7)]
    total = sum(x.cost for e in ep for x in e)
    kvpoll = [mk("buffer_load_dwordx2 v[%d:%d], v%d, %s, 0 offen sc1" % (uPoll, uPoll + 1, uFK, S4(sWS)), vm="kvp")]
    F.vq = [(0, y) for _, y in F.vq]; F.last = -9; F.space = opts.get("bspace", 2)
    X = lambda k, L: [] if opts.get(k) else L
    XB = opts.get("xb", 1)
    ORD = [0, 1, 2, 3, 4] + ([5] if opts.get("w5", 1) else []) + [7, 8, 9][:XB]
    EB = opts.get("ebar", 1)
    ORD += [6, 12][:EB * opts.get("en", 2)]
    INB_READ = [0, 1, 2][:XB]
    chain = lambda t: ([W(vm="w%d" % t)] + wd_reads(t, True) + [delay(4), W(lg="t%d" % t)] + wd_loads(t + 7, opts)) if t in INB_READ else []
    F.x(0, [mk("v_add_u32 v%d, 0x20000, v%d" % (uTR2 + mt, uTR + mt)) for mt in range(2)])
    F.x(0, [bundle("\n".join(y.t for y in fl0_setup()[:3]))] + fl0_setup()[3:])
    F.v(0, kv_stores())
    F.v(opts.get("st10", 6), g1_stage(10, opts))
    W0 = opts.get("w0at", 22)
    if W0 < 27: F.v(W0, wd_loads(0, opts))
    B1 = 34 - PD
    F.v(B1, g1_stage(11, opts)[:6] + [W(vm="kvst"), flag_store(sFlK)] + g1_stage(11, opts)[6:])
    if W0 >= 27: F.v(W0, wd_loads(0, opts))
    if 5 in ORD: F.v(opts.get("w5at", 46), wd_loads(5, opts))
    if HKP == 10: F.v(opts.get("hkat", 46), hk_loads(opts))
    F.v(33 + B1, wd_loads(1, opts) + wd_loads(2, opts))
    F.v(opts.get("c0", 80), chain(0))
    F.v(opts.get("kvpoll", 80), kvpoll)
    F.v(66 + B1, wd_loads(3, opts) + wd_loads(4, opts))
    F.v(opts.get("kvchk", 106), [W(vm="kvp")] + poll_check("kv", [uPoll], kvpoll) + conv_xr())
    F.v(0, chain(1) + chain(2))
    opts["_ord"] = ORD; opts["_rd"] = INB_READ
    if HKP: F.x(opts.get("hkb", 62 if HKP < 10 else 95), hk_build(1))
    EF = opts.get("eflag", 99 + 16)
    ngaps = 4 * 33; done = 0; cur = 0; gi = 0
    BUD = opts.get("bud", 24)
    for bb in range(4):
        tile = 4 + bb; a = acc_of(tile)
        for n in range(-1, 32):
            gap = []
            if n == -1:
                p("v_mfma_f32_32x32x16_bf16 %s, %s, %s, 0" % (vr(a, 16), vr(vR1A), vr(vR1B + 4 * (bb & 1))))
                if bb < 2: gap.append(mk("v_mov_b32 v%d, v%d" % (vR1B + 4 * (bb & 1), vST + 4 * (tile + 2))))
            else:
                if n % WE == 0: p.wait(lg="B%d_%d" % (bb, n + WE - 1))
                p("v_mfma_f32_32x32x16_bf16 %s, a[%d:%d], %s, %s" % (vr(a, 16), 4 * n, 4 * n + 3, vr(vXF + 4 * (n & 7)), vr(a, 16)))
                m = n + PD
                if m == 32 and bb < 3:
                    if any(y.vm == "st%d" % (9 + bb) for _, y in F.vq): raise SystemExit("stage not issued before its wait")
                    gap += [W(vm=["st%d" % (9 + bb)] + (["hk"] if bb == 2 else []), lg="*"), mk("s_barrier")]
                if m < 32: gap.append(rdXB(bb, m))
                elif bb < 3: gap.append(rdXB(bb + 1, m - 32))
            budget = BUD - (4 if (n % WE == WE - 1) else 0)
            if EB and bb == 3 and n == 33 - PD + 1:
                gap += [W(lg="*"), mk("s_barrier")]
                F.v(gi, [x for t in ORD if t in (6, 12) for x in wd_loads(t, opts)])
            if gi == EF:
                assert cur >= 4
                gap += [W(vm="hst3"), mk("s_barrier"), flag_store(sFlH, True), mk("s_add_u32 s%d, s%d, %d" % (sFlH, sFlH, WS_FL))]
            F.fill(gi, gap, min(budget, sum(y.cost for y in gap) + 8), min(budget, sum(y.cost for y in gap) + 12 if F.xq and F.xq[0][1].cost > 4 else sum(y.cost for y in gap) + 8))
            gi += 1
            target = total * gi / float(ngaps - opts.get("eplead", 4))
            while cur < 7 and done < target:
                if cur >= 4 and (cur - 4 >= bb or (cur - 4 == bb - 1 and n < 4)): break
                if cur < 4 and bb == 0 and n < 2: break
                x = ep[cur][0]
                if sum(y.cost for y in gap) + x.cost > budget: break
                gap.append(ep[cur].pop(0)); done += x.cost
                if not ep[cur]: cur += 1
            for x in gap: p.add(x)
            if gi % 6 == 0: stamp(p, "B%d" % gi, opts, 5)
            if opts.get("prof") and "ls0" in opts:
                k_, r_ = divmod(gi - opts["ls0"], opts.get("lsd", 4))
                if r_ == 0 and 0 <= k_ < 8: p("s_memtime s[%d:%d]" % (84 + 2 * k_, 85 + 2 * k_))
        if bb < 3: stamp(p, "g.b%d" % bb, opts, 2)
    if opts.get("prof") and "ls0" in opts:
        p("s_waitcnt lgkmcnt(0)")
        for k_ in range(8):
            nm_ = "L%d" % (opts["ls0"] + k_ * opts.get("lsd", 4))
            if opts["ls0"] + k_ * opts.get("lsd", 4) > 132: break
            STAMPS.append(nm_); p("v_writelane_b32 v255, s%d, %d" % (84 + 2 * k_, len(STAMPS) - 1))
    stamp(p, "g.Bend", opts)
    print("phase B: left-over v items %d, epilogue cost left %d" % (len(F.vq), total - done), file=sys.stderr)
    vl = [y for _, y in F.vq if y.kind != "delay"]
    rest_ = [y for _, y in F.xq if y.kind != "delay"] + [x for e_ in ep[cur:] for x in e_]
    for x in rest_: p.add(x)
    conv_start(p, opts)
    rest_ = [mk("s_mov_b32 s%d, %d" % (sTab + s, s * 4096)) for s in range(7)] + g1_epilogue(7, opts)
    k_ = max(2, (len(rest_) - 4) // (len(vl) + 1))
    for i, x in enumerate(rest_):
        if i == len(rest_) - 1: seq(p, vl); vl = []
        p.add(x)
        if vl and i % k_ == k_ - 1: p.add(vl.pop(0))

def out_half(ps, opts, pk):
    eW = 24; eR = 25; eY = 26
    if ps == 0: X = list(range(12, 20)); XN = list(range(32, 40)); YR = 20; Y = [28, 29, 30, 31, 218, 219, 222, 223]
    else: X = list(range(56, 64)); XN = list(range(64, 72)); YR = 80; Y = list(range(72, 80))
    P = [list(range(uAcc + 32 * ps + 8 * w, uAcc + 32 * ps + 8 * w + 8)) for w in range(4)]
    wr = [mk("ds_write_b128 v%d, %s offset:%d" % (eW, vr(uAcc + 32 * ps + 16 * mt + 4 * j), 128 * mt + 32 * j), cost=16) for mt in range(2) for j in range(4)]
    rdy = [mk("ds_read_b64_tr_b16 v[%d:%d], v%d offset:%d" % (YR + 2 * j, YR + 2 * j + 1, eY + ps, j * 512), lg="y%d" % ps) for j in range(2)]
    rd = [mk("ds_read_b128 %s, v%d offset:%d" % (vr(P[w][4 * h]), eR, w * REDW + 16 * h), lg="r%d" % ps) for h in range(2) for w in range(4)]
    xin = uXin + 4 * ps; st = (40, 224)[ps]; F = P[0]
    un = lambda d, s_, hi: ("v_and_b32 v%d, 0xffff0000, v%d" if hi else "v_lshlrev_b32 v%d, 16, v%d") % (d, s_)
    def op2(name, d, a_, b_, c_=None, sel=""):
        R = lambda z, i, n: z if isinstance(z, str) else vr(z[i], n)
        if pk: return [mk("v_pk_%s_f32 %s, %s, %s%s%s" % (name, vr(d[2 * i], 2), R(a_, 2 * i, 2), R(b_, 2 * i, 2), (", " + R(c_, 2 * i, 2)) if c_ else "", sel)) for i in range(4)]
        return [mk("v_%s_f32 v%d, %s, %s%s" % (name, d[i], R(a_, i, 1), R(b_, i, 1), (", " + R(c_, i, 1)) if c_ else "")) for i in range(8)]
    pre = ml(un(st, st, 1) + "\nv_mul_f32 v%d, %s, v%d" % (st + 1, hex(f2u(-1.0 / LOG2E)), st + 2))
    pre += [mk(un(X[i], xin + (i >> 1), i & 1)) for i in range(8)]
    if opts.get("x_eps"): pre += ml("v_mul_f32 v%d, %s, v%d" % (st + 1, hex(f2u(1.0 + opts["x_eps"] / 1000.0)), st + 1))
    pre += ml("v_mul_f32 v%d, v%d, v%d" % (st, st, st + 1))
    if pk: pre += op2("fma", XN, X, vr(st, 2), vr(st, 2), " op_sel:[0,1,0] op_sel_hi:[1,1,0]")
    else: pre += op2("fma", XN, X, "v%d" % (st + 1), "v%d" % st)
    m = [W(lg="r%d" % ps)] + op2("add", F, P[0], P[1]) + op2("add", P[2], P[2], P[3]) + op2("add", F, F, P[2])
    m += op2("mul", Y, "s[4:5]" if pk else "s4", F)
    t1 = [mk("v_exp_f32 v%d, v%d" % (Y[i], Y[i])) for i in range(8)]
    t2 = op2("mul", XN, XN, F)
    m += [z for pr in zip(t1, t2) for z in pr] if not pk else t1 + t2
    m += op2("add", Y, "1.0", Y, None, " op_sel_hi:[0,1]" if pk else "")
    m += [mk("v_rcp_f32 v%d, v%d" % (Y[i], Y[i])) for i in range(8)] + [mk("s_nop 0")]
    m += op2("mul", XN, XN, Y)
    my = [W(lg="y%d" % ps)] + [mk(un(Y[i], YR + (i >> 1), i & 1)) for i in range(8)]
    my += op2("fma", X, XN, Y, X)
    my += [mk("v_cvt_pk_bf16_f32 v%d, v%d, v%d" % (xin + i, X[2 * i], X[2 * i + 1])) for i in range(4)]
    my += [mk("buffer_store_dwordx4 %s, v%d, %s, %s offen%s" % (vr(xin), uX, S4(sOut), "s%d" % sT0 if ps else "0", opts.get("fo", " sc1")), vm="out")]
    return wr, pre, rd, m, rdy, my

def conv_start(p, opts):
    for i in range(1, 4): p("v_add_u32 v%d, %d, v%d" % (CAR[i], 1024 * i, uCA))
    p.wait(vm="cv", lg="*")
    p("s_barrier")
    stamp(p, "p2bar", opts, 4)
    for x in conv_reads(0): p.add(x)

def phase2(p, opts):
    ORD = opts["_ord"]; RD = opts["_rd"]
    stamp(p, "p2", opts)
    for mt in range(2): p("v_add_u32 v%d, 0x10000, v%d\nv_add_u32 v%d, 0x20000, v%d" % (HI[1] + mt, uTR + mt, HI[2] + mt, uTR + mt))
    hpollA = [mk("buffer_load_dwordx2 v[%d:%d], v%d, %s, 0 offen sc1" % (uPoll, uPoll + 1, uFH, S4(sWS)), vm="hpA")]
    hpollB = [mk("s_mov_b32 s%d, %d" % (sT1, WS_FL)), mk("buffer_load_dwordx2 v[%d:%d], v%d, %s, s%d offen sc1" % (uPoll + 2, uPoll + 3, uFH, S4(sWS), sT1), vm="hpB")]
    tq = []
    for t in range(7):
        if t not in RD: tq += [("w%d" % t if (t not in ORD or t == 6) else None, y) for y in wd_reads(t)]
    wl = lambda t: ([W(lg="t%d" % PREV[t])] if t in PREV else []) + wd_loads(t, opts)
    rest = [t for t in range(7, 14) if t not in ORD]
    nfirst = opts.get("wfirst", 4)
    VQ = (wl(5) if 5 not in ORD else []) + (wl(6) if 6 not in ORD else []) + [x for t in rest[:nfirst] for x in wl(t)]
    rest = rest[nfirst:]
    LEAD = opts.get("wlead", 3)
    CHKA = I("; chkA", cost=0); CHKB = I("; chkB", cost=0)
    VQ.append(CHKA)
    for hs in range(28):
        while rest and rest[0] - 1 - LEAD <= hs: VQ += wl(rest.pop(0))
        if hs == 14: VQ.append(CHKB)
        VQ += h_loads(hs)
    state = {"A": False, "B": False, "issued": {"w%d" % t for t in ORD}}
    def pace(p, done_hs):
        n = 0
        while VQ:
            y = VQ[0]
            if y is CHKA:
                if not state["A"]: return n
                VQ.pop(0); continue
            if y is CHKB:
                if not state["B"]: return n
                VQ.pop(0); continue
            if y.kind == "wait" and any(z.lg == y.lg for _, z in tq): return n
            if y.vm and y.vm[0] == "h" and int(y.vm[1:]) - 16 > done_hs: return n
            VQ.pop(0); p.add(y); n += 1
            if is_m0(y): p("s_nop 0") if False else None
            if is_vm(y): state["issued"].add(y.vm); return n
            if is_m0(y): return n
        return n
    strec = [mk("buffer_load_dwordx4 %s, v%d, %s, 0 offen offset:%d sc1" % (vr((40, 224)[e]), uSto, S4(sWS), 2048 * e), vm="xin") for e in range(2)]
    extra = ml("s_mov_b32 s%d, 131072" % sT0) + [mk("buffer_load_dwordx4 %s, v%d, %s, %s offen" % (vr(uXin + 4 * e), uX, S4(sQ), "s%d" % sT0 if e else "0"), vm="xin") for e in range(2)] + strec
    dq = ml("v_lshrrev_b32 v24, 4, v1\nv_and_b32 v25, 15, v1\nv_lshl_add_u32 v24, v24, 3, v25\nv_sub_u32 v24, 15, v24\nv_lshlrev_b32 v25, 4, v24\nv_and_b32 v25, 16, v25\n"
            "s_sub_u32 s3, s%d, 1\nv_lshlrev_b32 v25, v25, v%d\nv_and_b32 v25, s3, v25\nv_lshrrev_b32 v24, 1, v24" % (sHalf, uD))
    dq += ml("v_cmp_eq_u32 s[4:5], 0, v24\nv_cmp_eq_u32 s[6:7], 1, v24\nv_cmp_eq_u32 s[34:35], 2, v24\nv_cmp_eq_u32 vcc, 3, v24")
    dq += ml("v_cndmask_b32 v%d, 0, v25, s[4:5]\nv_cndmask_b32 v%d, 0, v25, s[6:7]\nv_cndmask_b32 v%d, 0, v25, s[34:35]\nv_cndmask_b32 v%d, 0, v25, vcc" % (uAD, uAD + 1, uAD + 2, uAD + 3))
    pollat = opts.get("hpoll", 24); flagat = opts.get("hflag", 60); chkA = opts.get("hchk", 62); pollB = opts.get("hpollb", 132); SP = opts.get("csp", 4)
    ypoll = [mk("buffer_load_dwordx2 %s, v%d, %s, 0 offen sc1" % (vr(uPoll, 2), uFY, S4(sWS)), vm="yp")]
    ydma = ml("s_lshl_b32 s7, s%d, 1\nv_xor_b32 v3, s7, v1\nv_lshrrev_b32 v2, 3, v1\nv_lshlrev_b32 v2, 12, v2\nv_and_b32 v3, 7, v3\nv_lshl_add_u32 v2, v3, 4, v2\nv_xor_b32 v3, 16, v2\nv_add_u32 v3, %d, v3" % (sWave, 32768 - 1024))
    ydma += ml("s_lshl_b32 s3, s%d, 18\ns_lshl_b32 s7, s%d, 16\ns_add_u32 s3, s3, s7\ns_lshl_b32 s7, s%d, 7\ns_add_u32 s3, s3, s7\ns_add_u32 s3, s3, %d" % (sDB, sWave, sTB2, WS_YT))
    ydma += ml("s_lshl_b32 s7, s%d, 11\ns_add_u32 m0, s7, %d" % (sWave, YT_L))
    adr = ml("v_and_b32 v24, 31, v1\nv_mul_u32_u24 v24, %d, v24\nv_lshrrev_b32 v25, 5, v1\nv_lshl_add_u32 v24, v25, 4, v24\ns_mul_i32 s6, s%d, %d\ns_add_u32 s6, s6, %d\nv_add_u32 v24, s6, v24" % (RS, sWave, REDW, RED[0]))
    adr += ml("v_lshrrev_b32 v25, 5, v1\nv_and_b32 v26, 3, v1\nv_lshl_add_u32 v25, v25, 2, v26\nv_mul_u32_u24 v25, %d, v25\nv_bfe_u32 v26, v1, 2, 3\nv_lshl_add_u32 v25, v26, 5, v25\ns_mul_i32 s6, s%d, %d\ns_add_u32 s6, s6, %d\nv_add_u32 v25, s6, v25" % (RS, sWave, 8 * RS, RED[0]))
    adr += ml("v_bfe_u32 v26, v1, 4, 1\nv_and_b32 v27, 3, v1\nv_lshl_add_u32 v26, v26, 2, v27\nv_xor_b32 v23, s%d, v26\nv_bfe_u32 v27, v1, 2, 2\nv_lshl_add_u32 v26, v26, 3, v27\nv_lshlrev_b32 v26, 7, v26\nv_lshl_add_u32 v26, v23, 4, v26\nv_lshrrev_b32 v27, 5, v1\nv_lshl_add_u32 v26, v27, 3, v26\nv_xor_b32 v27, 64, v26\nv_add_u32 v26, %d, v26\nv_add_u32 v27, %d, v27" % (sWave, YT_L, YT_L))
    chk = [W(vm="xin")] + poll_check("st", [43, 227], strec, 32)
    aq = ydma[:-2] + adr + chk
    first = set(); nm = 0
    for rr in range(4):
        rq = conv_reads(rr + 1) if rr < 3 else []
        b = CFB[rr & 1]
        pairs = sorted([(s1, p1) for s1 in range(8) for p1 in range(8) if s1 + p1 <= 7], key=lambda x: (max(x), x[0] + x[1], x[0]))
        seen = -1; k = 0
        for (s1, p1) in pairs:
            mx = max(s1, p1)
            if mx > seen:
                p.wait(lg="c%d_%d" % (rr, mx)); seen = mx
            acc = vr(uCacc + 4 * (s1 + p1))
            p("v_mfma_f32_16x16x32_bf16 %s, %s, %s, %s" % (acc, vr(b + 4 * s1), vr(b + 32 + 4 * p1), acc if (s1 + p1) in first else "0"))
            first.add(s1 + p1); k += 1; nm += 1
            n = 0
            if rq and k > 2 and (k % 4 != 0): p.add(rq.pop(0)); n += 1
            if dq and nm > 6 and (n == 0 or nm % 2): p.add(dq.pop(0)); n += 1
            if nm % SP == 0 or (VQ and is_m0(VQ[0]) and nm % SP == SP - 1): n += pace(p, -1)
            while tq and n < 2:
                tg = tq[0][0]
                if tg and (tg not in state["issued"] or nm < opts.get("t56", 84)): break
                if tg: p.wait(vm=tg)
                p.add(tq.pop(0)[1]); n += 1
            if aq and nm > opts.get("aqat", 96) and n < 2 and not (n and aq[0].t.startswith("v_") and p.ins[-1].t.startswith("v_") and "mfma" not in p.ins[-1].t):
                p.add(aq.pop(0))
                while aq and aq[0].cost == 0: p.add(aq.pop(0))
            if nm == pollat:
                for x in hpollA: p.add(x)
            if nm == flagat:
                p.wait(vm="hst7"); p("s_barrier"); p.add(flag_store(sFlH, True))
                stamp(p, "hflag", opts)
            if nm == chkA:
                p.wait(vm="hpA")
                for x in poll_check("hA", [uPoll], hpollA): p.add(x)
                stamp(p, "hokA", opts); state["A"] = True
        stamp(p, "cv%d" % rr, opts, 4)
        if rr == 0:
            for x in dq: p.add(x)
            if dq: p("s_nop 1")
            dq = []
            for p1 in range(8):
                acc = vr(uCacc + 4 * p1)
                p("v_mfma_f32_16x16x32_bf16 %s, %s, %s, %s" % (acc, vr(uAD), vr(b + 32 + 4 * p1), acc))
                if rq: p.add(rq.pop(0))
                if p1 % 4 == 1: pace(p, -1)
            for x in extra: p.add(x)
        for x in rq: p.add(x)
    print("conv: left-over reads %d, queued loads %d" % (len(tq), len(VQ)), file=sys.stderr)
    assert not tq
    cur_hs = [-1]
    def pace2():
        if pace(p, cur_hs[0]) and is_m0(p.ins[-1]): p("s_nop 0"); pace(p, cur_hs[0])
    for x in aq: p.add(x)
    stamp(p, "convend", opts)
    p("s_lshl_b32 s7, s%d, 13\ns_add_u32 s7, s7, %d\nv_add_u32 v4, s7, v%d\ns_and_b32 s7, s%d, 2\ns_lshl_b32 s7, s7, 13\ns_lshl_b32 s6, s%d, 12\ns_add_u32 s7, s7, s6\ns_add_u32 s7, s7, %d\nv_add_u32 v5, s7, v%d" % (sWave, XCH, vL16, sWave, sHalf, XCH, vL16))
    for x in hpollB: p.add(x)
    p("s_barrier")
    for i in range(8):
        p("ds_write_b128 v4, %s offset:%d" % (vr(uCacc + 4 * i), i * 1024))
        if i % 3 == 1: pace2()
    stamp(p, "xw", opts, 4)
    p("s_waitcnt lgkmcnt(0)\ns_barrier")
    for i in range(4):
        p("ds_read_b128 %s, v5 offset:%d" % (vr(uCacc + 4 * i), i * 1024), lg="xr%d" % i)
        p("ds_read_b128 %s, v5 offset:%d" % (vr(uCacc + 16 + 4 * i), 8192 + i * 1024), lg="xr%d" % i)
    pace2()
    for i in range(4):
        p.wait(lg="xr%d" % i)
        for e in range(2): p("v_pk_add_f32 %s, %s, %s" % (vr(uCacc + 4 * i + 2 * e, 2), vr(uCacc + 4 * i + 2 * e, 2), vr(uCacc + 16 + 4 * i + 2 * e, 2)))
    for i in range(4):
        o = uTmp + 4 * (i >> 1) + 2 * (i & 1)
        p("v_cvt_pk_bf16_f32 v%d, v%d, v%d\nv_cvt_pk_bf16_f32 v%d, v%d, v%d" % (o, uCacc + 4 * i, uCacc + 4 * i + 1, o + 1, uCacc + 4 * i + 2, uCacc + 4 * i + 3))
    pace2(); p("s_nop 0")
    for h in range(2):
        o = uTmp + 4 * h
        p("v_permlane16_swap_b32 v%d, v%d\nv_permlane16_swap_b32 v%d, v%d" % (o, o + 2, o + 1, o + 3))
    for h in range(2):
        p("buffer_store_dwordx4 %s, v%d, %s, s%d offen offset:%d sc1" % (vr(uTmp + 4 * h), uYst, S4(sWS), sYoff, h * 1024), vm="yst")
    stamp(p, "g2go", opts)
    wrA, preA, rdA, mA, rdyA, myA = out_half(0, opts, False)
    wrB, preB, rdB, mB, rdyB, myB = out_half(1, opts, True)
    YF = opts.get("yflag", 5); YP = opts.get("ypoll", 19); YC = YP + opts.get("ychk", 4); RB = opts.get("rbar", 18); RY = opts.get("ybar", YC + 5)
    HB = opts.get("hb", 5); HL = opts.get("hl", 5)
    xq = []
    def X_(at, L): xq.extend((at, y) for y in L)
    X_(0, preA + [mk("s_mov_b32 s4, %s" % hex(f2u(-LOG2E))), mk("s_mov_b32 s5, s4")])
    for i, y in enumerate(wrA): X_(4 * 14 + 5 + i, [y])
    X_(4 * RB, [W(lg="*"), mk("s_barrier")] + rdA)
    X_(4 * RB + 6, mA)
    GB = opts.get("gbud", 24)
    for hs in range(28):
        ps, s = divmod(hs, 14)
        cur_hs[0] = hs - 1
        while "h%d" % hs not in state["issued"] or any(y.vm == "h%d" % hs for y in VQ) or (ps == 0 and s < 13 and any(y.vm == "w%d" % (s + 1) for y in VQ)): pace2()
        rq = wd_reads(s + 1) if (ps == 0 and 7 <= s + 1 < 14) else []
        if hs == HB:
            p.wait(vm="hpB")
            for x in poll_check("hB", [uPoll + 2], hpollB): p.add(x)
            stamp(p, "hokB", opts); state["B"] = True
        if hs == YF: p.wait(vm="yst"); p("s_barrier"); p.add(flag_store(sFlY, True))
        if hs == YP: p.add(ypoll[0])
        if hs == YC:
            p.wait(vm="yp")
            for x in poll_check("y", [uPoll], ypoll): p.add(x)
            assert not any(is_m0(y) or y.t.endswith(" lds") for y in VQ)
            for x in ydma[-2:]: p.add(x)
            p("s_nop 0")
            p.add(dma(2, sWS, "s3", 0, "yt", " sc1")); p.add(dma(3, sWS, "s3", 1024, "yt", " sc1"))
            stamp(p, "yok", opts, 4)
        RT = opts.get("rtail", 0)
        if hs < 28 - RT: work = [(hs, e, mt) for e in range(2) for mt in range(2)]
        else:
            j = hs - (28 - RT); allw = [(h_, e, mt) for mt in range(2) for h_ in range(28 - RT, 28) for e in range(2)]
            work = allw[4 * j:4 * j + 4]
            if j == RT // 2:
                X_(4 * hs, [mk("v_add_u32 v24, %d, v24" % ((RED[1] - RED[0]) & 0xffffffff))])
                nw_ = min(4, 2 * RT - 3)
                for i, y in enumerate(wrB[:nw_]): X_(4 * hs + 3 + i, [y])
                wrB = wrB[nw_:]
        p.wait(vm="h%d" % max(h_ for h_, _, _ in work), lg="t%d" % s)
        for m, (h_, e, mt) in enumerate(work):
            acc = vr(uAcc + 32 * ps + 16 * mt, 16)
            hr = aH + 8 * (h_ % 16) + 4 * e
            k, b = wfrag(h_ % 14, 2 * e + mt)
            p("v_mfma_f32_32x32x16_bf16 %s, %s[%d:%d], a[%d:%d], %s" % (acc, k, b, b + 3, hr, hr + 3, acc if (s or e) else "0"))
            i0_ = len(p.ins)
            used = lambda: sum(y.cost for y in p.ins[i0_:]) + (4 if m == 3 else 0)
            tgt = "h%d" % min(27, hs + HL)
            left = max([i + 1 for i, y in enumerate(VQ) if y.vm == tgt] + [0])
            for _ in range(-(-left // (4 - m))):
                k_ = pace(p, hs - 1)
                if k_ == 0: break
                if is_m0(p.ins[-1]):
                    if rq: p.add(rq.pop(0)) if (m or True) and not (m == 0) else p("s_nop 0")
                    else: p("s_nop 0")
            if m == 0 and rq: p.wait(vm="w%d" % (s + 1))
            for _ in range(-(-len(rq) // (4 - m))): p.add(rq.pop(0))
            g = 4 * hs + m
            while xq and xq[0][0] <= g and used() + xq[0][1].cost <= GB: p.add(xq.pop(0)[1])
        assert not rq
        if hs == 13: stamp(p, "g2A", opts)
        elif hs % 3 == 0: stamp(p, "h%d" % hs, opts, 4)
    print("gemm2: left-over epilogue items %d" % len(xq), file=sys.stderr)
    stamp(p, "g2end", opts)
    if len(wrB) == 8: p("v_add_u32 v24, %d, v24" % ((RED[1] - RED[0]) & 0xffffffff))
    p("v_add_u32 v25, %d, v25" % ((RED[1] - RED[0]) & 0xffffffff))
    tail = [y for _, y in xq] + preB
    nop = max(0, 6 - len(tail))
    for x in tail[:12]: p.add(x)
    tail = tail[12:]
    for x in wrB:
        p.add(x)
        for _ in range(3):
            if tail: p.add(tail.pop(0))
    for x in tail: p.add(x)
    p.wait(vm="yt", lg="*"); p("s_barrier")
    stamp(p, "red", opts)
    if opts.get("ytail", 1):
        myA = out_half(0, opts, True)[5]
        for x in rdyA + rdB + rdyB + myA[:-1]: p.add(x)
        if opts.get("oearly", 1): p.add(myA[-1])
        for x in mB + myB[:-1]: p.add(x)
        stamp(p, "prest", opts)
        if not opts.get("oearly", 1): p.add(myA[-1])
        p.add(myB[-1])
    else:
        for x in rdB + rdyB + mB + myB: p.add(x)
    stamp(p, "fin", opts)

def aux(p, opts):
    p("s_lshl_b32 s3, s2, 6\ns_lshl_b32 s4, s%d, 4\ns_add_u32 s3, s3, s4" % sWave)
    p("v_add_u32 v12, s3, v2\nv_lshlrev_b32 v10, 10, v12\nv_lshl_add_u32 v10, v3, 4, v10\nv_add_u32 v11, 8192, v10\nv_mov_b32 v13, v3")
    p("s_memrealtime s[%d:%d]" % (sTag, sTag + 1))
    p("s_waitcnt lgkmcnt(0)")
    p("s_mov_b32 s%d, s74\ns_mov_b32 s%d, s75" % (sDbg, sDbg + 1))
    p("s_lshr_b32 s3, s2, %d\ns_or_b32 s3, s3, s%d\ns_cmp_lg_u32 s3, 0\ns_cselect_b64 exec, 0, 1" % (3 if opts.get("cas", 1) else 0, sWave))
    p("s_or_b32 s%d, s%d, 1\nv_mov_b32 v16, s%d\nv_mov_b32 v17, s%d\nv_mov_b32 v18, 0\nv_mov_b32 v19, 0\ns_cbranch_execz L_aux_nt" % (sTag, sTag, sTag, sTag + 1))
    p("global_atomic_cmpswap_x2 v%d, v[16:19], s[%d:%d] sc1" % (vNon + 2, sDbg, sDbg + 1))
    p.label("L_aux_nt")
    p("s_mov_b64 exec, -1")
    srd(p, sQ, kQ, 2048 * 1024)
    for g in range(2):
        for i in range(8):
            p("buffer_load_dwordx4 %s, v%d, %s, 0 offen offset:%d" % (vr(116 + 32 * g + 4 * i), 10 + g, S4(sQ), i * 128), vm="sx%d" % g)
        if g == 0:
            srd(p, sWS, kWS, WS_SZ)
            kv_setup(p); ids2(p); hk_srds(p)
            phase2_setup(p, opts)
    nld, nchk = nonce_get("na")
    p.add(nld)
    p("s_mov_b32 s5, 0x3f803f80")
    for g in range(2):
        p.wait(vm="sx%d" % g if g == 0 else "non")
        stamp(p, "a.sx%d" % g, opts, 3)
        if g == 1:
            p("v_lshlrev_b32 v10, 7, v1\ns_mov_b32 s12, s60\ns_and_b32 s13, s61, 0xffff\ns_mov_b32 s14, 0x200000\ns_mov_b32 s15, 0x20000")
            p("s_mov_b32 s24, s70\ns_and_b32 s25, s71, 0xffff\ns_mov_b32 s26, %d\ns_mov_b32 s27, 0x20000" % (1792 * 1024))
            p("s_lshl_b32 s3, s2, 16\ns_lshl_b32 s4, s%d, 14\ns_add_u32 s21, s3, s4\ns_mul_i32 s3, s2, 57344\ns_mul_i32 s4, s%d, 14336\ns_add_u32 s22, s3, s4" % (sWave, sWave))

        s1 = 16 + 4 * g; s2 = s1 + 1
        for r in range(32):
            x = 116 + 32 * g + r; c = r & 1
            p("v_dot2_f32_bf16 v%d, v%d, s5, %s" % (s1 + 2 * c, x, "v%d" % (s1 + 2 * c) if r > 1 else "0"))
            p("v_dot2_f32_bf16 v%d, v%d, v%d, %s" % (s2 + 2 * c, x, x, "v%d" % (s2 + 2 * c) if r > 1 else "0"))
    for x in nchk: p.add(x)
    p("v_add_f32 v16, v16, v18\nv_add_f32 v17, v17, v19\nv_add_f32 v18, v20, v22\nv_add_f32 v19, v21, v23")
    for mod in ("quad_perm:[1,0,3,2]", "quad_perm:[2,3,0,1]", "row_half_mirror"):
        for r in range(16, 20): p("v_add_f32_dpp v%d, v%d, v%d %s row_mask:0xf bank_mask:0xf" % (r, r, r, mod))
    ops = [[], []]
    for g in range(2):
        S1 = 16 + 2 * g; S2 = S1 + 1; o = 20 + 4 * g
        ops[g] = ["v_mul_f32 v%d, %s, v%d" % (S1, hex(f2u(1.0 / 512)), S1), "v_mul_f32 v%d, %s, v%d" % (S2, hex(f2u(1.0 / 512)), S2),
                  "v_fma_f32 v%d, -v%d, v%d, v%d" % (S2, S1, S1, S2), "v_max_f32 v%d, 0, v%d" % (S2, S2),
                  "v_cvt_pk_bf16_f32 v%d, v%d, v%d" % (S2, S2, S2), "v_and_b32 v%d, 0xffff0000, v%d" % (S2, S2),
                  "v_add_f32 v%d, %s, v%d" % (S2, hex(f2u(1e-5)), S2),
                  "v_cvt_pk_bf16_f32 v%d, v%d, v%d" % (S2, S2, S2), "v_and_b32 v%d, 0xffff0000, v%d" % (S2, S2),
                  "v_sqrt_f32 v%d, v%d" % (S2, S2), "v_cvt_pk_bf16_f32 v%d, -v%d, -v%d" % (o, S1, S1),
                  "v_cvt_pk_bf16_f32 v%d, v%d, v%d" % (S2, S2, S2), "v_and_b32 v%d, 0xffff0000, v%d" % (S2, S2),
                  "v_rcp_f32 v%d, v%d" % (o + 2, S2), "v_mul_f32 v%d, %s, v%d" % (o + 1, hex(f2u(-LOG2E)), S2),
                  "v_mul_f32 v%d, %s, v%d" % (o + 2, hex(f2u(-LOG2E)), o + 2), "v_mov_b32 v%d, s%d" % (o + 3, sTag)]
    p("v_cmp_eq_u32 vcc, 0, v13\nv_lshlrev_b32 v12, 4, v12\nv_add_u32 v12, %d, v12\nv_mov_b32 v14, 0x80000000\nv_cndmask_b32 v12, v14, v12, vcc" % WS_ST)
    for x0, x1 in zip(*ops): p(x0); p(x1)
    p("buffer_store_dwordx4 v[20:23], v12, %s, 0 offen sc1" % S4(sWS), vm="pub")
    p("buffer_store_dwordx4 v[24:27], v12, %s, 0 offen offset:128 sc1" % S4(sWS), vm="pub")
    stamp(p, "a.stats", opts)
    tW = ["buffer_load_dword v28, v10, s[24:27], s22 offen\ns_add_u32 s22, s22, 6144", "buffer_load_dword v28, v10, s[24:27], s22 offen"]
    tK = ["buffer_load_dword v28, v10, s[12:15], s21 offen\ns_add_u32 s21, s21, 8192", "buffer_load_dword v28, v10, s[12:15], s21 offen"]
    WM = opts.get("warm", 1)
    tq_ = {0: [], 1: tW + tK, 2: tW, 3: tK + tW, 4: tW + tK}[WM]
    p("s_barrier")
    if opts.get("atlb"):
        sh = opts["atlb"]
        p("s_lshr_b32 s3, s2, 3\ns_lshl_b32 s3, s3, 2\ns_add_u32 s3, s3, s%d\ns_lshl_b32 s3, s3, %d\nv_lshlrev_b32 v11, %d, v1\nv_add_u32 v11, s3, v11" % (sWave, sh + 6, sh))
        p("buffer_load_dword v28, v11, %s, 0 offen" % S4(sWS), vm="warm")
    seq(p, kv_loads(opts) + hk_loads(opts))
    if WM == 4: p(tq_.pop(0), vm="warm")
    for x in phase2_srds(): p.add(x)
    p.wait(vm="hk")
    p("s_barrier")
    for _ in range(opts.get("warm1", 1)):
        if tq_: p(tq_.pop(0), vm="warm")
    for x in kv_compute() + kv_stores(): p.add(x)
    stamp(p, "a.kv", opts)
    seq(p, hk_build())
    if tq_ and opts.get("warm2", 1): p(tq_.pop(0), vm="warm")
    p.wait(vm="kvst", lg="*")
    p.add(flag_store(sFlK))
    stamp(p, "a.kvfl", opts)
    for x in tq_: p(x, vm="warm")
    stamp(p, "a.warm", opts)
    p("s_lshl_b32 s3, s2, 7\ns_add_u32 s%d, s3, %d" % (sFlH, WS_FD))
    for x in fl0_setup(): p.add(x)
    p("s_barrier")
    for mt in range(2): p("v_add_u32 v%d, 0x20000, v%d" % (uTR2 + mt, uTR + mt))
    prev = PREV
    for t in sorted(opts["_ord"]):
        if t in prev:
            p.wait(vm="w%d" % prev[t])
            for x in wd_reads(prev[t], True): p.add(x)
            p.wait(lg="*")
        seq(p, wd_loads(t, opts))
    for s in range(7): p("s_mov_b32 s%d, %d" % (sTab + s, s * 4096))
    kvpoll = [mk("buffer_load_dwordx2 v[%d:%d], v%d, %s, 0 offen sc1" % (uPoll, uPoll + 1, uFK, S4(sWS)), vm="kvp")]
    p.add(kvpoll[0])
    p.wait(vm="kvp")
    for x in poll_check("kva", [uPoll], kvpoll): p.add(x)
    seq(p, conv_xr())
    p("s_waitcnt vmcnt(0)")
    stamp(p, "a.pre", opts)
    conv_start(p, opts)

def pollf(t, opts):
    if opts["pollf"] == "atom":
        m = re.match(r"buffer_load_dwordx2 v\[(\d+):(\d+)\], (.*) sc1", t)
        if not m: return t
        return "v_mov_b32 v%s, 0\nv_mov_b32 v%s, 0\nbuffer_atomic_add_x2 v[%s:%s], %s sc0 sc1" % (m.group(1), m.group(2), m.group(1), m.group(2), m.group(3))
    return t.replace(" sc1", " " + opts["pollf"].replace("+", " "))
def emit(a, lines):
    for l in lines: a(l if l.endswith(":") else "  " + l)

def build(opts):
    del SLOW[:]
    if "rho" in opts: RHO[:] = [int(c) for c in str(opts["rho"]).rjust(3, "0")]
    PROF[0] = opts.get("prof", 0); SLEEP['*'] = opts.get("sleep", 4)
    name = KN + "_kernel"
    a = A()
    a(header(["; @launch grid=(256,1,1) block=(256,1,1) lds=163840"]))
    a(kernel_begin(name))
    a("s_load_dwordx8 s[80:87], s[0:1], 0\ns_load_dwordx16 s[60:75], s[0:1], 32\ns_load_dwordx2 s[76:77], s[0:1], 96")
    a("s_cmp_ge_u32 s2, 256\ns_cbranch_scc1 L_end")
    if opts.get("prof"):
        a("s_memrealtime s[78:79]\ns_memtime s[100:101]\nv_mov_b32 v255, 0\ns_waitcnt lgkmcnt(0)\nv_writelane_b32 v255, s100, 0\nv_writelane_b32 v255, s78, 62")
    p0 = Prog(); common_setup(p0, opts); c0 = p0.resolve()
    a("s_cmp_ge_u32 s2, 32\ns_cbranch_scc1 L_gemm")
    if opts.get("ipf", 1):
        a("s_getpc_b64 s[4:5]\nv_lshlrev_b32 v1, 7, v0\ns_and_b32 s4, s4, 0xffffff00\nv_min_u32 v1, L_code_end-%s-128, v1\nglobal_load_dword v200, v1, s[4:5]" % name)
    a("s_branch L_aux")
    a.label("L_gemm")
    emit(a, c0)
    p = Prog(); gemm1(p, opts); p.label("L_phase2"); phase2(p, opts)
    pa = Prog(); aux(pa, opts)
    for q in (p, pa):
        if opts.get("x_nochk"): q.ins = [y for y in q.ins if not ("s_cbranch_vccnz L_slow" in y.t)]
        if opts.get("x_nost"): q.ins = [y for y in q.ins if not (y.t.startswith("buffer_store") and "sc1" in y.t)]
        if opts.get("x_nofl"): q.ins = [y for y in q.ins if not (y.t.startswith("buffer_store_dwordx2") and "v[6:7]" in y.t)]
        if opts.get("x_nokv"): q.ins = [y for y in q.ins if not (y.vm in ("kv", "hk") and y.kind != "wait")]
        if opts.get("pollf"):
            for y in q.ins:
                if y.vm in ("kvp", "hpA", "hpB", "yp", "wfp") and y.t.startswith("buffer_load"): y.t = pollf(y.t, opts)
        if opts.get("x_nohb"): q.ins = [y for y in q.ins if not ("v39" in y.t or y.t.startswith("v_alignbit") or y.lg == "hb")]
        if opts.get("x_nowb"): q.ins = [y for y in q.ins if not (y.vm in ("w0", "w1", "w2", "w3", "w4", "w7") and y.kind != "wait")]
        if opts.get("x_drop"):
            dr = str(opts["x_drop"]).split("+")
            q.ins = [y for y in q.ins if not (y.kind != "wait" and y.vm in dr)]
        if opts.get("x_dropw"):
            dr = str(opts["x_dropw"]).split("+")
            q.ins = [y for y in q.ins if not (y.kind == "wait" and y.vm in dr)]
        if opts.get("x_nopoll"): q.ins = [y for y in q.ins if not (y.vm in ("rec", "kvp", "hpA", "hpB", "yp", "wfp") and y.kind != "wait")]
    if opts.get("prof") and "q0" in opts:
        regs = [12, 14, 22, 24, 50, 80, 82, 98]
        i0 = [i for i, y in enumerate(p.ins) if y.t == "L_phase2:"][0]
        out = p.ins[:i0 + 1]; cnt = 0; mf = 0; k = 0
        for y in p.ins[i0 + 1:]:
            out.append(y)
            ism = "v_mfma" in y.t
            mf += ism
            if (mf >= opts.get("qm", 0) and y.kind != "label") if opts.get("qi") else ism:
                cnt += 1
                if k < 8 and cnt == opts["q0"] + k * opts.get("qd", 8):
                    out.append(mk("s_memtime s[%d:%d]" % (regs[k], regs[k] + 1))); k += 1
        out.append(mk("s_waitcnt lgkmcnt(0)"))
        for j in range(k):
            STAMPS.append("Q%d" % (opts["q0"] + j * opts.get("qd", 8))); out.append(mk("v_writelane_b32 v255, s%d, %d" % (regs[j], len(STAMPS) - 1)))
        p.ins = out
    lines = p.resolve()
    la = pa.resolve()
    lines = fix_hazards(lines, "main")
    pr = check_hazards(lines, "main") + check_hazards(la, "aux")
    for x in pr[:40]: print("HAZARD", x, file=sys.stderr)
    if pr: raise SystemExit("hazards")
    emit(a, lines)
    if opts.get("prof"):
        a("s_waitcnt vmcnt(0) lgkmcnt(0)\ns_memtime s[100:101]\ns_memrealtime s[78:79]\ns_load_dwordx2 s[4:5], s[0:1], 96\ns_waitcnt lgkmcnt(0)")
        a("v_writelane_b32 v255, s100, 60\nv_writelane_b32 v255, s78, 63\ns_getreg_b32 s100, hwreg(HW_REG_XCC_ID)\nv_writelane_b32 v255, s100, 61")
        a("s_lshl_b32 s6, s2, 10\ns_lshl_b32 s7, s%d, 8\ns_add_u32 s6, s6, s7\ns_add_u32 s6, s6, 0x1000000\ns_add_u32 s4, s4, s6\ns_addc_u32 s5, s5, 0" % sWave)
        a("v_lshlrev_b32 v2, 2, v1\nglobal_store_dword v2, v255, s[4:5]\ns_waitcnt vmcnt(0)")
        a("; STAMPS " + " ".join(STAMPS))
        a("; SPINS " + " ".join(SPINS))
    a.label("L_end")
    a("s_endpgm")
    a.label("L_aux")
    emit(a, c0)
    emit(a, la)
    a("s_branch L_phase2")
    for t in SLOW:
        if opts.get("pollf"): t = "\n".join(pollf(l, opts) if (l.startswith("buffer_load_dwordx2 v[25") or l.startswith("buffer_load_dwordx2 v[2:3]") or l.startswith("buffer_load_dwordx4 v[250")) else l for l in t.split("\n"))
        a(t)
    a.label("L_code_end")
    a(RODATA)
    a(kernel_desc(name, 512, 102, 256))
    return a.text()

if __name__ == "__main__":
    opts = {}
    for kv in sys.argv[2:]:
        k, _, v = kv.partition("=")
        opts[k] = int(v) if v.lstrip("-").isdigit() else (v if v else 1)
    for k in ("fw", "fx", "fd", "fk", "fkv", "fo", "fr", "fh"):
        if k in opts: opts[k] = "" if opts[k] == "none" else " " + opts[k].replace("+", " ")
    open(sys.argv[1], "w").write(build(opts))
```

```python
import sys, struct, re
from asmlib import *
from sched import *

WS_H  = 0x000000
WS_XR = 0x700000
WS_YT = 0x900000
WS_ST = 0xB00000
WS_FK = 0xB08000
WS_FH = 0xB10000
WS_FY = 0xB18000
WS_FD = 0xB20000
WS_FL = 0x20000
WS_CS = 0xB48000
WS_SZ = 0xC00000
LOG2E = 1.4426950408889634
SPIN_MAX = 1 << 16

def f2u(x): return struct.unpack("<I", struct.pack("<f", x))[0]
def vr(b, n=4, p="v"): return "%s[%d:%d]" % (p, b, b + n - 1) if n > 1 else "%s%d" % (p, b)
def S4(b): return "s[%d:%d]" % (b, b + 3)
def srd(p, d, lo, size):
    p("s_mov_b32 s%d, s%d\ns_and_b32 s%d, s%d, 0xffff\ns_mov_b32 s%d, 0x%x\ns_mov_b32 s%d, 0x20000" % (d, lo, d + 1, lo + 1, d + 2, size, d + 3))
def ml(t, **kw): return [mk(x, **kw) for x in t.split("\n")]
def bundle(t):
    b = I(t, cost=4 * len(t.split("\n"))); b.kind = "bundle"; return b

SLOT = 32768
CONV = 98304; CH_STRIDE = 12928; XR_OFF = 8320
UNIT = [141312, 0, 16384, 32768, 49152, 65536, 81920, 124416]
WUN = {t: t % 7 for t in range(14)}
WUN[5] = 7; PREV = {7: 0, 8: 1, 9: 2, 10: 3, 11: 4, 13: 6}
def wdl(s): return UNIT[WUN[s]]
KVL = 141312
RS = 272; REDW = 32 * RS
RED = [CONV, 0]
YT_L = CONV + 4 * REDW; XCH = CONV
sQ = 8; sW = 12; sWS = 16; sWave = 20; sTB = 21; sCB = 22; sLdsX = 23; sLdsW = 24; sLdsXB = 25; sT0 = 26; sT1 = 27
sHa = 28; sST = 29; sFlK = 30; sDoff = 31; sDbg = 32; sT2 = 34; sT3 = 35; sWd = 36; sHk = 40; sOut = 44; sTag = 48
sXB = 50
sCSw = 52; sTB2 = 53; sDB = 54; sCV = 55; sXRso = 56; sYoff = 57; sFlH = 58; sFlY = 59
sTabW = 60
sHalf = 74; sCh4k = 75; sSpin = 76; sWdL = 77
sDp = 80
sTab = 84
sK = 36; sV = 44; sSh = 64
kSK = 60; kD = 62;
kBX = 64; kWG = 66; kWU = 68; kWD = 70; kOUT = 72; kDBG = 74; kWS = 76; kQ = 80; kK = 82; kV = 84; kSH = 86
vKD = 2
vTag = 6; vFl = 8
vWD = 10; vXD = 14; vXA = 18; vWA = 26; vHoff = 28; vSToff = 29; vCSoff = 30; vL16 = 31; vNon = 32
vKA = 36; vKO = 37; vSH = 38
vR1A = 40; vR1B = 44; vOnes = 180; vST = 52; vXF = 84; vACC = 116; vTMP = 212; vOUT = 220
vCSR = 180; vCSA = 196
uWD = 228; uH = 232; uTR = 236; uCA = 240; uCB = 241; uYst = 242; uFY = 243; uX = 244; uSto = 245; uFH = 246; uFK = 247
uHead = 248; uHeadA = 249; uPoll = 250; uD = 254
uAD = 40; uTmp = 32; uXin = 44; uSt = 52; uCacc = 116; uAcc = 120
CFB = (148, 52); aH = 0
def wfrag(s, mt):
    if s < 8: return "a", 128 + 16 * s + 4 * mt
    if s < 10: return "v", 184 + 16 * (s - 8) + 4 * mt
    return "v", 56 + 16 * (s - 10) + 4 * mt

STAMPS = ["start"]
def stamp_l(name, opts, lvl=1):
    if not opts.get("prof") or opts.get("plvl", 1) == 0 or (lvl > 1 and lvl != opts.get("plvl", 1)): return []
    if name not in STAMPS: STAMPS.append(name)
    idx = STAMPS.index(name)
    assert idx < 48
    return ml("s_memtime s[100:101]\ns_waitcnt lgkmcnt(0)\nv_writelane_b32 v255, s100, %d" % idx, cost=0)
def stamp(p, name, opts, lvl=1):
    for x in stamp_l(name, opts, lvl): p.add(x)

def acc_of(t): return vACC + 16 * {0: 0, 1: 1, 2: 2, 3: 3, 4: 4, 5: 5, 6: 0, 7: 1}[t]
def win(addr): return addr >> 16, addr & 0xffff
def dma(v, srd_, so, off, tag, fl=""):
    return mk("buffer_load_dwordx4 v%d, %s, %s offen offset:%d%s lds" % (v, S4(srd_), so, off, fl), vm=tag)
def is_m0(x): return " m0," in x.t
def is_vm(x): return x.t.startswith("buffer_") or x.t.startswith("global_")
def seq(p, L):
    L = [x for x in L if x.kind != "delay"]
    for i, x in enumerate(L):
        p.add(x)
        if is_m0(x) and i + 1 < len(L) and is_vm(L[i + 1]): p("s_nop 0")
vFl0 = 9
def flag_store(so, wg=False, tag="fl"):
    return mk("buffer_store_dwordx2 v[%d:%d], v%d, %s, s%d offen sc1" % (vTag, vTag + 1, vFl0 if wg else vFl, S4(sWS), so), vm=tag)
def fl0_setup():
    return ml("s_lshl_b32 s6, s%d, 31\ns_lshl_b32 s7, s%d, 30\ns_or_b32 s6, s6, s7\ns_and_b32 s6, s6, 0x80000000\nv_or_b32 v%d, s6, v%d" % (sWave, sWave, vFl0, vFl))

def g1_stage(s, opts):
    L = []; base = (s % 3) * SLOT; tag = "st%d" % s
    fw = opts.get("fw", ""); fx = opts.get("fx", "")
    if s < 8:
        L.append(mk("s_add_u32 m0, s%d, %d" % (sLdsW, base)))
        L += [dma(vWD + j, sW, "s%d" % (sTab + s), j * 1024, tag, fw) for j in range(4)]
        L.append(mk("s_add_u32 m0, s%d, %d" % (sLdsX, base)))
        L += [dma(vXD + j, sQ, "s%d" % (sTab + 8 + s), j * 1024, tag, fx) for j in range(4)]
    else:
        for h in range(2):
            L.append(mk("s_add_u32 m0, s%d, %d" % (sLdsXB, base + h * 4096)))
            L.append(mk("s_add_u32 s%d, s%d, %d" % (sT0 + h, sXB + h, (s - 8) * 32768)))
            L += [dma(vXD + j, sQ, "s%d" % (sT0 + h), j * 1024, tag, fx) for j in range(4)]
    return L
def wd_loads(s, opts):
    return [mk("s_add_u32 m0, s%d, %d" % (sWdL, wdl(s)))] + \
           [dma(uWD + j, sWd, "s%d" % (sTabW + s), j * 1024, "w%d" % s, opts.get("fd", "")) for j in range(4)]
def h_loads(hs):
    ps, s = divmod(hs, 14)
    L = []
    for e in range(2):
        r = aH + 8 * (hs % 16) + 4 * e
        L.append(mk("buffer_load_dwordx4 a[%d:%d], v%d, %s, s%d offen offset:%d sc1" % (r, r + 3, uH + ps, S4(sWS), sTab + (s >> 1), e * 1024 + (s & 1) * 2048), vm="h%d" % hs))
    return L
HI = {1: 216, 2: 220}
uTR2 = 2
def wd_reads(s, inB=False):
    L = []
    w, off = win(wdl(s))
    for f in range(4):
        e, mt = f >> 1, f & 1
        k, b = wfrag(s, f)
        reg = uTR + mt if w == 0 else (uTR2 + mt if inB else HI[w] + mt)
        L.append(mk("ds_read_b64_tr_b16 %s[%d:%d], v%d offset:%d" % (k, b, b + 1, reg, off + e * 2048), lg="t%d" % s))
        L.append(mk("ds_read_b64_tr_b16 %s[%d:%d], v%d offset:%d" % (k, b + 2, b + 3, reg, off + e * 2048 + 512), lg="t%d" % s))
    return L
def hk_loads(opts):
    L = ml("s_lshl_b32 s6, s%d, 11\ns_add_u32 m0, s6, s%d\ns_add_u32 m0, m0, 32" % (sHalf, sCV))
    L += [dma(vL16, sHk, "s6", j * 1024, "hk", opts.get("fk", "")) for j in range(2)]
    L.append(mk("buffer_load_ushort v%d, v%d, %s, 0 offen" % (uHead, uHead, S4(sHk)), vm="hk"))
    L.append(mk("buffer_load_ushort v%d, off, %s, s%d" % (uD, S4(sDp), sDoff), vm="hk"))
    return L
def delay(n):
    d = I("; delay", cost=0); d.kind = "delay"; d.vm = n; return d
def hk_build(alt=0):
    D = [212, 213, 214, 215, 216, 217]; E1 = 220; E3 = 224; C2 = 52
    if alt: D = [10, 11, 12, 13, 26, 27]; E1 = 32; E3 = 32; C2 = 32
    L = ml("s_lshl_b32 s5, s%d, 11\ns_add_u32 s5, s5, s%d\nv_add_u32 v39, s5, v%d\nds_write_b16 v%d, v%d" % (sHalf, sCV, vL16, uHeadA, uHead))
    for j in range(2):
        o = 32 + j * 1024
        L.append(mk("ds_read_b128 %s, v39 offset:%d" % (vr(D[0]), o), lg="hb"))
        L.append(mk("ds_read_b32 v%d, v39 offset:%d" % (D[4], o + 16), lg="hb"))
        L += [delay(5), W(lg="hb")]
        L += [mk("v_alignbit_b32 v%d, v%d, v%d, 16" % (E1 + i, D[i + 1], D[i])) for i in range(4)]
        L += [delay(1), mk("ds_write_b128 v39, %s offset:%d" % (vr(E1), o + 4160), cost=12), delay(2)]
    return L
def conv_xr():
    L = ml("s_lshl_b32 s7, s%d, 10\ns_add_u32 m0, s7, %d" % (sWave, CONV + XR_OFF))
    L += [dma(vL16, sWS, "s%d" % sXRso, 0, "cv", " sc1")]
    L += ml("s_add_u32 s%d, s%d, 4096\ns_add_u32 m0, s7, %d" % (sXRso, sXRso, CONV + CH_STRIDE + XR_OFF))
    L += [dma(vL16, sWS, "s%d" % sXRso, 0, "cv", " sc1")]
    return L
CAR = [uCA, 10, 11, 12]
def conv_reads(rr):
    L = []; b = CFB[rr & 1]
    for i in range(8):
        a = b + 4 * i; t = "c%d_%d" % (rr, i)
        ar = CAR[i >> 1]; o = 16 * rr + 128 * (i & 1)
        L.append(mk("ds_read2_b32 v[%d:%d], v%d offset0:%d offset1:%d" % (a, a + 1, ar, o, o + 1), lg=t))
        L.append(mk("ds_read2_b32 v[%d:%d], v%d offset0:%d offset1:%d" % (a + 2, a + 3, ar, o + 2, o + 3), lg=t))
        L.append(mk("ds_read_b128 v[%d:%d], v%d offset:%d" % (a + 32, a + 35, uCB, 3584 - 512 * i + 64 * rr), lg=t))
    return L

def kv_setup(p):
    p("s_lshr_b32 s3, s2, 3\ns_lshl_b32 s3, s3, 16\ns_and_b32 s4, s2, 7\ns_lshl_b32 s5, s4, 7\ns_add_u32 s5, s5, s3")
    p("v_lshrrev_b32 v9, 3, v1\nv_and_b32 v%d, 7, v1\nv_lshlrev_b32 v%d, 4, v%d\nv_lshl_add_u32 v%d, v9, 10, v%d" % (vSH, vKD, vSH, vKD, vKD))
    p("s_add_u32 s6, s5, %d\nv_add_u32 v%d, s6, v%d" % (56 * 1024, vKD + 2, vKD))
    p("s_lshl_b32 s6, s%d, 14\ns_add_u32 s5, s5, s6\nv_add_u32 v%d, s5, v%d" % (sWave, vKD + 1, vKD))
    p("v_add_u32 v%d, 0xffffe000, v%d\nv_add_u32 v%d, %d, v%d" % (vKD, vKD + 1, vKD + 3, 8192 - 1056, vKD + 1))
    p("s_lshl_b32 s6, s%d, 5\ns_add_u32 s6, s6, %d\nv_mul_u32_u24 v%d, 1056, v9\nv_lshl_add_u32 v%d, v%d, 2, v%d\nv_add_u32 v%d, s6, v%d" % (sWave, KVL, vKA, vKA, vSH, vKA, vKA, vKA))
    p("s_lshl_b32 s6, s4, 18\ns_lshl_b32 s7, s%d, 16\ns_add_u32 s6, s6, s7\ns_lshr_b32 s7, s3, 9\ns_sub_u32 s6, s6, s7\ns_add_u32 s6, s6, %d" % (sWave, WS_XR + 4080))
    p("v_lshlrev_b32 v%d, 13, v%d\nv_lshlrev_b32 v9, 4, v9\nv_sub_u32 v%d, v%d, v9\nv_add_u32 v%d, s6, v%d" % (vKO, vSH, vKO, vKO, vKO, vKO))
    p("s_lshl_b32 s6, s4, 9\ns_lshl_b32 s7, s%d, 7\ns_add_u32 s6, s6, s7\nv_lshl_add_u32 v%d, v%d, 4, s6" % (sWave, vSH, vSH))
    p("s_lshl_b32 s6, s2, 7\ns_lshl_b32 s7, s%d, 3\ns_add_u32 s6, s6, s7\ns_add_u32 s%d, s6, %d" % (sWave, sFlK, WS_FK))
    srd(p, sK, kK, 2048 * 1024); srd(p, sV, kV, 2048 * 1024); srd(p, sSh, kSH, 4096)
def kv_loads(opts):
    f = opts.get("fkv", "")
    L = ml("s_mul_i32 s52, s%d, 2112\ns_add_u32 s52, s52, %d\ns_mov_b32 m0, s52" % (sWave, KVL))
    L += [dma(vKD, sK, "0", 0, "kv", f), mk("s_add_u32 m0, s52, 1056"), dma(vKD + 1, sK, "0", 0, "kv", f),
          mk("s_mov_b32 m0, %d" % (KVL + 8 * 1056)), dma(vKD + 2, sK, "0", 0, "kv", f),
          mk("s_add_u32 m0, s52, %d" % (9 * 1056)), dma(vKD + 1, sV, "0", 0, "kv", f), dma(vKD + 3, sV, "0", 1056, "kv", f),
          mk("buffer_load_dwordx4 v[72:75], v%d, %s, 0 offen" % (vSH, S4(sSh)), vm="kv")]
    return L
def kv_compute():
    RK = 52; RV = 63; Wt = 76; K = 212; A = 223; V = 225
    L = []
    for j in range(11): L.append(mk("ds_read_b32 v%d, v%d offset:%d" % (RK + j, vKA, (5 + j) * 128 if j < 3 else 1056 + (j - 3) * 128), lg="kvr"))
    for t in range(8): L.append(mk("ds_read_b32 v%d, v%d offset:%d" % (RV + t, vKA, 9 * 1056 + t * 128), lg="kvr"))
    un = lambda d, s_, hi: mk(("v_and_b32 v%d, 0xffff0000, v%d" if hi else "v_lshlrev_b32 v%d, 16, v%d") % (d, s_))
    for e in range(2):
        for i in range(4): L.append(un(Wt + 4 * e + i, 72 + 2 * e + (i >> 1), i & 1))
    L.append(W(lg="kvr"))
    for e in range(2):
        o = (vNon, uPoll)[e]
        for j in range(11): L.append(un(K + j, RK + j, e))
        for t in range(8):
            a = A + (t & 1)
            L.append(mk("v_mul_f32 v%d, v%d, v%d" % (a, K + t, Wt + 4 * e + 3)))
            L.append(un(V, RV + t, e))
            for i in (2, 1, 0): L.append(mk("v_fmac_f32 v%d, v%d, v%d" % (a, K + t + 3 - i, Wt + 4 * e + i)))
            L.append(mk("v_mul_f32 v%d, v%d, v%d" % (a, a, V)))
            if t & 1: L.append(mk("v_cvt_pk_bf16_f32 v%d, v%d, v%d" % (o + 3 - (t >> 1), A + 1, A)))
    return L
def kv_stores():
    return [mk("s_mov_b32 s%d, 4096" % sT2),
            mk("buffer_store_dwordx4 %s, v%d, %s, 0 offen sc1" % (vr(vNon), vKO, S4(sWS)), vm="kvst"),
            mk("buffer_store_dwordx4 %s, v%d, %s, s%d offen sc1" % (vr(uPoll), vKO, S4(sWS), sT2), vm="kvst")]

SLOW = []
SPINS = []
SLEEP = {'*': 8, 'kva': 16, 'ng': 4, 'na': 4}
PROF = [0]
def spin(name, reload_, test, okbr):
    t = ["L_slow_%s:" % name, "s_mov_b32 s%d, 1" % sSpin, "L_spin_%s:" % name, "s_sleep %d" % SLEEP.get(name, SLEEP['*'])]
    if PROF[0]:
        SPINS.append(name); t.append("v_writelane_b32 v255, s%d, %d" % (sSpin, 47 + len(SPINS)))
    t += [x.t for x in reload_] + ["s_waitcnt vmcnt(0)"] + [x.t for x in test]
    t += ["%s L_ok_%s" % (okbr, name), "s_add_u32 s%d, s%d, 1" % (sSpin, sSpin), "s_cmp_lt_u32 s%d, %d" % (sSpin, SPIN_MAX),
          "s_cbranch_scc1 L_spin_%s" % name, "s_branch L_ok_%s" % name]
    SLOW.append("\n".join(t))
def poll_check(name, regs, reload_, bits=64):
    L = []
    for i, r in enumerate(regs):
        op = "v_cmp_ne_u64 %%s, s[%d:%d], v[%d:%d]" % (sTag, sTag + 1, r, r + 1) if bits == 64 else "v_cmp_ne_u32 %%s, s%d, v%d" % (sTag, r)
        if i == 0: L.append(mk(op % "vcc"))
        else: L += ml(op % "s[4:5]" + "\ns_or_b64 vcc, vcc, s[4:5]")
    spin(name, reload_, L, "s_cbranch_vccz")
    return L + [mk("s_cbranch_vccnz L_slow_%s" % name), I("L_ok_%s:" % name, kind="label", cost=0)]
def nonce_get(name):
    ld = mk("global_load_dwordx2 v[%d:%d], v%d, s[%d:%d] sc1" % (vNon, vNon + 1, vNon + 2, sDbg, sDbg + 1), vm="non")
    t = ml("v_readfirstlane_b32 s%d, v%d\nv_readfirstlane_b32 s%d, v%d\ns_cmp_lg_u32 s%d, 0" % (sTag, vNon, sTag + 1, vNon + 1, sTag))
    spin(name, [ld], t, "s_cbranch_scc1")
    chk = t[:2] + [bundle(t[2].t + "\ns_cbranch_scc0 L_slow_%s" % name), I("L_ok_%s:" % name, kind="label", cost=0)]
    chk += ml("v_mov_b32 v%d, v%d\nv_mov_b32 v%d, v%d" % (vTag, vNon, vTag + 1, vNon + 1))
    return ld, chk

def g1_epilogue(tile, opts):
    A0 = acc_of(tile)
    c4 = vST + 4 * tile + 1; c1 = vST + 4 * tile + 2
    g = [A0 + (p >> 2) * 8 + (p & 3) for p in range(8)]
    u = [x + 4 for x in g]
    o = vOUT + 4 * (tile & 1)
    st = []
    for p in range(8):
        t = vTMP + p
        st.append([mk("v_mul_f32 v%d, v%d, v%d" % (g[p], g[p], c1)), mk("v_exp_f32 v%d, v%d" % (t, g[p])),
                   mk("v_mul_f32 v%d, v%d, v%d" % (u[p], g[p], u[p])), mk("v_fma_f32 v%d, v%d, v%d, v%d" % (t, t, c4, c4)),
                   mk("v_rcp_f32 v%d, v%d" % (t, t)), mk("v_mul_f32 v%d, v%d, v%d" % (u[p], u[p], t))])
    R = []; pend = []
    for step in range(18):
        for k in (5, 4, 3, 2, 1, 0):
            p = step - 2 * k
            if 0 <= p < 8:
                R.append(st[p][k])
                for q in pend: R.append(mk("v_cvt_pk_bf16_f32 v%d, v%d, v%d" % (o + (q >> 1), u[q - 1], u[q])))
                pend = [p] if (k == 5 and p & 1) else []
    for q in pend: R.append(mk("v_cvt_pk_bf16_f32 v%d, v%d, v%d" % (o + (q >> 1), u[q - 1], u[q])))
    R.append(mk("s_add_u32 s%d, s%d, %d" % (sT3, sHa, tile * 112 * 1024)))
    if not opts.get("x_nohst"): R.append(mk("buffer_store_dwordx4 %s, v%d, %s, s%d offen%s" % (vr(o), vL16, S4(sWS), sT3, "" if opts.get("x_hplain") else opts.get("fh", " sc1")), vm="hst%d" % tile))
    return R

def common_setup(p, opts):
    p("v_and_b32 v1, 63, v0\nv_lshrrev_b32 v2, 6, v0\nv_lshlrev_b32 v%d, 4, v1\nv_readfirstlane_b32 s%d, v2" % (vL16, sWave))
    p("v_lshrrev_b32 v2, 3, v1\nv_and_b32 v3, 7, v1\nv_lshrrev_b32 v9, 4, v1\nv_mov_b32 v%d, 0" % (vNon + 2))

def phase2_setup(p, opts):
    q, n, a, b, c, d = 40, 41, 42, 43, 44, 45
    p("s_and_b32 s3, s2, 7\ns_lshr_b32 s4, s2, 3\ns_lshl_b32 s3, s3, 2\ns_and_b32 s5, s4, 3\ns_add_u32 s%d, s3, s5\ns_lshr_b32 s%d, s4, 2" % (sTB2, sDB))
    if opts.get("dbx", 3): p("s_xor_b32 s%d, s%d, %d" % (sDB, sDB, opts.get("dbx", 3)))
    p("v_lshrrev_b32 v%d, 4, v1\nv_and_b32 v%d, 15, v1" % (q, n))
    p("v_lshrrev_b32 v%d, 3, v1\nv_and_b32 v%d, 7, v1\nv_and_b32 v%d, 1, v%d\nv_lshlrev_b32 v%d, 2, v%d\nv_xor_b32 v%d, v%d, v%d" % (a, b, c, q, c, c, c, c, b))
    p("s_lshl_b32 s7, s%d, 7\ns_mul_i32 s5, s%d, %d\ns_add_u32 s7, s7, s5" % (sDB, sWave, 448 * 1024))
    p("v_lshlrev_b32 v%d, 4, v%d\nv_lshl_add_u32 v%d, v%d, 10, v%d\nv_add_u32 v%d, s7, v%d" % (c, c, c, a, c, uWD, c))
    for j in range(1, 4): p("v_add_u32 v%d, %d, v%d" % (uWD + j, 7168 * j, uWD))
    p("s_lshr_b32 s5, s%d, 2\ns_lshl_b32 s5, s5, 4\ns_and_b32 s6, s%d, 3\ns_lshl_b32 s6, s6, 1\ns_add_u32 s6, s5, s6" % (sTB2, sTB2))
    p("s_mul_i32 s5, s6, 57344\ns_mul_i32 s7, s%d, 28672\ns_add_u32 s5, s5, s7\nv_add_u32 v%d, s5, v%d\nv_add_u32 v%d, %d, v%d" % (sWave, uH, vL16, uH + 1, 8 * 57344, uH))
    p("s_lshl_b32 s5, s6, 4\ns_lshl_b32 s7, s%d, 3\ns_add_u32 s5, s5, s7\nv_lshrrev_b32 v%d, 5, v1\nv_and_b32 v%d, 3, v1\nv_lshl_add_u32 v%d, v%d, 2, v%d\nv_add_u32 v%d, s5, v%d" % (sWave, c, d, c, c, d, c, c))
    p("v_bfe_u32 v%d, v1, 2, 3\nv_lshlrev_b32 v%d, 4, v%d\nv_lshl_add_u32 v%d, v%d, 10, v%d\ns_lshl_b32 s7, s%d, 7\nv_add_u32 v%d, s7, v%d" % (d, d, d, d, c, d, sDB, uX, d))
    p("v_lshlrev_b32 v%d, 4, v%d\nv_add_u32 v%d, %d, v%d" % (c, c, uSto, WS_ST, c))
    p("v_bfe_u32 v%d, v1, 2, 2\nv_lshrrev_b32 v%d, 5, v1\nv_lshl_add_u32 v%d, v%d, 3, v%d\nv_lshlrev_b32 v%d, 7, v%d\nv_lshrrev_b32 v%d, 1, v%d\nv_lshl_add_u32 v%d, v%d, 6, v%d" % (a, b, b, b, a, b, b, a, a, b, a, b))
    p("v_and_b32 v%d, 1, v%d\nv_lshl_add_u32 v%d, v%d, 5, v%d\nv_and_b32 v%d, 3, v1\nv_lshl_add_u32 v%d, v%d, 3, v%d\nv_add_u32 v%d, s%d, v%d\nv_xor_b32 v%d, 64, v%d" % (a, q, b, a, b, a, b, a, b, uTR, sWdL, b, uTR + 1, uTR))
    p("v_add_u32 v%d, 1, v%d\nv_and_b32 v%d, 1, v%d\nv_sub_u32 v%d, v%d, v%d\nv_lshl_add_u32 v%d, v%d, 3, v%d\nv_lshlrev_b32 v%d, 1, v%d" % (a, n, b, a, a, a, b, a, q, a, a, a))
    p("v_mul_u32_u24 v%d, 4160, v%d\ns_lshl_b32 s7, s%d, 8\ns_add_u32 s7, s7, s%d\nv_add3_u32 v%d, v%d, v%d, s7" % (b, b, sHalf, sCV, uCA, a, b))
    p("v_lshlrev_b32 v%d, 5, v%d\nv_lshlrev_b32 v%d, 4, v%d\nv_sub_u32 v%d, v%d, v%d\ns_add_u32 s7, s7, %d\nv_add_u32 v%d, s7, v%d" % (a, n, b, q, a, b, a, XR_OFF + 480, uCB, a))
    p("v_and_b32 v%d, 1, v%d\nv_mul_u32_u24 v%d, 4160, v%d\nv_lshl_add_u32 v%d, v%d, 1, v%d\nv_add_u32 v%d, s%d, v%d" % (a, q, a, a, a, n, a, uHeadA, sCV, a))
    p("v_mov_b32 v46, 0\nv_mov_b32 v47, 0\nv_lshlrev_b32 v%d, 3, v1\ns_add_u32 s7, s%d, %d\nv_add_u32 v%d, s7, v%d" % (a, sCV, XR_OFF + 4096, a, a))
    p("ds_write_b64 v%d, v[46:47]" % a)
    p("v_and_b32 v%d, 2, v%d\nv_lshlrev_b32 v%d, 3, v%d\nv_and_b32 v%d, 1, v%d\nv_lshl_add_u32 v%d, v%d, 5, v%d\nv_bfe_u32 v%d, v%d, 1, 2\nv_lshl_add_u32 v%d, v%d, 7, v%d\nv_lshrrev_b32 v%d, 3, v%d\nv_lshl_add_u32 v%d, v%d, 6, v%d\nv_and_b32 v%d, 1, v%d\nv_lshl_add_u32 v%d, v%d, 9, v%d" % (a, q, a, a, b, n, a, b, a, b, n, a, b, a, b, n, a, b, a, b, q, uYst, b, a))
    p("s_lshl_b32 s7, s%d, 11\ns_add_u32 s7, s7, s%d\ns_add_u32 s%d, s7, %d" % (sHalf, sCh4k, sYoff, WS_YT))
    p("s_lshl_b32 s7, s2, 13\ns_lshl_b32 s3, s%d, 10\ns_add_u32 s7, s7, s3\ns_add_u32 s%d, s7, %d" % (sWave, sXRso, WS_XR))
    p("s_lshl_b32 s7, s2, 7\ns_add_u32 s%d, s7, %d" % (sFlY, WS_FY))
    p("v_and_b32 v%d, 7, v1\nv_lshlrev_b32 v%d, 7, v%d" % (a, a, a))
    p("s_lshl_b32 s7, s%d, 12\ns_lshl_b32 s3, s%d, 10\ns_add_u32 s7, s7, s3\ns_add_u32 s7, s7, %d\nv_add_u32 v%d, s7, v%d" % (sDB, sWave, WS_FY, uFY, a))
    p("v_min_u32 v%d, 6, v1\nv_lshlrev_b32 v%d, 7, v%d" % (a, a, a))
    p("s_lshr_b32 s7, s%d, 2\ns_lshl_b32 s7, s7, 5\ns_mul_i32 s3, s%d, 7\ns_add_u32 s7, s7, s3\ns_lshl_b32 s7, s7, 7\ns_add_u32 s7, s7, %d\nv_add_u32 v%d, s7, v%d" % (sTB2, sWave, WS_FH, uFH, a))
    p("v_and_b32 v%d, 7, v1\nv_lshlrev_b32 v%d, 10, v%d\ns_lshr_b32 s7, s2, 5\ns_lshl_b32 s7, s7, 7\ns_and_b32 s3, s2, 24\ns_add_u32 s7, s7, s3" % (a, a, a))
    p("s_lshl_b32 s3, s%d, 13\ns_sub_u32 s7, s7, s3\ns_add_u32 s7, s7, %d\nv_sub_u32 v%d, s7, v%d" % (sWave, WS_FK + 31 * 1024, uFK, a))
    p("v_cmp_ne_u32 vcc, 0, v1\nv_mov_b32 v%d, 0x80000000\nv_mov_b32 v%d, 0\nv_cndmask_b32 v%d, v%d, v%d, vcc" % (a, b, vFl, b, a))

def hk_srds(p):
    p("s_add_u32 s%d, s60, s%d\ns_addc_u32 s%d, s61, 0\ns_and_b32 s%d, s%d, 0xffff\ns_sub_u32 s%d, 0x200000, s%d\ns_mov_b32 s%d, 0x20000" % (sHk, sCh4k, sHk + 1, sHk + 1, sHk + 1, sHk + 2, sCh4k, sHk + 3))
    srd(p, sDp, kD, 1024)
def ids2(p):
    p("s_lshr_b32 s3, s%d, 1\ns_lshl_b32 s4, s2, 1\ns_add_u32 s4, s4, s3\ns_mul_i32 s%d, s3, %d\ns_add_u32 s%d, s%d, %d" % (sWave, sCV, CH_STRIDE, sCV, sCV, CONV))
    p("s_and_b32 s%d, s%d, 1\ns_lshl_b32 s%d, s4, 12\ns_lshl_b32 s%d, s4, 1\ns_lshl_b32 s%d, s%d, 12" % (sHalf, sWave, sCh4k, sDoff, sWdL, sWave))
    p("v_bfe_u32 v40, v1, 4, 1\nv_and_b32 v41, 15, v1\nv_add_u32 v42, v40, v41\nv_add_u32 v42, -16, v42\nv_lshlrev_b32 v%d, 1, v42" % uHead)
RHO = [2, 4, 1]
def phase2_srds():
    L = []
    for d, lo, size in ((sWd, kWD, 1792 * 1024), (sOut, kOUT, 2048 * 1024)):
        L += ml("s_mov_b32 s%d, s%d\ns_and_b32 s%d, s%d, 0xffff\ns_mov_b32 s%d, 0x%x\ns_mov_b32 s%d, 0x20000" % (d, lo, d + 1, lo + 1, d + 2, size, d + 3))
    for s in range(14): L += ml("s_mov_b32 s%d, %d" % (sTabW + s, s * 32768))
    return L

class Filler:
    def __init__(self, space=2):
        self.vq = []; self.xq = []; self.last = -9; self.space = space
    def v(self, at, L): self.vq += [(at, x) for x in L]
    def x(self, at, L): self.xq += [(at, y) for y in L]
    def fill(self, gi, gap, budget, xbudget=None, novm=False):
        used = lambda: sum(y.cost for y in gap)
        nv = 0
        for q in (self.vq, self.xq):
            if q and q[0][1].kind == "delay" and q[0][0] <= gi:
                n = q.pop(0)[1].vm
                if q: q[0] = (max(q[0][0], gi + n), q[0][1])
        while not novm and self.vq and self.vq[0][0] <= gi and used() + self.vq[0][1].cost <= budget:
            at, y = self.vq[0]
            if y.kind == "delay": break
            if is_vm(y) and y.t.endswith(" lds"):
                lag = gi - at
                if nv >= 1 or (gi - self.last < self.space and lag < 14): break
                nv += 1; self.last = gi
            gap.append(y); self.vq.pop(0)
            if is_m0(y): break
        while self.xq and self.xq[0][0] <= gi and used() + self.xq[0][1].cost <= (xbudget or budget):
            if self.xq[0][1].kind == "delay": break
            gap.append(self.xq.pop(0)[1])

def gemm1(p, opts):
    p("s_sub_u32 s3, s2, 32\ns_and_b32 s4, s3, 7\ns_lshr_b32 s5, s3, 3")
    p("s_and_b32 s6, s4, 1\ns_and_b32 s7, s5, 3\ns_lshl_b32 s34, s7, 1\ns_add_u32 s34, s34, s6\ns_lshl_b32 s6, s6, 2\ns_add_u32 s%d, s6, s7" % sTB)
    p("s_lshr_b32 s6, s4, 1\ns_mul_i32 s6, s6, 7\ns_lshr_b32 s7, s5, 2\ns_add_u32 s7, s7, %d\ns_cmp_ge_u32 s7, 7\ns_cselect_b32 s5, 7, 0\ns_sub_u32 s7, s7, s5\ns_add_u32 s%d, s6, s7" % (opts.get("cbr", 0), sCB)) if opts.get("cbr") else p("s_lshr_b32 s6, s4, 1\ns_mul_i32 s6, s6, 7\ns_lshr_b32 s7, s5, 2\ns_add_u32 s%d, s6, s7" % sCB)
    SG = opts.get("sig", 5)
    if SG == 0: p("s_mov_b32 s34, 0")
    elif SG == 1: p("s_and_b32 s34, s4, 1\ns_lshl_b32 s34, s34, 2\ns_and_b32 s6, s4, 6\ns_add_u32 s34, s34, s6\ns_and_b32 s34, s34, 7")
    elif SG == 5: p("s_lshr_b32 s6, s4, 1\ns_xor_b32 s34, s6, s%d" % sTB)
    elif SG == 6: p("s_lshr_b32 s6, s4, 1\ns_and_b32 s34, s%d, 6\ns_xor_b32 s34, s6, s34" % sTB)
    elif SG == 2: p("s_add_u32 s34, s34, s%d\ns_and_b32 s34, s34, 7" % sCB)
    elif SG == 3: p("s_and_b32 s34, s4, 1\ns_lshl_b32 s34, s34, 2\ns_and_b32 s6, s4, 6\ns_add_u32 s34, s34, s6\ns_and_b32 s6, s%d, 1\ns_add_u32 s34, s34, s6\ns_and_b32 s34, s34, 7" % sTB)
    elif SG == 4: p("s_and_b32 s34, s4, 1\ns_lshl_b32 s34, s34, 2\ns_and_b32 s6, s4, 6\ns_add_u32 s34, s34, s6\ns_and_b32 s6, s%d, 1\ns_lshl_b32 s6, s6, 2\ns_add_u32 s34, s34, s6\ns_and_b32 s34, s34, 7" % sCB)
    p("v_xor_b32 v5, v9, v3\nv_lshlrev_b32 v5, 4, v5\nv_lshl_add_u32 v%d, v2, 10, v5\nv_xor_b32 v5, 64, v%d" % (vXD, vXD))
    p("v_add_u32 v%d, 7168, v5\nv_add_u32 v%d, 14336, v%d\nv_add_u32 v%d, 21504, v5" % (vXD + 1, vXD + 2, vXD, vXD + 3))
    p("s_lshr_b32 s3, s%d, 1\ns_lshl_b32 s3, s3, 2" % sWave)
    p("v_and_b32 v5, 1, v9\nv_lshlrev_b32 v5, 1, v5\nv_xor_b32 v5, s3, v5\nv_xor_b32 v5, v5, v3\nv_lshlrev_b32 v5, 4, v5")
    p("s_and_b32 s4, s%d, 1\ns_mul_i32 s4, s4, %d\ns_lshl_b32 s5, s%d, 7\ns_add_u32 s4, s4, s5" % (sWave, 32 * 3584, sCB))
    p("v_mul_u32_u24 v6, 3584, v2\nv_add3_u32 v%d, v5, v6, s4" % vWD)
    for j in range(1, 4): p("v_add_u32 v%d, %d, v%d" % (vWD + j, j * (8 * 3584 - 1024), vWD))
    p("s_lshl_b32 s35, s%d, 18\ns_lshl_b32 s5, s%d, 15\ns_add_u32 s7, s35, s5" % (sTB, sWave))
    p("s_lshl_b32 s%d, s%d, 12\ns_add_u32 s%d, s%d, 16384" % (sLdsW, sWave, sLdsX, sLdsW))
    p("s_mul_i32 s%d, s34, %d\ns_lshl_b32 s3, s34, 7\ns_add_u32 s%d, s3, s7" % (sTab + 4, 64 * 3584, sTab + 8))
    p("s_waitcnt lgkmcnt(0)")
    srd(p, sQ, kQ, 2048 * 1024)
    p("s_cmp_ge_u32 s%d, 2\ns_cselect_b32 s66, s68, s66\ns_cselect_b32 s67, s69, s67" % sWave)
    srd(p, sW, kWG, 512 * 3584)
    stamp(p, "g.karg", opts, 2)
    W2 = opts.get("wt2", 0); X2 = opts.get("xt2", W2)
    if W2:
        p("v_add_u32 v5, s34, v2\nv_and_b32 v5, 7, v5\nv_lshlrev_b32 v7, 7, v5\nv_lshl_add_u32 v5, v5, 6, v3\ns_and_b32 s3, s%d, 3\ns_mul_i32 s3, s3, %d\ns_add_u32 s3, s3, s4" % (sTB, 8 * 3584))
        p("v_mul_u32_u24 v5, 3584, v5\nv_cmp_gt_u32 vcc, %d, v2\nv_add_u32 v5, s3, v5\nv_mov_b32 v6, -1\nv_cndmask_b32 v5, v6, v5, vcc" % W2)
        p("buffer_load_dword v8, v5, %s, 0 offen" % S4(sW), vm="wt")
        p("s_lshr_b32 s3, s2, 5\ns_sub_u32 s3, s3, 1\ns_mul_i32 s3, s3, 5\nv_add_u32 v5, s3, v3\nv_cmp_gt_u32 vcc, 5, v3\nv_cmp_gt_u32 s[26:27], 32, v5\nv_cmp_gt_u32 s[28:29], %d, v2" % X2)
        p("v_lshl_add_u32 v5, v5, 10, v7\ns_and_b64 vcc, vcc, s[26:27]\ns_and_b64 vcc, vcc, s[28:29]\nv_add_u32 v5, s7, v5\nv_cndmask_b32 v5, v6, v5, vcc")
        p("buffer_load_dword v8, v5, %s, 0 offen" % S4(sQ), vm="wt")
    st0 = g1_stage(0, opts)
    for x in st0: x.t = x.t.replace("s%d offen" % sTab, "s%d offen" % (sTab + 4))
    seq(p, st0)
    stamp(p, "g.st0", opts, 2)
    WT = opts.get("wt", 0)
    if WT:
        p("v_add_u32 v5, s34, v2\nv_add_u32 v5, 1, v5\nv_and_b32 v5, 7, v5\nv_lshl_add_u32 v5, v5, 6, v3\ns_and_b32 s3, s%d, 3\ns_mul_i32 s3, s3, %d\ns_add_u32 s3, s3, s4" % (sTB, 8 * 3584))
        p("v_mul_u32_u24 v5, 3584, v5\nv_cmp_gt_u32 vcc, %d, v2\nv_add_u32 v5, s3, v5\nv_mov_b32 v6, -1\nv_cndmask_b32 v5, v6, v5, vcc" % WT)
        p("buffer_load_dword v6, v5, %s, 0 offen" % S4(sW), vm="wt")
    p("s_mov_b32 s27, s7")
    srd(p, sWS, kWS, WS_SZ)
    p("s_mov_b32 s%d, s74\ns_mov_b32 s%d, s75" % (sDbg, sDbg + 1))
    kv_setup(p)
    ids2(p); hk_srds(p)
    for s in range(1, 8):
        p(("s_xor_b32 s3, s34, %d" if SG >= 5 else "s_add_u32 s3, s34, %d\ns_and_b32 s3, s3, 7") % s)
        p("s_mul_i32 s%d, s3, %d\ns_lshl_b32 s3, s3, 7\ns_add_u32 s%d, s3, s27" % (sTab + s, 64 * 3584, sTab + 8 + s))
    p("s_lshl_b32 s%d, s%d, 13\ns_add_u32 s6, s35, %d" % (sLdsXB, sWave, 0 if opts.get("x_xsame") else 0x20000))
    for h in range(2):
        if SG >= 5: p("s_lshl_b32 s3, s%d, 1\ns_add_u32 s3, s3, %d\ns_xor_b32 s3, s3, s34\ns_lshl_b32 s3, s3, 7\ns_add_u32 s%d, s3, s6" % (sWave, h, sXB + h))
        else: p("s_lshl_b32 s3, s%d, 1\ns_add_u32 s3, s3, s34\ns_add_u32 s3, s3, %d\ns_and_b32 s3, s3, 7\ns_lshl_b32 s3, s3, 7\ns_add_u32 s%d, s3, s6" % (sWave, h, sXB + h))
    p("s_lshl_b32 s3, s%d, 2\ns_add_u32 s3, s3, s%d\ns_lshl_b32 s3, s3, 10\ns_mul_i32 s4, s%d, %d\ns_add_u32 s%d, s3, s4" % (sCB, sWave, sTB, 16 * 57344, sHa))
    p("s_lshl_b32 s4, s%d, 12\ns_add_u32 s%d, s4, %d" % (sTB, sST, WS_ST))
    a, b, c, d, e, f = 40, 41, 42, 43, 44, 45
    p("v_and_b32 v%d, 31, v1\nv_lshrrev_b32 v%d, 5, v1\nv_lshlrev_b32 v%d, 4, v%d" % (a, b, vSToff, a))
    p("s_lshl_b32 s3, s%d, 5\ns_add_u32 s3, s3, s%d\ns_lshl_b32 s3, s3, 7\ns_add_u32 s%d, s3, %d" % (sTB, sCB, sFlH, WS_FH))
    p("v_bfe_u32 v%d, v1, 1, 3\nv_xor_b32 v%d, v%d, v%d\nv_lshlrev_b32 v%d, 4, v%d\nv_lshl_add_u32 v%d, v%d, 7, v%d" % (c, c, c, b, c, c, vXA, a, c))
    for ks in range(1, 4): p("v_xor_b32 v%d, %d, v%d" % (vXA + ks, 32 * ks, vXA))
    for ks in range(4): p("v_add_u32 v%d, 0x10000, v%d" % (vXA + 4 + ks, vXA + ks))
    p("v_bfe_u32 v%d, v1, 2, 2\nv_bfe_u32 v%d, v1, 1, 1\nv_and_b32 v%d, 1, v1\nv_bfe_u32 v%d, v1, 4, 1" % (a, c, d, e))
    p("v_lshrrev_b32 v%d, 1, v%d\nv_lshl_add_u32 v%d, v%d, 1, v%d\nv_xor_b32 v%d, s%d, v%d\nv_lshlrev_b32 v%d, 5, v%d" % (f, a, f, c, f, f, sWave, f, f, f))
    p("v_lshl_add_u32 v%d, v%d, 4, v%d\nv_lshl_add_u32 v%d, v%d, 3, v%d\nv_lshl_add_u32 v%d, v%d, 13, v%d" % (f, d, f, f, e, f, f, c, f))
    p("v_lshl_add_u32 v%d, v%d, 3, v%d\nv_lshl_add_u32 v%d, v%d, 7, v%d\nv_add_u32 v%d, 0x10000, v%d" % (a, b, a, vWA, a, f, vWA + 1, vWA))
    stamp(p, "g.set1", opts, 2)
    if not opts.get("p2in", 1): phase2_setup(p, opts)
    for r in range(2 if opts.get("cs4", 1) else 4): p("v_mov_b32 v%d, 0x3f803f80" % (vOnes + r))
    stamp(p, "g.set2", opts, 2)
    KVP = opts.get("kvp", 1)
    nld, nchk = nonce_get("ng")
    HKP = opts.get("hkp", 9)
    hkl = hk_loads(opts) if HKP == 0 else []
    if KVP == 0: seq(p, kv_loads(opts) + hkl)
    stamp(p, "g.kvis", opts, 2)
    S1IN = opts.get("s1in", 0)
    NL = opts.get("nlate", 1)
    if not S1IN:
        seq(p, g1_stage(1, opts))
        if not NL: p.add(nld)
    if KVP == 1: seq(p, kv_loads(opts) + hkl)
    if opts.get("tlb"):
        sh = opts["tlb"]
        p("v_lshlrev_b32 v52, %d, v1\nbuffer_load_dword v53, v52, %s, 0 offen" % (sh, S4(sWS)), vm="tlb")
        p("v_min_u32 v52, 0x1bff00, v52\nglobal_load_dword v54, v52, s[70:71]\nglobal_load_dword v55, v52, s[72:73]\nglobal_load_dword v56, v52, s[60:61]", vm="tlb")
    stamp(p, "g.st1", opts)

    def rdW(n):
        s, ks = n >> 2, n & 3
        w, off = win((s % 3) * SLOT + ks * 2048)
        return [mk("ds_read_b64_tr_b16 a[%d:%d], v%d offset:%d" % (4 * n, 4 * n + 1, vWA + w, off), lg="W%d" % n),
                mk("ds_read_b64_tr_b16 a[%d:%d], v%d offset:%d" % (4 * n + 2, 4 * n + 3, vWA + w, off + 512), lg="W%d" % n)]
    def rdXA(n, i):
        s, ks = n >> 2, n & 3
        w, off = win((s % 3) * SLOT + 16384 + i * 4096)
        return mk("ds_read_b128 %s, v%d offset:%d" % (vr(vXF + 16 * (n & 1) + 4 * i), vXA + 4 * w + ks, off), lg="X%d_%d" % (n, i))
    def rdXB(bb, n):
        w, off = win(((8 + bb) % 3) * SLOT + (n >> 2) * 4096)
        return mk("ds_read_b128 %s, v%d offset:%d" % (vr(vXF + 4 * (n & 7)), vXA + 4 * w + (n & 3), off), lg="B%d_%d" % (bb, n))

    fr = opts.get("fr", " sc1")
    st_loads = [mk("buffer_load_dwordx4 %s, v%d, %s, s%d offen offset:%d sc1" % (vr(vST + 4 * t), vSToff, S4(sWS), sST, t * 512), vm="rec") for t in range(8)]
    post = poll_check("rec", [vST + 4 * t + 3 for t in range(8)], st_loads, 32)
    post += ml("v_mov_b32 v%d, v%d\nv_mov_b32 v%d, v%d" % (vR1B, vST, vR1B + 4, vST + 4))
    csfin = ml("v_cvt_pk_bf16_f32 v%d, v%d, v%d\nv_and_b32 v%d, 0xffff0000, v%d\nv_sub_f32 v%d, v%d, v%d\nv_cvt_pk_bf16_f32 v%d, v%d, v%d\nv_and_b32 v%d, v186, v%d"
               % (184, vCSA, vCSA, 184, 184, 185, vCSA, 184, 184, 184, 185, vR1A, 184))
    if opts.get("cs4", 1):
        csfin = ml("v_add_f32 v%d, v%d, v%d\nv_mov_b32 v%d, v%d\ns_nop 1\nv_permlane32_swap_b32 v%d, v%d\nv_add_f32 v%d, v%d, v%d" % (vCSA, vCSA, vCSA + 4, vCSA + 1, vCSA, vCSA, vCSA + 1, vCSA, vCSA, vCSA + 1)) + csfin
    if opts.get("x_norec"):
        st_loads = []; post = [y for y in post if "cbranch" not in y.t]
    F = Filler(opts.get("aspace", 2))
    RL = opts.get("recst", 5)
    if S1IN: F.v(-20, g1_stage(1, opts) + [nld])
    for s in range(8):
        F.v(max(0, 16 * s - 3) if not (S1IN and s == 0) else -20, g1_stage(s + 2, opts))
        if NL and s == 0 and not S1IN: F.v(0, [nld])
        if KVP >= 2 and s + 2 == KVP: F.v(0, kv_loads(opts) + hkl)
        if HKP and HKP < 10 and s + 2 == HKP: F.v(0, hk_loads(opts))
        if s == opts.get("kvst", 8) and not opts.get("x_nokvs"): F.v(0, kv_stores())
        if s == 7 and opts.get("kvst", 8) < 8: F.v(16 * 7 + 8, [W(vm="kvst"), flag_store(sFlK)])
    if opts.get("p2in", 1):
        q_ = Prog(); phase2_setup(q_, opts)
        L_ = q_.ins; F.x(0, L_[:-4] + [bundle("\n".join(y.t for y in L_[-4:]))])
    F.x(0, ml("v_lshrrev_b32 v186, 5, v1\nv_add_u32 v186, -1, v186"))
    F.x(0, [mk("v_mov_b32 v%d, 0" % r) for r in (vR1A + 1, vR1A + 2, vR1A + 3)])
    F.x(0, [mk("v_mov_b32 v%d, 0" % r) for r in (vR1B + 1, vR1B + 2, vR1B + 3, vR1B + 5, vR1B + 6, vR1B + 7)])
    sr = phase2_srds()
    if opts.get("sre", 1): F.x(16 * KVP - 1 if KVP >= 2 else 0, sr); sr = []
    F.x(29 if NL else 13, [W(vm="non")] + nchk)
    kc = kv_compute()
    if opts.get("x_nokvr"): kc = [y for y in kc if not y.t.startswith("ds_")]
    if opts.get("x_nokvv"): kc = [y for y in kc if not y.t.startswith("v_")]
    F.x(13 if KVP == 0 else 16 * (KVP + 1) - 3, kc)
    KVS = I("; kv done", cost=0); KVS.kind = "label"
    F.x(0, [KVS] + (hk_build() if HKP == 0 else []) + sr[:8])
    F.x(16 * RL - 4, st_loads)
    F.x(0, sr[8:])
    F.x(16 * (RL + 2) - 3 + opts.get("postat", 0), [W(vm="rec")] + post)
    p.wait(vm="st0")
    p("s_barrier")
    stamp(p, "g.st0in", opts)
    for x in rdW(0): p.add(x)
    for i in range(4): p.add(rdXA(0, i))
    PD = opts.get("pd", 7); WE = opts.get("we", 4)
    BA = opts.get("buda", 24)
    for n in range(32):
        s, ks = n >> 2, n & 3
        gaps = [[], [], [], []]
        if ks == 3:
            DU = [int(c) * 10 for c in str(opts.get("dump", "666")).ljust(8, "0")][s]
            F.fill(4 * n, gaps[0], 4 * DU, novm=True)
            F.pre = sum(y.cost for y in gaps[0])
            gaps[0] += [W(vm="st%d" % (s + 1), lg="*"), mk("s_barrier")]
        if n < 31:
            gaps[0] += rdW(n + 1); gaps[1] += [rdXA(n + 1, 0), rdXA(n + 1, 1)]; gaps[2] += [rdXA(n + 1, 2), rdXA(n + 1, 3)]
        else:
            gaps[0] += [rdXB(0, 0), rdXB(0, 1)]; gaps[1] += [rdXB(0, 2), rdXB(0, 3)]
        for i in range(4):
            if i in (0, 2): p.wait(lg=["W%d" % n, "X%d_%d" % (n, i + 1)])
            if opts.get("cs4", 1):
                if i in (0, 1): p("v_mfma_f32_4x4x4_16b_bf16 %s, %s, a[%d:%d], %s" % (vr(vCSA + 4 * i), vr(vOnes, 2), 4 * n + 2 * i, 4 * n + 2 * i + 1, vr(vCSA + 4 * i) if n else "0"))
            elif i == 0:
                p("v_mfma_f32_32x32x16_bf16 %s, %s, a[%d:%d], %s" % (vr(vCSA, 16), vr(vOnes), 4 * n, 4 * n + 3, vr(vCSA, 16) if n else "0"))
                g5 = []; F.fill(4 * n, g5, BA, novm=True)
                for x in g5: p.add(x)
            if n == 31 and i == 2 and opts.get("cs4", 1): gaps[i] += csfin[:5]; csfin = csfin[5:]
            if n == 31 and i == 3: gaps[i] += csfin
            a = acc_of(i)
            p("v_mfma_f32_32x32x16_bf16 %s, a[%d:%d], %s, %s" % (vr(a, 16), 4 * n, 4 * n + 3, vr(vXF + 16 * (n & 1) + 4 * i), vr(a, 16) if n else "0"))
            if ks == 3 and i == 0 and any(y.vm == "st%d" % (s + 1) for _, y in F.vq): raise SystemExit("stage %d not issued" % (s + 1))
            BS = opts.get("bud0", 24) if s == 0 else (opts.get("bud1", 24) if s < opts.get("nb1", 3) else BA)
            if any(y.t.startswith("s_mov_b32 s%d," % sWd) for _, y in F.xq[:12]): assert not any(y.vm == "kv" for _, y in F.vq) or F.xq[0][0] > 4 * n + i or not F.xq[0][1].t.startswith("s_mov_b32 s%d," % sWd)
            F.fill(4 * n + i, gaps[i], BS - (4 if i in (1, 3) else 0) + (F.pre if (ks == 3 and i == 0) else 0))
            if any(y.vm == "kvst" for y in gaps[i]): assert KVS not in gaps[i] + [z for _, z in F.xq], "kv store too early"
            for x in gaps[i]: p.add(x)
        if ks == 3 and s < 7: stamp(p, "g.s%d" % s, opts, 2)
    left = len(F.xq)
    stamp(p, "g.A31", opts, 2)
    for _, x in F.xq: p.add(x)
    F.xq = []
    print("phase A: left-over x items %d, v items %d" % (left, len(F.vq)), file=sys.stderr)
    stamp(p, "g.Aend", opts)
    for m_ in range(4, PD): p.add(rdXB(0, m_))
    p("s_nop 0")
    for t in range(4):
        a = acc_of(t)
        p("v_mfma_f32_32x32x16_bf16 %s, %s, %s, %s" % (vr(a, 16), vr(vR1A), vr(vR1B + 4 * (t & 1)), vr(a, 16)))
        p("v_mov_b32 v%d, v%d" % (vR1B + 4 * (t & 1), vST + 4 * (t + 2)))
        p("s_nop 0")
    ep = [g1_epilogue(t, opts) for t in range(7)]
    total = sum(x.cost for e in ep for x in e)
    kvpoll = [mk("buffer_load_dwordx2 v[%d:%d], v%d, %s, 0 offen sc1" % (uPoll, uPoll + 1, uFK, S4(sWS)), vm="kvp")]
    F.vq = [(0, y) for _, y in F.vq]; F.last = -9; F.space = opts.get("bspace", 2)
    X = lambda k, L: [] if opts.get(k) else L
    XB = opts.get("xb", 1)
    ORD = [0, 1, 2, 3, 4] + ([5] if opts.get("w5", 1) else []) + [7, 8, 9][:XB]
    EB = opts.get("ebar", 1)
    ORD += [6, 12][:EB * opts.get("en", 2)]
    INB_READ = [0, 1, 2][:XB]
    chain = lambda t: ([W(vm="w%d" % t)] + wd_reads(t, True) + [delay(4), W(lg="t%d" % t)] + wd_loads(t + 7, opts)) if t in INB_READ else []
    F.x(0, [mk("v_add_u32 v%d, 0x20000, v%d" % (uTR2 + mt, uTR + mt)) for mt in range(2)])
    F.x(0, [bundle("\n".join(y.t for y in fl0_setup()[:3]))] + fl0_setup()[3:])
    F.v(0, kv_stores())
    F.v(opts.get("st10", 6), g1_stage(10, opts))
    W0 = opts.get("w0at", 22)
    if W0 < 27: F.v(W0, wd_loads(0, opts))
    B1 = 34 - PD
    KF = opts.get("kvf", 0)
    F.v(B1, g1_stage(11, opts)[:KF] + [W(vm="kvst"), flag_store(sFlK)] + g1_stage(11, opts)[KF:])
    if W0 >= 27: F.v(W0, wd_loads(0, opts))
    if 5 in ORD: F.v(opts.get("w5at", 46), wd_loads(5, opts))
    if HKP == 10: F.v(opts.get("hkat", 46), hk_loads(opts))
    ev_ = [(33 + B1, wd_loads(1, opts)), (33 + B1 + 8, wd_loads(2, opts)), (opts.get("c0", 80), chain(0)), (opts.get("kvpoll", 64), kvpoll),
           (66 + B1, wd_loads(3, opts)), (66 + B1 + 8, wd_loads(4, opts)),
           (opts.get("kvchk", 90), [W(vm="kvp")] + poll_check("kv", [uPoll], kvpoll) + conv_xr())]
    ev_ = sorted(ev_, key=lambda z: z[0])
    for i_, (at_, L_) in enumerate(ev_): F.v(at_, L_)
    opts["_cvlast"] = ev_[-1][1][-1].vm == "cv"
    F.v(0, chain(1) + chain(2))
    opts["_ord"] = ORD; opts["_rd"] = INB_READ
    if HKP: F.x(opts.get("hkb", 62 if HKP < 10 else 95), hk_build(1))
    EF = opts.get("eflag", 99 + 16)
    ngaps = 4 * 33; done = 0; cur = 0; gi = 0
    BUD = opts.get("bud", 24)
    for bb in range(4):
        tile = 4 + bb; a = acc_of(tile)
        for n in range(-1, 32):
            gap = []
            if n == -1:
                p("v_mfma_f32_32x32x16_bf16 %s, %s, %s, 0" % (vr(a, 16), vr(vR1A), vr(vR1B + 4 * (bb & 1))))
                if bb < 2: gap.append(mk("v_mov_b32 v%d, v%d" % (vR1B + 4 * (bb & 1), vST + 4 * (tile + 2))))
            else:
                if n % WE == 0: p.wait(lg="B%d_%d" % (bb, n + WE - 1))
                p("v_mfma_f32_32x32x16_bf16 %s, a[%d:%d], %s, %s" % (vr(a, 16), 4 * n, 4 * n + 3, vr(vXF + 4 * (n & 7)), vr(a, 16)))
                m = n + PD
                if m == 32 and bb < 3:
                    if any(y.vm == "st%d" % (9 + bb) for _, y in F.vq): raise SystemExit("stage not issued before its wait")
                    gap += [W(vm=["st%d" % (9 + bb)] + (["hk"] if bb == 2 else []), lg="*"), mk("s_barrier")]
                if m < 32: gap.append(rdXB(bb, m))
                elif bb < 3: gap.append(rdXB(bb + 1, m - 32))
            budget = BUD - (4 if (n % WE == WE - 1) else 0)
            if EB and bb == 3 and n == 33 - PD + 1:
                gap += [W(lg="*"), mk("s_barrier")]
                F.v(gi, [x for t in ORD if t in (6, 12) for x in wd_loads(t, opts)])
            if gi == EF:
                assert cur >= 4
                gap += [W(vm="hst3"), mk("s_barrier"), flag_store(sFlH, True), mk("s_add_u32 s%d, s%d, %d" % (sFlH, sFlH, WS_FL))]
            F.fill(gi, gap, min(budget, sum(y.cost for y in gap) + 8), min(budget, sum(y.cost for y in gap) + 12 if F.xq and F.xq[0][1].cost > 4 else sum(y.cost for y in gap) + 8))
            gi += 1
            target = total * gi / float(ngaps - opts.get("eplead", 4))
            while cur < 7 and done < target:
                if cur >= 4 and (cur - 4 >= bb or (cur - 4 == bb - 1 and n < 4)): break
                if cur < 4 and bb == 0 and n < 2: break
                x = ep[cur][0]
                if sum(y.cost for y in gap) + x.cost > budget: break
                gap.append(ep[cur].pop(0)); done += x.cost
                if not ep[cur]: cur += 1
            for x in gap: p.add(x)
            if gi % 6 == 0: stamp(p, "B%d" % gi, opts, 5)
            if opts.get("prof") and "ls0" in opts:
                k_, r_ = divmod(gi - opts["ls0"], opts.get("lsd", 4))
                if r_ == 0 and 0 <= k_ < 8: p("s_memtime s[%d:%d]" % (84 + 2 * k_, 85 + 2 * k_))
        if bb < 3: stamp(p, "g.b%d" % bb, opts, 2)
    if opts.get("prof") and "ls0" in opts:
        p("s_waitcnt lgkmcnt(0)")
        for k_ in range(8):
            nm_ = "L%d" % (opts["ls0"] + k_ * opts.get("lsd", 4))
            if opts["ls0"] + k_ * opts.get("lsd", 4) > 132: break
            STAMPS.append(nm_); p("v_writelane_b32 v255, s%d, %d" % (84 + 2 * k_, len(STAMPS) - 1))
    stamp(p, "g.Bend", opts)
    print("phase B: left-over v items %d, epilogue cost left %d" % (len(F.vq), total - done), file=sys.stderr)
    vl = [y for _, y in F.vq if y.kind != "delay"]
    rest_ = [y for _, y in F.xq if y.kind != "delay"] + [x for e_ in ep[cur:] for x in e_]
    for x in rest_: p.add(x)
    cr_ = conv_start(p, opts, True)
    rest_ = []
    for i, x in enumerate([mk("s_mov_b32 s%d, %d" % (sTab + s, s * 4096)) for s in range(7)] + g1_epilogue(7, opts)):
        if cr_ and i % 2 == 0: rest_.append(cr_.pop(0))
        rest_.append(x)
    assert not cr_
    k_ = max(2, (len(rest_) - 4) // (len(vl) + 1))
    for i, x in enumerate(rest_):
        if i == len(rest_) - 1: seq(p, vl); vl = []
        p.add(x)
        if vl and i % k_ == k_ - 1: p.add(vl.pop(0))

def out_half(ps, opts, pk):
    eW = 24; eR = 25; eY = 26
    if ps == 0: X = list(range(12, 20)); XN = list(range(32, 40)); YR = 20; Y = [28, 29, 30, 31, 218, 219, 222, 223]
    else: X = list(range(56, 64)); XN = list(range(64, 72)); YR = 80; Y = list(range(72, 80))
    P = [list(range(uAcc + 32 * ps + 8 * w, uAcc + 32 * ps + 8 * w + 8)) for w in range(4)]
    wr = [mk("ds_write_b128 v%d, %s offset:%d" % (eW, vr(uAcc + 32 * ps + 16 * mt + 4 * j), 128 * mt + 32 * j), cost=16) for mt in range(2) for j in range(4)]
    rdy = [mk("ds_read_b64_tr_b16 v[%d:%d], v%d offset:%d" % (YR + 2 * j, YR + 2 * j + 1, eY + ps, j * 512), lg="y%d" % ps) for j in range(2)]
    rd = [mk("ds_read_b128 %s, v%d offset:%d" % (vr(P[w][4 * h]), eR, w * REDW + 16 * h), lg="r%d" % ps) for h in range(2) for w in range(4)]
    xin = uXin + 4 * ps; st = (40, 224)[ps]; F = P[0]
    un = lambda d, s_, hi: ("v_and_b32 v%d, 0xffff0000, v%d" if hi else "v_lshlrev_b32 v%d, 16, v%d") % (d, s_)
    def op2(name, d, a_, b_, c_=None, sel=""):
        R = lambda z, i, n: z if isinstance(z, str) else vr(z[i], n)
        if pk: return [mk("v_pk_%s_f32 %s, %s, %s%s%s" % (name, vr(d[2 * i], 2), R(a_, 2 * i, 2), R(b_, 2 * i, 2), (", " + R(c_, 2 * i, 2)) if c_ else "", sel)) for i in range(4)]
        return [mk("v_%s_f32 v%d, %s, %s%s" % (name, d[i], R(a_, i, 1), R(b_, i, 1), (", " + R(c_, i, 1)) if c_ else "")) for i in range(8)]
    pre = ml(un(st, st, 1) + "\nv_mul_f32 v%d, %s, v%d" % (st + 1, hex(f2u(-1.0 / LOG2E)), st + 2))
    pre += [mk(un(X[i], xin + (i >> 1), i & 1)) for i in range(8)]
    if opts.get("x_eps"): pre += ml("v_mul_f32 v%d, %s, v%d" % (st + 1, hex(f2u(1.0 + opts["x_eps"] / 1000.0)), st + 1))
    pre += ml("v_mul_f32 v%d, v%d, v%d" % (st, st, st + 1))
    if pk: pre += op2("fma", XN, X, vr(st, 2), vr(st, 2), " op_sel:[0,1,0] op_sel_hi:[1,1,0]")
    else: pre += op2("fma", XN, X, "v%d" % (st + 1), "v%d" % st)
    m = [W(lg="r%d" % ps)] + op2("add", F, P[0], P[1]) + op2("add", P[2], P[2], P[3]) + op2("add", F, F, P[2])
    m += op2("mul", Y, "s[4:5]" if pk else "s4", F)
    t1 = [mk("v_exp_f32 v%d, v%d" % (Y[i], Y[i])) for i in range(8)]
    t2 = op2("mul", XN, XN, F)
    m += [z for pr in zip(t1, t2) for z in pr] if not pk else t1 + t2
    m += op2("add", Y, "1.0", Y, None, " op_sel_hi:[0,1]" if pk else "")
    m += [mk("v_rcp_f32 v%d, v%d" % (Y[i], Y[i])) for i in range(8)] + [mk("s_nop 0")]
    m += op2("mul", XN, XN, Y)
    my = [W(lg="y%d" % ps)] + [mk(un(Y[i], YR + (i >> 1), i & 1)) for i in range(8)]
    my += op2("fma", X, XN, Y, X)
    my += [mk("v_cvt_pk_bf16_f32 v%d, v%d, v%d" % (xin + i, X[2 * i], X[2 * i + 1])) for i in range(4)]
    my += [mk("buffer_store_dwordx4 %s, v%d, %s, %s offen%s" % (vr(xin), uX, S4(sOut), "s%d" % sT0 if ps else "0", opts.get("fo", " sc1")), vm="out")]
    return wr, pre, rd, m, rdy, my

def conv_start(p, opts, defer=False):
    for i in range(1, 4): p("v_add_u32 v%d, %d, v%d" % (CAR[i], 1024 * i, uCA))
    p.wait(vm="cv", lg="*")
    p("s_barrier")
    stamp(p, "p2bar", opts, 4)
    if defer: return conv_reads(0)
    for x in conv_reads(0): p.add(x)

def phase2(p, opts):
    ORD = opts["_ord"]; RD = opts["_rd"]
    stamp(p, "p2", opts)
    for mt in range(2): p("v_add_u32 v%d, 0x10000, v%d\nv_add_u32 v%d, 0x20000, v%d" % (HI[1] + mt, uTR + mt, HI[2] + mt, uTR + mt))
    hpollA = [mk("buffer_load_dwordx2 v[%d:%d], v%d, %s, 0 offen sc1" % (uPoll, uPoll + 1, uFH, S4(sWS)), vm="hpA")]
    hpollB = [mk("s_mov_b32 s%d, %d" % (sT1, WS_FL)), mk("buffer_load_dwordx2 v[%d:%d], v%d, %s, s%d offen sc1" % (uPoll + 2, uPoll + 3, uFH, S4(sWS), sT1), vm="hpB")]
    tq = []
    for t in range(7):
        if t not in RD: tq += [("w%d" % t if (t not in ORD or t == 6 or (t >= 3 and not opts["_cvlast"])) else None, y) for y in wd_reads(t)]
    wl = lambda t: ([W(lg="t%d" % PREV[t])] if t in PREV else []) + wd_loads(t, opts)
    rest = [t for t in range(7, 14) if t not in ORD]
    nfirst = opts.get("wfirst", 4)
    VQ = (wl(5) if 5 not in ORD else []) + (wl(6) if 6 not in ORD else []) + [x for t in rest[:nfirst] for x in wl(t)]
    rest = rest[nfirst:]
    LEAD = opts.get("wlead", 3)
    CHKA = I("; chkA", cost=0); CHKB = I("; chkB", cost=0)
    VQ.append(CHKA)
    for hs in range(28):
        while rest and rest[0] - 1 - LEAD <= hs: VQ += wl(rest.pop(0))
        if hs == 14: VQ.append(CHKB)
        VQ += h_loads(hs)
    state = {"A": False, "B": False, "issued": {"w%d" % t for t in ORD}}
    def pace(p, done_hs):
        n = 0
        while VQ:
            y = VQ[0]
            if y is CHKA:
                if not state["A"]: return n
                VQ.pop(0); continue
            if y is CHKB:
                if not state["B"]: return n
                VQ.pop(0); continue
            if y.kind == "wait" and any(z.lg == y.lg for _, z in tq): return n
            if y.vm and y.vm[0] == "h" and int(y.vm[1:]) - 16 > done_hs: return n
            VQ.pop(0); p.add(y); n += 1
            if is_m0(y): p("s_nop 0") if False else None
            if is_vm(y): state["issued"].add(y.vm); return n
            if is_m0(y): return n
        return n
    strec = [mk("buffer_load_dwordx4 %s, v%d, %s, 0 offen offset:%d sc1" % (vr((40, 224)[e]), uSto, S4(sWS), 2048 * e), vm="xin") for e in range(2)]
    extra = ml("s_mov_b32 s%d, 131072" % sT0) + [mk("buffer_load_dwordx4 %s, v%d, %s, %s offen" % (vr(uXin + 4 * e), uX, S4(sQ), "s%d" % sT0 if e else "0"), vm="xin") for e in range(2)] + strec
    dq = ml("v_lshrrev_b32 v24, 4, v1\nv_and_b32 v25, 15, v1\nv_lshl_add_u32 v24, v24, 3, v25\nv_sub_u32 v24, 15, v24\nv_lshlrev_b32 v25, 4, v24\nv_and_b32 v25, 16, v25\n"
            "s_sub_u32 s3, s%d, 1\nv_lshlrev_b32 v25, v25, v%d\nv_and_b32 v25, s3, v25\nv_lshrrev_b32 v24, 1, v24" % (sHalf, uD))
    dq += ml("v_cmp_eq_u32 s[4:5], 0, v24\nv_cmp_eq_u32 s[6:7], 1, v24\nv_cmp_eq_u32 s[34:35], 2, v24\nv_cmp_eq_u32 vcc, 3, v24")
    dq += ml("v_cndmask_b32 v%d, 0, v25, s[4:5]\nv_cndmask_b32 v%d, 0, v25, s[6:7]\nv_cndmask_b32 v%d, 0, v25, s[34:35]\nv_cndmask_b32 v%d, 0, v25, vcc" % (uAD, uAD + 1, uAD + 2, uAD + 3))
    pollat = opts.get("hpoll", 24); flagat = opts.get("hflag", 60); chkA = opts.get("hchk", 62); pollB = opts.get("hpollb", 132); SP = opts.get("csp", 4)
    ypoll = [mk("buffer_load_dwordx2 %s, v%d, %s, 0 offen sc1" % (vr(uPoll, 2), uFY, S4(sWS)), vm="yp")]
    ydma = ml("s_lshl_b32 s7, s%d, 1\nv_xor_b32 v3, s7, v1\nv_lshrrev_b32 v2, 3, v1\nv_lshlrev_b32 v2, 12, v2\nv_and_b32 v3, 7, v3\nv_lshl_add_u32 v2, v3, 4, v2\nv_xor_b32 v3, 16, v2\nv_add_u32 v3, %d, v3" % (sWave, 32768 - 1024))
    ydma += ml("s_lshl_b32 s3, s%d, 18\ns_lshl_b32 s7, s%d, 16\ns_add_u32 s3, s3, s7\ns_lshl_b32 s7, s%d, 7\ns_add_u32 s3, s3, s7\ns_add_u32 s3, s3, %d" % (sDB, sWave, sTB2, WS_YT))
    ydma += ml("s_lshl_b32 s7, s%d, 11\ns_add_u32 m0, s7, %d" % (sWave, YT_L))
    adr = ml("v_and_b32 v24, 31, v1\nv_mul_u32_u24 v24, %d, v24\nv_lshrrev_b32 v25, 5, v1\nv_lshl_add_u32 v24, v25, 4, v24\ns_mul_i32 s6, s%d, %d\ns_add_u32 s6, s6, %d\nv_add_u32 v24, s6, v24" % (RS, sWave, REDW, RED[0]))
    adr += ml("v_lshrrev_b32 v25, 5, v1\nv_and_b32 v26, 3, v1\nv_lshl_add_u32 v25, v25, 2, v26\nv_mul_u32_u24 v25, %d, v25\nv_bfe_u32 v26, v1, 2, 3\nv_lshl_add_u32 v25, v26, 5, v25\ns_mul_i32 s6, s%d, %d\ns_add_u32 s6, s6, %d\nv_add_u32 v25, s6, v25" % (RS, sWave, 8 * RS, RED[0]))
    adr += ml("v_bfe_u32 v26, v1, 4, 1\nv_and_b32 v27, 3, v1\nv_lshl_add_u32 v26, v26, 2, v27\nv_xor_b32 v23, s%d, v26\nv_bfe_u32 v27, v1, 2, 2\nv_lshl_add_u32 v26, v26, 3, v27\nv_lshlrev_b32 v26, 7, v26\nv_lshl_add_u32 v26, v23, 4, v26\nv_lshrrev_b32 v27, 5, v1\nv_lshl_add_u32 v26, v27, 3, v26\nv_xor_b32 v27, 64, v26\nv_add_u32 v26, %d, v26\nv_add_u32 v27, %d, v27" % (sWave, YT_L, YT_L))
    chk = [W(vm="xin")] + poll_check("st", [43, 227], strec, 32)
    aq = ydma[:-2] + adr + chk
    first = set(); nm = 0
    for rr in range(4):
        rq = conv_reads(rr + 1) if rr < 3 else []
        b = CFB[rr & 1]
        pairs = sorted([(s1, p1) for s1 in range(8) for p1 in range(8) if s1 + p1 <= 7], key=lambda x: (max(x), x[0] + x[1], x[0]))
        seen = -1; k = 0
        for (s1, p1) in pairs:
            mx = max(s1, p1)
            if mx > seen:
                p.wait(lg="c%d_%d" % (rr, mx)); seen = mx
            acc = vr(uCacc + 4 * (s1 + p1))
            p("v_mfma_f32_16x16x32_bf16 %s, %s, %s, %s" % (acc, vr(b + 4 * s1), vr(b + 32 + 4 * p1), acc if (s1 + p1) in first else "0"))
            first.add(s1 + p1); k += 1; nm += 1
            n = 0
            if rq and k > 2 and (k % 4 != 0): p.add(rq.pop(0)); n += 1
            if dq and nm > 6 and (n == 0 or nm % 2): p.add(dq.pop(0)); n += 1
            if nm % SP == 0 or (VQ and is_m0(VQ[0]) and nm % SP == SP - 1): n += pace(p, -1)
            while tq and n < 2:
                tg = tq[0][0]
                if tg and (tg not in state["issued"] or nm < (opts.get("t56", 84) if tg == "w6" else opts.get("t34", 24))): break
                if tg: p.wait(vm=tg)
                p.add(tq.pop(0)[1]); n += 1
            if aq and nm > opts.get("aqat", 96) and n < 2 and not (n and aq[0].t.startswith("v_") and p.ins[-1].t.startswith("v_") and "mfma" not in p.ins[-1].t):
                p.add(aq.pop(0))
                while aq and aq[0].cost == 0: p.add(aq.pop(0))
            if nm == pollat:
                for x in hpollA: p.add(x)
            if nm == flagat:
                p.wait(vm="hst7"); p("s_barrier"); p.add(flag_store(sFlH, True))
                stamp(p, "hflag", opts)
            if nm == chkA:
                p.wait(vm="hpA")
                for x in poll_check("hA", [uPoll], hpollA): p.add(x)
                stamp(p, "hokA", opts); state["A"] = True
        stamp(p, "cv%d" % rr, opts, 4)
        if rr == 0:
            for x in dq: p.add(x)
            if dq: p("s_nop 1")
            dq = []
            for p1 in range(8):
                acc = vr(uCacc + 4 * p1)
                p("v_mfma_f32_16x16x32_bf16 %s, %s, %s, %s" % (acc, vr(uAD), vr(b + 32 + 4 * p1), acc))
                if rq: p.add(rq.pop(0))
                if p1 % 4 == 1: pace(p, -1)
            for x in extra: p.add(x)
        for x in rq: p.add(x)
    print("conv: left-over reads %d, queued loads %d" % (len(tq), len(VQ)), file=sys.stderr)
    assert not tq
    cur_hs = [-1]
    def pace2():
        if pace(p, cur_hs[0]) and is_m0(p.ins[-1]): p("s_nop 0"); pace(p, cur_hs[0])
    for x in aq: p.add(x)
    stamp(p, "convend", opts)
    p("s_lshl_b32 s7, s%d, 13\ns_add_u32 s7, s7, %d\nv_add_u32 v4, s7, v%d\ns_and_b32 s7, s%d, 2\ns_lshl_b32 s7, s7, 13\ns_lshl_b32 s6, s%d, 12\ns_add_u32 s7, s7, s6\ns_add_u32 s7, s7, %d\nv_add_u32 v5, s7, v%d" % (sWave, XCH, vL16, sWave, sHalf, XCH, vL16))
    for x in hpollB: p.add(x)
    p("s_barrier")
    for i in range(8):
        p("ds_write_b128 v4, %s offset:%d" % (vr(uCacc + 4 * i), i * 1024))
        if i % 3 == 1: pace2()
    stamp(p, "xw", opts, 4)
    p("s_waitcnt lgkmcnt(0)\ns_barrier")
    for i in range(4):
        p("ds_read_b128 %s, v5 offset:%d" % (vr(uCacc + 4 * i), i * 1024), lg="xr%d" % i)
        p("ds_read_b128 %s, v5 offset:%d" % (vr(uCacc + 16 + 4 * i), 8192 + i * 1024), lg="xr%d" % i)
    pace2()
    for i in range(4):
        p.wait(lg="xr%d" % i)
        for e in range(2): p("v_pk_add_f32 %s, %s, %s" % (vr(uCacc + 4 * i + 2 * e, 2), vr(uCacc + 4 * i + 2 * e, 2), vr(uCacc + 16 + 4 * i + 2 * e, 2)))
    for i in range(4):
        o = uTmp + 4 * (i >> 1) + 2 * (i & 1)
        p("v_cvt_pk_bf16_f32 v%d, v%d, v%d\nv_cvt_pk_bf16_f32 v%d, v%d, v%d" % (o, uCacc + 4 * i, uCacc + 4 * i + 1, o + 1, uCacc + 4 * i + 2, uCacc + 4 * i + 3))
    pace2(); p("s_nop 0")
    for h in range(2):
        o = uTmp + 4 * h
        p("v_permlane16_swap_b32 v%d, v%d\nv_permlane16_swap_b32 v%d, v%d" % (o, o + 2, o + 1, o + 3))
    for h in range(2):
        p("buffer_store_dwordx4 %s, v%d, %s, s%d offen offset:%d sc1" % (vr(uTmp + 4 * h), uYst, S4(sWS), sYoff, h * 1024), vm="yst")
    stamp(p, "g2go", opts)
    wrA, preA, rdA, mA, rdyA, myA = out_half(0, opts, False)
    wrB, preB, rdB, mB, rdyB, myB = out_half(1, opts, True)
    YF = opts.get("yflag", 6); YP = opts.get("ypoll", 19); YC = YP + opts.get("ychk", 5); RB = opts.get("rbar", 20); RY = opts.get("ybar", YC + 5)
    HB = opts.get("hb", 5); HL = opts.get("hl", 6)
    xq = []
    def X_(at, L): xq.extend((at, y) for y in L)
    X_(0, preA + [mk("s_mov_b32 s4, %s" % hex(f2u(-LOG2E))), mk("s_mov_b32 s5, s4")])
    for i, y in enumerate(wrA): X_(4 * 14 + 5 + opts.get("wsp", 2) * i, [y])
    X_(4 * RB, [W(lg="*"), mk("s_barrier")] + rdA)
    X_(4 * RB + 6, mA)
    GB = opts.get("gbud", 24)
    for hs in range(28):
        ps, s = divmod(hs, 14)
        cur_hs[0] = hs - 1
        while "h%d" % hs not in state["issued"] or any(y.vm == "h%d" % hs for y in VQ) or (ps == 0 and s < 13 and any(y.vm == "w%d" % (s + 1) for y in VQ)): pace2()
        rq = wd_reads(s + 1) if (ps == 0 and 7 <= s + 1 < 14) else []
        if hs == HB:
            p.wait(vm="hpB")
            for x in poll_check("hB", [uPoll + 2], hpollB): p.add(x)
            stamp(p, "hokB", opts); state["B"] = True
        if hs == YF: p.wait(vm="yst"); p("s_barrier"); p.add(flag_store(sFlY, True))
        if hs == YP: p.add(ypoll[0])
        if hs == YC:
            p.wait(vm="yp")
            for x in poll_check("y", [uPoll], ypoll): p.add(x)
            assert not any(is_m0(y) or y.t.endswith(" lds") for y in VQ)
            for x in ydma[-2:]: p.add(x)
            p("s_nop 0")
            p.add(dma(2, sWS, "s3", 0, "yt", " sc1")); p.add(dma(3, sWS, "s3", 1024, "yt", " sc1"))
            stamp(p, "yok", opts, 4)
        RT = opts.get("rtail", 0)
        if hs < 28 - RT: work = [(hs, e, mt) for e in range(2) for mt in range(2)]
        else:
            j = hs - (28 - RT); allw = [(h_, e, mt) for mt in range(2) for h_ in range(28 - RT, 28) for e in range(2)]
            work = allw[4 * j:4 * j + 4]
            if j == RT // 2:
                X_(4 * hs, [mk("v_add_u32 v24, %d, v24" % ((RED[1] - RED[0]) & 0xffffffff))])
                nw_ = min(4, 2 * RT - 3)
                for i, y in enumerate(wrB[:nw_]): X_(4 * hs + 3 + i, [y])
                wrB = wrB[nw_:]
        p.wait(vm="h%d" % max(h_ for h_, _, _ in work), lg="t%d" % s)
        for m, (h_, e, mt) in enumerate(work):
            acc = vr(uAcc + 32 * ps + 16 * mt, 16)
            hr = aH + 8 * (h_ % 16) + 4 * e
            k, b = wfrag(h_ % 14, 2 * e + mt)
            p("v_mfma_f32_32x32x16_bf16 %s, %s[%d:%d], a[%d:%d], %s" % (acc, k, b, b + 3, hr, hr + 3, acc if (s or e) else "0"))
            i0_ = len(p.ins)
            used = lambda: sum(y.cost for y in p.ins[i0_:]) + (4 if m == 3 else 0)
            tgt = "h%d" % min(27, hs + HL)
            left = max([i + 1 for i, y in enumerate(VQ) if y.vm == tgt] + [0])
            for _ in range(-(-left // (4 - m))):
                k_ = pace(p, hs - 1)
                if k_ == 0: break
                if is_m0(p.ins[-1]):
                    if rq: p.add(rq.pop(0)) if (m or True) and not (m == 0) else p("s_nop 0")
                    else: p("s_nop 0")
            if m == 0 and rq: p.wait(vm="w%d" % (s + 1))
            for _ in range(-(-len(rq) // (4 - m))): p.add(rq.pop(0))
            g = 4 * hs + m
            while xq and xq[0][0] <= g and used() + xq[0][1].cost <= GB: p.add(xq.pop(0)[1])
        assert not rq
        if hs == 13: stamp(p, "g2A", opts)
        elif hs % 3 == 0: stamp(p, "h%d" % hs, opts, 4)
    print("gemm2: left-over epilogue items %d" % len(xq), file=sys.stderr)
    stamp(p, "g2end", opts)
    if len(wrB) == 8: p("v_add_u32 v24, %d, v24" % ((RED[1] - RED[0]) & 0xffffffff))
    p("v_add_u32 v25, %d, v25" % ((RED[1] - RED[0]) & 0xffffffff))
    tail = [y for _, y in xq] + preB
    nop = max(0, 6 - len(tail))
    for x in tail[:12]: p.add(x)
    tail = tail[12:]
    for x in wrB:
        p.add(x)
        for _ in range(3):
            if tail: p.add(tail.pop(0))
    for x in tail: p.add(x)
    p.wait(vm="yt", lg="*"); p("s_barrier")
    stamp(p, "red", opts)
    if opts.get("ytail", 1):
        myA = out_half(0, opts, True)[5]
        for x in rdyA + rdB + rdyB + myA[:-1]: p.add(x)
        if opts.get("oearly", 1): p.add(myA[-1])
        for x in mB + myB[:-1]: p.add(x)
        stamp(p, "prest", opts)
        if not opts.get("oearly", 1): p.add(myA[-1])
        p.add(myB[-1])
    else:
        for x in rdB + rdyB + mB + myB: p.add(x)
    stamp(p, "fin", opts)

def aux(p, opts):
    p("s_lshl_b32 s3, s2, 6\ns_lshl_b32 s4, s%d, 4\ns_add_u32 s3, s3, s4" % sWave)
    p("v_add_u32 v12, s3, v2\nv_lshlrev_b32 v10, 10, v12\nv_lshl_add_u32 v10, v3, 4, v10\nv_add_u32 v11, 8192, v10\nv_mov_b32 v13, v3")
    p("s_memrealtime s[%d:%d]" % (sTag, sTag + 1))
    p("s_waitcnt lgkmcnt(0)")
    p("s_mov_b32 s%d, s74\ns_mov_b32 s%d, s75" % (sDbg, sDbg + 1))
    p("s_lshr_b32 s3, s2, %d\ns_or_b32 s3, s3, s%d\ns_cmp_lg_u32 s3, 0\ns_cselect_b64 exec, 0, 1" % (3 if opts.get("cas", 1) else 0, sWave))
    p("s_or_b32 s%d, s%d, 1\nv_mov_b32 v16, s%d\nv_mov_b32 v17, s%d\nv_mov_b32 v18, 0\nv_mov_b32 v19, 0\ns_cbranch_execz L_aux_nt" % (sTag, sTag, sTag, sTag + 1))
    p("global_atomic_cmpswap_x2 v%d, v[16:19], s[%d:%d] sc1" % (vNon + 2, sDbg, sDbg + 1))
    p.label("L_aux_nt")
    p("s_mov_b64 exec, -1")
    srd(p, sQ, kQ, 2048 * 1024)
    for g in range(2):
        for i in range(8):
            p("buffer_load_dwordx4 %s, v%d, %s, 0 offen offset:%d" % (vr(116 + 32 * g + 4 * i), 10 + g, S4(sQ), i * 128), vm="sx%d" % g)
        if g == 0:
            srd(p, sWS, kWS, WS_SZ)
            kv_setup(p); ids2(p); hk_srds(p)
            phase2_setup(p, opts)
    nld, nchk = nonce_get("na")
    p.add(nld)
    p("s_mov_b32 s5, 0x3f803f80")
    for g in range(2):
        p.wait(vm="sx%d" % g if g == 0 else "non")
        stamp(p, "a.sx%d" % g, opts, 3)
        if g == 1:
            p("v_lshlrev_b32 v10, 7, v1\ns_mov_b32 s12, s60\ns_and_b32 s13, s61, 0xffff\ns_mov_b32 s14, 0x200000\ns_mov_b32 s15, 0x20000")
            p("s_mov_b32 s24, s70\ns_and_b32 s25, s71, 0xffff\ns_mov_b32 s26, %d\ns_mov_b32 s27, 0x20000" % (1792 * 1024))
            p("s_lshl_b32 s3, s2, 16\ns_lshl_b32 s4, s%d, 14\ns_add_u32 s21, s3, s4\ns_mul_i32 s3, s2, 57344\ns_mul_i32 s4, s%d, 14336\ns_add_u32 s22, s3, s4" % (sWave, sWave))

        s1 = 16 + 4 * g; s2 = s1 + 1
        for r in range(32):
            x = 116 + 32 * g + r; c = r & 1
            p("v_dot2_f32_bf16 v%d, v%d, s5, %s" % (s1 + 2 * c, x, "v%d" % (s1 + 2 * c) if r > 1 else "0"))
            p("v_dot2_f32_bf16 v%d, v%d, v%d, %s" % (s2 + 2 * c, x, x, "v%d" % (s2 + 2 * c) if r > 1 else "0"))
    for x in nchk: p.add(x)
    p("v_add_f32 v16, v16, v18\nv_add_f32 v17, v17, v19\nv_add_f32 v18, v20, v22\nv_add_f32 v19, v21, v23")
    for mod in ("quad_perm:[1,0,3,2]", "quad_perm:[2,3,0,1]", "row_half_mirror"):
        for r in range(16, 20): p("v_add_f32_dpp v%d, v%d, v%d %s row_mask:0xf bank_mask:0xf" % (r, r, r, mod))
    ops = [[], []]
    for g in range(2):
        S1 = 16 + 2 * g; S2 = S1 + 1; o = 20 + 4 * g
        ops[g] = ["v_mul_f32 v%d, %s, v%d" % (S1, hex(f2u(1.0 / 512)), S1), "v_mul_f32 v%d, %s, v%d" % (S2, hex(f2u(1.0 / 512)), S2),
                  "v_fma_f32 v%d, -v%d, v%d, v%d" % (S2, S1, S1, S2), "v_max_f32 v%d, 0, v%d" % (S2, S2),
                  "v_cvt_pk_bf16_f32 v%d, v%d, v%d" % (S2, S2, S2), "v_and_b32 v%d, 0xffff0000, v%d" % (S2, S2),
                  "v_add_f32 v%d, %s, v%d" % (S2, hex(f2u(1e-5)), S2),
                  "v_cvt_pk_bf16_f32 v%d, v%d, v%d" % (S2, S2, S2), "v_and_b32 v%d, 0xffff0000, v%d" % (S2, S2),
                  "v_sqrt_f32 v%d, v%d" % (S2, S2), "v_cvt_pk_bf16_f32 v%d, -v%d, -v%d" % (o, S1, S1),
                  "v_cvt_pk_bf16_f32 v%d, v%d, v%d" % (S2, S2, S2), "v_and_b32 v%d, 0xffff0000, v%d" % (S2, S2),
                  "v_rcp_f32 v%d, v%d" % (o + 2, S2), "v_mul_f32 v%d, %s, v%d" % (o + 1, hex(f2u(-LOG2E)), S2),
                  "v_mul_f32 v%d, %s, v%d" % (o + 2, hex(f2u(-LOG2E)), o + 2), "v_mov_b32 v%d, s%d" % (o + 3, sTag)]
    p("v_cmp_eq_u32 vcc, 0, v13\nv_lshlrev_b32 v12, 4, v12\nv_add_u32 v12, %d, v12\nv_mov_b32 v14, 0x80000000\nv_cndmask_b32 v12, v14, v12, vcc" % WS_ST)
    for x0, x1 in zip(*ops): p(x0); p(x1)
    p("buffer_store_dwordx4 v[20:23], v12, %s, 0 offen sc1" % S4(sWS), vm="pub")
    p("buffer_store_dwordx4 v[24:27], v12, %s, 0 offen offset:128 sc1" % S4(sWS), vm="pub")
    stamp(p, "a.stats", opts)
    tW = ["buffer_load_dword v28, v10, s[24:27], s22 offen\ns_add_u32 s22, s22, 6144", "buffer_load_dword v28, v10, s[24:27], s22 offen"]
    tK = ["buffer_load_dword v28, v10, s[12:15], s21 offen\ns_add_u32 s21, s21, 8192", "buffer_load_dword v28, v10, s[12:15], s21 offen"]
    WM = opts.get("warm", 1)
    tq_ = {0: [], 1: tW + tK, 2: tW, 3: tK + tW, 4: tW + tK}[WM]
    p("s_barrier")
    if opts.get("atlb"):
        sh = opts["atlb"]
        p("s_lshr_b32 s3, s2, 3\ns_lshl_b32 s3, s3, 2\ns_add_u32 s3, s3, s%d\ns_lshl_b32 s3, s3, %d\nv_lshlrev_b32 v11, %d, v1\nv_add_u32 v11, s3, v11" % (sWave, sh + 6, sh))
        p("buffer_load_dword v28, v11, %s, 0 offen" % S4(sWS), vm="warm")
    seq(p, kv_loads(opts) + hk_loads(opts))
    if WM == 4: p(tq_.pop(0), vm="warm")
    for x in phase2_srds(): p.add(x)
    p.wait(vm="hk")
    p("s_barrier")
    for _ in range(opts.get("warm1", 1)):
        if tq_: p(tq_.pop(0), vm="warm")
    for x in kv_compute() + kv_stores(): p.add(x)
    stamp(p, "a.kv", opts)
    seq(p, hk_build())
    if tq_ and opts.get("warm2", 1): p(tq_.pop(0), vm="warm")
    p.wait(vm="kvst", lg="*")
    p.add(flag_store(sFlK))
    stamp(p, "a.kvfl", opts)
    for x in tq_: p(x, vm="warm")
    stamp(p, "a.warm", opts)
    p("s_lshl_b32 s3, s2, 7\ns_add_u32 s%d, s3, %d" % (sFlH, WS_FD))
    for x in fl0_setup(): p.add(x)
    p("s_barrier")
    for mt in range(2): p("v_add_u32 v%d, 0x20000, v%d" % (uTR2 + mt, uTR + mt))
    prev = PREV
    for t in sorted(opts["_ord"]):
        if t in prev:
            p.wait(vm="w%d" % prev[t])
            for x in wd_reads(prev[t], True): p.add(x)
            p.wait(lg="*")
        seq(p, wd_loads(t, opts))
    for s in range(7): p("s_mov_b32 s%d, %d" % (sTab + s, s * 4096))
    kvpoll = [mk("buffer_load_dwordx2 v[%d:%d], v%d, %s, 0 offen sc1" % (uPoll, uPoll + 1, uFK, S4(sWS)), vm="kvp")]
    p.add(kvpoll[0])
    p.wait(vm="kvp")
    for x in poll_check("kva", [uPoll], kvpoll): p.add(x)
    seq(p, conv_xr())
    p("s_waitcnt vmcnt(0)")
    stamp(p, "a.pre", opts)
    conv_start(p, opts)

def pollf(t, opts):
    if opts["pollf"] == "atom":
        m = re.match(r"buffer_load_dwordx2 v\[(\d+):(\d+)\], (.*) sc1", t)
        if not m: return t
        return "v_mov_b32 v%s, 0\nv_mov_b32 v%s, 0\nbuffer_atomic_add_x2 v[%s:%s], %s sc0 sc1" % (m.group(1), m.group(2), m.group(1), m.group(2), m.group(3))
    return t.replace(" sc1", " " + opts["pollf"].replace("+", " "))
def emit(a, lines):
    for l in lines: a(l if l.endswith(":") else "  " + l)

def build(opts):
    del SLOW[:]
    if "rho" in opts: RHO[:] = [int(c) for c in str(opts["rho"]).rjust(3, "0")]
    PROF[0] = opts.get("prof", 0); SLEEP['*'] = opts.get("sleep", 2)
    name = KN + "_kernel"
    a = A()
    a(header(["; @launch grid=(256,1,1) block=(256,1,1) lds=163840"]))
    a(kernel_begin(name))
    a("s_load_dwordx8 s[80:87], s[0:1], 0\ns_load_dwordx16 s[60:75], s[0:1], 32\ns_load_dwordx2 s[76:77], s[0:1], 96")
    a("s_cmp_ge_u32 s2, 256\ns_cbranch_scc1 L_end")
    if opts.get("prof"):
        a("s_memrealtime s[78:79]\ns_memtime s[100:101]\nv_mov_b32 v255, 0\ns_waitcnt lgkmcnt(0)\nv_writelane_b32 v255, s100, 0\nv_writelane_b32 v255, s78, 62")
    p0 = Prog(); common_setup(p0, opts); c0 = p0.resolve()
    a("s_cmp_ge_u32 s2, 32\ns_cbranch_scc1 L_gemm")
    if opts.get("ipf", 1):
        a("s_getpc_b64 s[4:5]\nv_lshlrev_b32 v1, 7, v0\ns_and_b32 s4, s4, 0xffffff00\nv_min_u32 v1, L_code_end-%s-128, v1\nglobal_load_dword v200, v1, s[4:5]" % name)
    a("s_branch L_aux")
    a.label("L_gemm")
    emit(a, c0)
    p = Prog(); gemm1(p, opts); p.label("L_phase2"); phase2(p, opts)
    pa = Prog(); aux(pa, opts)
    for q in (p, pa):
        if opts.get("x_nochk"): q.ins = [y for y in q.ins if not ("s_cbranch_vccnz L_slow" in y.t)]
        if opts.get("x_nost"): q.ins = [y for y in q.ins if not (y.t.startswith("buffer_store") and "sc1" in y.t)]
        if opts.get("x_nofl"): q.ins = [y for y in q.ins if not (y.t.startswith("buffer_store_dwordx2") and "v[6:7]" in y.t)]
        if opts.get("x_nokv"): q.ins = [y for y in q.ins if not (y.vm in ("kv", "hk") and y.kind != "wait")]
        if opts.get("pollf"):
            for y in q.ins:
                if y.vm in ("kvp", "hpA", "hpB", "yp", "wfp") and y.t.startswith("buffer_load"): y.t = pollf(y.t, opts)
        if opts.get("x_nohb"): q.ins = [y for y in q.ins if not ("v39" in y.t or y.t.startswith("v_alignbit") or y.lg == "hb")]
        if opts.get("x_nowb"): q.ins = [y for y in q.ins if not (y.vm in ("w0", "w1", "w2", "w3", "w4", "w7") and y.kind != "wait")]
        if opts.get("x_drop"):
            dr = str(opts["x_drop"]).split("+")
            q.ins = [y for y in q.ins if not (y.kind != "wait" and y.vm in dr)]
        if opts.get("x_dropw"):
            dr = str(opts["x_dropw"]).split("+")
            q.ins = [y for y in q.ins if not (y.kind == "wait" and y.vm in dr)]
        if opts.get("x_nopoll"): q.ins = [y for y in q.ins if not (y.vm in ("rec", "kvp", "hpA", "hpB", "yp", "wfp") and y.kind != "wait")]
    if opts.get("prof") and "q0" in opts:
        regs = [12, 14, 22, 24, 50, 80, 82, 98]
        i0 = [i for i, y in enumerate(p.ins) if y.t == "L_phase2:"][0]
        out = p.ins[:i0 + 1]; cnt = 0; mf = 0; k = 0
        for y in p.ins[i0 + 1:]:
            out.append(y)
            ism = "v_mfma" in y.t
            mf += ism
            if (mf >= opts.get("qm", 0) and y.kind != "label") if opts.get("qi") else ism:
                cnt += 1
                if k < 8 and cnt == opts["q0"] + k * opts.get("qd", 8):
                    out.append(mk("s_memtime s[%d:%d]" % (regs[k], regs[k] + 1))); k += 1
        out.append(mk("s_waitcnt lgkmcnt(0)"))
        for j in range(k):
            STAMPS.append("Q%d" % (opts["q0"] + j * opts.get("qd", 8))); out.append(mk("v_writelane_b32 v255, s%d, %d" % (regs[j], len(STAMPS) - 1)))
        p.ins = out
    lines = p.resolve()
    la = pa.resolve()
    lines = fix_hazards(lines, "main")
    pr = check_hazards(lines, "main") + check_hazards(la, "aux")
    for x in pr[:40]: print("HAZARD", x, file=sys.stderr)
    if pr: raise SystemExit("hazards")
    emit(a, lines)
    if opts.get("prof"):
        a("s_waitcnt vmcnt(0) lgkmcnt(0)\ns_memtime s[100:101]\ns_memrealtime s[78:79]\ns_load_dwordx2 s[4:5], s[0:1], 96\ns_waitcnt lgkmcnt(0)")
        a("v_writelane_b32 v255, s100, 60\nv_writelane_b32 v255, s78, 63\ns_getreg_b32 s100, hwreg(HW_REG_XCC_ID)\nv_writelane_b32 v255, s100, 61")
        a("s_lshl_b32 s6, s2, 10\ns_lshl_b32 s7, s%d, 8\ns_add_u32 s6, s6, s7\ns_add_u32 s6, s6, 0x1000000\ns_add_u32 s4, s4, s6\ns_addc_u32 s5, s5, 0" % sWave)
        a("v_lshlrev_b32 v2, 2, v1\nglobal_store_dword v2, v255, s[4:5]\ns_waitcnt vmcnt(0)")
        a("; STAMPS " + " ".join(STAMPS))
        a("; SPINS " + " ".join(SPINS))
    a.label("L_end")
    a("s_endpgm")
    a.label("L_aux")
    emit(a, c0)
    emit(a, la)
    a("s_branch L_phase2")
    for t in SLOW:
        if opts.get("pollf"): t = "\n".join(pollf(l, opts) if (l.startswith("buffer_load_dwordx2 v[25") or l.startswith("buffer_load_dwordx2 v[2:3]") or l.startswith("buffer_load_dwordx4 v[250")) else l for l in t.split("\n"))
        a(t)
    a.label("L_code_end")
    a(RODATA)
    a(kernel_desc(name, 512, 102, 256))
    return a.text()

if __name__ == "__main__":
    opts = {}
    for kv in sys.argv[2:]:
        k, _, v = kv.partition("=")
        opts[k] = int(v) if v.lstrip("-").isdigit() else (v if v else 1)
    for k in ("fw", "fx", "fd", "fk", "fkv", "fo", "fr", "fh"):
        if k in opts: opts[k] = "" if opts[k] == "none" else " " + opts[k].replace("+", " ")
    open(sys.argv[1], "w").write(build(opts))
```

```python
import sys, struct, re
from asmlib import *
from sched import *

WS_H  = 0x000000
WS_XR = 0x700000
WS_YT = 0x900000
WS_ST = 0xB00000
WS_FK = 0xB08000
WS_FH = 0xB10000
WS_FY = 0xB18000
WS_FD = 0xB20000
WS_FL = 0x20000
WS_CS = 0xB48000
WS_SZ = 0xC00000
LOG2E = 1.4426950408889634
SPIN_MAX = 1 << 16

def f2u(x): return struct.unpack("<I", struct.pack("<f", x))[0]
def vr(b, n=4, p="v"): return "%s[%d:%d]" % (p, b, b + n - 1) if n > 1 else "%s%d" % (p, b)
def S4(b): return "s[%d:%d]" % (b, b + 3)
def srd(p, d, lo, size):
    p("s_mov_b32 s%d, s%d\ns_and_b32 s%d, s%d, 0xffff\ns_mov_b32 s%d, 0x%x\ns_mov_b32 s%d, 0x20000" % (d, lo, d + 1, lo + 1, d + 2, size, d + 3))
def ml(t, **kw): return [mk(x, **kw) for x in t.split("\n")]
def bundle(t):
    b = I(t, cost=4 * len(t.split("\n"))); b.kind = "bundle"; return b

SLOT = 32768
CONV = 98304; CH_STRIDE = 12928; XR_OFF = 8320
UNIT = [141312, 0, 16384, 32768, 49152, 65536, 81920, 124416]
WUN = {t: t % 7 for t in range(14)}
WUN[5] = 7; PREV = {7: 0, 8: 1, 9: 2, 10: 3, 11: 4, 13: 6}
def wdl(s): return UNIT[WUN[s]]
KVL = 141312
RS = 272; REDW = 32 * RS
RED = [CONV, 0]
YT_L = CONV + 4 * REDW; XCH = CONV
sQ = 8; sW = 12; sWS = 16; sWave = 20; sTB = 21; sCB = 22; sLdsX = 23; sLdsW = 24; sLdsXB = 25; sT0 = 26; sT1 = 27
sHa = 28; sST = 29; sFlK = 30; sDoff = 31; sDbg = 32; sT2 = 34; sT3 = 35; sWd = 36; sHk = 40; sOut = 44; sTag = 48
sXB = 50
sCSw = 52; sTB2 = 53; sDB = 54; sCV = 55; sXRso = 56; sYoff = 57; sFlH = 58; sFlY = 59
sTabW = 60
sHalf = 74; sCh4k = 75; sSpin = 76; sWdL = 77
sDp = 80
sTab = 84
sK = 36; sV = 44; sSh = 64
kSK = 60; kD = 62;
kBX = 64; kWG = 66; kWU = 68; kWD = 70; kOUT = 72; kDBG = 74; kWS = 76; kQ = 80; kK = 82; kV = 84; kSH = 86
vKD = 2
vTag = 6; vFl = 8
vWD = 10; vXD = 14; vXA = 18; vWA = 26; vHoff = 28; vSToff = 29; vCSoff = 30; vL16 = 31; vNon = 32
vKA = 36; vKO = 37; vSH = 38
vR1A = 40; vR1B = 44; vOnes = 180; vST = 52; vXF = 84; vACC = 116; vTMP = 212; vOUT = 220
vCSR = 180; vCSA = 196
uWD = 228; uH = 232; uTR = 236; uCA = 240; uCB = 241; uYst = 242; uFY = 243; uX = 244; uSto = 245; uFH = 246; uFK = 247
uHead = 248; uHeadA = 249; uPoll = 250; uD = 254
uAD = 40; uTmp = 32; uXin = 44; uSt = 52; uCacc = 116; uAcc = 120
CFB = (148, 52); aH = 0
def wfrag(s, mt):
    if s < 8: return "a", 128 + 16 * s + 4 * mt
    if s < 10: return "v", 184 + 16 * (s - 8) + 4 * mt
    return "v", 56 + 16 * (s - 10) + 4 * mt

STAMPS = ["start"]
def stamp_l(name, opts, lvl=1):
    if opts.get("amp") == name: return ml("s_memrealtime s[100:101]", cost=0)
    if opts.get("amp0") == name: return ml("s_memrealtime s[78:79]", cost=0)
    if not opts.get("prof") or opts.get("plvl", 1) == 0 or (lvl > 1 and lvl != opts.get("plvl", 1)): return []
    if name not in STAMPS: STAMPS.append(name)
    idx = STAMPS.index(name)
    assert idx < 48
    return ml("s_memtime s[100:101]\ns_waitcnt lgkmcnt(0)\nv_writelane_b32 v255, s100, %d" % idx, cost=0)
def stamp(p, name, opts, lvl=1):
    for x in stamp_l(name, opts, lvl): p.add(x)

def acc_of(t): return vACC + 16 * {0: 0, 1: 1, 2: 2, 3: 3, 4: 4, 5: 5, 6: 0, 7: 1}[t]
def win(addr): return addr >> 16, addr & 0xffff
def dma(v, srd_, so, off, tag, fl=""):
    return mk("buffer_load_dwordx4 v%d, %s, %s offen offset:%d%s lds" % (v, S4(srd_), so, off, fl), vm=tag)
def is_m0(x): return " m0," in x.t
def is_vm(x): return x.t.startswith("buffer_") or x.t.startswith("global_")
def seq(p, L):
    L = [x for x in L if x.kind != "delay"]
    for i, x in enumerate(L):
        p.add(x)
        if is_m0(x) and i + 1 < len(L) and is_vm(L[i + 1]): p("s_nop 0")
vFl0 = 9
def flag_store(so, wg=False, tag="fl"):
    return mk("buffer_store_dwordx2 v[%d:%d], v%d, %s, s%d offen sc1" % (vTag, vTag + 1, vFl0 if wg else vFl, S4(sWS), so), vm=tag)
def fl0_setup():
    return ml("s_lshl_b32 s6, s%d, 31\ns_lshl_b32 s7, s%d, 30\ns_or_b32 s6, s6, s7\ns_and_b32 s6, s6, 0x80000000\nv_or_b32 v%d, s6, v%d" % (sWave, sWave, vFl0, vFl))

def g1_stage(s, opts):
    L = []; base = (s % 3) * SLOT; tag = "st%d" % s
    fw = opts.get("fw", ""); fx = opts.get("fx", "")
    if s < 8:
        L.append(mk("s_add_u32 m0, s%d, %d" % (sLdsW, base)))
        L += [dma(vWD + j, sW, "s%d" % (sTab + s), j * 1024, tag, fw) for j in range(4)]
        L.append(mk("s_add_u32 m0, s%d, %d" % (sLdsX, base)))
        L += [dma(vXD + j, sQ, "s%d" % (sTab + 8 + s), j * 1024, tag, fx) for j in range(4)]
    else:
        for h in range(2):
            L.append(mk("s_add_u32 m0, s%d, %d" % (sLdsXB, base + h * 4096)))
            L.append(mk("s_add_u32 s%d, s%d, %d" % (sT0 + h, sXB + h, (s - 8) * 32768)))
            L += [dma(vXD + j, sQ, "s%d" % (sT0 + h), j * 1024, tag, fx) for j in range(4)]
    return L
def wd_loads(s, opts):
    return [mk("s_add_u32 m0, s%d, %d" % (sWdL, wdl(s)))] + \
           [dma(uWD + j, sWd, "s%d" % (sTabW + s), j * 1024, "w%d" % s, opts.get("fd", "")) for j in range(4)]
def h_loads(hs):
    ps, s = divmod(hs, 14)
    L = []
    for e in range(2):
        r = aH + 8 * (hs % 16) + 4 * e
        L.append(mk("buffer_load_dwordx4 a[%d:%d], v%d, %s, s%d offen offset:%d sc1" % (r, r + 3, uH + ps, S4(sWS), sTab + (s >> 1), e * 1024 + (s & 1) * 2048), vm="h%d" % hs))
    return L
HI = {1: 216, 2: 220}
uTR2 = 2
def wd_reads(s, inB=False):
    L = []
    w, off = win(wdl(s))
    for f in range(4):
        e, mt = f >> 1, f & 1
        k, b = wfrag(s, f)
        reg = uTR + mt if w == 0 else (uTR2 + mt if inB else HI[w] + mt)
        L.append(mk("ds_read_b64_tr_b16 %s[%d:%d], v%d offset:%d" % (k, b, b + 1, reg, off + e * 2048), lg="t%d" % s))
        L.append(mk("ds_read_b64_tr_b16 %s[%d:%d], v%d offset:%d" % (k, b + 2, b + 3, reg, off + e * 2048 + 512), lg="t%d" % s))
    return L
def hk_loads(opts):
    L = ml("s_lshl_b32 s6, s%d, 11\ns_add_u32 m0, s6, s%d\ns_add_u32 m0, m0, 32" % (sHalf, sCV))
    L += [dma(vL16, sHk, "s6", j * 1024, "hk", opts.get("fk", "")) for j in range(2)]
    L.append(mk("buffer_load_ushort v%d, v%d, %s, 0 offen" % (uHead, uHead, S4(sHk)), vm="hk"))
    L.append(mk("buffer_load_ushort v%d, off, %s, s%d" % (uD, S4(sDp), sDoff), vm="hk"))
    return L
def delay(n):
    d = I("; delay", cost=0); d.kind = "delay"; d.vm = n; return d
def hk_build(alt=0):
    D = [212, 213, 214, 215, 216, 217]; E1 = 220; E3 = 224; C2 = 52
    if alt: D = [10, 11, 12, 13, 26, 27]; E1 = 32; E3 = 32; C2 = 32
    L = ml("s_lshl_b32 s5, s%d, 11\ns_add_u32 s5, s5, s%d\nv_add_u32 v39, s5, v%d\nds_write_b16 v%d, v%d" % (sHalf, sCV, vL16, uHeadA, uHead))
    for j in range(2):
        o = 32 + j * 1024
        L.append(mk("ds_read_b128 %s, v39 offset:%d" % (vr(D[0]), o), lg="hb"))
        L.append(mk("ds_read_b32 v%d, v39 offset:%d" % (D[4], o + 16), lg="hb"))
        L += [delay(5), W(lg="hb")]
        L += [mk("v_alignbit_b32 v%d, v%d, v%d, 16" % (E1 + i, D[i + 1], D[i])) for i in range(4)]
        L += [delay(1), mk("ds_write_b128 v39, %s offset:%d" % (vr(E1), o + 4160), cost=12), delay(2)]
    return L
def conv_xr():
    L = ml("s_lshl_b32 s7, s%d, 10\ns_add_u32 m0, s7, %d" % (sWave, CONV + XR_OFF))
    L += [dma(vL16, sWS, "s%d" % sXRso, 0, "cv", " sc1")]
    L += ml("s_add_u32 s%d, s%d, 4096\ns_add_u32 m0, s7, %d" % (sXRso, sXRso, CONV + CH_STRIDE + XR_OFF))
    L += [dma(vL16, sWS, "s%d" % sXRso, 0, "cv", " sc1")]
    return L
CAR = [uCA, 10, 11, 12]
def conv_reads(rr):
    L = []; b = CFB[rr & 1]
    for i in range(8):
        a = b + 4 * i; t = "c%d_%d" % (rr, i)
        ar = CAR[i >> 1]; o = 16 * rr + 128 * (i & 1)
        L.append(mk("ds_read2_b32 v[%d:%d], v%d offset0:%d offset1:%d" % (a, a + 1, ar, o, o + 1), lg=t))
        L.append(mk("ds_read2_b32 v[%d:%d], v%d offset0:%d offset1:%d" % (a + 2, a + 3, ar, o + 2, o + 3), lg=t))
        L.append(mk("ds_read_b128 v[%d:%d], v%d offset:%d" % (a + 32, a + 35, uCB, 3584 - 512 * i + 64 * rr), lg=t))
    return L

def kv_setup(p):
    p("s_lshr_b32 s3, s2, 3\ns_lshl_b32 s3, s3, 16\ns_and_b32 s4, s2, 7\ns_lshl_b32 s5, s4, 7\ns_add_u32 s5, s5, s3")
    p("v_lshrrev_b32 v9, 3, v1\nv_and_b32 v%d, 7, v1\nv_lshlrev_b32 v%d, 4, v%d\nv_lshl_add_u32 v%d, v9, 10, v%d" % (vSH, vKD, vSH, vKD, vKD))
    p("s_add_u32 s6, s5, %d\nv_add_u32 v%d, s6, v%d" % (56 * 1024, vKD + 2, vKD))
    p("s_lshl_b32 s6, s%d, 14\ns_add_u32 s5, s5, s6\nv_add_u32 v%d, s5, v%d" % (sWave, vKD + 1, vKD))
    p("v_add_u32 v%d, 0xffffe000, v%d\nv_add_u32 v%d, %d, v%d" % (vKD, vKD + 1, vKD + 3, 8192 - 1056, vKD + 1))
    p("s_lshl_b32 s6, s%d, 5\ns_add_u32 s6, s6, %d\nv_mul_u32_u24 v%d, 1056, v9\nv_lshl_add_u32 v%d, v%d, 2, v%d\nv_add_u32 v%d, s6, v%d" % (sWave, KVL, vKA, vKA, vSH, vKA, vKA, vKA))
    p("s_lshl_b32 s6, s4, 18\ns_lshl_b32 s7, s%d, 16\ns_add_u32 s6, s6, s7\ns_lshr_b32 s7, s3, 9\ns_sub_u32 s6, s6, s7\ns_add_u32 s6, s6, %d" % (sWave, WS_XR + 4080))
    p("v_lshlrev_b32 v%d, 13, v%d\nv_lshlrev_b32 v9, 4, v9\nv_sub_u32 v%d, v%d, v9\nv_add_u32 v%d, s6, v%d" % (vKO, vSH, vKO, vKO, vKO, vKO))
    p("s_lshl_b32 s6, s4, 9\ns_lshl_b32 s7, s%d, 7\ns_add_u32 s6, s6, s7\nv_lshl_add_u32 v%d, v%d, 4, s6" % (sWave, vSH, vSH))
    p("s_lshl_b32 s6, s2, 7\ns_lshl_b32 s7, s%d, 3\ns_add_u32 s6, s6, s7\ns_add_u32 s%d, s6, %d" % (sWave, sFlK, WS_FK))
    srd(p, sK, kK, 2048 * 1024); srd(p, sV, kV, 2048 * 1024); srd(p, sSh, kSH, 4096)
def kv_loads(opts):
    f = opts.get("fkv", "")
    L = ml("s_mul_i32 s52, s%d, 2112\ns_add_u32 s52, s52, %d\ns_mov_b32 m0, s52" % (sWave, KVL))
    L += [dma(vKD, sK, "0", 0, "kv", f), mk("s_add_u32 m0, s52, 1056"), dma(vKD + 1, sK, "0", 0, "kv", f),
          mk("s_mov_b32 m0, %d" % (KVL + 8 * 1056)), dma(vKD + 2, sK, "0", 0, "kv", f),
          mk("s_add_u32 m0, s52, %d" % (9 * 1056)), dma(vKD + 1, sV, "0", 0, "kv", f), dma(vKD + 3, sV, "0", 1056, "kv", f),
          mk("buffer_load_dwordx4 v[72:75], v%d, %s, 0 offen" % (vSH, S4(sSh)), vm="kv")]
    return L
def kv_compute():
    RK = 52; RV = 63; Wt = 76; K = 212; A = 223; V = 225
    L = []
    for j in range(11): L.append(mk("ds_read_b32 v%d, v%d offset:%d" % (RK + j, vKA, (5 + j) * 128 if j < 3 else 1056 + (j - 3) * 128), lg="kvr"))
    for t in range(8): L.append(mk("ds_read_b32 v%d, v%d offset:%d" % (RV + t, vKA, 9 * 1056 + t * 128), lg="kvr"))
    un = lambda d, s_, hi: mk(("v_and_b32 v%d, 0xffff0000, v%d" if hi else "v_lshlrev_b32 v%d, 16, v%d") % (d, s_))
    for e in range(2):
        for i in range(4): L.append(un(Wt + 4 * e + i, 72 + 2 * e + (i >> 1), i & 1))
    L.append(W(lg="kvr"))
    for e in range(2):
        o = (vNon, uPoll)[e]
        for j in range(11): L.append(un(K + j, RK + j, e))
        for t in range(8):
            a = A + (t & 1)
            L.append(mk("v_mul_f32 v%d, v%d, v%d" % (a, K + t, Wt + 4 * e + 3)))
            L.append(un(V, RV + t, e))
            for i in (2, 1, 0): L.append(mk("v_fmac_f32 v%d, v%d, v%d" % (a, K + t + 3 - i, Wt + 4 * e + i)))
            L.append(mk("v_mul_f32 v%d, v%d, v%d" % (a, a, V)))
            if t & 1: L.append(mk("v_cvt_pk_bf16_f32 v%d, v%d, v%d" % (o + 3 - (t >> 1), A + 1, A)))
    return L
def kv_stores():
    return [mk("s_mov_b32 s%d, 4096" % sT2),
            mk("buffer_store_dwordx4 %s, v%d, %s, 0 offen sc1" % (vr(vNon), vKO, S4(sWS)), vm="kvst"),
            mk("buffer_store_dwordx4 %s, v%d, %s, s%d offen sc1" % (vr(uPoll), vKO, S4(sWS), sT2), vm="kvst")]

SLOW = []
SPINS = []
SLEEP = {'*': 8, 'kva': 16, 'ng': 4, 'na': 4}
PROF = [0]
def spin(name, reload_, test, okbr):
    t = ["L_slow_%s:" % name, "s_mov_b32 s%d, 1" % sSpin, "L_spin_%s:" % name, "s_sleep %d" % SLEEP.get(name, SLEEP['*'])]
    if PROF[0]:
        SPINS.append(name); t.append("v_writelane_b32 v255, s%d, %d" % (sSpin, 47 + len(SPINS)))
    t += [x.t for x in reload_] + ["s_waitcnt vmcnt(0)"] + [x.t for x in test]
    t += ["%s L_ok_%s" % (okbr, name), "s_add_u32 s%d, s%d, 1" % (sSpin, sSpin), "s_cmp_lt_u32 s%d, %d" % (sSpin, SPIN_MAX),
          "s_cbranch_scc1 L_spin_%s" % name, "s_branch L_ok_%s" % name]
    SLOW.append("\n".join(t))
def poll_check(name, regs, reload_, bits=64):
    L = []
    for i, r in enumerate(regs):
        op = "v_cmp_ne_u64 %%s, s[%d:%d], v[%d:%d]" % (sTag, sTag + 1, r, r + 1) if bits == 64 else "v_cmp_ne_u32 %%s, s%d, v%d" % (sTag, r)
        if i == 0: L.append(mk(op % "vcc"))
        else: L += ml(op % "s[4:5]" + "\ns_or_b64 vcc, vcc, s[4:5]")
    spin(name, reload_, L, "s_cbranch_vccz")
    return L + [mk("s_cbranch_vccnz L_slow_%s" % name), I("L_ok_%s:" % name, kind="label", cost=0)]
def nonce_get(name):
    ld = mk("global_load_dwordx2 v[%d:%d], v%d, s[%d:%d] sc1" % (vNon, vNon + 1, vNon + 2, sDbg, sDbg + 1), vm="non")
    t = ml("v_readfirstlane_b32 s%d, v%d\nv_readfirstlane_b32 s%d, v%d\ns_cmp_lg_u32 s%d, 0" % (sTag, vNon, sTag + 1, vNon + 1, sTag))
    spin(name, [ld], t, "s_cbranch_scc1")
    chk = t[:2] + [bundle(t[2].t + "\ns_cbranch_scc0 L_slow_%s" % name), I("L_ok_%s:" % name, kind="label", cost=0)]
    chk += ml("v_mov_b32 v%d, v%d\nv_mov_b32 v%d, v%d" % (vTag, vNon, vTag + 1, vNon + 1))
    return ld, chk

def g1_epilogue(tile, opts):
    A0 = acc_of(tile)
    c4 = vST + 4 * tile + 1; c1 = vST + 4 * tile + 2
    g = [A0 + (p >> 2) * 8 + (p & 3) for p in range(8)]
    u = [x + 4 for x in g]
    o = vOUT + 4 * (tile & 1)
    st = []
    for p in range(8):
        t = vTMP + p
        st.append([mk("v_mul_f32 v%d, v%d, v%d" % (g[p], g[p], c1)), mk("v_exp_f32 v%d, v%d" % (t, g[p])),
                   mk("v_mul_f32 v%d, v%d, v%d" % (u[p], g[p], u[p])), mk("v_fma_f32 v%d, v%d, v%d, v%d" % (t, t, c4, c4)),
                   mk("v_rcp_f32 v%d, v%d" % (t, t)), mk("v_mul_f32 v%d, v%d, v%d" % (u[p], u[p], t))])
    R = []; pend = []
    for step in range(18):
        for k in (5, 4, 3, 2, 1, 0):
            p = step - 2 * k
            if 0 <= p < 8:
                R.append(st[p][k])
                for q in pend: R.append(mk("v_cvt_pk_bf16_f32 v%d, v%d, v%d" % (o + (q >> 1), u[q - 1], u[q])))
                pend = [p] if (k == 5 and p & 1) else []
    for q in pend: R.append(mk("v_cvt_pk_bf16_f32 v%d, v%d, v%d" % (o + (q >> 1), u[q - 1], u[q])))
    R.append(mk("s_add_u32 s%d, s%d, %d" % (sT3, sHa, tile * 112 * 1024)))
    if not opts.get("x_nohst"): R.append(mk("buffer_store_dwordx4 %s, v%d, %s, s%d offen%s" % (vr(o), vL16, S4(sWS), sT3, "" if opts.get("x_hplain") else opts.get("fh", " sc1")), vm="hst%d" % tile))
    return R

def common_setup(p, opts):
    p("v_and_b32 v1, 63, v0\nv_lshrrev_b32 v2, 6, v0\nv_lshlrev_b32 v%d, 4, v1\nv_readfirstlane_b32 s%d, v2" % (vL16, sWave))
    p("v_lshrrev_b32 v2, 3, v1\nv_and_b32 v3, 7, v1\nv_lshrrev_b32 v9, 4, v1\nv_mov_b32 v%d, 0" % (vNon + 2))

def phase2_setup(p, opts):
    q, n, a, b, c, d = 40, 41, 42, 43, 44, 45
    p("s_and_b32 s3, s2, 7\ns_lshr_b32 s4, s2, 3\ns_lshl_b32 s3, s3, 2\ns_and_b32 s5, s4, 3\ns_add_u32 s%d, s3, s5\ns_lshr_b32 s%d, s4, 2" % (sTB2, sDB))
    if opts.get("dbx", 3): p("s_xor_b32 s%d, s%d, %d" % (sDB, sDB, opts.get("dbx", 3)))
    p("v_lshrrev_b32 v%d, 4, v1\nv_and_b32 v%d, 15, v1" % (q, n))
    p("v_lshrrev_b32 v%d, 3, v1\nv_and_b32 v%d, 7, v1\nv_and_b32 v%d, 1, v%d\nv_lshlrev_b32 v%d, 2, v%d\nv_xor_b32 v%d, v%d, v%d" % (a, b, c, q, c, c, c, c, b))
    p("s_lshl_b32 s7, s%d, 7\ns_mul_i32 s5, s%d, %d\ns_add_u32 s7, s7, s5" % (sDB, sWave, 448 * 1024))
    p("v_lshlrev_b32 v%d, 4, v%d\nv_lshl_add_u32 v%d, v%d, 10, v%d\nv_add_u32 v%d, s7, v%d" % (c, c, c, a, c, uWD, c))
    for j in range(1, 4): p("v_add_u32 v%d, %d, v%d" % (uWD + j, 7168 * j, uWD))
    p("s_lshr_b32 s5, s%d, 2\ns_lshl_b32 s5, s5, 4\ns_and_b32 s6, s%d, 3\ns_lshl_b32 s6, s6, 1\ns_add_u32 s6, s5, s6" % (sTB2, sTB2))
    p("s_mul_i32 s5, s6, 57344\ns_mul_i32 s7, s%d, 28672\ns_add_u32 s5, s5, s7\nv_add_u32 v%d, s5, v%d\nv_add_u32 v%d, %d, v%d" % (sWave, uH, vL16, uH + 1, 8 * 57344, uH))
    p("s_lshl_b32 s5, s6, 4\ns_lshl_b32 s7, s%d, 3\ns_add_u32 s5, s5, s7\nv_lshrrev_b32 v%d, 5, v1\nv_and_b32 v%d, 3, v1\nv_lshl_add_u32 v%d, v%d, 2, v%d\nv_add_u32 v%d, s5, v%d" % (sWave, c, d, c, c, d, c, c))
    p("v_bfe_u32 v%d, v1, 2, 3\nv_lshlrev_b32 v%d, 4, v%d\nv_lshl_add_u32 v%d, v%d, 10, v%d\ns_lshl_b32 s7, s%d, 7\nv_add_u32 v%d, s7, v%d" % (d, d, d, d, c, d, sDB, uX, d))
    p("v_lshlrev_b32 v%d, 4, v%d\nv_add_u32 v%d, %d, v%d" % (c, c, uSto, WS_ST, c))
    p("v_bfe_u32 v%d, v1, 2, 2\nv_lshrrev_b32 v%d, 5, v1\nv_lshl_add_u32 v%d, v%d, 3, v%d\nv_lshlrev_b32 v%d, 7, v%d\nv_lshrrev_b32 v%d, 1, v%d\nv_lshl_add_u32 v%d, v%d, 6, v%d" % (a, b, b, b, a, b, b, a, a, b, a, b))
    p("v_and_b32 v%d, 1, v%d\nv_lshl_add_u32 v%d, v%d, 5, v%d\nv_and_b32 v%d, 3, v1\nv_lshl_add_u32 v%d, v%d, 3, v%d\nv_add_u32 v%d, s%d, v%d\nv_xor_b32 v%d, 64, v%d" % (a, q, b, a, b, a, b, a, b, uTR, sWdL, b, uTR + 1, uTR))
    p("v_add_u32 v%d, 1, v%d\nv_and_b32 v%d, 1, v%d\nv_sub_u32 v%d, v%d, v%d\nv_lshl_add_u32 v%d, v%d, 3, v%d\nv_lshlrev_b32 v%d, 1, v%d" % (a, n, b, a, a, a, b, a, q, a, a, a))
    p("v_mul_u32_u24 v%d, 4160, v%d\ns_lshl_b32 s7, s%d, 8\ns_add_u32 s7, s7, s%d\nv_add3_u32 v%d, v%d, v%d, s7" % (b, b, sHalf, sCV, uCA, a, b))
    p("v_lshlrev_b32 v%d, 5, v%d\nv_lshlrev_b32 v%d, 4, v%d\nv_sub_u32 v%d, v%d, v%d\ns_add_u32 s7, s7, %d\nv_add_u32 v%d, s7, v%d" % (a, n, b, q, a, b, a, XR_OFF + 480, uCB, a))
    p("v_and_b32 v%d, 1, v%d\nv_mul_u32_u24 v%d, 4160, v%d\nv_lshl_add_u32 v%d, v%d, 1, v%d\nv_add_u32 v%d, s%d, v%d" % (a, q, a, a, a, n, a, uHeadA, sCV, a))
    p("v_mov_b32 v46, 0\nv_mov_b32 v47, 0\nv_lshlrev_b32 v%d, 3, v1\ns_add_u32 s7, s%d, %d\nv_add_u32 v%d, s7, v%d" % (a, sCV, XR_OFF + 4096, a, a))
    p("ds_write_b64 v%d, v[46:47]" % a)
    p("v_and_b32 v%d, 2, v%d\nv_lshlrev_b32 v%d, 3, v%d\nv_and_b32 v%d, 1, v%d\nv_lshl_add_u32 v%d, v%d, 5, v%d\nv_bfe_u32 v%d, v%d, 1, 2\nv_lshl_add_u32 v%d, v%d, 7, v%d\nv_lshrrev_b32 v%d, 3, v%d\nv_lshl_add_u32 v%d, v%d, 6, v%d\nv_and_b32 v%d, 1, v%d\nv_lshl_add_u32 v%d, v%d, 9, v%d" % (a, q, a, a, b, n, a, b, a, b, n, a, b, a, b, n, a, b, a, b, q, uYst, b, a))
    p("s_lshl_b32 s7, s%d, 11\ns_add_u32 s7, s7, s%d\ns_add_u32 s%d, s7, %d" % (sHalf, sCh4k, sYoff, WS_YT))
    p("s_lshl_b32 s7, s2, 13\ns_lshl_b32 s3, s%d, 10\ns_add_u32 s7, s7, s3\ns_add_u32 s%d, s7, %d" % (sWave, sXRso, WS_XR))
    p("s_lshl_b32 s7, s2, 7\ns_add_u32 s%d, s7, %d" % (sFlY, WS_FY))
    p("v_and_b32 v%d, 7, v1\nv_lshlrev_b32 v%d, 7, v%d" % (a, a, a))
    p("s_lshl_b32 s7, s%d, 12\ns_lshl_b32 s3, s%d, 10\ns_add_u32 s7, s7, s3\ns_add_u32 s7, s7, %d\nv_add_u32 v%d, s7, v%d" % (sDB, sWave, WS_FY, uFY, a))
    p("v_min_u32 v%d, 6, v1\nv_lshlrev_b32 v%d, 7, v%d" % (a, a, a))
    p("s_lshr_b32 s7, s%d, 2\ns_lshl_b32 s7, s7, 5\ns_mul_i32 s3, s%d, 7\ns_add_u32 s7, s7, s3\ns_lshl_b32 s7, s7, 7\ns_add_u32 s7, s7, %d\nv_add_u32 v%d, s7, v%d" % (sTB2, sWave, WS_FH, uFH, a))
    p("v_and_b32 v%d, 7, v1\nv_lshlrev_b32 v%d, 10, v%d\ns_lshr_b32 s7, s2, 5\ns_lshl_b32 s7, s7, 7\ns_and_b32 s3, s2, 24\ns_add_u32 s7, s7, s3" % (a, a, a))
    p("s_lshl_b32 s3, s%d, 13\ns_sub_u32 s7, s7, s3\ns_add_u32 s7, s7, %d\nv_sub_u32 v%d, s7, v%d" % (sWave, WS_FK + 31 * 1024, uFK, a))
    p("v_cmp_ne_u32 vcc, 0, v1\nv_mov_b32 v%d, 0x80000000\nv_mov_b32 v%d, 0\nv_cndmask_b32 v%d, v%d, v%d, vcc" % (a, b, vFl, b, a))

def hk_srds(p):
    p("s_add_u32 s%d, s60, s%d\ns_addc_u32 s%d, s61, 0\ns_and_b32 s%d, s%d, 0xffff\ns_sub_u32 s%d, 0x200000, s%d\ns_mov_b32 s%d, 0x20000" % (sHk, sCh4k, sHk + 1, sHk + 1, sHk + 1, sHk + 2, sCh4k, sHk + 3))
    srd(p, sDp, kD, 1024)
def ids2(p):
    p("s_lshr_b32 s3, s%d, 1\ns_lshl_b32 s4, s2, 1\ns_add_u32 s4, s4, s3\ns_mul_i32 s%d, s3, %d\ns_add_u32 s%d, s%d, %d" % (sWave, sCV, CH_STRIDE, sCV, sCV, CONV))
    p("s_and_b32 s%d, s%d, 1\ns_lshl_b32 s%d, s4, 12\ns_lshl_b32 s%d, s4, 1\ns_lshl_b32 s%d, s%d, 12" % (sHalf, sWave, sCh4k, sDoff, sWdL, sWave))
    p("v_bfe_u32 v40, v1, 4, 1\nv_and_b32 v41, 15, v1\nv_add_u32 v42, v40, v41\nv_add_u32 v42, -16, v42\nv_lshlrev_b32 v%d, 1, v42" % uHead)
RHO = [2, 4, 1]
def phase2_srds():
    L = []
    for d, lo, size in ((sWd, kWD, 1792 * 1024), (sOut, kOUT, 2048 * 1024)):
        L += ml("s_mov_b32 s%d, s%d\ns_and_b32 s%d, s%d, 0xffff\ns_mov_b32 s%d, 0x%x\ns_mov_b32 s%d, 0x20000" % (d, lo, d + 1, lo + 1, d + 2, size, d + 3))
    for s in range(14): L += ml("s_mov_b32 s%d, %d" % (sTabW + s, s * 32768))
    return L

class Filler:
    def __init__(self, space=2):
        self.vq = []; self.xq = []; self.last = -9; self.space = space
    def v(self, at, L): self.vq += [(at, x) for x in L]
    def x(self, at, L): self.xq += [(at, y) for y in L]
    def fill(self, gi, gap, budget, xbudget=None, novm=False):
        used = lambda: sum(y.cost for y in gap)
        nv = 0
        for q in (self.vq, self.xq):
            if q and q[0][1].kind == "delay" and q[0][0] <= gi:
                n = q.pop(0)[1].vm
                if q: q[0] = (max(q[0][0], gi + n), q[0][1])
        while not novm and self.vq and self.vq[0][0] <= gi and used() + self.vq[0][1].cost <= budget:
            at, y = self.vq[0]
            if y.kind == "delay": break
            if is_vm(y) and y.t.endswith(" lds"):
                lag = gi - at
                if nv >= 1 or (gi - self.last < self.space and lag < 14): break
                nv += 1; self.last = gi
            gap.append(y); self.vq.pop(0)
            if is_m0(y): break
        while self.xq and self.xq[0][0] <= gi and used() + self.xq[0][1].cost <= (xbudget or budget):
            if self.xq[0][1].kind == "delay": break
            gap.append(self.xq.pop(0)[1])

def gemm1(p, opts):
    p("s_sub_u32 s3, s2, 32\ns_and_b32 s4, s3, 7\ns_lshr_b32 s5, s3, 3")
    p("s_and_b32 s6, s4, 1\ns_and_b32 s7, s5, 3\ns_lshl_b32 s34, s7, 1\ns_add_u32 s34, s34, s6\ns_lshl_b32 s6, s6, 2\ns_add_u32 s%d, s6, s7" % sTB)
    p("s_lshr_b32 s6, s4, 1\ns_mul_i32 s6, s6, 7\ns_lshr_b32 s7, s5, 2\ns_add_u32 s7, s7, %d\ns_cmp_ge_u32 s7, 7\ns_cselect_b32 s5, 7, 0\ns_sub_u32 s7, s7, s5\ns_add_u32 s%d, s6, s7" % (opts.get("cbr", 0), sCB)) if opts.get("cbr") else p("s_lshr_b32 s6, s4, 1\ns_mul_i32 s6, s6, 7\ns_lshr_b32 s7, s5, 2\ns_add_u32 s%d, s6, s7" % sCB)
    SG = opts.get("sig", 5)
    if SG == 0: p("s_mov_b32 s34, 0")
    elif SG == 1: p("s_and_b32 s34, s4, 1\ns_lshl_b32 s34, s34, 2\ns_and_b32 s6, s4, 6\ns_add_u32 s34, s34, s6\ns_and_b32 s34, s34, 7")
    elif SG == 5: p("s_lshr_b32 s6, s4, 1\ns_xor_b32 s34, s6, s%d" % sTB)
    elif SG == 6: p("s_lshr_b32 s6, s4, 1\ns_and_b32 s34, s%d, 6\ns_xor_b32 s34, s6, s34" % sTB)
    elif SG == 2: p("s_add_u32 s34, s34, s%d\ns_and_b32 s34, s34, 7" % sCB)
    elif SG == 3: p("s_and_b32 s34, s4, 1\ns_lshl_b32 s34, s34, 2\ns_and_b32 s6, s4, 6\ns_add_u32 s34, s34, s6\ns_and_b32 s6, s%d, 1\ns_add_u32 s34, s34, s6\ns_and_b32 s34, s34, 7" % sTB)
    elif SG == 4: p("s_and_b32 s34, s4, 1\ns_lshl_b32 s34, s34, 2\ns_and_b32 s6, s4, 6\ns_add_u32 s34, s34, s6\ns_and_b32 s6, s%d, 1\ns_lshl_b32 s6, s6, 2\ns_add_u32 s34, s34, s6\ns_and_b32 s34, s34, 7" % sCB)
    p("v_xor_b32 v5, v9, v3\nv_lshlrev_b32 v5, 4, v5\nv_lshl_add_u32 v%d, v2, 10, v5\nv_xor_b32 v5, 64, v%d" % (vXD, vXD))
    p("v_add_u32 v%d, 7168, v5\nv_add_u32 v%d, 14336, v%d\nv_add_u32 v%d, 21504, v5" % (vXD + 1, vXD + 2, vXD, vXD + 3))
    p("s_lshr_b32 s3, s%d, 1\ns_lshl_b32 s3, s3, 2" % sWave)
    p("v_and_b32 v5, 1, v9\nv_lshlrev_b32 v5, 1, v5\nv_xor_b32 v5, s3, v5\nv_xor_b32 v5, v5, v3\nv_lshlrev_b32 v5, 4, v5")
    p("s_and_b32 s4, s%d, 1\ns_mul_i32 s4, s4, %d\ns_lshl_b32 s5, s%d, 7\ns_add_u32 s4, s4, s5" % (sWave, 32 * 3584, sCB))
    p("v_mul_u32_u24 v6, 3584, v2\nv_add3_u32 v%d, v5, v6, s4" % vWD)
    for j in range(1, 4): p("v_add_u32 v%d, %d, v%d" % (vWD + j, j * (8 * 3584 - 1024), vWD))
    p("s_lshl_b32 s35, s%d, 18\ns_lshl_b32 s5, s%d, 15\ns_add_u32 s7, s35, s5" % (sTB, sWave))
    p("s_lshl_b32 s%d, s%d, 12\ns_add_u32 s%d, s%d, 16384" % (sLdsW, sWave, sLdsX, sLdsW))
    p("s_mul_i32 s%d, s34, %d\ns_lshl_b32 s3, s34, 7\ns_add_u32 s%d, s3, s7" % (sTab + 4, 64 * 3584, sTab + 8))
    p("s_waitcnt lgkmcnt(0)")
    srd(p, sQ, kQ, 2048 * 1024)
    p("s_cmp_ge_u32 s%d, 2\ns_cselect_b32 s66, s68, s66\ns_cselect_b32 s67, s69, s67" % sWave)
    srd(p, sW, kWG, 512 * 3584)
    stamp(p, "g.karg", opts, 2)
    W2 = opts.get("wt2", 0); X2 = opts.get("xt2", W2)
    if W2:
        p("v_add_u32 v5, s34, v2\nv_and_b32 v5, 7, v5\nv_lshlrev_b32 v7, 7, v5\nv_lshl_add_u32 v5, v5, 6, v3\ns_and_b32 s3, s%d, 3\ns_mul_i32 s3, s3, %d\ns_add_u32 s3, s3, s4" % (sTB, 8 * 3584))
        p("v_mul_u32_u24 v5, 3584, v5\nv_cmp_gt_u32 vcc, %d, v2\nv_add_u32 v5, s3, v5\nv_mov_b32 v6, -1\nv_cndmask_b32 v5, v6, v5, vcc" % W2)
        p("buffer_load_dword v8, v5, %s, 0 offen" % S4(sW), vm="wt")
        p("s_lshr_b32 s3, s2, 5\ns_sub_u32 s3, s3, 1\ns_mul_i32 s3, s3, 5\nv_add_u32 v5, s3, v3\nv_cmp_gt_u32 vcc, 5, v3\nv_cmp_gt_u32 s[26:27], 32, v5\nv_cmp_gt_u32 s[28:29], %d, v2" % X2)
        p("v_lshl_add_u32 v5, v5, 10, v7\ns_and_b64 vcc, vcc, s[26:27]\ns_and_b64 vcc, vcc, s[28:29]\nv_add_u32 v5, s7, v5\nv_cndmask_b32 v5, v6, v5, vcc")
        p("buffer_load_dword v8, v5, %s, 0 offen" % S4(sQ), vm="wt")
    st0 = g1_stage(0, opts)
    for x in st0: x.t = x.t.replace("s%d offen" % sTab, "s%d offen" % (sTab + 4))
    seq(p, st0)
    stamp(p, "g.st0", opts, 2)
    WT = opts.get("wt", 0)
    if WT:
        p("v_add_u32 v5, s34, v2\nv_add_u32 v5, 1, v5\nv_and_b32 v5, 7, v5\nv_lshl_add_u32 v5, v5, 6, v3\ns_and_b32 s3, s%d, 3\ns_mul_i32 s3, s3, %d\ns_add_u32 s3, s3, s4" % (sTB, 8 * 3584))
        p("v_mul_u32_u24 v5, 3584, v5\nv_cmp_gt_u32 vcc, %d, v2\nv_add_u32 v5, s3, v5\nv_mov_b32 v6, -1\nv_cndmask_b32 v5, v6, v5, vcc" % WT)
        p("buffer_load_dword v6, v5, %s, 0 offen" % S4(sW), vm="wt")
    p("s_mov_b32 s27, s7")
    srd(p, sWS, kWS, WS_SZ)
    p("s_mov_b32 s%d, s74\ns_mov_b32 s%d, s75" % (sDbg, sDbg + 1))
    kv_setup(p)
    ids2(p); hk_srds(p)
    for s in range(1, 8):
        p(("s_xor_b32 s3, s34, %d" if SG >= 5 else "s_add_u32 s3, s34, %d\ns_and_b32 s3, s3, 7") % s)
        p("s_mul_i32 s%d, s3, %d\ns_lshl_b32 s3, s3, 7\ns_add_u32 s%d, s3, s27" % (sTab + s, 64 * 3584, sTab + 8 + s))
    p("s_lshl_b32 s%d, s%d, 13\ns_add_u32 s6, s35, %d" % (sLdsXB, sWave, 0 if opts.get("x_xsame") else 0x20000))
    for h in range(2):
        if SG >= 5: p("s_lshl_b32 s3, s%d, 1\ns_add_u32 s3, s3, %d\ns_xor_b32 s3, s3, s34\ns_lshl_b32 s3, s3, 7\ns_add_u32 s%d, s3, s6" % (sWave, h, sXB + h))
        else: p("s_lshl_b32 s3, s%d, 1\ns_add_u32 s3, s3, s34\ns_add_u32 s3, s3, %d\ns_and_b32 s3, s3, 7\ns_lshl_b32 s3, s3, 7\ns_add_u32 s%d, s3, s6" % (sWave, h, sXB + h))
    p("s_lshl_b32 s3, s%d, 2\ns_add_u32 s3, s3, s%d\ns_lshl_b32 s3, s3, 10\ns_mul_i32 s4, s%d, %d\ns_add_u32 s%d, s3, s4" % (sCB, sWave, sTB, 16 * 57344, sHa))
    p("s_lshl_b32 s4, s%d, 12\ns_add_u32 s%d, s4, %d" % (sTB, sST, WS_ST))
    a, b, c, d, e, f = 40, 41, 42, 43, 44, 45
    p("v_and_b32 v%d, 31, v1\nv_lshrrev_b32 v%d, 5, v1\nv_lshlrev_b32 v%d, 4, v%d" % (a, b, vSToff, a))
    p("s_lshl_b32 s3, s%d, 5\ns_add_u32 s3, s3, s%d\ns_lshl_b32 s3, s3, 7\ns_add_u32 s%d, s3, %d" % (sTB, sCB, sFlH, WS_FH))
    p("v_bfe_u32 v%d, v1, 1, 3\nv_xor_b32 v%d, v%d, v%d\nv_lshlrev_b32 v%d, 4, v%d\nv_lshl_add_u32 v%d, v%d, 7, v%d" % (c, c, c, b, c, c, vXA, a, c))
    for ks in range(1, 4): p("v_xor_b32 v%d, %d, v%d" % (vXA + ks, 32 * ks, vXA))
    for ks in range(4): p("v_add_u32 v%d, 0x10000, v%d" % (vXA + 4 + ks, vXA + ks))
    p("v_bfe_u32 v%d, v1, 2, 2\nv_bfe_u32 v%d, v1, 1, 1\nv_and_b32 v%d, 1, v1\nv_bfe_u32 v%d, v1, 4, 1" % (a, c, d, e))
    p("v_lshrrev_b32 v%d, 1, v%d\nv_lshl_add_u32 v%d, v%d, 1, v%d\nv_xor_b32 v%d, s%d, v%d\nv_lshlrev_b32 v%d, 5, v%d" % (f, a, f, c, f, f, sWave, f, f, f))
    p("v_lshl_add_u32 v%d, v%d, 4, v%d\nv_lshl_add_u32 v%d, v%d, 3, v%d\nv_lshl_add_u32 v%d, v%d, 13, v%d" % (f, d, f, f, e, f, f, c, f))
    p("v_lshl_add_u32 v%d, v%d, 3, v%d\nv_lshl_add_u32 v%d, v%d, 7, v%d\nv_add_u32 v%d, 0x10000, v%d" % (a, b, a, vWA, a, f, vWA + 1, vWA))
    stamp(p, "g.set1", opts, 2)
    if not opts.get("p2in", 1): phase2_setup(p, opts)
    for r in range(2 if opts.get("cs4", 1) else 4): p("v_mov_b32 v%d, 0x3f803f80" % (vOnes + r))
    stamp(p, "g.set2", opts, 2)
    KVP = opts.get("kvp", 1)
    nld, nchk = nonce_get("ng")
    HKP = opts.get("hkp", 9)
    hkl = hk_loads(opts) if HKP == 0 else []
    if KVP == 0: seq(p, kv_loads(opts) + hkl)
    stamp(p, "g.kvis", opts, 2)
    S1IN = opts.get("s1in", 0)
    NL = opts.get("nlate", 1)
    if not S1IN:
        seq(p, g1_stage(1, opts))
        if not NL: p.add(nld)
    if KVP == 1: seq(p, kv_loads(opts) + hkl)
    if opts.get("tlb"):
        sh = opts["tlb"]
        p("v_lshlrev_b32 v52, %d, v1\nbuffer_load_dword v53, v52, %s, 0 offen" % (sh, S4(sWS)), vm="tlb")
        p("v_min_u32 v52, 0x1bff00, v52\nglobal_load_dword v54, v52, s[70:71]\nglobal_load_dword v55, v52, s[72:73]\nglobal_load_dword v56, v52, s[60:61]", vm="tlb")
    stamp(p, "g.st1", opts)

    def rdW(n):
        s, ks = n >> 2, n & 3
        w, off = win((s % 3) * SLOT + ks * 2048)
        return [mk("ds_read_b64_tr_b16 a[%d:%d], v%d offset:%d" % (4 * n, 4 * n + 1, vWA + w, off), lg="W%d" % n),
                mk("ds_read_b64_tr_b16 a[%d:%d], v%d offset:%d" % (4 * n + 2, 4 * n + 3, vWA + w, off + 512), lg="W%d" % n)]
    def rdXA(n, i):
        s, ks = n >> 2, n & 3
        w, off = win((s % 3) * SLOT + 16384 + i * 4096)
        return mk("ds_read_b128 %s, v%d offset:%d" % (vr(vXF + 16 * (n & 1) + 4 * i), vXA + 4 * w + ks, off), lg="X%d_%d" % (n, i))
    def rdXB(bb, n):
        w, off = win(((8 + bb) % 3) * SLOT + (n >> 2) * 4096)
        return mk("ds_read_b128 %s, v%d offset:%d" % (vr(vXF + 4 * (n & 7)), vXA + 4 * w + (n & 3), off), lg="B%d_%d" % (bb, n))

    fr = opts.get("fr", " sc1")
    st_loads = [mk("buffer_load_dwordx4 %s, v%d, %s, s%d offen offset:%d sc1" % (vr(vST + 4 * t), vSToff, S4(sWS), sST, t * 512), vm="rec") for t in range(8)]
    post = poll_check("rec", [vST + 4 * t + 3 for t in range(8)], st_loads, 32)
    post += ml("v_mov_b32 v%d, v%d\nv_mov_b32 v%d, v%d" % (vR1B, vST, vR1B + 4, vST + 4))
    csfin = ml("v_cvt_pk_bf16_f32 v%d, v%d, v%d\nv_and_b32 v%d, 0xffff0000, v%d\nv_sub_f32 v%d, v%d, v%d\nv_cvt_pk_bf16_f32 v%d, v%d, v%d\nv_and_b32 v%d, v186, v%d"
               % (184, vCSA, vCSA, 184, 184, 185, vCSA, 184, 184, 184, 185, vR1A, 184))
    if opts.get("cs4", 1):
        csfin = ml("v_add_f32 v%d, v%d, v%d\nv_mov_b32 v%d, v%d\ns_nop 1\nv_permlane32_swap_b32 v%d, v%d\nv_add_f32 v%d, v%d, v%d" % (vCSA, vCSA, vCSA + 4, vCSA + 1, vCSA, vCSA, vCSA + 1, vCSA, vCSA, vCSA + 1)) + csfin
    if opts.get("x_norec"):
        st_loads = []; post = [y for y in post if "cbranch" not in y.t]
    F = Filler(opts.get("aspace", 2))
    RL = opts.get("recst", 5)
    if S1IN: F.v(-20, g1_stage(1, opts) + [nld])
    for s in range(8):
        F.v(max(0, 16 * s - 3) if not (S1IN and s == 0) else -20, g1_stage(s + 2, opts))
        if NL and s == 0 and not S1IN: F.v(0, [nld])
        if KVP >= 2 and s + 2 == KVP: F.v(0, kv_loads(opts) + hkl)
        if HKP and HKP < 10 and s + 2 == HKP: F.v(0, hk_loads(opts))
        if s == opts.get("kvst", 8) and not opts.get("x_nokvs"): F.v(0, kv_stores())
        if s == 7 and opts.get("kvst", 8) < 8: F.v(16 * 7 + 8, [W(vm="kvst"), flag_store(sFlK)])
    if opts.get("p2in", 1):
        q_ = Prog(); phase2_setup(q_, opts)
        L_ = q_.ins; F.x(0, L_[:-4] + [bundle("\n".join(y.t for y in L_[-4:]))])
    F.x(0, ml("v_lshrrev_b32 v186, 5, v1\nv_add_u32 v186, -1, v186"))
    F.x(0, [mk("v_mov_b32 v%d, 0" % r) for r in (vR1A + 1, vR1A + 2, vR1A + 3)])
    F.x(0, [mk("v_mov_b32 v%d, 0" % r) for r in (vR1B + 1, vR1B + 2, vR1B + 3, vR1B + 5, vR1B + 6, vR1B + 7)])
    sr = phase2_srds()
    if opts.get("sre", 1): F.x(16 * KVP - 1 if KVP >= 2 else 0, sr); sr = []
    F.x(29 if NL else 13, [W(vm="non")] + nchk)
    kc = kv_compute()
    if opts.get("x_nokvr"): kc = [y for y in kc if not y.t.startswith("ds_")]
    if opts.get("x_nokvv"): kc = [y for y in kc if not y.t.startswith("v_")]
    F.x(13 if KVP == 0 else 16 * (KVP + 1) - 3, kc)
    KVS = I("; kv done", cost=0); KVS.kind = "label"
    F.x(0, [KVS] + (hk_build() if HKP == 0 else []) + sr[:8])
    F.x(16 * RL - 4, st_loads)
    F.x(0, sr[8:])
    F.x(16 * (RL + 2) - 3 + opts.get("postat", 0), [W(vm="rec")] + post)
    p.wait(vm="st0")
    p("s_barrier")
    stamp(p, "g.st0in", opts)
    for x in rdW(0): p.add(x)
    for i in range(4): p.add(rdXA(0, i))
    PD = opts.get("pd", 7); WE = opts.get("we", 4)
    BA = opts.get("buda", 24)
    for n in range(32):
        s, ks = n >> 2, n & 3
        gaps = [[], [], [], []]
        if ks == 3:
            DU = [int(c) * 10 for c in str(opts.get("dump", "666")).ljust(8, "0")][s]
            F.fill(4 * n, gaps[0], 4 * DU, novm=True)
            F.pre = sum(y.cost for y in gaps[0])
            gaps[0] += [W(vm="st%d" % (s + 1), lg="*"), mk("s_barrier")]
        if n < 31:
            gaps[0] += rdW(n + 1); gaps[1] += [rdXA(n + 1, 0), rdXA(n + 1, 1)]; gaps[2] += [rdXA(n + 1, 2), rdXA(n + 1, 3)]
        else:
            gaps[0] += [rdXB(0, 0), rdXB(0, 1)]; gaps[1] += [rdXB(0, 2), rdXB(0, 3)]
        for i in range(4):
            if i in (0, 2): p.wait(lg=["W%d" % n, "X%d_%d" % (n, i + 1)])
            if opts.get("cs4", 1):
                if i in (0, 1): p("v_mfma_f32_4x4x4_16b_bf16 %s, %s, a[%d:%d], %s" % (vr(vCSA + 4 * i), vr(vOnes, 2), 4 * n + 2 * i, 4 * n + 2 * i + 1, vr(vCSA + 4 * i) if n else "0"))
            elif i == 0:
                p("v_mfma_f32_32x32x16_bf16 %s, %s, a[%d:%d], %s" % (vr(vCSA, 16), vr(vOnes), 4 * n, 4 * n + 3, vr(vCSA, 16) if n else "0"))
                g5 = []; F.fill(4 * n, g5, BA, novm=True)
                for x in g5: p.add(x)
            if n == 31 and i == 2 and opts.get("cs4", 1): gaps[i] += csfin[:5]; csfin = csfin[5:]
            if n == 31 and i == 3: gaps[i] += csfin
            a = acc_of(i)
            p("v_mfma_f32_32x32x16_bf16 %s, a[%d:%d], %s, %s" % (vr(a, 16), 4 * n, 4 * n + 3, vr(vXF + 16 * (n & 1) + 4 * i), vr(a, 16) if n else "0"))
            if ks == 3 and i == 0 and any(y.vm == "st%d" % (s + 1) for _, y in F.vq): raise SystemExit("stage %d not issued" % (s + 1))
            BS = opts.get("bud0", 24) if s == 0 else (opts.get("bud1", 24) if s < opts.get("nb1", 3) else BA)
            if any(y.t.startswith("s_mov_b32 s%d," % sWd) for _, y in F.xq[:12]): assert not any(y.vm == "kv" for _, y in F.vq) or F.xq[0][0] > 4 * n + i or not F.xq[0][1].t.startswith("s_mov_b32 s%d," % sWd)
            F.fill(4 * n + i, gaps[i], BS - (4 if i in (1, 3) else 0) + (F.pre if (ks == 3 and i == 0) else 0))
            if any(y.vm == "kvst" for y in gaps[i]): assert KVS not in gaps[i] + [z for _, z in F.xq], "kv store too early"
            for x in gaps[i]: p.add(x)
        if ks == 3 and s < 7: stamp(p, "g.s%d" % s, opts, 2)
    left = len(F.xq)
    stamp(p, "g.A31", opts, 2)
    for _, x in F.xq: p.add(x)
    F.xq = []
    print("phase A: left-over x items %d, v items %d" % (left, len(F.vq)), file=sys.stderr)
    stamp(p, "g.Aend", opts)
    for m_ in range(4, PD): p.add(rdXB(0, m_))
    p("s_nop 0")
    for t in range(4):
        a = acc_of(t)
        p("v_mfma_f32_32x32x16_bf16 %s, %s, %s, %s" % (vr(a, 16), vr(vR1A), vr(vR1B + 4 * (t & 1)), vr(a, 16)))
        p("v_mov_b32 v%d, v%d" % (vR1B + 4 * (t & 1), vST + 4 * (t + 2)))
        p("s_nop 0")
    ep = [g1_epilogue(t, opts) for t in range(7)]
    total = sum(x.cost for e in ep for x in e)
    kvpoll = [mk("buffer_load_dwordx2 v[%d:%d], v%d, %s, 0 offen sc1" % (uPoll, uPoll + 1, uFK, S4(sWS)), vm="kvp")]
    F.vq = [(0, y) for _, y in F.vq]; F.last = -9; F.space = opts.get("bspace", 2)
    X = lambda k, L: [] if opts.get(k) else L
    XB = opts.get("xb", 1)
    ORD = [0, 1, 2, 3, 4] + ([5] if opts.get("w5", 1) else []) + [7, 8, 9][:XB]
    EB = opts.get("ebar", 1)
    ORD += [6, 12][:EB * opts.get("en", 2)]
    INB_READ = [0, 1, 2][:XB]
    chain = lambda t: ([W(vm="w%d" % t)] + wd_reads(t, True) + [delay(4), W(lg="t%d" % t)] + wd_loads(t + 7, opts)) if t in INB_READ else []
    F.x(0, [mk("v_add_u32 v%d, 0x20000, v%d" % (uTR2 + mt, uTR + mt)) for mt in range(2)])
    F.x(0, [bundle("\n".join(y.t for y in fl0_setup()[:3]))] + fl0_setup()[3:])
    F.v(0, kv_stores())
    F.v(opts.get("st10", 6), g1_stage(10, opts))
    W0 = opts.get("w0at", 22)
    if W0 < 27: F.v(W0, wd_loads(0, opts))
    B1 = 34 - PD
    KF = opts.get("kvf", 0)
    F.v(B1, g1_stage(11, opts)[:KF] + [W(vm="kvst"), flag_store(sFlK)] + g1_stage(11, opts)[KF:])
    if W0 >= 27: F.v(W0, wd_loads(0, opts))
    if 5 in ORD: F.v(opts.get("w5at", 46), wd_loads(5, opts))
    if HKP == 10: F.v(opts.get("hkat", 46), hk_loads(opts))
    ev_ = [(33 + B1, wd_loads(1, opts)), (33 + B1 + 8, wd_loads(2, opts)), (opts.get("c0", 80), chain(0)), (opts.get("kvpoll", 64), kvpoll),
           (66 + B1, wd_loads(3, opts)), (66 + B1 + 8, wd_loads(4, opts)),
           (opts.get("kvchk", 90), [W(vm="kvp")] + poll_check("kv", [uPoll], kvpoll) + conv_xr())]
    ev_ = sorted(ev_, key=lambda z: z[0])
    for i_, (at_, L_) in enumerate(ev_): F.v(at_, L_)
    opts["_cvlast"] = ev_[-1][1][-1].vm == "cv"
    F.v(0, chain(1) + chain(2))
    opts["_ord"] = ORD; opts["_rd"] = INB_READ
    if HKP: F.x(opts.get("hkb", 62 if HKP < 10 else 95), hk_build(1))
    EF = opts.get("eflag", 99 + 16)
    ngaps = 4 * 33; done = 0; cur = 0; gi = 0
    BUD = opts.get("bud", 24)
    for bb in range(4):
        tile = 4 + bb; a = acc_of(tile)
        for n in range(-1, 32):
            gap = []
            if n == -1:
                p("v_mfma_f32_32x32x16_bf16 %s, %s, %s, 0" % (vr(a, 16), vr(vR1A), vr(vR1B + 4 * (bb & 1))))
                if bb < 2: gap.append(mk("v_mov_b32 v%d, v%d" % (vR1B + 4 * (bb & 1), vST + 4 * (tile + 2))))
            else:
                if n % WE == 0: p.wait(lg="B%d_%d" % (bb, n + WE - 1))
                p("v_mfma_f32_32x32x16_bf16 %s, a[%d:%d], %s, %s" % (vr(a, 16), 4 * n, 4 * n + 3, vr(vXF + 4 * (n & 7)), vr(a, 16)))
                m = n + PD
                if m == 32 and bb < 3:
                    if any(y.vm == "st%d" % (9 + bb) for _, y in F.vq): raise SystemExit("stage not issued before its wait")
                    gap += [W(vm=["st%d" % (9 + bb)] + (["hk"] if bb == 2 else []), lg="*"), mk("s_barrier")]
                if m < 32: gap.append(rdXB(bb, m))
                elif bb < 3: gap.append(rdXB(bb + 1, m - 32))
            budget = BUD - (4 if (n % WE == WE - 1) else 0)
            if EB and bb == 3 and n == 33 - PD + 1:
                gap += [W(lg="*"), mk("s_barrier")]
                F.v(gi, [x for t in ORD if t in (6, 12) for x in wd_loads(t, opts)])
            if gi == EF:
                assert cur >= 4
                gap += [W(vm="hst3"), mk("s_barrier"), flag_store(sFlH, True), mk("s_add_u32 s%d, s%d, %d" % (sFlH, sFlH, WS_FL))]
            F.fill(gi, gap, min(budget, sum(y.cost for y in gap) + 8), min(budget, sum(y.cost for y in gap) + 12 if F.xq and F.xq[0][1].cost > 4 else sum(y.cost for y in gap) + 8))
            gi += 1
            target = total * gi / float(ngaps - opts.get("eplead", 4))
            while cur < 7 and done < target:
                if cur >= 4 and (cur - 4 >= bb or (cur - 4 == bb - 1 and n < 4)): break
                if cur < 4 and bb == 0 and n < 2: break
                x = ep[cur][0]
                if sum(y.cost for y in gap) + x.cost > budget: break
                gap.append(ep[cur].pop(0)); done += x.cost
                if not ep[cur]: cur += 1
            for x in gap: p.add(x)
            if gi % 6 == 0: stamp(p, "B%d" % gi, opts, 5)
            if opts.get("prof") and "ls0" in opts:
                k_, r_ = divmod(gi - opts["ls0"], opts.get("lsd", 4))
                if r_ == 0 and 0 <= k_ < 8: p("s_memtime s[%d:%d]" % (84 + 2 * k_, 85 + 2 * k_))
        if bb < 3: stamp(p, "g.b%d" % bb, opts, 2)
    if opts.get("prof") and "ls0" in opts:
        p("s_waitcnt lgkmcnt(0)")
        for k_ in range(8):
            nm_ = "L%d" % (opts["ls0"] + k_ * opts.get("lsd", 4))
            if opts["ls0"] + k_ * opts.get("lsd", 4) > 132: break
            STAMPS.append(nm_); p("v_writelane_b32 v255, s%d, %d" % (84 + 2 * k_, len(STAMPS) - 1))
    stamp(p, "g.Bend", opts)
    print("phase B: left-over v items %d, epilogue cost left %d" % (len(F.vq), total - done), file=sys.stderr)
    vl = [y for _, y in F.vq if y.kind != "delay"]
    rest_ = [y for _, y in F.xq if y.kind != "delay"] + [x for e_ in ep[cur:] for x in e_]
    for x in rest_: p.add(x)
    cr_ = conv_start(p, opts, True)
    rest_ = []
    for i, x in enumerate([mk("s_mov_b32 s%d, %d" % (sTab + s, s * 4096)) for s in range(7)] + g1_epilogue(7, opts)):
        if cr_ and i % 2 == 0: rest_.append(cr_.pop(0))
        rest_.append(x)
    assert not cr_
    k_ = max(2, (len(rest_) - 4) // (len(vl) + 1))
    for i, x in enumerate(rest_):
        if i == len(rest_) - 1: seq(p, vl); vl = []
        p.add(x)
        if vl and i % k_ == k_ - 1: p.add(vl.pop(0))

def out_half(ps, opts, pk):
    eW = 24; eR = 25; eY = 26
    if ps == 0: X = list(range(12, 20)); XN = list(range(32, 40)); YR = 20; Y = [28, 29, 30, 31, 218, 219, 222, 223]
    else: X = list(range(56, 64)); XN = list(range(64, 72)); YR = 80; Y = list(range(72, 80))
    P = [list(range(uAcc + 32 * ps + 8 * w, uAcc + 32 * ps + 8 * w + 8)) for w in range(4)]
    wr = [mk("ds_write_b128 v%d, %s offset:%d" % (eW, vr(uAcc + 32 * ps + 16 * mt + 4 * j), 128 * mt + 32 * j), cost=16) for mt in range(2) for j in range(4)]
    rdy = [mk("ds_read_b64_tr_b16 v[%d:%d], v%d offset:%d" % (YR + 2 * j, YR + 2 * j + 1, eY + ps, j * 512), lg="y%d" % ps) for j in range(2)]
    rd = [mk("ds_read_b128 %s, v%d offset:%d" % (vr(P[w][4 * h]), eR, w * REDW + 16 * h), lg="r%d" % ps) for h in range(2) for w in range(4)]
    xin = uXin + 4 * ps; st = (40, 224)[ps]; F = P[0]
    un = lambda d, s_, hi: ("v_and_b32 v%d, 0xffff0000, v%d" if hi else "v_lshlrev_b32 v%d, 16, v%d") % (d, s_)
    def op2(name, d, a_, b_, c_=None, sel=""):
        R = lambda z, i, n: z if isinstance(z, str) else vr(z[i], n)
        if pk: return [mk("v_pk_%s_f32 %s, %s, %s%s%s" % (name, vr(d[2 * i], 2), R(a_, 2 * i, 2), R(b_, 2 * i, 2), (", " + R(c_, 2 * i, 2)) if c_ else "", sel)) for i in range(4)]
        return [mk("v_%s_f32 v%d, %s, %s%s" % (name, d[i], R(a_, i, 1), R(b_, i, 1), (", " + R(c_, i, 1)) if c_ else "")) for i in range(8)]
    pre = ml(un(st, st, 1) + "\nv_mul_f32 v%d, %s, v%d" % (st + 1, hex(f2u(-1.0 / LOG2E)), st + 2))
    pre += [mk(un(X[i], xin + (i >> 1), i & 1)) for i in range(8)]
    if opts.get("x_eps"): pre += ml("v_mul_f32 v%d, %s, v%d" % (st + 1, hex(f2u(1.0 + opts["x_eps"] / 1000.0)), st + 1))
    pre += ml("v_mul_f32 v%d, v%d, v%d" % (st, st, st + 1))
    if pk: pre += op2("fma", XN, X, vr(st, 2), vr(st, 2), " op_sel:[0,1,0] op_sel_hi:[1,1,0]")
    else: pre += op2("fma", XN, X, "v%d" % (st + 1), "v%d" % st)
    m = [W(lg="r%d" % ps)] + op2("add", F, P[0], P[1]) + op2("add", P[2], P[2], P[3]) + op2("add", F, F, P[2])
    m += op2("mul", Y, "s[4:5]" if pk else "s4", F)
    t1 = [mk("v_exp_f32 v%d, v%d" % (Y[i], Y[i])) for i in range(8)]
    t2 = op2("mul", XN, XN, F)
    m += [z for pr in zip(t1, t2) for z in pr] if not pk else t1 + t2
    m += op2("add", Y, "1.0", Y, None, " op_sel_hi:[0,1]" if pk else "")
    m += [mk("v_rcp_f32 v%d, v%d" % (Y[i], Y[i])) for i in range(8)] + [mk("s_nop 0")]
    m += op2("mul", XN, XN, Y)
    my = [W(lg="y%d" % ps)] + [mk(un(Y[i], YR + (i >> 1), i & 1)) for i in range(8)]
    my += op2("fma", X, XN, Y, X)
    my += [mk("v_cvt_pk_bf16_f32 v%d, v%d, v%d" % (xin + i, X[2 * i], X[2 * i + 1])) for i in range(4)]
    my += [mk("buffer_store_dwordx4 %s, v%d, %s, %s offen%s" % (vr(xin), uX, S4(sOut), "s%d" % sT0 if ps else "0", opts.get("fo", " sc1")), vm="out")]
    return wr, pre, rd, m, rdy, my

def conv_start(p, opts, defer=False):
    for i in range(1, 4): p("v_add_u32 v%d, %d, v%d" % (CAR[i], 1024 * i, uCA))
    p.wait(vm="cv", lg="*")
    p("s_barrier")
    stamp(p, "p2bar", opts, 4)
    if defer: return conv_reads(0)
    for x in conv_reads(0): p.add(x)

def phase2(p, opts):
    ORD = opts["_ord"]; RD = opts["_rd"]
    stamp(p, "p2", opts)
    for mt in range(2): p("v_add_u32 v%d, 0x10000, v%d\nv_add_u32 v%d, 0x20000, v%d" % (HI[1] + mt, uTR + mt, HI[2] + mt, uTR + mt))
    hpollA = [mk("buffer_load_dwordx2 v[%d:%d], v%d, %s, 0 offen sc1" % (uPoll, uPoll + 1, uFH, S4(sWS)), vm="hpA")]
    hpollB = [mk("s_mov_b32 s%d, %d" % (sT1, WS_FL)), mk("buffer_load_dwordx2 v[%d:%d], v%d, %s, s%d offen sc1" % (uPoll + 2, uPoll + 3, uFH, S4(sWS), sT1), vm="hpB")]
    tq = []
    for t in range(7):
        if t not in RD: tq += [("w%d" % t if (t not in ORD or t == 6 or (t >= 3 and not opts["_cvlast"])) else None, y) for y in wd_reads(t)]
    wl = lambda t: ([W(lg="t%d" % PREV[t])] if t in PREV else []) + wd_loads(t, opts)
    rest = [t for t in range(7, 14) if t not in ORD]
    nfirst = opts.get("wfirst", 4)
    VQ = (wl(5) if 5 not in ORD else []) + (wl(6) if 6 not in ORD else []) + [x for t in rest[:nfirst] for x in wl(t)]
    rest = rest[nfirst:]
    LEAD = opts.get("wlead", 3)
    CHKA = I("; chkA", cost=0); CHKB = I("; chkB", cost=0)
    VQ.append(CHKA)
    for hs in range(28):
        while rest and rest[0] - 1 - LEAD <= hs: VQ += wl(rest.pop(0))
        if hs == 14: VQ.append(CHKB)
        VQ += h_loads(hs)
    state = {"A": False, "B": False, "issued": {"w%d" % t for t in ORD}}
    def pace(p, done_hs):
        n = 0
        while VQ:
            y = VQ[0]
            if y is CHKA:
                if not state["A"]: return n
                VQ.pop(0); continue
            if y is CHKB:
                if not state["B"]: return n
                VQ.pop(0); continue
            if y.kind == "wait" and any(z.lg == y.lg for _, z in tq): return n
            if y.vm and y.vm[0] == "h" and int(y.vm[1:]) - 16 > done_hs: return n
            VQ.pop(0); p.add(y); n += 1
            if is_m0(y): p("s_nop 0") if False else None
            if is_vm(y): state["issued"].add(y.vm); return n
            if is_m0(y): return n
        return n
    strec = [mk("buffer_load_dwordx4 %s, v%d, %s, 0 offen offset:%d sc1" % (vr((40, 224)[e]), uSto, S4(sWS), 2048 * e), vm="xin") for e in range(2)]
    extra = ml("s_mov_b32 s%d, 131072" % sT0) + [mk("buffer_load_dwordx4 %s, v%d, %s, %s offen" % (vr(uXin + 4 * e), uX, S4(sQ), "s%d" % sT0 if e else "0"), vm="xin") for e in range(2)] + strec
    dq = ml("v_lshrrev_b32 v24, 4, v1\nv_and_b32 v25, 15, v1\nv_lshl_add_u32 v24, v24, 3, v25\nv_sub_u32 v24, 15, v24\nv_lshlrev_b32 v25, 4, v24\nv_and_b32 v25, 16, v25\n"
            "s_sub_u32 s3, s%d, 1\nv_lshlrev_b32 v25, v25, v%d\nv_and_b32 v25, s3, v25\nv_lshrrev_b32 v24, 1, v24" % (sHalf, uD))
    dq += ml("v_cmp_eq_u32 s[4:5], 0, v24\nv_cmp_eq_u32 s[6:7], 1, v24\nv_cmp_eq_u32 s[34:35], 2, v24\nv_cmp_eq_u32 vcc, 3, v24")
    dq += ml("v_cndmask_b32 v%d, 0, v25, s[4:5]\nv_cndmask_b32 v%d, 0, v25, s[6:7]\nv_cndmask_b32 v%d, 0, v25, s[34:35]\nv_cndmask_b32 v%d, 0, v25, vcc" % (uAD, uAD + 1, uAD + 2, uAD + 3))
    pollat = opts.get("hpoll", 24); flagat = opts.get("hflag", 60); chkA = opts.get("hchk", 62); pollB = opts.get("hpollb", 132); SP = opts.get("csp", 4)
    ypoll = [mk("buffer_load_dwordx2 %s, v%d, %s, 0 offen sc1" % (vr(uPoll, 2), uFY, S4(sWS)), vm="yp")]
    ydma = ml("s_lshl_b32 s7, s%d, 1\nv_xor_b32 v3, s7, v1\nv_lshrrev_b32 v2, 3, v1\nv_lshlrev_b32 v2, 12, v2\nv_and_b32 v3, 7, v3\nv_lshl_add_u32 v2, v3, 4, v2\nv_xor_b32 v3, 16, v2\nv_add_u32 v3, %d, v3" % (sWave, 32768 - 1024))
    ydma += ml("s_lshl_b32 s3, s%d, 18\ns_lshl_b32 s7, s%d, 16\ns_add_u32 s3, s3, s7\ns_lshl_b32 s7, s%d, 7\ns_add_u32 s3, s3, s7\ns_add_u32 s3, s3, %d" % (sDB, sWave, sTB2, WS_YT))
    ydma += ml("s_lshl_b32 s7, s%d, 11\ns_add_u32 m0, s7, %d" % (sWave, YT_L))
    adr = ml("v_and_b32 v24, 31, v1\nv_mul_u32_u24 v24, %d, v24\nv_lshrrev_b32 v25, 5, v1\nv_lshl_add_u32 v24, v25, 4, v24\ns_mul_i32 s6, s%d, %d\ns_add_u32 s6, s6, %d\nv_add_u32 v24, s6, v24" % (RS, sWave, REDW, RED[0]))
    adr += ml("v_lshrrev_b32 v25, 5, v1\nv_and_b32 v26, 3, v1\nv_lshl_add_u32 v25, v25, 2, v26\nv_mul_u32_u24 v25, %d, v25\nv_bfe_u32 v26, v1, 2, 3\nv_lshl_add_u32 v25, v26, 5, v25\ns_mul_i32 s6, s%d, %d\ns_add_u32 s6, s6, %d\nv_add_u32 v25, s6, v25" % (RS, sWave, 8 * RS, RED[0]))
    adr += ml("v_bfe_u32 v26, v1, 4, 1\nv_and_b32 v27, 3, v1\nv_lshl_add_u32 v26, v26, 2, v27\nv_xor_b32 v23, s%d, v26\nv_bfe_u32 v27, v1, 2, 2\nv_lshl_add_u32 v26, v26, 3, v27\nv_lshlrev_b32 v26, 7, v26\nv_lshl_add_u32 v26, v23, 4, v26\nv_lshrrev_b32 v27, 5, v1\nv_lshl_add_u32 v26, v27, 3, v26\nv_xor_b32 v27, 64, v26\nv_add_u32 v26, %d, v26\nv_add_u32 v27, %d, v27" % (sWave, YT_L, YT_L))
    chk = [W(vm="xin")] + poll_check("st", [43, 227], strec, 32)
    aq = ydma[:-2] + adr + chk
    first = set(); nm = 0
    for rr in range(4):
        rq = conv_reads(rr + 1) if rr < 3 else []
        b = CFB[rr & 1]
        pairs = sorted([(s1, p1) for s1 in range(8) for p1 in range(8) if s1 + p1 <= 7], key=lambda x: (max(x), x[0] + x[1], x[0]))
        seen = -1; k = 0
        for (s1, p1) in pairs:
            mx = max(s1, p1)
            if mx > seen:
                p.wait(lg="c%d_%d" % (rr, mx)); seen = mx
            acc = vr(uCacc + 4 * (s1 + p1))
            p("v_mfma_f32_16x16x32_bf16 %s, %s, %s, %s" % (acc, vr(b + 4 * s1), vr(b + 32 + 4 * p1), acc if (s1 + p1) in first else "0"))
            first.add(s1 + p1); k += 1; nm += 1
            n = 0
            if rq and k > 2 and (k % 4 != 0): p.add(rq.pop(0)); n += 1
            if dq and nm > 6 and (n == 0 or nm % 2): p.add(dq.pop(0)); n += 1
            if nm % SP == 0 or (VQ and is_m0(VQ[0]) and nm % SP == SP - 1): n += pace(p, -1)
            while tq and n < 2:
                tg = tq[0][0]
                if tg and (tg not in state["issued"] or nm < (opts.get("t56", 84) if tg == "w6" else opts.get("t34", 24))): break
                if tg: p.wait(vm=tg)
                p.add(tq.pop(0)[1]); n += 1
            if aq and nm > opts.get("aqat", 96) and n < 2 and not (n and aq[0].t.startswith("v_") and p.ins[-1].t.startswith("v_") and "mfma" not in p.ins[-1].t):
                p.add(aq.pop(0))
                while aq and aq[0].cost == 0: p.add(aq.pop(0))
            if nm == pollat:
                for x in hpollA: p.add(x)
            if nm == flagat:
                p.wait(vm="hst7"); p("s_barrier"); p.add(flag_store(sFlH, True))
                stamp(p, "hflag", opts)
            if nm == chkA:
                p.wait(vm="hpA")
                for x in poll_check("hA", [uPoll], hpollA): p.add(x)
                stamp(p, "hokA", opts); state["A"] = True
        stamp(p, "cv%d" % rr, opts, 4)
        if rr == 0:
            for x in dq: p.add(x)
            if dq: p("s_nop 1")
            dq = []
            for p1 in range(8):
                acc = vr(uCacc + 4 * p1)
                p("v_mfma_f32_16x16x32_bf16 %s, %s, %s, %s" % (acc, vr(uAD), vr(b + 32 + 4 * p1), acc))
                if rq: p.add(rq.pop(0))
                if p1 % 4 == 1: pace(p, -1)
            for x in extra: p.add(x)
        for x in rq: p.add(x)
    print("conv: left-over reads %d, queued loads %d" % (len(tq), len(VQ)), file=sys.stderr)
    assert not tq
    cur_hs = [-1]
    def pace2():
        if pace(p, cur_hs[0]) and is_m0(p.ins[-1]): p("s_nop 0"); pace(p, cur_hs[0])
    for x in aq: p.add(x)
    stamp(p, "convend", opts)
    p("s_lshl_b32 s7, s%d, 13\ns_add_u32 s7, s7, %d\nv_add_u32 v4, s7, v%d\ns_and_b32 s7, s%d, 2\ns_lshl_b32 s7, s7, 13\ns_lshl_b32 s6, s%d, 12\ns_add_u32 s7, s7, s6\ns_add_u32 s7, s7, %d\nv_add_u32 v5, s7, v%d" % (sWave, XCH, vL16, sWave, sHalf, XCH, vL16))
    for x in hpollB: p.add(x)
    p("s_barrier")
    for i in range(8):
        p("ds_write_b128 v4, %s offset:%d" % (vr(uCacc + 4 * i), i * 1024))
        if i % 3 == 1: pace2()
    stamp(p, "xw", opts, 4)
    p("s_waitcnt lgkmcnt(0)\ns_barrier")
    for i in range(4):
        p("ds_read_b128 %s, v5 offset:%d" % (vr(uCacc + 4 * i), i * 1024), lg="xr%d" % i)
        p("ds_read_b128 %s, v5 offset:%d" % (vr(uCacc + 16 + 4 * i), 8192 + i * 1024), lg="xr%d" % i)
    pace2()
    for i in range(4):
        p.wait(lg="xr%d" % i)
        for e in range(2): p("v_pk_add_f32 %s, %s, %s" % (vr(uCacc + 4 * i + 2 * e, 2), vr(uCacc + 4 * i + 2 * e, 2), vr(uCacc + 16 + 4 * i + 2 * e, 2)))
    for i in range(4):
        o = uTmp + 4 * (i >> 1) + 2 * (i & 1)
        p("v_cvt_pk_bf16_f32 v%d, v%d, v%d\nv_cvt_pk_bf16_f32 v%d, v%d, v%d" % (o, uCacc + 4 * i, uCacc + 4 * i + 1, o + 1, uCacc + 4 * i + 2, uCacc + 4 * i + 3))
    pace2(); p("s_nop 0")
    for h in range(2):
        o = uTmp + 4 * h
        p("v_permlane16_swap_b32 v%d, v%d\nv_permlane16_swap_b32 v%d, v%d" % (o, o + 2, o + 1, o + 3))
    for h in range(2):
        p("buffer_store_dwordx4 %s, v%d, %s, s%d offen offset:%d sc1" % (vr(uTmp + 4 * h), uYst, S4(sWS), sYoff, h * 1024), vm="yst")
    stamp(p, "g2go", opts)
    wrA, preA, rdA, mA, rdyA, myA = out_half(0, opts, False)
    wrB, preB, rdB, mB, rdyB, myB = out_half(1, opts, True)
    YF = opts.get("yflag", 6); YP = opts.get("ypoll", 19); YC = YP + opts.get("ychk", 5); RB = opts.get("rbar", 20); RY = opts.get("ybar", YC + 5)
    HB = opts.get("hb", 5); HL = opts.get("hl", 6)
    xq = []
    def X_(at, L): xq.extend((at, y) for y in L)
    X_(0, preA + [mk("s_mov_b32 s4, %s" % hex(f2u(-LOG2E))), mk("s_mov_b32 s5, s4")])
    for i, y in enumerate(wrA): X_(4 * 14 + 5 + opts.get("wsp", 2) * i, [y])
    X_(4 * RB, [W(lg="*"), mk("s_barrier")] + rdA)
    X_(4 * RB + 6, mA)
    GB = opts.get("gbud", 24)
    for hs in range(28):
        ps, s = divmod(hs, 14)
        cur_hs[0] = hs - 1
        while "h%d" % hs not in state["issued"] or any(y.vm == "h%d" % hs for y in VQ) or (ps == 0 and s < 13 and any(y.vm == "w%d" % (s + 1) for y in VQ)): pace2()
        rq = wd_reads(s + 1) if (ps == 0 and 7 <= s + 1 < 14) else []
        if hs == HB:
            p.wait(vm="hpB")
            for x in poll_check("hB", [uPoll + 2], hpollB): p.add(x)
            stamp(p, "hokB", opts); state["B"] = True
        if hs == YF: p.wait(vm="yst"); p("s_barrier"); p.add(flag_store(sFlY, True))
        if hs == YP: p.add(ypoll[0])
        if hs == YC:
            p.wait(vm="yp")
            for x in poll_check("y", [uPoll], ypoll): p.add(x)
            assert not any(is_m0(y) or y.t.endswith(" lds") for y in VQ)
            for x in ydma[-2:]: p.add(x)
            p("s_nop 0")
            p.add(dma(2, sWS, "s3", 0, "yt", " sc1")); p.add(dma(3, sWS, "s3", 1024, "yt", " sc1"))
            stamp(p, "yok", opts, 4)
        RT = opts.get("rtail", 0)
        if hs < 28 - RT: work = [(hs, e, mt) for e in range(2) for mt in range(2)]
        else:
            j = hs - (28 - RT); allw = [(h_, e, mt) for mt in range(2) for h_ in range(28 - RT, 28) for e in range(2)]
            work = allw[4 * j:4 * j + 4]
            if j == RT // 2:
                X_(4 * hs, [mk("v_add_u32 v24, %d, v24" % ((RED[1] - RED[0]) & 0xffffffff))])
                nw_ = min(4, 2 * RT - 3)
                for i, y in enumerate(wrB[:nw_]): X_(4 * hs + 3 + i, [y])
                wrB = wrB[nw_:]
        p.wait(vm="h%d" % max(h_ for h_, _, _ in work), lg="t%d" % s)
        for m, (h_, e, mt) in enumerate(work):
            acc = vr(uAcc + 32 * ps + 16 * mt, 16)
            hr = aH + 8 * (h_ % 16) + 4 * e
            k, b = wfrag(h_ % 14, 2 * e + mt)
            p("v_mfma_f32_32x32x16_bf16 %s, %s[%d:%d], a[%d:%d], %s" % (acc, k, b, b + 3, hr, hr + 3, acc if (s or e) else "0"))
            i0_ = len(p.ins)
            used = lambda: sum(y.cost for y in p.ins[i0_:]) + (4 if m == 3 else 0)
            tgt = "h%d" % min(27, hs + HL)
            left = max([i + 1 for i, y in enumerate(VQ) if y.vm == tgt] + [0])
            for _ in range(-(-left // (4 - m))):
                k_ = pace(p, hs - 1)
                if k_ == 0: break
                if is_m0(p.ins[-1]):
                    if rq: p.add(rq.pop(0)) if (m or True) and not (m == 0) else p("s_nop 0")
                    else: p("s_nop 0")
            if m == 0 and rq: p.wait(vm="w%d" % (s + 1))
            for _ in range(-(-len(rq) // (4 - m))): p.add(rq.pop(0))
            g = 4 * hs + m
            while xq and xq[0][0] <= g and used() + xq[0][1].cost <= GB: p.add(xq.pop(0)[1])
        assert not rq
        if hs == 13: stamp(p, "g2A", opts)
        elif hs % 3 == 0: stamp(p, "h%d" % hs, opts, 4)
    print("gemm2: left-over epilogue items %d" % len(xq), file=sys.stderr)
    stamp(p, "g2end", opts)
    if len(wrB) == 8: p("v_add_u32 v24, %d, v24" % ((RED[1] - RED[0]) & 0xffffffff))
    p("v_add_u32 v25, %d, v25" % ((RED[1] - RED[0]) & 0xffffffff))
    tail = [y for _, y in xq] + preB
    nop = max(0, 6 - len(tail))
    for x in tail[:12]: p.add(x)
    tail = tail[12:]
    for x in wrB:
        p.add(x)
        for _ in range(3):
            if tail: p.add(tail.pop(0))
    for x in tail: p.add(x)
    p.wait(vm="yt", lg="*"); p("s_barrier")
    stamp(p, "red", opts)
    if opts.get("ytail", 1):
        myA = out_half(0, opts, True)[5]
        for x in rdyA + rdB + rdyB + myA[:-1]: p.add(x)
        if opts.get("oearly", 1): p.add(myA[-1])
        for x in mB + myB[:-1]: p.add(x)
        stamp(p, "prest", opts)
        if not opts.get("oearly", 1): p.add(myA[-1])
        p.add(myB[-1])
    else:
        for x in rdB + rdyB + mB + myB: p.add(x)
    stamp(p, "fin", opts)

def aux(p, opts):
    p("s_lshl_b32 s3, s2, 6\ns_lshl_b32 s4, s%d, 4\ns_add_u32 s3, s3, s4" % sWave)
    p("v_add_u32 v12, s3, v2\nv_lshlrev_b32 v10, 10, v12\nv_lshl_add_u32 v10, v3, 4, v10\nv_add_u32 v11, 8192, v10\nv_mov_b32 v13, v3")
    p("s_memrealtime s[%d:%d]" % (sTag, sTag + 1))
    p("s_waitcnt lgkmcnt(0)")
    p("s_mov_b32 s%d, s74\ns_mov_b32 s%d, s75" % (sDbg, sDbg + 1))
    p("s_lshr_b32 s3, s2, %d\ns_or_b32 s3, s3, s%d\ns_cmp_lg_u32 s3, 0\ns_cselect_b64 exec, 0, 1" % (3 if opts.get("cas", 1) else 0, sWave))
    p("s_or_b32 s%d, s%d, 1\nv_mov_b32 v16, s%d\nv_mov_b32 v17, s%d\nv_mov_b32 v18, 0\nv_mov_b32 v19, 0\ns_cbranch_execz L_aux_nt" % (sTag, sTag, sTag, sTag + 1))
    p("global_atomic_cmpswap_x2 v%d, v[16:19], s[%d:%d] sc1" % (vNon + 2, sDbg, sDbg + 1))
    p.label("L_aux_nt")
    p("s_mov_b64 exec, -1")
    srd(p, sQ, kQ, 2048 * 1024)
    for g in range(2):
        for i in range(8):
            p("buffer_load_dwordx4 %s, v%d, %s, 0 offen offset:%d" % (vr(116 + 32 * g + 4 * i), 10 + g, S4(sQ), i * 128), vm="sx%d" % g)
        if g == 0:
            srd(p, sWS, kWS, WS_SZ)
            kv_setup(p); ids2(p); hk_srds(p)
            phase2_setup(p, opts)
    nld, nchk = nonce_get("na")
    p.add(nld)
    p("s_mov_b32 s5, 0x3f803f80")
    for g in range(2):
        p.wait(vm="sx%d" % g if g == 0 else "non")
        stamp(p, "a.sx%d" % g, opts, 3)
        if g == 1:
            p("v_lshlrev_b32 v10, 7, v1\ns_mov_b32 s12, s60\ns_and_b32 s13, s61, 0xffff\ns_mov_b32 s14, 0x200000\ns_mov_b32 s15, 0x20000")
            p("s_mov_b32 s24, s70\ns_and_b32 s25, s71, 0xffff\ns_mov_b32 s26, %d\ns_mov_b32 s27, 0x20000" % (1792 * 1024))
            p("s_lshl_b32 s3, s2, 16\ns_lshl_b32 s4, s%d, 14\ns_add_u32 s21, s3, s4\ns_mul_i32 s3, s2, 57344\ns_mul_i32 s4, s%d, 14336\ns_add_u32 s22, s3, s4" % (sWave, sWave))

        s1 = 16 + 4 * g; s2 = s1 + 1
        for r in range(32):
            x = 116 + 32 * g + r; c = r & 1
            p("v_dot2_f32_bf16 v%d, v%d, s5, %s" % (s1 + 2 * c, x, "v%d" % (s1 + 2 * c) if r > 1 else "0"))
            p("v_dot2_f32_bf16 v%d, v%d, v%d, %s" % (s2 + 2 * c, x, x, "v%d" % (s2 + 2 * c) if r > 1 else "0"))
    for x in nchk: p.add(x)
    p("v_add_f32 v16, v16, v18\nv_add_f32 v17, v17, v19\nv_add_f32 v18, v20, v22\nv_add_f32 v19, v21, v23")
    for mod in ("quad_perm:[1,0,3,2]", "quad_perm:[2,3,0,1]", "row_half_mirror"):
        for r in range(16, 20): p("v_add_f32_dpp v%d, v%d, v%d %s row_mask:0xf bank_mask:0xf" % (r, r, r, mod))
    ops = [[], []]
    for g in range(2):
        S1 = 16 + 2 * g; S2 = S1 + 1; o = 20 + 4 * g
        ops[g] = ["v_mul_f32 v%d, %s, v%d" % (S1, hex(f2u(1.0 / 512)), S1), "v_mul_f32 v%d, %s, v%d" % (S2, hex(f2u(1.0 / 512)), S2),
                  "v_fma_f32 v%d, -v%d, v%d, v%d" % (S2, S1, S1, S2), "v_max_f32 v%d, 0, v%d" % (S2, S2),
                  "v_cvt_pk_bf16_f32 v%d, v%d, v%d" % (S2, S2, S2), "v_and_b32 v%d, 0xffff0000, v%d" % (S2, S2),
                  "v_add_f32 v%d, %s, v%d" % (S2, hex(f2u(1e-5)), S2),
                  "v_cvt_pk_bf16_f32 v%d, v%d, v%d" % (S2, S2, S2), "v_and_b32 v%d, 0xffff0000, v%d" % (S2, S2),
                  "v_sqrt_f32 v%d, v%d" % (S2, S2), "v_cvt_pk_bf16_f32 v%d, -v%d, -v%d" % (o, S1, S1),
                  "v_cvt_pk_bf16_f32 v%d, v%d, v%d" % (S2, S2, S2), "v_and_b32 v%d, 0xffff0000, v%d" % (S2, S2),
                  "v_rcp_f32 v%d, v%d" % (o + 2, S2), "v_mul_f32 v%d, %s, v%d" % (o + 1, hex(f2u(-LOG2E)), S2),
                  "v_mul_f32 v%d, %s, v%d" % (o + 2, hex(f2u(-LOG2E)), o + 2), "v_mov_b32 v%d, s%d" % (o + 3, sTag)]
    p("v_cmp_eq_u32 vcc, 0, v13\nv_lshlrev_b32 v12, 4, v12\nv_add_u32 v12, %d, v12\nv_mov_b32 v14, 0x80000000\nv_cndmask_b32 v12, v14, v12, vcc" % WS_ST)
    for x0, x1 in zip(*ops): p(x0); p(x1)
    p("buffer_store_dwordx4 v[20:23], v12, %s, 0 offen sc1" % S4(sWS), vm="pub")
    p("buffer_store_dwordx4 v[24:27], v12, %s, 0 offen offset:128 sc1" % S4(sWS), vm="pub")
    stamp(p, "a.stats", opts)
    tW = ["buffer_load_dword v28, v10, s[24:27], s22 offen\ns_add_u32 s22, s22, 6144", "buffer_load_dword v28, v10, s[24:27], s22 offen"]
    tK = ["buffer_load_dword v28, v10, s[12:15], s21 offen\ns_add_u32 s21, s21, 8192", "buffer_load_dword v28, v10, s[12:15], s21 offen"]
    WM = opts.get("warm", 1)
    tq_ = {0: [], 1: tW + tK, 2: tW, 3: tK + tW, 4: tW + tK}[WM]
    p("s_barrier")
    if opts.get("atlb"):
        sh = opts["atlb"]
        p("s_lshr_b32 s3, s2, 3\ns_lshl_b32 s3, s3, 2\ns_add_u32 s3, s3, s%d\ns_lshl_b32 s3, s3, %d\nv_lshlrev_b32 v11, %d, v1\nv_add_u32 v11, s3, v11" % (sWave, sh + 6, sh))
        p("buffer_load_dword v28, v11, %s, 0 offen" % S4(sWS), vm="warm")
    seq(p, kv_loads(opts) + hk_loads(opts))
    if WM == 4: p(tq_.pop(0), vm="warm")
    for x in phase2_srds(): p.add(x)
    p.wait(vm="hk")
    p("s_barrier")
    for _ in range(opts.get("warm1", 1)):
        if tq_: p(tq_.pop(0), vm="warm")
    for x in kv_compute() + kv_stores(): p.add(x)
    stamp(p, "a.kv", opts)
    seq(p, hk_build())
    if tq_ and opts.get("warm2", 1): p(tq_.pop(0), vm="warm")
    p.wait(vm="kvst", lg="*")
    p.add(flag_store(sFlK))
    stamp(p, "a.kvfl", opts)
    for x in tq_: p(x, vm="warm")
    stamp(p, "a.warm", opts)
    p("s_lshl_b32 s3, s2, 7\ns_add_u32 s%d, s3, %d" % (sFlH, WS_FD))
    for x in fl0_setup(): p.add(x)
    p("s_barrier")
    for mt in range(2): p("v_add_u32 v%d, 0x20000, v%d" % (uTR2 + mt, uTR + mt))
    prev = PREV
    for t in sorted(opts["_ord"]):
        if t in prev:
            p.wait(vm="w%d" % prev[t])
            for x in wd_reads(prev[t], True): p.add(x)
            p.wait(lg="*")
        seq(p, wd_loads(t, opts))
    for s in range(7): p("s_mov_b32 s%d, %d" % (sTab + s, s * 4096))
    kvpoll = [mk("buffer_load_dwordx2 v[%d:%d], v%d, %s, 0 offen sc1" % (uPoll, uPoll + 1, uFK, S4(sWS)), vm="kvp")]
    p.add(kvpoll[0])
    p.wait(vm="kvp")
    for x in poll_check("kva", [uPoll], kvpoll): p.add(x)
    seq(p, conv_xr())
    p("s_waitcnt vmcnt(0)")
    stamp(p, "a.pre", opts)
    conv_start(p, opts)

def pollf(t, opts):
    if opts["pollf"] == "atom":
        m = re.match(r"buffer_load_dwordx2 v\[(\d+):(\d+)\], (.*) sc1", t)
        if not m: return t
        return "v_mov_b32 v%s, 0\nv_mov_b32 v%s, 0\nbuffer_atomic_add_x2 v[%s:%s], %s sc0 sc1" % (m.group(1), m.group(2), m.group(1), m.group(2), m.group(3))
    return t.replace(" sc1", " " + opts["pollf"].replace("+", " "))
def emit(a, lines):
    for l in lines: a(l if l.endswith(":") else "  " + l)

def build(opts):
    del SLOW[:]
    if "rho" in opts: RHO[:] = [int(c) for c in str(opts["rho"]).rjust(3, "0")]
    PROF[0] = opts.get("prof", 0); SLEEP['*'] = opts.get("sleep", 2)
    name = KN + "_kernel"
    a = A()
    a(header(["; @launch grid=(256,1,1) block=(256,1,1) lds=163840"]))
    a(kernel_begin(name))
    a("s_load_dwordx8 s[80:87], s[0:1], 0\ns_load_dwordx16 s[60:75], s[0:1], 32\ns_load_dwordx2 s[76:77], s[0:1], 96")
    a("s_cmp_ge_u32 s2, 256\ns_cbranch_scc1 L_end")
    if opts.get("prof"):
        a("s_memrealtime s[78:79]\ns_memtime s[100:101]\nv_mov_b32 v255, 0\ns_waitcnt lgkmcnt(0)\nv_writelane_b32 v255, s100, 0\nv_writelane_b32 v255, s78, 62")
    if opts.get("amp"): a("s_memrealtime s[78:79]\ns_mov_b32 s100, 0\ns_mov_b32 s101, 0")
    p0 = Prog(); common_setup(p0, opts); c0 = p0.resolve()
    a("s_cmp_ge_u32 s2, 32\ns_cbranch_scc1 L_gemm")
    if opts.get("ipf", 1):
        a("s_getpc_b64 s[4:5]\nv_lshlrev_b32 v1, 7, v0\ns_and_b32 s4, s4, 0xffffff00\nv_min_u32 v1, L_code_end-%s-128, v1\nglobal_load_dword v200, v1, s[4:5]" % name)
    a("s_branch L_aux")
    a.label("L_gemm")
    emit(a, c0)
    p = Prog(); gemm1(p, opts); p.label("L_phase2"); phase2(p, opts)
    pa = Prog(); aux(pa, opts)
    for q in (p, pa):
        if opts.get("x_nochk"): q.ins = [y for y in q.ins if not ("s_cbranch_vccnz L_slow" in y.t)]
        if opts.get("x_nost"): q.ins = [y for y in q.ins if not (y.t.startswith("buffer_store") and "sc1" in y.t)]
        if opts.get("x_nofl"): q.ins = [y for y in q.ins if not (y.t.startswith("buffer_store_dwordx2") and "v[6:7]" in y.t)]
        if opts.get("x_nokv"): q.ins = [y for y in q.ins if not (y.vm in ("kv", "hk") and y.kind != "wait")]
        if opts.get("pollf"):
            for y in q.ins:
                if y.vm in ("kvp", "hpA", "hpB", "yp", "wfp") and y.t.startswith("buffer_load"): y.t = pollf(y.t, opts)
        if opts.get("x_nohb"): q.ins = [y for y in q.ins if not ("v39" in y.t or y.t.startswith("v_alignbit") or y.lg == "hb")]
        if opts.get("x_nowb"): q.ins = [y for y in q.ins if not (y.vm in ("w0", "w1", "w2", "w3", "w4", "w7") and y.kind != "wait")]
        if opts.get("x_drop"):
            dr = str(opts["x_drop"]).split("+")
            q.ins = [y for y in q.ins if not (y.kind != "wait" and y.vm in dr)]
        if opts.get("x_dropw"):
            dr = str(opts["x_dropw"]).split("+")
            q.ins = [y for y in q.ins if not (y.kind == "wait" and y.vm in dr)]
        if opts.get("x_nopoll"): q.ins = [y for y in q.ins if not (y.vm in ("rec", "kvp", "hpA", "hpB", "yp", "wfp") and y.kind != "wait")]
    if opts.get("prof") and "q0" in opts:
        regs = [12, 14, 22, 24, 50, 80, 82, 98]
        i0 = [i for i, y in enumerate(p.ins) if y.t == "L_phase2:"][0]
        out = p.ins[:i0 + 1]; cnt = 0; mf = 0; k = 0
        for y in p.ins[i0 + 1:]:
            out.append(y)
            ism = "v_mfma" in y.t
            mf += ism
            if (mf >= opts.get("qm", 0) and y.kind != "label") if opts.get("qi") else ism:
                cnt += 1
                if k < 8 and cnt == opts["q0"] + k * opts.get("qd", 8):
                    out.append(mk("s_memtime s[%d:%d]" % (regs[k], regs[k] + 1))); k += 1
        out.append(mk("s_waitcnt lgkmcnt(0)"))
        for j in range(k):
            STAMPS.append("Q%d" % (opts["q0"] + j * opts.get("qd", 8))); out.append(mk("v_writelane_b32 v255, s%d, %d" % (regs[j], len(STAMPS) - 1)))
        p.ins = out
    lines = p.resolve()
    la = pa.resolve()
    lines = fix_hazards(lines, "main")
    pr = check_hazards(lines, "main") + check_hazards(la, "aux")
    for x in pr[:40]: print("HAZARD", x, file=sys.stderr)
    if pr: raise SystemExit("hazards")
    emit(a, lines)
    if opts.get("prof"):
        a("s_waitcnt vmcnt(0) lgkmcnt(0)\ns_memtime s[100:101]\ns_memrealtime s[78:79]\ns_load_dwordx2 s[4:5], s[0:1], 96\ns_waitcnt lgkmcnt(0)")
        a("v_writelane_b32 v255, s100, 60\nv_writelane_b32 v255, s78, 63\ns_getreg_b32 s100, hwreg(HW_REG_XCC_ID)\nv_writelane_b32 v255, s100, 61")
        a("s_lshl_b32 s6, s2, 10\ns_lshl_b32 s7, s%d, 8\ns_add_u32 s6, s6, s7\ns_add_u32 s6, s6, 0x1000000\ns_add_u32 s4, s4, s6\ns_addc_u32 s5, s5, 0" % sWave)
        a("v_lshlrev_b32 v2, 2, v1\nglobal_store_dword v2, v255, s[4:5]\ns_waitcnt vmcnt(0)")
        a("; STAMPS " + " ".join(STAMPS))
        a("; SPINS " + " ".join(SPINS))
    if opts.get("amp"):
        a("s_waitcnt vmcnt(0) lgkmcnt(0)\ns_memrealtime s[4:5]\ns_waitcnt lgkmcnt(0)")
        if opts["amp"] == "end": a("s_mov_b32 s100, s4")
        a("s_cmp_eq_u32 s100, 0\ns_cbranch_scc1 L_end\ns_sub_u32 s6, s100, s78\ns_mul_i32 s6, s6, %d\ns_min_u32 s6, s6, 20000" % opts.get("ampk", 1))
        a("L_amp:\ns_memrealtime s[100:101]\ns_waitcnt lgkmcnt(0)\ns_sub_u32 s7, s100, s4\ns_cmp_lt_u32 s7, s6\ns_cbranch_scc1 L_amp")
    a.label("L_end")
    a("s_endpgm")
    a.label("L_aux")
    emit(a, c0)
    emit(a, la)
    a("s_branch L_phase2")
    for t in SLOW:
        if opts.get("pollf"): t = "\n".join(pollf(l, opts) if (l.startswith("buffer_load_dwordx2 v[25") or l.startswith("buffer_load_dwordx2 v[2:3]") or l.startswith("buffer_load_dwordx4 v[250")) else l for l in t.split("\n"))
        a(t)
    a.label("L_code_end")
    a(RODATA)
    a(kernel_desc(name, 512, 102, 256))
    return a.text()

if __name__ == "__main__":
    opts = {}
    for kv in sys.argv[2:]:
        k, _, v = kv.partition("=")
        opts[k] = int(v) if v.lstrip("-").isdigit() else (v if v else 1)
    for k in ("fw", "fx", "fd", "fk", "fkv", "fo", "fr", "fh"):
        if k in opts: opts[k] = "" if opts[k] == "none" else " " + opts[k].replace("+", " ")
    open(sys.argv[1], "w").write(build(opts))
```
